```python
import torch

def _softmax(x, axis=-1):
    return torch.softmax(x, dim=axis)
def _gelu(x):
    return torch.nn.functional.gelu(x, approximate="tanh")
def _silu(x):
    return torch.nn.functional.silu(x)
def _sigmoid(x):
    return torch.sigmoid(x)
def _layernorm(x, axis=-1, eps=1e-5):
    m = x.mean(dim=axis, keepdim=True)
    v = x.var(dim=axis, keepdim=True, unbiased=False)
    return (x - m) / torch.sqrt(v + eps)
def _scatter_add(tgt, idx, src, axis=0):
    return tgt.clone().index_add_(axis, idx, src)
def _segment_sum(src, seg, n):
    out = torch.zeros((n,) + src.shape[1:], dtype=src.dtype)
    return out.index_add_(0, seg, src)
def _pad(x, pw):
    flat = tuple(v for pair in reversed(pw) for v in pair)
    return torch.nn.functional.pad(x, flat)

kernel_name = 'interleave_layers__sliding_local_dilated__dense_activation_silu__prompt'

def setup_inputs():

    _w = (lambda a: (lambda t: t.to(torch.bfloat16) if t.is_floating_point() else t)(torch.as_tensor(a)))
    def _A_setup():
        B, S, D = 1, 2048, 512
        return {
            "x": _w((lambda *s: torch.randn(*s, dtype=torch.bfloat16) * 0.05)(B, S, D)),
            "wqkv": _w((lambda *s: torch.randn(*s, dtype=torch.bfloat16) * 0.05)(D, 3 * D)),
            "wo": _w((lambda *s: torch.randn(*s, dtype=torch.bfloat16) * 0.05)(D, D)),
        }
    _A_in = _A_setup()

    def _B_setup():
        B, S, D, F = 1, 2048, 512, 1792
        return {
            "x": _w((lambda *s: torch.randn(*s, dtype=torch.bfloat16) * 0.05)(B, S, D)),
            "w1": _w((lambda *s: torch.randn(*s, dtype=torch.bfloat16) * 0.8)(D, F) * (D ** -0.5)),
            "w2": _w((lambda *s: torch.randn(*s, dtype=torch.bfloat16) * 0.8)(F, D) * (F ** -0.5)),
        }
    _B_in = _B_setup()

    return {
        "A_x": _A_in["x"],
        "A_wqkv": _A_in["wqkv"],
        "A_wo": _A_in["wo"],
        "B_x": _B_in["x"],
        "B_w1": _B_in["w1"],
        "B_w2": _B_in["w2"],
    }

def reference(A_x, A_wqkv, A_wo, B_x, B_w1, B_w2):
    def _A_ref(x, wqkv, wo):
        B, S, D = x.shape
        H = 32; Dh = D // H
        W, dil = 8, 2
        qkv = (lambda x, *d: x.permute(*d))((x @ wqkv).reshape(B, S, 3, H, Dh), 2, 0, 3, 1, 4)
        q, k, v = qkv[0], qkv[1], qkv[2]
        scale = Dh ** -0.5
        pos = torch.arange(S)
        off = torch.arange(W) * dil
        idx = pos[:, None] - off[None, :]
        mask = idx >= 0
        idx_c = torch.where(mask, idx, 0).reshape(-1)
        kg = k[:, :, idx_c, :].reshape(B, H, S, W, Dh)
        vg = v[:, :, idx_c, :].reshape(B, H, S, W, Dh)
        logits = torch.einsum("bhsd,bhswd->bhsw", q, kg) * scale
        logits = torch.where(mask[None, None, :, :], logits, -1e9)
        attn = _softmax(logits, axis=-1)
        o = torch.einsum("bhsw,bhswd->bhsd", attn, vg)
        return (lambda x, *d: x.permute(*d))(o, 0, 2, 1, 3).reshape(B, S, D) @ wo

    def _B_ref(x, w1, w2):
        h = torch.einsum("bsd,df->bsf", x, w1)
        h = _silu(h)
        out = torch.einsum("bsf,fd->bsd", h, w2)
        return out

    x = A_x
    x = x + _A_ref(_layernorm(x, axis=-1), A_wqkv, A_wo)
    x = x + _B_ref(_layernorm(x, axis=-1), B_w1, B_w2)
    x = x + _A_ref(_layernorm(x, axis=-1), A_wqkv, A_wo)
    x = x + _B_ref(_layernorm(x, axis=-1), B_w1, B_w2)
    return x
```

```python
class Em:
    def __init__(s):
        s.L=[]; s.vm=[]; s.lg=[]; s.uid=0
    def __call__(s,t): s.L.append("    "+t)
    def lab(s,n): s.L.append(n+":")
    def newlab(s,p="L"):
        s.uid+=1; return f"{p}_{s.uid}"
    def reset(s): s.vm=[]; s.lg=[]
    def vmem(s,t,tag=None): s(t); s.vm.append(tag)
    def lds(s,t,tag=None): s(t); s.lg.append(tag)
    def _n(s,q,tags):
        if not isinstance(tags,list): tags=[tags]
        last=-1
        for i,x in enumerate(q):
            if x in tags: last=i
        return last
    def wvm(s,tags):
        i=s._n(s.vm,tags)
        if i<0: return
        n=len(s.vm)-1-i
        assert n<=63
        s(f"s_waitcnt vmcnt({n})"); s.vm=s.vm[i+1:]
    def wlg(s,tags):
        i=s._n(s.lg,tags)
        if i<0: return
        n=min(len(s.lg)-1-i,15)
        s(f"s_waitcnt lgkmcnt({n})"); s.lg=s.lg[len(s.lg)-n:] if n else []
    def wlg0(s): s("s_waitcnt lgkmcnt(0)"); s.lg=[]
    def wvm0(s): s("s_waitcnt vmcnt(0)"); s.vm=[]
    def nop(s,n):
        while n>0:
            k=min(n,16); s(f"s_nop {k-1}"); n-=k
    def bar(s): s("s_barrier")
    def text(s): return "\n".join(s.L)+"\n"
def R(b,n=1): return f"v{b}" if n==1 else f"v[{b}:{b+n-1}]"
def S(b,n=1): return f"s{b}" if n==1 else f"s[{b}:{b+n-1}]"
```

```python
import sys
from em import *
NAME="interleave_layers__sliding_local_dilated__dense_activation_silu__prompt"
MB=1<<20
O_OFF,X1_OFF,H_OFF,X2_OFF,ST_OFF=0,2*MB,4*MB,12*MB,14*MB
LSTRIDE=16*MB
sW,sXCD,sJ,sT0,sT1,sT2,sT3,sMB,sNB,sKQ,sMH,sLB=3,4,5,6,7,8,9,10,11,12,13,14
sONE=15
srdA,srdW,srdR,srdO,srdS=16,20,24,28,32
pX,pQKV,pWO,pW1,pW2,pOUT,pWS=36,38,40,44,46,48,52
sD=56
vL=1
ONES=0x3F803F80

def prologue(e,nwg):
    e(f"s_cmp_ge_u32 s2, {nwg}"); e("s_cbranch_scc1 "+e.endlab)
    e(f"s_load_dwordx16 s[36:51], s[0:1], 0"); e(f"s_load_dwordx2 s[52:53], s[0:1], 64")
    e("v_lshrrev_b32 v2, 6, v0"); e(f"v_and_b32 {R(vL)}, 63, v0")
    e(f"v_readfirstlane_b32 {S(sW)}, v2")
    e(f"s_and_b32 {S(sXCD)}, s2, 7"); e(f"s_lshr_b32 {S(sJ)}, s2, 3")
    e(f"s_mov_b32 {S(sONE)}, {ONES:#x}")
    e("s_waitcnt lgkmcnt(0)")
def srd(e,d,p,off,size):
    if off: e(f"s_add_u32 {S(d)}, {S(p)}, {off:#x}"); e(f"s_addc_u32 {S(d+1)}, {S(p+1)}, 0")
    else: e(f"s_mov_b32 {S(d)}, {S(p)}"); e(f"s_mov_b32 {S(d+1)}, {S(p+1)}")
    e(f"s_mov_b32 {S(d+2)}, {size:#x}"); e(f"s_mov_b32 {S(d+3)}, 0x20000")
def dma(e,vaddr,srd_,soff,m0expr,tag):
    sg,c=m0expr
    if sg is None: e(f"s_mov_b32 m0, {c:#x}")
    else: e(f"s_add_u32 m0, {S(sg)}, {c:#x}")
    if soff: e(f"s_mov_b32 {S(sT3)}, {soff:#x}"); so=S(sT3)
    else: e("s_nop 0"); so="0"
    e.vmem(f"buffer_load_dwordx4 {R(vaddr)}, {S(srd_,4)}, {so} offen lds",tag)
def ldfrag(e,dst,vaddr,srd_,t,tag,st):
    hi=t>>2
    if hi and (t&3==0 or st): e(f"s_mov_b32 {S(sT2)}, {hi*4096:#x}")
    so=S(sT2) if hi else "0"
    e.vmem(f"buffer_load_dwordx4 {R(dst,4)}, {R(vaddr)}, {S(srd_,4)}, {so} offen offset:{(t&3)*1024}",tag)
def tr_lane_base(e,dst,tmp,perm):
    a,b,c=tmp,tmp+1,tmp+2
    e(f"v_bfe_u32 {R(a)}, {R(vL)}, 2, 2")
    e(f"v_lshrrev_b32 {R(b)}, 5, {R(vL)}")
    e(f"v_lshl_add_u32 {R(dst)}, {R(b)}, 3, {R(a)}")
    e(f"v_lshlrev_b32 {R(dst)}, 7, {R(dst)}")
    e(f"v_lshrrev_b32 {R(a)}, 1, {R(a)}"); e(f"v_lshlrev_b32 {R(a)}, 2, {R(a)}")
    e(f"v_lshl_or_b32 {R(a)}, {R(b)}, 1, {R(a)}")
    if perm=="frag":
        e(f"v_bfe_u32 {R(b)}, {R(vL)}, 4, 1"); e(f"v_and_b32 {R(c)}, 1, {R(vL)}")
        e(f"v_lshl_or_b32 {R(b)}, {R(b)}, 1, {R(c)}"); e(f"v_bfe_u32 {R(c)}, {R(vL)}, 1, 1")
    else:
        e(f"v_and_b32 {R(b)}, 1, {R(vL)}"); e(f"v_bfe_u32 {R(c)}, {R(vL)}, 4, 1")
        e(f"v_lshl_or_b32 {R(b)}, {R(b)}, 1, {R(c)}"); e(f"v_bfe_u32 {R(c)}, {R(vL)}, 1, 1")
    e(f"v_xor_b32 {R(a)}, {R(a)}, {R(b)}")
    e(f"v_lshl_add_u32 {R(dst)}, {R(a)}, 4, {R(dst)}")
    e(f"v_lshl_add_u32 {R(dst)}, {R(c)}, 3, {R(dst)}")
def wdma_lane(e,dst,tmp,rowstride,odd):
    a,b=tmp,tmp+1
    e(f"v_lshrrev_b32 {R(a)}, 3, {R(vL)}")
    e(f"s_mov_b32 {S(sT0)}, {rowstride}"); e(f"v_mul_lo_u32 {R(dst)}, {R(a)}, {S(sT0)}")
    e(f"v_bfe_u32 {R(a)}, {R(vL)}, 4, 1"); e(f"v_lshlrev_b32 {R(a)}, 2, {R(a)}")
    if isinstance(odd,int):
        if odd: e(f"v_or_b32 {R(a)}, 2, {R(a)}")
    else: e(f"v_lshl_or_b32 {R(a)}, {odd}, 1, {R(a)}")
    e(f"v_and_b32 {R(b)}, 7, {R(vL)}"); e(f"v_xor_b32 {R(a)}, {R(a)}, {R(b)}")
    e(f"v_lshl_add_u32 {R(dst)}, {R(a)}, 4, {R(dst)}")
def mfma32(e,d,a,b,first): e(f"v_mfma_f32_32x32x16_bf16 {R(d,16)}, {R(a,4)}, {R(b,4)}, {'0' if first else R(d,16)}")
def mfma16(e,d,a,b,first): e(f"v_mfma_f32_16x16x32_bf16 {R(d,4)}, {R(a,4)}, {R(b,4)}, {'0' if first else R(d,4)}")
def trread(e,dst,va,off,tag):
    e.lds(f"ds_read_b64_tr_b16 {R(dst,2)}, {R(va)} offset:{off}",tag)
    e.lds(f"ds_read_b64_tr_b16 {R(dst+2,2)}, {R(va)} offset:{off+512}",tag)
def allsum_halves(e,a,t):
    e(f"v_mov_b32 {R(t)}, {R(a)}"); e.nop(2); e(f"v_permlane32_swap_b32 {R(t)}, {R(a)}"); e.nop(1); e(f"v_add_f32 {R(a)}, {R(a)}, {R(t)}")
def meanrstd(e,s_,q,t):
    e(f"v_mul_f32 {R(s_)}, 0x3b000000, {R(s_)}"); e(f"v_mul_f32 {R(q)}, 0x3b000000, {R(q)}")
    e(f"v_fma_f32 {R(q)}, -{R(s_)}, {R(s_)}, {R(q)}"); e(f"v_max_f32 {R(q)}, 0, {R(q)}")
    e(f"v_add_f32 {R(q)}, 0x3727c5ac, {R(q)}"); e(f"v_rsq_f32 {R(q)}, {R(q)}"); e.nop(1)

def phase_rs(e,L,which):
    P2=which==2
    K=512 if P2 else 1792; KS=K//64; RING=8 if P2 else 20; SLAB=RING*2048
    wo=L*LSTRIDE
    e(f"s_lshr_b32 {S(sMB)}, {S(sJ)}, 3"); e(f"s_lshl_b32 {S(sT0)}, {S(sXCD)}, 2"); e(f"s_add_u32 {S(sMB)}, {S(sMB)}, {S(sT0)}")
    e(f"s_and_b32 {S(sNB)}, {S(sJ)}, 7"); e(f"s_and_b32 {S(sKQ)}, {S(sW)}, 3"); e(f"s_lshr_b32 {S(sMH)}, {S(sW)}, 2")
    if P2:
        srd(e,srdA,pWS,wo+O_OFF,2*MB); srd(e,srdW,pWO,0,512*1024)
        if L==0: srd(e,srdR,pX,0,2*MB)
        else: srd(e,srdR,pWS,X2_OFF,2*MB)
        srd(e,srdO,pWS,wo+X1_OFF,2*MB); srd(e,srdS,pWS,wo+ST_OFF,128*1024)
    else:
        srd(e,srdA,pWS,wo+H_OFF,7*MB); srd(e,srdW,pW2,0,1792*1024); srd(e,srdR,pWS,wo+X1_OFF,2*MB)
        if L==0: srd(e,srdO,pWS,X2_OFF,2*MB)
        else: srd(e,srdO,pOUT,0,2*MB)
    vA,vB,vF,vRM,vT0,vT1,vRD,vRes,vAcc,vBf,vAf=2,3,4,5,6,7,8,12,16,48,80
    tmp=9
    mt=sD;
    e(f"s_lshl_b32 {S(mt)}, {S(sMB)}, 1"); e(f"s_add_u32 {S(mt)}, {S(mt)}, {S(sMH)}")
    wdma_lane(e,vB,tmp,1024,S(sMH))
    e(f"s_mul_i32 {S(sT0)}, {S(sKQ)}, {KS*16*1024}"); e(f"s_lshl_b32 {S(sT1)}, {S(sMH)}, 13"); e(f"s_add_u32 {S(sT0)}, {S(sT0)}, {S(sT1)}")
    e(f"s_lshl_b32 {S(sT1)}, {S(sNB)}, 7"); e(f"s_add_u32 {S(sT0)}, {S(sT0)}, {S(sT1)}"); e(f"v_add_u32 {R(vB)}, {S(sT0)}, {R(vB)}")
    e(f"s_mul_i32 {S(sLB)}, {S(sKQ)}, {SLAB}"); e(f"s_lshl_b32 {S(sT1)}, {S(sMH)}, 10"); e(f"s_add_u32 {S(sD+1)}, {S(sLB)}, {S(sT1)}")
    e(f"s_mul_i32 {S(sT0)}, {S(mt)}, {K//16*1024}"); e(f"s_mul_i32 {S(sT1)}, {S(sKQ)}, {KS*1024}"); e(f"s_add_u32 {S(sT0)}, {S(sT0)}, {S(sT1)}")
    e(f"v_lshl_add_u32 {R(vA)}, {R(vL)}, 4, {S(sT0)}")
    for t in range(KS):
        if t<RING: dma(e,vB,srdW,t*16384,(sD+1,t*2048),("B",t//4))
        ldfrag(e,vAf+4*t,vA,srdA,t,("A",t//4),False)
        if t==3:
            e(f"s_lshl_b32 {S(sT0)}, {S(mt)}, 5"); e(f"s_lshl_b32 {S(sT1)}, {S(sNB)}, 2"); e(f"s_add_u32 {S(sT1)}, {S(sT1)}, {S(sKQ)}")
            e(f"s_add_u32 {S(sT0)}, {S(sT0)}, {S(sT1)}"); e(f"s_lshl_b32 {S(sT0)}, {S(sT0)}, 10")
            e(f"v_lshl_add_u32 {R(vF)}, {R(vL)}, 4, {S(sT0)}")
            e(f"s_lshl_b32 {S(sT0)}, {S(mt)}, 15"); e(f"s_lshl_b32 {S(sT1)}, {S(sT1)}, 5"); e(f"s_add_u32 {S(sT0)}, {S(sT0)}, {S(sT1)}")
            e(f"v_and_b32 {R(tmp)}, 31, {R(vL)}"); e(f"v_lshlrev_b32 {R(tmp)}, 10, {R(tmp)}"); e(f"v_lshrrev_b32 {R(tmp+1)}, 5, {R(vL)}")
            e(f"v_lshl_add_u32 {R(tmp)}, {R(tmp+1)}, 4, {R(tmp)}"); e(f"v_add_u32 {R(vRM)}, {S(sT0)}, {R(tmp)}")
            e.vmem(f"buffer_load_dwordx4 {R(vRes,4)}, {R(vRM if P2 else vF)}, {S(srdR,4)}, 0 offen","res")
    tr_lane_base(e,vT0,tmp,"frag")
    e(f"v_add_u32 {R(vT0)}, {S(sLB)}, {R(vT0)}"); e(f"v_xor_b32 {R(vT1)}, 64, {R(vT0)}")
    e(f"s_lshl_b32 {S(sT0)}, {S(sMH)}, 15"); e(f"v_lshl_add_u32 {R(vRD)}, {R(vL)}, 4, {S(sT0)}")
    for ch in range(KS//4):
        e.wvm([("B",ch)]); e.bar()
        for t in range(4*ch,4*ch+4):
            for nt in range(2): trread(e,vBf+(t&3)*8+nt*4,vT0+nt,(t%RING)*2048,("f",t,nt))
        if ch>=1 and RING+4*(ch-1)<KS:
            for t in range(RING+4*(ch-1),RING+4*ch): dma(e,vB,srdW,t*16384,(sD+1,(t%RING)*2048),("B",t//4))
        e.wvm([("A",ch)])
        for t in range(4*ch,4*ch+4):
            for nt in range(2):
                e.wlg(("f",t,nt)); mfma32(e,vAcc+16*nt,vBf+(t&3)*8+nt*4,vAf+4*t,t==0)
    e.bar(); e.nop(10)
    own=vBf
    done=e.newlab("rdone"); labs=[e.newlab("rv") for _ in range(4)]
    for q in range(1,4): e(f"s_cmp_eq_u32 {S(sKQ)}, {q}"); e(f"s_cbranch_scc1 {labs[q]}")
    for kq in range(4):
        e.lab(labs[kq])
        for q in range(4):
            if q==kq: continue
            for j in range(2): e(f"ds_write_b128 {R(vRD)}, {R(vAcc+8*q+4*j,4)} offset:{(q*4+((kq-q)&3))*2048+j*1024}")
        for j in range(8): e(f"v_mov_b32 {R(own+j)}, {R(vAcc+8*kq+j)}")
        if kq<3: e(f"s_branch {done}")
    e.lab(done)
    e(f"s_lshl_b32 {S(sT0)}, {S(sKQ)}, 13"); e(f"v_add_u32 {R(vRD)}, {S(sT0)}, {R(vRD)}")
    e.wlg0(); e.bar()
    for i in range(1,4):
        for j in range(2): e.lds(f"ds_read_b128 {R(own+8*i+4*j,4)}, {R(vRD)} offset:{i*2048+j*1024}",("p",i))
    e.wvm("res")
    rf=vAcc
    for j in range(4):
        e(f"v_lshlrev_b32 {R(rf+2*j)}, 16, {R(vRes+j)}"); e(f"v_and_b32 {R(rf+2*j+1)}, 0xffff0000, {R(vRes+j)}")
    for j in range(4): e(f"v_pk_add_f32 {R(own+2*j,2)}, {R(own+2*j,2)}, {R(rf+2*j,2)}")
    for i in range(1,4):
        e.wlg(("p",i))
        for j in range(4): e(f"v_pk_add_f32 {R(own+2*j,2)}, {R(own+2*j,2)}, {R(own+8*i+2*j,2)}")
    for j in range(4): e(f"v_cvt_pk_bf16_f32 {R(vRes+j)}, {R(own+2*j)}, {R(own+2*j+1)}")
    e.vmem(f"buffer_store_dwordx4 {R(vRes,4)}, {R(vF if P2 else vRM)}, {S(srdO,4)}, 0 offen","st")
    if P2:
        a,b=rf,rf+1
        e(f"v_dot2_f32_bf16 {R(a)}, {R(vRes)}, {S(sONE)}, 0"); e(f"v_dot2_f32_bf16 {R(b)}, {R(vRes)}, {R(vRes)}, 0")
        for j in range(1,4):
            e(f"v_dot2_f32_bf16 {R(a)}, {R(vRes+j)}, {S(sONE)}, {R(a)}"); e(f"v_dot2_f32_bf16 {R(b)}, {R(vRes+j)}, {R(vRes+j)}, {R(b)}")
        e(f"s_lshl_b32 {S(sT0)}, {S(sW)}, 8"); e(f"s_add_u32 {S(sT0)}, {S(sT0)}, 0x10000")
        e(f"v_lshl_add_u32 {R(tmp)}, {R(vL)}, 2, {S(sT0)}"); e.nop(2)
        e(f"v_permlane32_swap_b32 {R(a)}, {R(b)}"); e.nop(1); e(f"v_add_f32 {R(a)}, {R(a)}, {R(b)}")
        e(f"ds_write_b32 {R(tmp)}, {R(a)}"); e.wlg0(); e.bar()
        sk=e.newlab("nost"); e(f"s_cmp_lg_u32 {S(sKQ)}, 0"); e(f"s_cbranch_scc1 {sk}")
        for i in range(1,4): e(f"ds_read_b32 {R(rf+1+i)}, {R(tmp)} offset:{i*256}")
        e(f"s_lshl_b32 {S(sT0)}, {S(mt)}, 3"); e(f"s_add_u32 {S(sT0)}, {S(sT0)}, {S(sNB)}"); e(f"s_lshl_b32 {S(sT0)}, {S(sT0)}, 8")
        e(f"v_lshl_add_u32 {R(tmp)}, {R(vL)}, 2, {S(sT0)}"); e.wlg0()
        e(f"v_add_f32 {R(a)}, {R(a)}, {R(rf+2)}"); e(f"v_add_f32 {R(rf+3)}, {R(rf+3)}, {R(rf+4)}"); e(f"v_add_f32 {R(a)}, {R(a)}, {R(rf+3)}")
        e(f"buffer_store_dword {R(a)}, {R(tmp)}, {S(srdS,4)}, 0 offen")
        e.lab(sk)
    return (66*1024+1024) if P2 else 160*1024

def phase3(e,L):
    wo=L*LSTRIDE
    e(f"s_cmp_ge_u32 {S(sJ)}, 14"); e(f"s_cselect_b32 {S(sT0)}, 1, 0"); e(f"s_cselect_b32 {S(sT1)}, 14, 0")
    e(f"s_sub_u32 {S(sNB)}, {S(sJ)}, {S(sT1)}"); e(f"s_lshl_b32 {S(sMB)}, {S(sXCD)}, 1"); e(f"s_add_u32 {S(sMB)}, {S(sMB)}, {S(sT0)}")
    srd(e,srdA,pWS,wo+X1_OFF,2*MB); srd(e,srdW,pW1,0,512*3584); srd(e,srdO,pWS,wo+H_OFF,7*MB); srd(e,srdS,pWS,wo+ST_OFF,128*1024)
    CS=131072
    ld=e.newlab("p3ld"); fin=e.newlab("p3fin")
    tmp=9
    e(f"s_cmp_ge_u32 {S(sW)}, 4"); e(f"s_cbranch_scc1 {ld}")
    vA,vT,vH,vM,vS,vSt,vAcc,vBf,vAf=2,4,3,12,14,16,24,88,128
    mt=sD
    e(f"s_lshl_b32 {S(mt)}, {S(sMB)}, 2"); e(f"s_add_u32 {S(mt)}, {S(mt)}, {S(sW)}")
    e(f"s_lshl_b32 {S(sT0)}, {S(mt)}, 15"); e(f"v_lshl_add_u32 {R(vA)}, {R(vL)}, 4, {S(sT0)}")
    e(f"s_lshl_b32 {S(sT0)}, {S(mt)}, 11"); e(f"v_lshl_add_u32 {R(vH)}, {R(vL)}, 2, {S(sT0)}")
    for t in range(32):
        ldfrag(e,vAf+4*t,vA,srdA,t,("A",t),False)
        if t==7:
            for i in range(8): e.vmem(f"buffer_load_dword {R(vSt+i)}, {R(vH)}, {S(srdS,4)}, 0 offen offset:{i*256}","st")
    tr_lane_base(e,vT,tmp,"frag")
    e(f"v_xor_b32 {R(vT+1)}, 64, {R(vT)}"); e(f"v_add_u32 {R(vT+2)}, 0x10000, {R(vT)}"); e(f"v_add_u32 {R(vT+3)}, 0x10000, {R(vT+1)}")
    e(f"s_mul_i32 {S(sT0)}, {S(mt)}, {112*1024}"); e(f"s_lshl_b32 {S(sT1)}, {S(sNB)}, 13"); e(f"s_add_u32 {S(sT0)}, {S(sT0)}, {S(sT1)}")
    e(f"v_lshl_add_u32 {R(vH)}, {R(vL)}, 4, {S(sT0)}")
    def rd(t):
        for nt in range(4): trread(e,vBf+(t&1)*16+nt*4,vT+nt,t*2048,("f",t,nt))
    e.bar(); rd(0)
    for t in range(32):
        if t+1<32:
            if (t+1)%4==0: e.bar()
            rd(t+1)
        e.wvm(("A",t))
        for nt in range(4):
            e.wlg(("f",t,nt)); mfma32(e,vAcc+16*nt,vBf+(t&1)*16+nt*4,vAf+4*t,t==0)
        if t==9:
            for i in (4,2,1):
                for j in range(i): e(f"v_add_f32 {R(vSt+j)}, {R(vSt+j)}, {R(vSt+j+i)}")
            e(f"v_mov_b32 {R(vSt+1)}, {R(vSt)}"); e.nop(2); e(f"v_permlane32_swap_b32 {R(vSt)}, {R(vSt+1)}"); e.nop(1)
            meanrstd(e,vSt,vSt+1,tmp)
            e(f"v_sub_f32 {R(vM)}, 0, {R(vSt)}"); e(f"v_mov_b32 {R(vS)}, {R(vSt+1)}"); e(f"v_mul_f32 {R(vS+1)}, 0xbfb8aa3b, {R(vSt+1)}")
    e(f"v_lshrrev_b32 {R(tmp)}, 5, {R(vL)}"); e(f"v_lshlrev_b32 {R(tmp)}, 4, {R(tmp)}"); e(f"v_add_u32 {R(tmp)}, {CS:#x}, {R(tmp)}")
    e.bar()
    vC=vAf
    for nt in range(4):
        for g in range(4): e.lds(f"ds_read_b128 {R(vC+16*nt+4*g,4)}, {R(tmp)} offset:{nt*128+g*32}",("c",nt))
    e(f"v_mov_b32 {R(vSt)}, 1.0"); e(f"v_mov_b32 {R(vSt+1)}, 1.0"); e.nop(4)
    U=vBf; PK=vAf+64
    for nt in range(4):
        e.wlg(("c",nt))
        for hh in range(2):
            b=vAcc+16*nt+8*hh; c=vC+16*nt+8*hh; o=PK+(nt*2+hh)*4
            for j in range(4): e(f"v_pk_fma_f32 {R(b+2*j,2)}, {R(c+2*j,2)}, {R(vM,2)}, {R(b+2*j,2)} op_sel_hi:[1,0,1]")
            for j in range(4): e(f"v_pk_mul_f32 {R(U+2*j,2)}, {R(b+2*j,2)}, {R(vS,2)} op_sel:[0,1] op_sel_hi:[1,1]")
            for j in range(8): e(f"v_exp_f32 {R(U+j)}, {R(U+j)}")
            for j in range(4): e(f"v_pk_mul_f32 {R(b+2*j,2)}, {R(b+2*j,2)}, {R(vS,2)} op_sel_hi:[1,0]")
            for j in range(4): e(f"v_pk_add_f32 {R(U+2*j,2)}, {R(U+2*j,2)}, {R(vSt,2)}")
            for j in range(8): e(f"v_rcp_f32 {R(U+j)}, {R(U+j)}")
            e.nop(1)
            for j in range(4): e(f"v_pk_mul_f32 {R(b+2*j,2)}, {R(b+2*j,2)}, {R(U+2*j,2)}")
            for j in range(4): e(f"v_cvt_pk_bf16_f32 {R(o+j)}, {R(b+2*j)}, {R(b+2*j+1)}")
            t=nt*2+hh
            if t==4: e(f"s_movk_i32 {S(sT2)}, 0x1000")
            e.vmem(f"buffer_store_dwordx4 {R(o,4)}, {R(vH)}, {S(srdO,4)}, {S(sT2) if t>=4 else '0'} offen offset:{(t&3)*1024}","st")
    e(f"s_branch {fin}")
    e.lab(ld); e.reset()
    vB,vT,vCs,vBf=2,4,5,16
    j=sD; e(f"s_sub_u32 {S(j)}, {S(sW)}, 4")
    wdma_lane(e,vB,tmp,3584,0)
    e(f"s_and_b32 {S(sD+1)}, {S(j)}, 1"); e(f"s_lshr_b32 {S(sD+2)}, {S(j)}, 1")
    e(f"s_mul_i32 {S(sT0)}, {S(sD+2)}, {32*3584}"); e(f"s_lshl_b32 {S(sT1)}, {S(sD+1)}, 7"); e(f"s_add_u32 {S(sT0)}, {S(sT0)}, {S(sT1)}")
    e(f"s_lshl_b32 {S(sT1)}, {S(sNB)}, 8"); e(f"s_add_u32 {S(sT0)}, {S(sT0)}, {S(sT1)}")
    e(f"v_add_u32 {R(vB)}, {S(sT0)}, {R(vB)}"); e(f"v_xor_b32 {R(vB+1)}, 32, {R(vB)}")
    e(f"s_lshl_b32 {S(sLB)}, {S(sD+1)}, 16"); e(f"s_lshl_b32 {S(sT1)}, {S(sD+2)}, 12"); e(f"s_add_u32 {S(sLB)}, {S(sLB)}, {S(sT1)}")
    for ch in range(8):
        for i in range(4): dma(e,vB+(i&1),srdW,(ch*64+8*i)*3584,(sLB,ch*8192+i*1024),("B",ch))
    tr_lane_base(e,vT,tmp,"frag")
    e(f"s_lshl_b32 {S(sT0)}, {S(sD+1)}, 6"); e(f"v_xor_b32 {R(vT)}, {S(sT0)}, {R(vT)}")
    e(f"s_lshl_b32 {S(sT0)}, {S(sD+2)}, 16"); e(f"v_add_u32 {R(vT)}, {S(sT0)}, {R(vT)}")
    e(f"v_mov_b32 {R(vCs)}, 0"); e(f"v_mov_b32 {R(vCs+1)}, 0")
    for ch in range(8):
        e.wvm(("B",ch)); e.bar()
        for t in range(4): trread(e,vBf+4*t,vT,(ch*4+t)*2048,("f",t))
        for t in range(4):
            e.wlg(("f",t))
            for i in range(4): e(f"v_dot2_f32_bf16 {R(vCs+(i&1))}, {R(vBf+4*t+i)}, {S(sONE)}, {R(vCs+(i&1))}")
    e(f"s_lshl_b32 {S(sT0)}, {S(j)}, 7"); e(f"s_add_u32 {S(sT0)}, {S(sT0)}, {CS:#x}")
    e(f"v_and_b32 {R(tmp)}, 31, {R(vL)}"); e(f"v_lshl_add_u32 {R(tmp)}, {R(tmp)}, 2, {S(sT0)}"); e.nop(2)
    e(f"v_add_f32 {R(vCs)}, {R(vCs)}, {R(vCs+1)}")
    allsum_halves(e,vCs,vCs+1)
    e(f"ds_write_b32 {R(tmp)}, {R(vCs)}"); e.wlg0(); e.bar()
    e.lab(fin)
    return CS+1024

STG=34816; WOF=10240; CS1=4*STG; ST1=CS1+1024; QB,KB,VB=0,9216,20736
def phase1(e,L):
    wo=L*LSTRIDE
    e(f"s_lshr_b32 {S(sMB)}, {S(sJ)}, 3"); e(f"s_lshl_b32 {S(sT0)}, {S(sXCD)}, 2"); e(f"s_add_u32 {S(sMB)}, {S(sMB)}, {S(sT0)}")
    e(f"s_and_b32 {S(sNB)}, {S(sJ)}, 7")
    if L==0: srd(e,srdA,pX,0,2*MB)
    else: srd(e,srdA,pWS,X2_OFF,2*MB)
    srd(e,srdW,pQKV,0,512*3072); srd(e,srdO,pWS,wo+O_OFF,2*MB)
    tmp=9; vW,vX,vb=20,26,29
    dW,dX=sD,sD+6
    lab_h,lab_l,lab_att=e.newlab("p1h"),e.newlab("p1l"),e.newlab("p1att")
    wdma_lane(e,vb,tmp,3072,0)
    e(f"s_lshl_b32 {S(sT0)}, {S(sNB)}, 7"); e(f"v_add_u32 {R(vb)}, {S(sT0)}, {R(vb)}")
    e(f"v_lshrrev_b32 {R(tmp)}, 3, {R(vL)}"); e(f"v_lshrrev_b32 {R(tmp+1)}, 4, {R(vL)}"); e(f"v_and_b32 {R(tmp+2)}, 7, {R(vL)}")
    e(f"v_xor_b32 {R(tmp+1)}, {R(tmp+1)}, {R(tmp+2)}"); e(f"v_lshlrev_b32 {R(tmp+1)}, 4, {R(tmp+1)}")
    e(f"v_lshl_add_u32 {R(vb+1)}, {R(tmp)}, 10, {R(tmp+1)}")
    def wslots(sw,k0):
        for a in range(3):
            e(f"s_mul_i32 {S(sT0)}, {S(sw)}, 3"); e(f"s_add_u32 {S(sT0)}, {S(sT0)}, {a}")
            e(f"s_lshl_b32 {S(dW+k0+a)}, {S(sT0)}, 10"); e(f"s_add_u32 {S(dW+k0+a)}, {S(dW+k0+a)}, {WOF}")
            e(f"s_and_b32 {S(sT1)}, {S(sT0)}, 1"); e(f"s_lshl_b32 {S(sT1)}, {S(sT1)}, 5"); e(f"v_xor_b32 {R(vW+k0+a)}, {S(sT1)}, {R(vb)}")
            e(f"s_and_b32 {S(sT1)}, {S(sT0)}, 7"); e(f"s_mul_i32 {S(sT1)}, {S(sT1)}, {8*3072}")
            e(f"s_lshr_b32 {S(sT0)}, {S(sT0)}, 3"); e(f"s_lshl_b32 {S(sT0)}, {S(sT0)}, 10"); e(f"s_add_u32 {S(sT0)}, {S(sT0)}, {S(sT1)}")
            e(f"v_add_u32 {R(vW+k0+a)}, {S(sT0)}, {R(vW+k0+a)}")
    def xslot(si,k):
        e(f"s_lshl_b32 {S(dX+k)}, {S(si)}, 10")
        e(f"s_and_b32 {S(sT1)}, {S(si)}, 1"); e(f"s_lshl_b32 {S(sT1)}, {S(sT1)}, 6"); e(f"v_xor_b32 {R(vX+k)}, {S(sT1)}, {R(vb+1)}")
        e(f"s_lshl_b32 {S(sT0)}, {S(sMB)}, 16"); e(f"s_lshl_b32 {S(sT1)}, {S(si)}, 13"); e(f"s_add_u32 {S(sT0)}, {S(sT0)}, {S(sT1)}")
        e(f"s_sub_u32 {S(sT0)}, {S(sT0)}, 0x4000"); e(f"v_add_u32 {R(vX+k)}, {S(sT0)}, {R(vX+k)}")
    def issue(s,ws,xs):
        b=(s%4)*STG
        for k in xs: dma(e,vX+k,srdA,s*128,(dX+k,b),("S",s))
        for k in ws: dma(e,vW+k,srdW,s*64*3072,(dW+k,b),("S",s))
    def bump(regs,s):
        d=STG if s%4!=3 else -3*STG
        for r in regs: e(f"v_add_u32 {R(r)}, {d&0xffffffff:#x}, {R(r)}")
    def xaddr(dst,n,step,rowbase,w16):
        if w16: e(f"v_and_b32 {R(tmp)}, 15, {R(vL)}"); e(f"v_lshrrev_b32 {R(tmp+1)}, 4, {R(vL)}")
        else: e(f"v_and_b32 {R(tmp)}, 31, {R(vL)}"); e(f"v_lshrrev_b32 {R(tmp+1)}, 5, {R(vL)}")
        if rowbase is not None: e(f"v_add_u32 {R(tmp)}, {rowbase}, {R(tmp)}")
        e(f"v_bfe_u32 {R(tmp+2)}, {R(tmp)}, 1, 3"); e(f"v_xor_b32 {R(tmp+1)}, {R(tmp+1)}, {R(tmp+2)}")
        e(f"v_lshlrev_b32 {R(tmp+1)}, 4, {R(tmp+1)}"); e(f"v_lshl_add_u32 {R(dst)}, {R(tmp)}, 7, {R(tmp+1)}")
        for i in range(1,n): e(f"v_xor_b32 {R(dst+i)}, {i*step}, {R(dst)}")
    wslots(sW,0); xslot(sW,0)
    e(f"s_cmp_ge_u32 {S(sW)}, 4"); e(f"s_cbranch_scc1 {lab_l}")
    for s in range(4): issue(s,range(3),[0])
    q0=list(e.vm)
    e(f"s_cmp_eq_u32 {S(sW)}, 3"); e(f"s_cbranch_scc1 {lab_h}")
    vXa,vTa,vAcc,vF=2,6,32,96
    xaddr(vXa,4,32,16,False)
    tr_lane_base(e,vTa,tmp,"head")
    pA,nA,pB,nB=sD+10,sD+11,sD+12,sD+13
    e(f"s_min_u32 {S(pA)}, {S(sW)}, 1"); e(f"s_lshr_b32 {S(nA)}, {S(sW)}, 1"); e(f"s_lshl_b32 {S(pB)}, {S(pA)}, 1")
    e(f"s_and_b32 {S(nB)}, {S(sW)}, 1"); e(f"s_xor_b32 {S(nB)}, {S(nB)}, 1")
    for r,p,n in ((vTa+1,pB,nB),(vTa,pA,nA)):
        e(f"s_lshl_b32 {S(sT0)}, {S(n)}, 6"); e(f"v_xor_b32 {R(r)}, {S(sT0)}, {R(vTa)}")
        e(f"s_lshl_b32 {S(sT0)}, {S(p)}, 13"); e(f"s_add_u32 {S(sT0)}, {S(sT0)}, {WOF}"); e(f"v_add_u32 {R(r)}, {S(sT0)}, {R(r)}")
    def rd(t):
        b=vF+(t&1)*16; ks=t&3
        trread(e,b+8,vTa,ks*2048,("a",t)); e.lds(f"ds_read_b128 {R(b,4)}, {R(vXa+ks)}",("a",t))
        e.lds(f"ds_read_b128 {R(b+4,4)}, {R(vXa+ks)} offset:4096",("b",t)); trread(e,b+12,vTa+1,ks*2048,("c",t))
    e.wvm(("S",0)); e.bar(); rd(0)
    for t in range(32):
        if t+1<32:
            if (t+1)%4==0:
                s=(t+1)//4
                e.wvm(("S",s)); e.wlg0(); bump(range(vXa,vXa+6),s-1); e.bar()
            rd(t+1)
        b=vF+(t&1)*16
        e.wlg(("a",t)); mfma32(e,vAcc,b+8,b,t==0)
        e.wlg(("b",t)); mfma32(e,vAcc+16,b+8,b+4,t==0)
        e.wlg(("c",t)); mfma32(e,vAcc+32,b+12,b,t==0); mfma32(e,vAcc+48,b+12,b+4,t==0)
    vC,vSt,vWA,vWB,vP=128,160,2,3,168
    e(f"v_lshrrev_b32 {R(tmp)}, 5, {R(vL)}"); e(f"v_and_b32 {R(tmp+1)}, 31, {R(vL)}")
    for r,p,n in ((4,pA,nA),(5,pB,nB)):
        e(f"s_lshl_b32 {S(sT0)}, {S(p)}, 8"); e(f"s_lshl_b32 {S(sT1)}, {S(n)}, 7"); e(f"s_add_u32 {S(sT0)}, {S(sT0)}, {S(sT1)}")
        e(f"s_add_u32 {S(sT0)}, {S(sT0)}, {CS1}"); e(f"v_lshl_add_u32 {R(r)}, {R(tmp)}, 6, {S(sT0)}")
    e(f"v_lshlrev_b32 {R(6)}, 3, {R(tmp+1)}"); e(f"v_add_u32 {R(6)}, {ST1+128:#x}, {R(6)}")
    e(f"v_mul_u32_u24 {R(vWA)}, 144, {R(tmp+1)}"); e(f"v_lshl_add_u32 {R(vWA)}, {R(tmp)}, 5, {R(vWA)}")
    e(f"v_mul_u32_u24 {R(vWB)}, 272, {R(tmp+1)}"); e(f"v_lshl_add_u32 {R(vWB)}, {R(tmp)}, 6, {R(vWB)}")
    e(f"s_mul_i32 {S(sT0)}, {S(pA)}, {KB+16*144}"); e(f"s_lshl_b32 {S(sT1)}, {S(nA)}, 6"); e(f"s_add_u32 {S(sT0)}, {S(sT0)}, {S(sT1)}")
    e(f"v_add_u32 {R(vWA)}, {S(sT0)}, {R(vWA)}")
    e(f"s_lshl_b32 {S(sT1)}, {S(nB)}, 7"); e(f"s_add_u32 {S(sT1)}, {S(sT1)}, {VB+16*272}"); e(f"v_add_u32 {R(vWB)}, {S(sT1)}, {R(vWB)}")
    e.bar()
    for m in range(2): e.lds(f"ds_read_b64 {R(vSt+2*m,2)}, {R(6)} offset:{m*256}","st")
    for T in range(2):
        for g in range(4): e.lds(f"ds_read_b128 {R(vC+16*T+4*g,4)}, {R(4+T)} offset:{g*16}",("c",T))
    def corr(T,m):
        b=vAcc+32*T+16*m
        for j in range(8): e(f"v_pk_fma_f32 {R(b+2*j,2)}, {R(vC+16*T+2*j,2)}, {R(vSt+2*m,2)}, {R(b+2*j,2)} op_sel_hi:[1,0,1]")
        for j in range(8): e(f"v_pk_mul_f32 {R(b+2*j,2)}, {R(b+2*j,2)}, {R(vSt+2*m,2)} op_sel:[0,1] op_sel_hi:[1,1]")
    def wr16(T,m,off):
        b=vAcc+32*T+16*m; p=vP+8*(2*T+m)
        for j in range(8): e(f"v_cvt_pk_bf16_f32 {R(p+j)}, {R(b+2*j)}, {R(b+2*j+1)}")
        for j in range(2): e(f"ds_write_b128 {R(vWA)}, {R(p+4*j,4)} offset:{off+m*32*144+16*j}")
    e.wlg(("c",0))
    for m in range(2): corr(0,m); wr16(0,m,0)
    e.wlg0()
    for m in range(2): corr(1,m)
    lv=e.newlab("p1v"); e(f"s_cmp_lg_u32 {S(sW)}, 0"); e(f"s_cbranch_scc1 {lv}")
    for m in range(2): wr16(1,m,64)
    e(f"s_branch {lab_att}")
    e.lab(lv)
    for m in range(2):
        for j in range(4): e(f"ds_write_b128 {R(vWB)}, {R(vAcc+32+16*m+4*j,4)} offset:{m*32*272+16*j}")
    e(f"s_branch {lab_att}")
    e.lab(lab_h); e.reset(); e.vm=list(q0)
    vXa,vTh,vAcc,vXf,vWf=2,4,32,80,96
    xaddr(vXa,2,64,None,True)
    e(f"v_lshrrev_b32 {R(tmp)}, 4, {R(vL)}"); e(f"v_bfe_u32 {R(tmp+1)}, {R(vL)}, 2, 2")
    e(f"v_lshl_add_u32 {R(vTh)}, {R(tmp)}, 3, {R(tmp+1)}"); e(f"v_lshlrev_b32 {R(vTh)}, 7, {R(vTh)}")
    e(f"v_and_b32 {R(tmp)}, 1, {R(tmp)}"); e(f"v_lshlrev_b32 {R(tmp)}, 1, {R(tmp)}"); e(f"v_lshrrev_b32 {R(tmp+1)}, 1, {R(tmp+1)}")
    e(f"v_lshl_or_b32 {R(tmp)}, {R(tmp+1)}, 2, {R(tmp)}"); e(f"v_bfe_u32 {R(tmp+1)}, {R(vL)}, 1, 1"); e(f"v_or_b32 {R(tmp)}, {R(tmp)}, {R(tmp+1)}")
    e(f"v_lshl_add_u32 {R(vTh)}, {R(tmp)}, 4, {R(vTh)}"); e(f"v_and_b32 {R(tmp)}, 1, {R(vL)}"); e(f"v_lshl_add_u32 {R(vTh)}, {R(tmp)}, 3, {R(vTh)}")
    e(f"v_add_u32 {R(vTh)}, {WOF}, {R(vTh)}")
    for h in range(1,4): e(f"v_xor_b32 {R(vTh+h)}, {h*32}, {R(vTh)}")
    e(f"v_and_b32 {R(tmp)}, 15, {R(vL)}"); e(f"v_cmp_eq_u32 vcc, 0, {R(tmp)}"); e(f"v_mov_b32 {R(12)}, {S(sONE)}")
    def rdu(u):
        T,p=divmod(u,3); kk=T&1
        if p==0: e.lds(f"ds_read_b128 {R(vXf+4*(T&1),4)}, {R(vXa+kk)}",("x",T))
        for h in range(4): trread(e,vWf+(u&1)*16+4*h,vTh+h,p*8192+kk*4096,("w",u,h))
    e.wvm(("S",0)); e.bar(); rdu(0)
    for u in range(48):
        T,p=divmod(u,3)
        if u+1<48:
            if (u+1)%6==0:
                s=(u+1)//6
                e.wvm(("S",s)); e.wlg0(); bump(range(vXa,vXa+6),s-1); e.bar()
            rdu(u+1)
        if p==0:
            e.wlg(("x",T))
            for i in range(4): e(f"v_cndmask_b32 {R(vXf+4*(T&1)+i)}, {R(vXf+4*(T&1)+i)}, {R(12)}, vcc")
            e.nop(2)
        for h in range(4):
            e.wlg(("w",u,h)); mfma16(e,vAcc+16*p+4*h,vWf+(u&1)*16+4*h,vXf+4*(T&1),T==0)
    e(f"v_lshrrev_b32 {R(tmp)}, 4, {R(vL)}"); e(f"v_and_b32 {R(tmp+1)}, 15, {R(vL)}")
    e(f"v_lshlrev_b32 {R(2)}, 4, {R(tmp)}"); e(f"v_add_u32 {R(2)}, {CS1}, {R(2)}")
    e(f"v_lshlrev_b32 {R(3)}, 3, {R(tmp+1)}"); e(f"v_add_u32 {R(3)}, {ST1}, {R(3)}")
    e(f"v_mul_u32_u24 {R(4)}, 144, {R(tmp+1)}"); e(f"v_lshl_add_u32 {R(4)}, {R(tmp)}, 3, {R(4)}")
    e(f"v_mul_u32_u24 {R(5)}, 272, {R(tmp+1)}"); e(f"v_lshl_add_u32 {R(5)}, {R(tmp)}, 4, {R(5)}")
    e(f"s_and_saveexec_b64 {S(sD+14,2)}, vcc")
    for i in range(12): e(f"ds_write_b128 {R(2)}, {R(vAcc+4*i,4)} offset:{i*64}")
    e(f"s_mov_b64 exec, {S(sD+14,2)}")
    e.wlg0(); e.bar()
    vC,vSt=96,80
    e.lds(f"ds_read_b64 {R(vSt,2)}, {R(3)}","st")
    for i in range(8): e.lds(f"ds_read_b128 {R(vC+4*i,4)}, {R(2)} offset:{(4+i)*64}",("c",i))
    for i in range(8):
        e.wlg(("c",i)); b=vAcc+16+4*i
        for j in range(2): e(f"v_pk_fma_f32 {R(b+2*j,2)}, {R(vC+4*i+2*j,2)}, {R(vSt,2)}, {R(b+2*j,2)} op_sel_hi:[1,0,1]")
        for j in range(2): e(f"v_pk_mul_f32 {R(b+2*j,2)}, {R(b+2*j,2)}, {R(vSt,2)} op_sel:[0,1] op_sel_hi:[1,1]")
        if i<4:
            for j in range(2): e(f"v_cvt_pk_bf16_f32 {R(b+j)}, {R(b+2*j)}, {R(b+2*j+1)}")
            e.lds(f"ds_write_b64 {R(4)}, {R(b,2)} offset:{KB+i*32}")
        else: e.lds(f"ds_write_b128 {R(5)}, {R(b,4)} offset:{VB+(i-4)*64}")
    e(f"s_branch {lab_att}")
    e.lab(lab_l); e.reset()
    j=sD+10; e(f"s_sub_u32 {S(j)}, {S(sW)}, 4")
    e(f"s_and_b32 {S(sD+11)}, {S(j)}, 1"); e(f"s_add_u32 {S(sD+11)}, {S(sD+11)}, 8"); xslot(sD+11,1)
    for s in range(4): issue(s,range(3),[0,1])
    wslots(j,3); xslot(j,2)
    vXa,vF,vS=2,32,12
    e(f"s_min_u32 {S(sT2)}, {S(j)}, 2"); e(f"s_lshl_b32 {S(sT2)}, {S(sT2)}, 5"); e(f"s_sub_u32 {S(sT2)}, {S(sT2)}, 16"); e(f"s_max_i32 {S(sT2)}, {S(sT2)}, 0")
    xaddr(vXa,4,32,S(sT2),False)
    e(f"v_lshlrev_b32 {R(6)}, 3, {R(tmp)}"); e(f"v_add_u32 {R(6)}, {ST1}, {R(6)}")
    for i in range(4): e(f"v_mov_b32 {R(vS+i)}, 0")
    for s in range(8):
        e.wvm(("S",s)); e.bar()
        for ks in range(4): e.lds(f"ds_read_b128 {R(vF+4*ks,4)}, {R(vXa+ks)}",("x",ks))
        if 1<=s<=4: issue(s+3,range(6),[0,1,2])
        if s<7: bump(range(vXa,vXa+4),s)
        for ks in range(4):
            e.wlg(("x",ks))
            for i in range(4):
                e(f"v_dot2_f32_bf16 {R(vS+(i&1))}, {R(vF+4*ks+i)}, {S(sONE)}, {R(vS+(i&1))}")
                e(f"v_dot2_f32_bf16 {R(vS+2+(i&1))}, {R(vF+4*ks+i)}, {R(vF+4*ks+i)}, {R(vS+2+(i&1))}")
    e.nop(3); e(f"v_add_f32 {R(vS)}, {R(vS)}, {R(vS+1)}"); e(f"v_add_f32 {R(vS+1)}, {R(vS+2)}, {R(vS+3)}")
    allsum_halves(e,vS,vS+2); allsum_halves(e,vS+1,vS+2)
    meanrstd(e,vS,vS+1,tmp); e(f"v_sub_f32 {R(vS)}, 0, {R(vS)}")
    e(f"ds_write_b64 {R(6)}, {R(vS,2)}"); e.wlg0(); e.bar()
    e.lab(lab_att); e.reset()
    vQ,vK,vV,vLg,vO=16,32,96,160,176
    mt,h=sD,sD+1
    e(f"s_lshr_b32 {S(mt)}, {S(sW)}, 2"); e(f"s_and_b32 {S(h)}, {S(sW)}, 3")
    e(f"v_and_b32 {R(tmp)}, 31, {R(vL)}"); e(f"s_lshl_b32 {S(sT0)}, {S(mt)}, 5"); e(f"v_add_u32 {R(tmp)}, {S(sT0)}, {R(tmp)}")
    e(f"v_lshrrev_b32 {R(tmp+1)}, 5, {R(vL)}")
    e(f"s_lshl_b32 {S(sT0)}, {S(h)}, 5"); e(f"v_mul_u32_u24 {R(2)}, 144, {R(tmp)}"); e(f"v_add_u32 {R(2)}, {S(sT0)}, {R(2)}")
    e(f"s_lshl_b32 {S(sT0)}, {S(h)}, 6"); e(f"v_mul_u32_u24 {R(3)}, 272, {R(tmp)}"); e(f"v_lshl_add_u32 {R(3)}, {R(tmp+1)}, 5, {R(3)}"); e(f"v_add_u32 {R(3)}, {S(sT0)}, {R(3)}")
    e(f"s_lshl_b32 {S(sT0)}, {S(sMB)}, 6"); e(f"v_add_u32 {R(4)}, {S(sT0)}, {R(tmp)}")
    e(f"s_lshl_b32 {S(sT0)}, {S(sMB)}, 1"); e(f"s_add_u32 {S(sT0)}, {S(sT0)}, {S(mt)}"); e(f"s_lshl_b32 {S(sT0)}, {S(sT0)}, 5")
    e(f"s_lshl_b32 {S(sT1)}, {S(sNB)}, 2"); e(f"s_add_u32 {S(sT0)}, {S(sT0)}, {S(sT1)}"); e(f"s_add_u32 {S(sT0)}, {S(sT0)}, {S(h)}"); e(f"s_lshl_b32 {S(sT0)}, {S(sT0)}, 10")
    e(f"v_lshl_add_u32 {R(5)}, {R(vL)}, 4, {S(sT0)}")
    e(f"v_mov_b32 {R(6)}, 0xce6e6b28"); e(f"v_mov_b32 {R(7)}, 0x3eb8aa3b")
    e.wlg0(); e.bar()
    for i in range(2): e.lds(f"ds_read_b128 {R(vQ+4*i,4)}, {R(2)} offset:{QB+16*i}","q")
    for jj in range(8):
        for i in range(2): e.lds(f"ds_read_b128 {R(vK+8*jj+4*i,4)}, {R(2)} offset:{KB+288+(7-jj)*288+16*i}",("k",jj))
    for jj in range(8):
        e.wlg(("k",jj))
        for i in range(8): e(f"v_dot2_f32_bf16 {R(vLg+jj)}, {R(vQ+i)}, {R(vK+8*jj+i)}, {R(vLg+jj) if i else '0'}")
        for i in range(2): e.lds(f"ds_read_b128 {R(vV+8*jj+4*i,4)}, {R(3)} offset:{VB+544+(7-jj)*544+16*i}",("v",jj))
    for jj in range(1,8): e(f"v_cmp_le_u32 {S(sD+2*jj,2)}, {2*jj}, {R(4)}")
    for jj in range(1,8): e(f"v_cndmask_b32 {R(vLg+jj)}, {R(6)}, {R(vLg+jj)}, {S(sD+2*jj,2)}")
    m=8
    e(f"v_max3_f32 {R(m)}, {R(vLg)}, {R(vLg+1)}, {R(vLg+2)}"); e(f"v_max3_f32 {R(m)}, {R(m)}, {R(vLg+3)}, {R(vLg+4)}")
    e(f"v_max3_f32 {R(m)}, {R(m)}, {R(vLg+5)}, {R(vLg+6)}"); e(f"v_max_f32 {R(m)}, {R(m)}, {R(vLg+7)}")
    for jj in range(8): e(f"v_sub_f32 {R(vLg+jj)}, {R(vLg+jj)}, {R(m)}")
    for jj in range(8): e(f"v_mul_f32 {R(vLg+jj)}, {R(7)}, {R(vLg+jj)}")
    for jj in range(8): e(f"v_exp_f32 {R(vLg+jj)}, {R(vLg+jj)}")
    e.nop(1)
    e(f"v_pk_add_f32 {R(10,2)}, {R(vLg,2)}, {R(vLg+2,2)}"); e(f"v_pk_add_f32 {R(12,2)}, {R(vLg+4,2)}, {R(vLg+6,2)}")
    e(f"v_pk_add_f32 {R(10,2)}, {R(10,2)}, {R(12,2)}"); e(f"v_add_f32 {R(10)}, {R(10)}, {R(11)}"); e(f"v_rcp_f32 {R(10)}, {R(10)}")
    for jj in range(8):
        e.wlg(("v",jj)); pb=vLg+(jj&~1); o=jj&1
        for i in range(4):
            if jj==0: e(f"v_pk_mul_f32 {R(vO+2*i,2)}, {R(vV+2*i,2)}, {R(pb,2)} op_sel_hi:[1,0]")
            else: e(f"v_pk_fma_f32 {R(vO+2*i,2)}, {R(vV+8*jj+2*i,2)}, {R(pb,2)}, {R(vO+2*i,2)} op_sel:[0,{o},0] op_sel_hi:[1,{o},1]")
    for i in range(4): e(f"v_pk_mul_f32 {R(vO+2*i,2)}, {R(vO+2*i,2)}, {R(10,2)} op_sel_hi:[1,0]")
    for i in range(4): e(f"v_cvt_pk_bf16_f32 {R(vQ+i)}, {R(vO+2*i)}, {R(vO+2*i+1)}")
    e.vmem(f"buffer_store_dwordx4 {R(vQ,4)}, {R(5)}, {S(srdO,4)}, 0 offen","st")
    return ST1+1024

def desc(k):
    return f""".p2align 6
.amdhsa_kernel {k}
  .amdhsa_next_free_vgpr 256
  .amdhsa_next_free_sgpr 102
  .amdhsa_accum_offset 256
  .amdhsa_group_segment_fixed_size 0
  .amdhsa_kernarg_size 72
  .amdhsa_user_sgpr_count 2
  .amdhsa_user_sgpr_kernarg_segment_ptr 1
  .amdhsa_system_sgpr_workgroup_id_x 1
.end_amdhsa_kernel
"""
def build_multi():
    e=Em(); hdr=""; ks=[]
    for L in range(2):
        for p in (1,2,3,4):
            k=f"p{p}l{L}_kernel"; ks.append(k); nwg=224 if p==3 else 256
            e.L.append(f".globl {k}\n.p2align 8\n.type {k},@function\n{k}:"); e.endlab=f"end_{k}"; e.reset()
            prologue(e,nwg)
            lds=phase1(e,L) if p==1 else phase3(e,L) if p==3 else phase_rs(e,L,p)
            e.lab(e.endlab); e("s_endpgm")
            hdr+=f"; @launch kernel={k} grid=({nwg},1,1) block=(512,1,1) lds={lds}\n"
    return hdr+'.amdgcn_target "amdgcn-amd-amdhsa--gfx950"\n.text\n'+e.text()+'.section .rodata,"a"\n'+"".join(desc(k) for k in ks)
if __name__=="__main__":
    out=sys.argv[1] if len(sys.argv)>1 else f"cdna_kernels/{NAME}.s"
    open(out,"w").write(build_multi())
```

```python
import sys,os
DBG=os.environ.get('DBG','')
from em import *
NAME="interleave_layers__sliding_local_dilated__dense_activation_silu__prompt"
MB=1<<20
O_OFF,X1_OFF,H_OFF,X2_OFF,ST_OFF=0,2*MB,4*MB,12*MB,14*MB
LSTRIDE=16*MB
sW,sXCD,sJ,sT0,sT1,sT2,sT3,sMB,sNB,sKQ,sMH,sLB=3,4,5,6,7,8,9,10,11,12,13,14
sONE=15
srdA,srdW,srdR,srdO,srdS=16,20,24,28,32
pX,pQKV,pWO,pW1,pW2,pOUT,pWS=36,38,40,44,46,48,52
sD=56
vL=1
sMODE,sTAG=54,55
srdF,srdD=96,24
FL_OFF,X2H_OFF=40*MB,15*MB
vRES=248
vINFO=244
FORCE_SLOW=False
ONES=0x3F803F80

PROF=False
def stamp(e,i):
    if PROF: e(f"s_memrealtime {S(72+2*i,2)}")
def stamp_flush(e,slot,n=12):
    if not PROF: return
    sk=e.newlab("nopf"); e(f"s_cmp_lg_u32 {S(sW)}, 0"); e(f"s_cbranch_scc1 {sk}")
    e("s_waitcnt vmcnt(0)"); stamp(e,n-1); e("s_waitcnt lgkmcnt(0)")
    srd(e,srdS,pWS,200*MB,MB)
    e(f"s_lshl_b32 {S(sT0)}, s2, 7"); e(f"s_add_u32 {S(sT0)}, {S(sT0)}, {slot*32768}"); e(f"v_mov_b32 v2, {S(sT0)}")
    for i in range(n):
        e(f"v_mov_b32 v4, {S(72+2*i)}"); e(f"v_mov_b32 v5, {S(73+2*i)}"); e(f"buffer_store_dwordx2 v[4:5], v2, {S(srdS,4)}, 0 offen offset:{i*8}"); e.nop(2)
    e.lab(sk)
def gstore(e,instr,tag):
    a,b=e.newlab("gs"),e.newlab("gd")
    e(f"s_cmp_eq_u32 {S(sMODE)}, 0"); e(f"s_cbranch_scc1 {a}"); e.vmem(instr+(' nt' if 'stnt' in DBG else ' sc0' if 'stsc0' in DBG else ''),tag); e(f"s_branch {b}")
    e.lab(a); e(instr+" sc1"); e.lab(b)
def spin(e,body,cond):
    lp,out=e.newlab("spin"),e.newlab("spun")
    e(f"s_mov_b32 {S(sT3)}, 0"); e.lab(lp); body()
    e(f"s_add_u32 {S(sT3)}, {S(sT3)}, 1"); e(f"s_cmp_gt_u32 {S(sT3)}, 0x40000"); e(f"s_cbranch_scc1 {out}")
    cond(lp); e.lab(out)
def publish(e,ph,pre=None):
    e.wvm0(); e.bar()
    sk=e.newlab("nopub"); e(f"s_cmp_lg_u32 {S(sW)}, 0"); e(f"s_cbranch_scc1 {sk}")
    e(f"s_lshl_b32 {S(sT0)}, {S(sXCD)}, 7"); e(f"s_lshl_b32 {S(sT1)}, {S(sJ)}, 2"); e(f"s_add_u32 {S(sT0)}, {S(sT0)}, {S(sT1)}")
    e(f"v_mov_b32 v2, {S(sT0)}"); e(f"v_mov_b32 v3, {S(sTAG)}"); e("s_mov_b64 exec, 1")
    e(f"s_mov_b32 {S(sT2)}, {ph*1024}")
    gstore(e,f"buffer_store_dword v3, v2, {S(srdF,4)}, {S(sT2)} offen","fl")
    if pre: pre()
    e("s_mov_b64 exec, -1"); e.lab(sk); e.reset()
def waitflags(e,ph,jbase,n,second=None):
    sk=e.newlab("nopoll"); e(f"s_cmp_lg_u32 {S(sW)}, 0"); e(f"s_cbranch_scc1 {sk}")
    e(f"s_lshl_b32 {S(sT0)}, {S(sXCD)}, 7"); e(f"s_lshl_b32 {S(sT1)}, {S(jbase)}, 2"); e(f"s_add_u32 {S(sT0)}, {S(sT0)}, {S(sT1)}")
    e(f"s_add_u32 {S(sT0)}, {S(sT0)}, {ph*1024}")
    e(f"v_min_u32 v2, {n-1}, {R(vL)}"); e(f"v_lshl_add_u32 v2, v2, 2, {S(sT0)}")
    if second is not None:
        e(f"v_and_b32 v3, 7, {R(vL)}"); e(f"v_lshl_add_u32 v3, v3, 2, {S(second)}"); e(f"v_cmp_gt_u32 vcc, 8, {R(vL)}"); e.nop(2); e("v_cndmask_b32 v2, v3, v2, vcc")
    def body(): e(f"buffer_load_dword v3, v2, {S(srdF,4)}, 0 offen sc1"); e("s_waitcnt vmcnt(0)"); e(f"v_cmp_ne_u32 vcc, {S(sTAG)}, v3")
    spin(e,body,lambda lp:e(f"s_cbranch_vccnz {lp}"))
    e(f"s_cmp_lg_u32 {S(sMODE)}, 0"); e(f"s_cbranch_scc1 {sk}"); e("buffer_inv sc1"); e("s_waitcnt vmcnt(0)")
    e.lab(sk); e.bar()
def hello(e):
    e(f"s_getreg_b32 {S(sT0)}, hwreg(HW_REG_XCC_ID, 0, 3)"); e(f"s_mul_i32 {S(sT0)}, {S(sT0)}, 6")
    e(f"s_lshl_b64 {S(sD+14,2)}, 1, {S(sT0)}"); e(f"s_add_u32 {S(sD+15)}, {S(sD+15)}, 0x1000000")
    e(f"s_lshl_b32 {S(sT1)}, {S(sXCD)}, 4"); e(f"v_mov_b32 v2, {S(sT1)}"); e(f"v_mov_b32 v4, {S(sD+14)}"); e(f"v_mov_b32 v5, {S(sD+15)}")
    e("s_mov_b64 exec, 1"); e.vmem(f"buffer_atomic_add_x2 v[4:5], v2, {S(srdD,4)}, 0 offen","hello")
    s2=e.newlab("notag"); e("s_cmp_lg_u32 s2, 0"); e(f"s_cbranch_scc1 {s2}")
    e("v_mov_b32 v2, 0x3000"); e(f"buffer_load_dword v3, v2, {S(srdF,4)}, 0 offen sc1"); e("s_waitcnt vmcnt(0)")
    e("v_add_u32 v3, 0x9e3779b9, v3"); e("v_max_u32 v3, 1, v3"); e(f"buffer_store_dword v3, v2, {S(srdF,4)}, 0 offen sc1")
    e("v_mov_b32 v2, 0x80"); e(f"buffer_store_dword v3, v2, {S(srdD,4)}, 0 offen sc1")
    e("s_waitcnt vmcnt(0)"); e.lab(s2); e("s_mov_b64 exec, -1"); e.nop(2)
def getmode(e):
    e(f"s_lshl_b32 {S(sT0)}, {S(sXCD)}, 4"); e(f"v_mov_b32 {R(vINFO)}, {S(sT0)}"); e(f"v_mov_b32 {R(vINFO+1)}, 0x80")
    def body():
        e(f"buffer_load_dwordx2 {R(vINFO+2,2)}, {R(vINFO)}, {S(srdD,4)}, 0 offen sc1"); e(f"buffer_load_dword {R(vINFO-1)}, {R(vINFO+1)}, {S(srdD,4)}, 0 offen sc1")
        e("s_waitcnt vmcnt(0)"); e(f"v_readfirstlane_b32 {S(sD)}, {R(vINFO+2)}"); e(f"v_readfirstlane_b32 {S(sD+1)}, {R(vINFO+3)}"); e(f"v_readfirstlane_b32 {S(sTAG)}, {R(vINFO-1)}")
    def cond(lp):
        e(f"s_lshr_b32 {S(sT0)}, {S(sD+1)}, 24"); e(f"s_cmp_lt_u32 {S(sT0)}, 32"); e(f"s_cbranch_scc1 {lp}")
        e(f"s_cmp_eq_u32 {S(sTAG)}, 0"); e(f"s_cbranch_scc1 {lp}")
    spin(e,body,cond)
    e(f"s_getreg_b32 {S(sT0)}, hwreg(HW_REG_XCC_ID, 0, 3)"); e(f"s_mul_i32 {S(sT0)}, {S(sT0)}, 6")
    e(f"s_lshr_b64 {S(sD,2)}, {S(sD,2)}, {S(sT0)}"); e(f"s_and_b32 {S(sD)}, {S(sD)}, 63"); e(f"s_cmp_eq_u32 {S(sD)}, 32")
    e(f"s_cselect_b32 {S(sMODE)}, {0 if FORCE_SLOW else 1}, 0")
def prefetch(e,sr,ptr,total,nw,sw,va,dst,extra=None):
    per=total//32//nw; lines=per//128
    srd(e,sr,ptr,0,total if extra is None else 2*MB)
    e(f"s_mul_i32 {S(sT0)}, {S(sJ)}, {total//32}"); e(f"s_mul_i32 {S(sT1)}, {S(sw)}, {per}"); e(f"s_add_u32 {S(sT0)}, {S(sT0)}, {S(sT1)}")
    if extra is not None: e(f"s_lshl_b32 {S(sT1)}, {S(sXCD)}, {extra}"); e(f"s_add_u32 {S(sT0)}, {S(sT0)}, {S(sT1)}")
    for i in range((lines+63)//64):
        n=min(64,lines-64*i)
        e(f"v_min_u32 {R(va)}, {n-1}, {R(vL)}"); e(f"v_lshl_add_u32 {R(va)}, {R(va)}, 7, {S(sT0)}")
        if i: e(f"v_add_u32 {R(va)}, {8192*i}, {R(va)}")
        e.vmem(f"buffer_load_dword {R(dst)}, {R(va)}, {S(sr,4)}, 0 offen","pf")
def prologue(e,nwg):
    e(f"s_cmp_ge_u32 s2, {nwg}"); e("s_cbranch_scc1 "+e.endlab)
    stamp(e,0)
    e(f"s_load_dwordx16 s[36:51], s[0:1], 0"); e(f"s_load_dwordx2 s[52:53], s[0:1], 64")
    e("v_lshrrev_b32 v2, 6, v0"); e(f"v_and_b32 {R(vL)}, 63, v0")
    e(f"v_readfirstlane_b32 {S(sW)}, v2")
    e(f"s_and_b32 {S(sXCD)}, s2, 7"); e(f"s_lshr_b32 {S(sJ)}, s2, 3")
    e(f"s_mov_b32 {S(sONE)}, {ONES:#x}")
    e("s_waitcnt lgkmcnt(0)")
def srd(e,d,p,off,size):
    if off: e(f"s_add_u32 {S(d)}, {S(p)}, {off:#x}"); e(f"s_addc_u32 {S(d+1)}, {S(p+1)}, 0")
    else: e(f"s_mov_b32 {S(d)}, {S(p)}"); e(f"s_mov_b32 {S(d+1)}, {S(p+1)}")
    e(f"s_mov_b32 {S(d+2)}, {size:#x}"); e(f"s_mov_b32 {S(d+3)}, 0x20000")
def dma(e,vaddr,srd_,soff,m0expr,tag,sc1=False):
    sg,c=m0expr
    if sg is None: e(f"s_mov_b32 m0, {c:#x}")
    else: e(f"s_add_u32 m0, {S(sg)}, {c:#x}")
    if soff: e(f"s_mov_b32 {S(sT3)}, {soff:#x}"); so=S(sT3)
    else: e("s_nop 0"); so="0"
    e.vmem(f"buffer_load_dwordx4 {R(vaddr)}, {S(srd_,4)}, {so} offen {'sc1 ' if sc1 else ''}lds",tag)
def ldfrag(e,dst,vaddr,srd_,t,tag,st):
    hi=t>>2
    if hi and (t&3==0 or st): e(f"s_mov_b32 {S(sT2)}, {hi*4096:#x}")
    so=S(sT2) if hi else "0"
    e.vmem(f"buffer_load_dwordx4 {R(dst,4)}, {R(vaddr)}, {S(srd_,4)}, {so} offen offset:{(t&3)*1024}"+(' sc1' if 'ldsc1' in DBG else ' nt' if 'ldnt' in DBG else ''),tag)
def tr_lane_base(e,dst,tmp,perm):
    a,b,c=tmp,tmp+1,tmp+2
    e(f"v_bfe_u32 {R(a)}, {R(vL)}, 2, 2")
    e(f"v_lshrrev_b32 {R(b)}, 5, {R(vL)}")
    e(f"v_lshl_add_u32 {R(dst)}, {R(b)}, 3, {R(a)}")
    e(f"v_lshlrev_b32 {R(dst)}, 7, {R(dst)}")
    e(f"v_lshrrev_b32 {R(a)}, 1, {R(a)}"); e(f"v_lshlrev_b32 {R(a)}, 2, {R(a)}")
    e(f"v_lshl_or_b32 {R(a)}, {R(b)}, 1, {R(a)}")
    if perm=="frag":
        e(f"v_bfe_u32 {R(b)}, {R(vL)}, 4, 1"); e(f"v_and_b32 {R(c)}, 1, {R(vL)}")
        e(f"v_lshl_or_b32 {R(b)}, {R(b)}, 1, {R(c)}"); e(f"v_bfe_u32 {R(c)}, {R(vL)}, 1, 1")
    else:
        e(f"v_and_b32 {R(b)}, 1, {R(vL)}"); e(f"v_bfe_u32 {R(c)}, {R(vL)}, 4, 1")
        e(f"v_lshl_or_b32 {R(b)}, {R(b)}, 1, {R(c)}"); e(f"v_bfe_u32 {R(c)}, {R(vL)}, 1, 1")
    e(f"v_xor_b32 {R(a)}, {R(a)}, {R(b)}")
    e(f"v_lshl_add_u32 {R(dst)}, {R(a)}, 4, {R(dst)}")
    e(f"v_lshl_add_u32 {R(dst)}, {R(c)}, 3, {R(dst)}")
def wdma_lane(e,dst,tmp,rowstride,odd):
    a,b=tmp,tmp+1
    e(f"v_lshrrev_b32 {R(a)}, 3, {R(vL)}")
    e(f"s_mov_b32 {S(sT0)}, {rowstride}"); e(f"v_mul_lo_u32 {R(dst)}, {R(a)}, {S(sT0)}")
    e(f"v_bfe_u32 {R(a)}, {R(vL)}, 4, 1"); e(f"v_lshlrev_b32 {R(a)}, 2, {R(a)}")
    if isinstance(odd,int):
        if odd: e(f"v_or_b32 {R(a)}, 2, {R(a)}")
    else: e(f"v_lshl_or_b32 {R(a)}, {odd}, 1, {R(a)}")
    e(f"v_and_b32 {R(b)}, 7, {R(vL)}"); e(f"v_xor_b32 {R(a)}, {R(a)}, {R(b)}")
    e(f"v_lshl_add_u32 {R(dst)}, {R(a)}, 4, {R(dst)}")
def mfma32(e,d,a,b,first): e(f"v_mfma_f32_32x32x16_bf16 {R(d,16)}, {R(a,4)}, {R(b,4)}, {'0' if first else R(d,16)}")
def mfma16(e,d,a,b,first): e(f"v_mfma_f32_16x16x32_bf16 {R(d,4)}, {R(a,4)}, {R(b,4)}, {'0' if first else R(d,4)}")
def trread(e,dst,va,off,tag):
    e.lds(f"ds_read_b64_tr_b16 {R(dst,2)}, {R(va)} offset:{off}",tag)
    e.lds(f"ds_read_b64_tr_b16 {R(dst+2,2)}, {R(va)} offset:{off+512}",tag)
def allsum_halves(e,a,t):
    e(f"v_mov_b32 {R(t)}, {R(a)}"); e.nop(2); e(f"v_permlane32_swap_b32 {R(t)}, {R(a)}"); e.nop(1); e(f"v_add_f32 {R(a)}, {R(a)}, {R(t)}")
def meanrstd(e,s_,q,t):
    e(f"v_mul_f32 {R(s_)}, 0x3b000000, {R(s_)}"); e(f"v_mul_f32 {R(q)}, 0x3b000000, {R(q)}")
    e(f"v_fma_f32 {R(q)}, -{R(s_)}, {R(s_)}, {R(q)}"); e(f"v_max_f32 {R(q)}, 0, {R(q)}")
    e(f"v_add_f32 {R(q)}, 0x3727c5ac, {R(q)}"); e(f"v_rsq_f32 {R(q)}, {R(q)}"); e.nop(1)

def phase_rs(e,L,which):
    P2=which==2
    K=512 if P2 else 1792; KS=K//64; RING=8 if P2 else 20; SLAB=RING*2048
    wo=L*LSTRIDE
    e(f"s_lshr_b32 {S(sMB)}, {S(sJ)}, 3"); e(f"s_lshl_b32 {S(sT0)}, {S(sXCD)}, 2"); e(f"s_add_u32 {S(sMB)}, {S(sMB)}, {S(sT0)}")
    e(f"s_and_b32 {S(sNB)}, {S(sJ)}, 7"); e(f"s_and_b32 {S(sKQ)}, {S(sW)}, 3"); e(f"s_lshr_b32 {S(sMH)}, {S(sW)}, 2")
    if P2:
        srd(e,srdA,pWS,wo+O_OFF,2*MB); srd(e,srdW,pWO,0,512*1024)
        if L==0: srd(e,srdR,pX,0,2*MB)
        srd(e,srdO,pWS,wo+X1_OFF,2*MB); srd(e,srdS,pWS,wo+ST_OFF,128*1024)
    else:
        srd(e,srdA,pWS,wo+H_OFF,7*MB); srd(e,srdW,pW2,0,1792*1024); srd(e,srdR,pWS,X2H_OFF,128*1024)
        if L==0: srd(e,srdO,pWS,X2_OFF,2*MB)
        else: srd(e,srdO,pOUT,0,2*MB)
    vA,vB,vF,vRM,vT0,vT1,vRD,vRes,vAcc,vBf,vAf=12,13,4,5,6,7,8,vRES,16,48,80
    tmp=9
    mt=sD;
    e(f"s_lshl_b32 {S(mt)}, {S(sMB)}, 1"); e(f"s_add_u32 {S(mt)}, {S(mt)}, {S(sMH)}")
    wdma_lane(e,vB,tmp,1024,S(sMH))
    e(f"s_mul_i32 {S(sT0)}, {S(sKQ)}, {KS*16*1024}"); e(f"s_lshl_b32 {S(sT1)}, {S(sMH)}, 13"); e(f"s_add_u32 {S(sT0)}, {S(sT0)}, {S(sT1)}")
    e(f"s_lshl_b32 {S(sT1)}, {S(sNB)}, 7"); e(f"s_add_u32 {S(sT0)}, {S(sT0)}, {S(sT1)}"); e(f"v_add_u32 {R(vB)}, {S(sT0)}, {R(vB)}")
    e(f"s_mul_i32 {S(sLB)}, {S(sKQ)}, {SLAB}"); e(f"s_lshl_b32 {S(sT1)}, {S(sMH)}, 10"); e(f"s_add_u32 {S(sD+1)}, {S(sLB)}, {S(sT1)}")
    e(f"s_mul_i32 {S(sT0)}, {S(mt)}, {K//16*1024}"); e(f"s_mul_i32 {S(sT1)}, {S(sKQ)}, {KS*1024}"); e(f"s_add_u32 {S(sT0)}, {S(sT0)}, {S(sT1)}")
    e(f"v_lshl_add_u32 {R(vA)}, {R(vL)}, 4, {S(sT0)}")
    if P2: e(f"s_and_b32 {S(sD+2)}, {S(sJ)}, 24"); waitflags(e,L*4,sD+2,8)
    else: e(f"s_lshr_b32 {S(sD+2)}, {S(sJ)}, 4"); e(f"s_mul_i32 {S(sD+2)}, {S(sD+2)}, 14"); waitflags(e,L*4+2,sD+2,14)
    stamp(e,9)
    for t in range(KS):
        if t<RING and 'noB' not in DBG: dma(e,vB,srdW,t*16384,(sD+1,t*2048),("B",t//4))
        if 'noA' not in DBG: ldfrag(e,vAf+4*t,vA,srdA,t,("A",t//4),False)
        if t==3:
            e(f"s_lshl_b32 {S(sT0)}, {S(mt)}, 5"); e(f"s_lshl_b32 {S(sT1)}, {S(sNB)}, 2"); e(f"s_add_u32 {S(sT1)}, {S(sT1)}, {S(sKQ)}")
            e(f"s_add_u32 {S(sT0)}, {S(sT0)}, {S(sT1)}"); e(f"s_lshl_b32 {S(sT0)}, {S(sT0)}, 10")
            e(f"v_lshl_add_u32 {R(vF)}, {R(vL)}, 4, {S(sT0)}")
            e(f"s_lshl_b32 {S(sT0)}, {S(mt)}, 15"); e(f"s_lshl_b32 {S(sT1)}, {S(sT1)}, 5"); e(f"s_add_u32 {S(sT0)}, {S(sT0)}, {S(sT1)}")
            e(f"v_and_b32 {R(tmp)}, 31, {R(vL)}"); e(f"v_lshlrev_b32 {R(tmp)}, 10, {R(tmp)}"); e(f"v_lshrrev_b32 {R(tmp+1)}, 5, {R(vL)}")
            e(f"v_lshl_add_u32 {R(tmp)}, {R(tmp+1)}, 4, {R(tmp)}"); e(f"v_add_u32 {R(vRM)}, {S(sT0)}, {R(tmp)}")
            if P2 and L==0: e.vmem(f"buffer_load_dwordx4 {R(vRes,4)}, {R(vRM)}, {S(srdR,4)}, 0 offen","res")
    tr_lane_base(e,vT0,tmp,"frag")
    e(f"v_add_u32 {R(vT0)}, {S(sLB)}, {R(vT0)}"); e(f"v_xor_b32 {R(vT1)}, 64, {R(vT0)}")
    e(f"s_lshl_b32 {S(sT0)}, {S(sMH)}, 15"); e(f"v_lshl_add_u32 {R(vRD)}, {R(vL)}, 4, {S(sT0)}")
    for ch in range(KS//4):
        e.wvm([("B",ch)]); e.bar()
        stamp(e,1+ch)
        for t in range(4*ch,4*ch+4):
            for nt in range(2): trread(e,vBf+(t&3)*8+nt*4,vT0+nt,(t%RING)*2048,("f",t,nt))
        if ch>=1 and RING+4*(ch-1)<KS:
            for t in range(RING+4*(ch-1),RING+4*ch): dma(e,vB,srdW,t*16384,(sD+1,(t%RING)*2048),("B",t//4))
        if not P2 and L==0 and ch==3:
            e(f"s_lshl_b32 {S(sT0)}, {S(sMB)}, 3"); e(f"s_add_u32 {S(sT0)}, {S(sT0)}, {S(sW)}"); e(f"s_lshl_b32 {S(sT0)}, {S(sT0)}, 13")
            e(f"s_lshl_b32 {S(sT1)}, {S(sNB)}, 7"); e(f"s_add_u32 {S(sT0)}, {S(sT0)}, {S(sT1)}")
            e(f"v_and_b32 v9, 7, {R(vL)}"); e(f"v_lshl_add_u32 v9, v9, 10, {S(sT0)}")
            e.vmem(f"buffer_load_dword v242, v9, {S(srdO,4)}, 0 offen sc1","pf")
            prefetch(e,srdS,pQKV,512*3072,8,sW,9,240)
        e.wvm([("A",ch)])
        for t in range(4*ch,4*ch+4):
            for nt in range(2):
                e.wlg(("f",t,nt)); mfma32(e,vAcc+16*nt,vBf+(t&3)*8+nt*4,vAf+4*t,t==0)
    e.bar(); stamp(e,10); e.nop(10)
    own=vBf
    done=e.newlab("rdone"); labs=[e.newlab("rv") for _ in range(4)]
    for q in range(1,4): e(f"s_cmp_eq_u32 {S(sKQ)}, {q}"); e(f"s_cbranch_scc1 {labs[q]}")
    for kq in range(4):
        e.lab(labs[kq])
        for q in range(4):
            if q==kq: continue
            for j in range(2): e(f"ds_write_b128 {R(vRD)}, {R(vAcc+8*q+4*j,4)} offset:{(q*4+((kq-q)&3))*2048+j*1024}")
        for j in range(8): e(f"v_mov_b32 {R(own+j)}, {R(vAcc+8*kq+j)}")
        if kq<3: e(f"s_branch {done}")
    e.lab(done)
    e(f"s_lshl_b32 {S(sT0)}, {S(sKQ)}, 13"); e(f"v_add_u32 {R(vRD)}, {S(sT0)}, {R(vRD)}")
    e.wlg0(); e.bar()
    for i in range(1,4):
        for j in range(2): e.lds(f"ds_read_b128 {R(own+8*i+4*j,4)}, {R(vRD)} offset:{i*2048+j*1024}",("p",i))
    e.wvm("res")
    rf=vAcc
    for j in range(4):
        e(f"v_lshlrev_b32 {R(rf+2*j)}, 16, {R(vRes+j)}"); e(f"v_and_b32 {R(rf+2*j+1)}, 0xffff0000, {R(vRes+j)}")
    for j in range(4): e(f"v_pk_add_f32 {R(own+2*j,2)}, {R(own+2*j,2)}, {R(rf+2*j,2)}")
    for i in range(1,4):
        e.wlg(("p",i))
        for j in range(4): e(f"v_pk_add_f32 {R(own+2*j,2)}, {R(own+2*j,2)}, {R(own+8*i+2*j,2)}")
    for j in range(4): e(f"v_cvt_pk_bf16_f32 {R(vRes+j)}, {R(own+2*j)}, {R(own+2*j+1)}")
    ins=f"buffer_store_dwordx4 {R(vRes,4)}, {R(vF if P2 else vRM)}, {S(srdO,4)}, 0 offen"
    if P2 or L==0: gstore(e,ins,"st")
    else: e.vmem(ins,"st")
    if not P2 and L==0:
        sk=e.newlab("nohalo"); e(f"s_and_b32 {S(sT0)}, {S(mt)}, 7"); e(f"s_cmp_lg_u32 {S(sT0)}, 7"); e(f"s_cbranch_scc1 {sk}")
        e(f"s_lshl_b32 {S(sT0)}, {S(mt)}, 15"); e(f"s_lshl_b32 {S(sT1)}, {S(sXCD)}, 14"); e(f"s_sub_u32 {S(sT0)}, {S(sT0)}, {S(sT1)}"); e(f"s_add_u32 {S(sT0)}, {S(sT0)}, 0x4000")
        e(f"v_subrev_u32 {R(tmp)}, {S(sT0)}, {R(vRM)}"); e("s_mov_b32 exec_lo, 0xffff0000"); e("s_mov_b32 exec_hi, 0xffff0000")
        e(f"buffer_store_dwordx4 {R(vRes,4)}, {R(tmp)}, {S(srdR,4)}, 0 offen sc1"); e("s_mov_b64 exec, -1"); e.lab(sk)
        def xflag():
            sk=e.newlab("noxf"); e(f"s_cmp_lt_u32 {S(sJ)}, 24"); e(f"s_cbranch_scc1 {sk}")
            e(f"s_mov_b32 {S(sT2)}, {7*1024}"); e(f"buffer_store_dword v3, v2, {S(srdF,4)}, {S(sT2)} offen sc1"); e.lab(sk)
        publish(e,3,xflag)
    if P2:
        a,b=rf,rf+1
        e(f"v_dot2_f32_bf16 {R(a)}, {R(vRes)}, {S(sONE)}, 0"); e(f"v_dot2_f32_bf16 {R(b)}, {R(vRes)}, {R(vRes)}, 0")
        for j in range(1,4):
            e(f"v_dot2_f32_bf16 {R(a)}, {R(vRes+j)}, {S(sONE)}, {R(a)}"); e(f"v_dot2_f32_bf16 {R(b)}, {R(vRes+j)}, {R(vRes+j)}, {R(b)}")
        e(f"s_lshl_b32 {S(sT0)}, {S(sW)}, 8"); e(f"s_add_u32 {S(sT0)}, {S(sT0)}, 0x10000")
        e(f"v_lshl_add_u32 {R(tmp)}, {R(vL)}, 2, {S(sT0)}"); e.nop(2)
        e(f"v_permlane32_swap_b32 {R(a)}, {R(b)}"); e.nop(1); e(f"v_add_f32 {R(a)}, {R(a)}, {R(b)}")
        e(f"ds_write_b32 {R(tmp)}, {R(a)}"); e.wlg0(); e.bar()
        sk=e.newlab("nost"); e(f"s_cmp_lg_u32 {S(sKQ)}, 0"); e(f"s_cbranch_scc1 {sk}")
        for i in range(1,4): e(f"ds_read_b32 {R(rf+1+i)}, {R(tmp)} offset:{i*256}")
        e(f"s_lshl_b32 {S(sT0)}, {S(mt)}, 3"); e(f"s_add_u32 {S(sT0)}, {S(sT0)}, {S(sNB)}"); e(f"s_lshl_b32 {S(sT0)}, {S(sT0)}, 8")
        e(f"v_lshl_add_u32 {R(tmp)}, {R(vL)}, 2, {S(sT0)}"); e.wlg0()
        e(f"v_add_f32 {R(a)}, {R(a)}, {R(rf+2)}"); e(f"v_add_f32 {R(rf+3)}, {R(rf+3)}, {R(rf+4)}"); e(f"v_add_f32 {R(a)}, {R(a)}, {R(rf+3)}")
        gstore(e,f"buffer_store_dword {R(a)}, {R(tmp)}, {S(srdS,4)}, 0 offen","st")
        e.lab(sk)
        publish(e,L*4+1)
    return (66*1024+1024) if P2 else 160*1024

def phase3(e,L):
    wo=L*LSTRIDE
    e(f"s_cmp_ge_u32 {S(sJ)}, 14"); e(f"s_cselect_b32 {S(sT0)}, 1, 0"); e(f"s_cselect_b32 {S(sT1)}, 14, 0")
    e(f"s_sub_u32 {S(sNB)}, {S(sJ)}, {S(sT1)}"); e(f"s_lshl_b32 {S(sMB)}, {S(sXCD)}, 1"); e(f"s_add_u32 {S(sMB)}, {S(sMB)}, {S(sT0)}")
    srd(e,srdA,pWS,wo+X1_OFF,2*MB); srd(e,srdW,pW1,0,512*3584); srd(e,srdO,pWS,wo+H_OFF,7*MB); srd(e,srdS,pWS,wo+ST_OFF,128*1024)
    CS=131072
    ld=e.newlab("p3ld"); fin=e.newlab("p3fin"); skip=e.newlab("p3skip")
    e(f"s_cmp_ge_u32 {S(sJ)}, 28"); e(f"s_cbranch_scc1 {skip}")
    e(f"s_and_b32 {S(sD+2)}, {S(sMB)}, 1"); e(f"s_lshl_b32 {S(sD+2)}, {S(sD+2)}, 4"); waitflags(e,L*4+1,sD+2,16); stamp(e,9)
    tmp=9
    e(f"s_cmp_ge_u32 {S(sW)}, 4"); e(f"s_cbranch_scc1 {ld}")
    vA,vT,vH,vM,vS,vSt,vAcc,vBf,vAf=2,4,3,12,14,16,24,88,120
    mt=sD
    e(f"s_lshl_b32 {S(mt)}, {S(sMB)}, 2"); e(f"s_add_u32 {S(mt)}, {S(mt)}, {S(sW)}")
    e(f"s_lshl_b32 {S(sT0)}, {S(mt)}, 15"); e(f"v_lshl_add_u32 {R(vA)}, {R(vL)}, 4, {S(sT0)}")
    e(f"s_lshl_b32 {S(sT0)}, {S(mt)}, 11"); e(f"v_lshl_add_u32 {R(vH)}, {R(vL)}, 2, {S(sT0)}")
    for t in range(32):
        if 'noA' not in DBG: ldfrag(e,vAf+4*t,vA,srdA,t,("A",t),False)
        if t==7:
            for i in range(8): e.vmem(f"buffer_load_dword {R(vSt+i)}, {R(vH)}, {S(srdS,4)}, 0 offen offset:{i*256}","st")
    tr_lane_base(e,vT,tmp,"frag")
    e(f"v_xor_b32 {R(vT+1)}, 64, {R(vT)}"); e(f"v_add_u32 {R(vT+2)}, 0x10000, {R(vT)}"); e(f"v_add_u32 {R(vT+3)}, 0x10000, {R(vT+1)}")
    e(f"s_mul_i32 {S(sT0)}, {S(mt)}, {112*1024}"); e(f"s_lshl_b32 {S(sT1)}, {S(sNB)}, 13"); e(f"s_add_u32 {S(sT0)}, {S(sT0)}, {S(sT1)}")
    e(f"v_lshl_add_u32 {R(vH)}, {R(vL)}, 4, {S(sT0)}")
    def rd(t):
        for nt in range(4): trread(e,vBf+(t&1)*16+nt*4,vT+nt,t*2048,("f",t,nt))
    e.bar(); stamp(e,1); rd(0)
    for t in range(32):
        if t+1<32:
            if (t+1)%4==0: e.bar(); stamp(e,1+(t+1)//4)
            rd(t+1)
        e.wvm(("A",t))
        for nt in range(4):
            e.wlg(("f",t,nt)); mfma32(e,vAcc+16*nt,vBf+(t&1)*16+nt*4,vAf+4*t,t==0)
        if t==9:
            for i in (4,2,1):
                for j in range(i): e(f"v_add_f32 {R(vSt+j)}, {R(vSt+j)}, {R(vSt+j+i)}")
            e(f"v_mov_b32 {R(vSt+1)}, {R(vSt)}"); e.nop(2); e(f"v_permlane32_swap_b32 {R(vSt)}, {R(vSt+1)}"); e.nop(1)
            meanrstd(e,vSt,vSt+1,tmp)
            e(f"v_sub_f32 {R(vM)}, 0, {R(vSt)}"); e(f"v_mov_b32 {R(vS)}, {R(vSt+1)}"); e(f"v_mul_f32 {R(vS+1)}, 0xbfb8aa3b, {R(vSt+1)}")
    e(f"v_lshrrev_b32 {R(tmp)}, 5, {R(vL)}"); e(f"v_lshlrev_b32 {R(tmp)}, 4, {R(tmp)}"); e(f"v_add_u32 {R(tmp)}, {CS:#x}, {R(tmp)}")
    e.bar(); stamp(e,10)
    vC=vAf
    for nt in range(4):
        for g in range(4): e.lds(f"ds_read_b128 {R(vC+16*nt+4*g,4)}, {R(tmp)} offset:{nt*128+g*32}",("c",nt))
    e(f"v_mov_b32 {R(vSt)}, 1.0"); e(f"v_mov_b32 {R(vSt+1)}, 1.0"); e.nop(4)
    U=vBf; PK=vAf+64
    for nt in range(4):
        e.wlg(("c",nt))
        for hh in range(2):
            b=vAcc+16*nt+8*hh; c=vC+16*nt+8*hh; o=PK+(nt*2+hh)*4
            for j in range(4): e(f"v_pk_fma_f32 {R(b+2*j,2)}, {R(c+2*j,2)}, {R(vM,2)}, {R(b+2*j,2)} op_sel_hi:[1,0,1]")
            for j in range(4): e(f"v_pk_mul_f32 {R(U+2*j,2)}, {R(b+2*j,2)}, {R(vS,2)} op_sel:[0,1] op_sel_hi:[1,1]")
            for j in range(8): e(f"v_exp_f32 {R(U+j)}, {R(U+j)}")
            for j in range(4): e(f"v_pk_mul_f32 {R(b+2*j,2)}, {R(b+2*j,2)}, {R(vS,2)} op_sel_hi:[1,0]")
            for j in range(4): e(f"v_pk_add_f32 {R(U+2*j,2)}, {R(U+2*j,2)}, {R(vSt,2)}")
            for j in range(8): e(f"v_rcp_f32 {R(U+j)}, {R(U+j)}")
            e.nop(1)
            for j in range(4): e(f"v_pk_mul_f32 {R(b+2*j,2)}, {R(b+2*j,2)}, {R(U+2*j,2)}")
            for j in range(4): e(f"v_cvt_pk_bf16_f32 {R(o+j)}, {R(b+2*j)}, {R(b+2*j+1)}")
            t=nt*2+hh
            if t==4: e(f"s_movk_i32 {S(sT2)}, 0x1000")
            gstore(e,f"buffer_store_dwordx4 {R(o,4)}, {R(vH)}, {S(srdO,4)}, {S(sT2) if t>=4 else '0'} offen offset:{(t&3)*1024}","st")
    if 'selfpf' in DBG:
        e(f"v_mul_u32_u24 {R(tmp)}, 112, {R(vL)}"); e(f"v_add_u32 {R(tmp)}, {R(tmp)}, {R(vH)}"); e.wvm0()
        e(f"buffer_load_dword {R(tmp+1)}, {R(tmp)}, {S(srdO,4)}, 0 offen sc1")
    e(f"s_branch {fin}")
    e.lab(ld); e.reset()
    vB,vT,vCs,vBf=2,4,5,16
    j=sD; e(f"s_sub_u32 {S(j)}, {S(sW)}, 4")
    wdma_lane(e,vB,tmp,3584,0)
    e(f"s_and_b32 {S(sD+1)}, {S(j)}, 1"); e(f"s_lshr_b32 {S(sD+2)}, {S(j)}, 1")
    e(f"s_mul_i32 {S(sT0)}, {S(sD+2)}, {32*3584}"); e(f"s_lshl_b32 {S(sT1)}, {S(sD+1)}, 7"); e(f"s_add_u32 {S(sT0)}, {S(sT0)}, {S(sT1)}")
    e(f"s_lshl_b32 {S(sT1)}, {S(sNB)}, 8"); e(f"s_add_u32 {S(sT0)}, {S(sT0)}, {S(sT1)}")
    e(f"v_add_u32 {R(vB)}, {S(sT0)}, {R(vB)}"); e(f"v_xor_b32 {R(vB+1)}, 32, {R(vB)}")
    e(f"s_lshl_b32 {S(sLB)}, {S(sD+1)}, 16"); e(f"s_lshl_b32 {S(sT1)}, {S(sD+2)}, 12"); e(f"s_add_u32 {S(sLB)}, {S(sLB)}, {S(sT1)}")
    for ch in range(8):
        for i in range(0 if 'noB' in DBG else 4): dma(e,vB+(i&1),srdW,(ch*64+8*i)*3584,(sLB,ch*8192+i*1024),("B",ch))
    e(f"s_lshl_b32 {S(sT0)}, {S(sMB)}, 2"); e(f"s_add_u32 {S(sT0)}, {S(sT0)}, {S(j)}"); e(f"s_mul_i32 {S(sT0)}, {S(sT0)}, {112*1024}")
    e(f"s_lshl_b32 {S(sT1)}, {S(sNB)}, 13"); e(f"s_add_u32 {S(sT0)}, {S(sT0)}, {S(sT1)}"); e(f"v_lshl_add_u32 v7, {R(vL)}, 7, {S(sT0)}")
    e.vmem(f"buffer_load_dword v242, v7, {S(srdO,4)}, 0 offen sc1","pf")
    prefetch(e,srdR,pW2,1792*1024,4,j,7,240)
    tr_lane_base(e,vT,tmp,"frag")
    e(f"s_lshl_b32 {S(sT0)}, {S(sD+1)}, 6"); e(f"v_xor_b32 {R(vT)}, {S(sT0)}, {R(vT)}")
    e(f"s_lshl_b32 {S(sT0)}, {S(sD+2)}, 16"); e(f"v_add_u32 {R(vT)}, {S(sT0)}, {R(vT)}")
    e(f"v_mov_b32 {R(vCs)}, 0"); e(f"v_mov_b32 {R(vCs+1)}, 0")
    for ch in range(8):
        e.wvm(("B",ch)); e.bar()
        for t in range(4): trread(e,vBf+4*t,vT,(ch*4+t)*2048,("f",t))
        for t in range(4):
            e.wlg(("f",t))
            for i in range(4): e(f"v_dot2_f32_bf16 {R(vCs+(i&1))}, {R(vBf+4*t+i)}, {S(sONE)}, {R(vCs+(i&1))}")
    e(f"s_lshl_b32 {S(sT0)}, {S(j)}, 7"); e(f"s_add_u32 {S(sT0)}, {S(sT0)}, {CS:#x}")
    e(f"v_and_b32 {R(tmp)}, 31, {R(vL)}"); e(f"v_lshl_add_u32 {R(tmp)}, {R(tmp)}, 2, {S(sT0)}"); e.nop(2)
    e(f"v_add_f32 {R(vCs)}, {R(vCs)}, {R(vCs+1)}")
    allsum_halves(e,vCs,vCs+1)
    e(f"ds_write_b32 {R(tmp)}, {R(vCs)}"); e.wlg0(); e.bar()
    e.lab(fin); publish(e,L*4+2); sk2=e.newlab("p3end"); e(f"s_branch {sk2}")
    e.lab(skip); prefetch(e,srdR,pW2,1792*1024,8,sW,7,240); e.wvm0(); e.lab(sk2)
    return CS+1024

STG=34816; WOF=10240; CS1=4*STG; ST1=CS1+1024; QB,KB,VB=0,9216,20736
def phase1(e,L):
    wo=L*LSTRIDE
    e(f"s_lshr_b32 {S(sMB)}, {S(sJ)}, 3"); e(f"s_lshl_b32 {S(sT0)}, {S(sXCD)}, 2"); e(f"s_add_u32 {S(sMB)}, {S(sMB)}, {S(sT0)}")
    e(f"s_and_b32 {S(sNB)}, {S(sJ)}, 7")
    if L==0: srd(e,srdA,pX,0,2*MB)
    else: srd(e,srdA,pWS,X2_OFF,4*MB)
    srd(e,srdW,pQKV,0,512*3072); srd(e,srdO,pWS,wo+O_OFF,2*MB)
    tmp=9; vW,vX,vb=20,26,29
    dW,dX=sD,sD+6
    lab_h,lab_l,lab_att=e.newlab("p1h"),e.newlab("p1l"),e.newlab("p1att")
    wdma_lane(e,vb,tmp,3072,0)
    e(f"s_lshl_b32 {S(sT0)}, {S(sNB)}, 7"); e(f"v_add_u32 {R(vb)}, {S(sT0)}, {R(vb)}")
    e(f"v_lshrrev_b32 {R(tmp)}, 3, {R(vL)}"); e(f"v_lshrrev_b32 {R(tmp+1)}, 4, {R(vL)}"); e(f"v_and_b32 {R(tmp+2)}, 7, {R(vL)}")
    e(f"v_xor_b32 {R(tmp+1)}, {R(tmp+1)}, {R(tmp+2)}"); e(f"v_lshlrev_b32 {R(tmp+1)}, 4, {R(tmp+1)}")
    e(f"v_lshl_add_u32 {R(vb+1)}, {R(tmp)}, 10, {R(tmp+1)}")
    def wslots(sw,k0):
        for a in range(3):
            e(f"s_mul_i32 {S(sT0)}, {S(sw)}, 3"); e(f"s_add_u32 {S(sT0)}, {S(sT0)}, {a}")
            e(f"s_lshl_b32 {S(dW+k0+a)}, {S(sT0)}, 10"); e(f"s_add_u32 {S(dW+k0+a)}, {S(dW+k0+a)}, {WOF}")
            e(f"s_and_b32 {S(sT1)}, {S(sT0)}, 1"); e(f"s_lshl_b32 {S(sT1)}, {S(sT1)}, 5"); e(f"v_xor_b32 {R(vW+k0+a)}, {S(sT1)}, {R(vb)}")
            e(f"s_and_b32 {S(sT1)}, {S(sT0)}, 7"); e(f"s_mul_i32 {S(sT1)}, {S(sT1)}, {8*3072}")
            e(f"s_lshr_b32 {S(sT0)}, {S(sT0)}, 3"); e(f"s_lshl_b32 {S(sT0)}, {S(sT0)}, 10"); e(f"s_add_u32 {S(sT0)}, {S(sT0)}, {S(sT1)}")
            e(f"v_add_u32 {R(vW+k0+a)}, {S(sT0)}, {R(vW+k0+a)}")
    def xslot(si,k):
        e(f"s_lshl_b32 {S(dX+k)}, {S(si)}, 10")
        e(f"s_and_b32 {S(sT1)}, {S(si)}, 1"); e(f"s_lshl_b32 {S(sT1)}, {S(sT1)}, 6"); e(f"v_xor_b32 {R(vX+k)}, {S(sT1)}, {R(vb+1)}")
        e(f"s_lshl_b32 {S(sT0)}, {S(sMB)}, 16"); e(f"s_lshl_b32 {S(sT1)}, {S(si)}, 13"); e(f"s_add_u32 {S(sT0)}, {S(sT0)}, {S(sT1)}")
        e(f"s_sub_u32 {S(sT0)}, {S(sT0)}, 0x4000")
        if L==1:
            e(f"s_lshl_b32 {S(sT2)}, {S(sXCD)}, 14"); e(f"s_add_u32 {S(sT2)}, {S(sT2)}, {S(sT1)}"); e(f"s_add_u32 {S(sT2)}, {S(sT2)}, {X2H_OFF-X2_OFF-0x4000}")
            e(f"s_cmp_lt_u32 {S(si)}, 2"); e(f"s_cselect_b32 {S(sT1)}, {S(sD+9)}, 0"); e(f"s_cmp_lg_u32 {S(sT1)}, 0"); e(f"s_cselect_b32 {S(sT0)}, {S(sT2)}, {S(sT0)}")
        e(f"v_add_u32 {R(vX+k)}, {S(sT0)}, {R(vX+k)}")
    def issue(s,ws,xs):
        b=(s%4)*STG
        for k in xs: dma(e,vX+k,srdA,s*128,(dX+k,b),("S",s),L==1)
        for k in ws: dma(e,vW+k,srdW,s*64*3072,(dW+k,b),("S",s))
    def bump(regs,s):
        d=STG if s%4!=3 else -3*STG
        for r in regs: e(f"v_add_u32 {R(r)}, {d&0xffffffff:#x}, {R(r)}")
    def xaddr(dst,n,step,rowbase,w16):
        if w16: e(f"v_and_b32 {R(tmp)}, 15, {R(vL)}"); e(f"v_lshrrev_b32 {R(tmp+1)}, 4, {R(vL)}")
        else: e(f"v_and_b32 {R(tmp)}, 31, {R(vL)}"); e(f"v_lshrrev_b32 {R(tmp+1)}, 5, {R(vL)}")
        if rowbase is not None: e(f"v_add_u32 {R(tmp)}, {rowbase}, {R(tmp)}")
        e(f"v_bfe_u32 {R(tmp+2)}, {R(tmp)}, 1, 3"); e(f"v_xor_b32 {R(tmp+1)}, {R(tmp+1)}, {R(tmp+2)}")
        e(f"v_lshlrev_b32 {R(tmp+1)}, 4, {R(tmp+1)}"); e(f"v_lshl_add_u32 {R(dst)}, {R(tmp)}, 7, {R(tmp+1)}")
        for i in range(1,n): e(f"v_xor_b32 {R(dst+i)}, {i*step}, {R(dst)}")
    if L==1:
        e(f"s_cmp_lt_u32 {S(sJ)}, 8"); e(f"s_cselect_b32 {S(sD+9)}, {S(sXCD)}, 0")
        e(f"s_and_b32 {S(sD+2)}, {S(sJ)}, 24"); e(f"s_max_u32 {S(sT0)}, {S(sD+2)}, 8"); e(f"s_sub_u32 {S(sT0)}, {S(sT0)}, 8"); e(f"s_lshl_b32 {S(sT0)}, {S(sT0)}, 2")
        e(f"s_lshl_b32 {S(sT1)}, {S(sXCD)}, 7"); e(f"s_add_u32 {S(sT0)}, {S(sT0)}, {S(sT1)}"); e(f"s_add_u32 {S(sT0)}, {S(sT0)}, {3*1024}")
        e(f"s_add_u32 {S(sT1)}, {S(sT1)}, {7*1024-128+96}"); e(f"s_cmp_lg_u32 {S(sD+9)}, 0"); e(f"s_cselect_b32 {S(sD+3)}, {S(sT1)}, {S(sT0)}")
        waitflags(e,3,sD+2,8,sD+3)
    if L==0:
        prefetch(e,srdS,pQKV,512*3072,8,sW,2,240); prefetch(e,srdS,pX,256*1024,8,sW,2,241,18)
    wslots(sW,0); xslot(sW,0)
    e(f"s_cmp_ge_u32 {S(sW)}, 4"); e(f"s_cbranch_scc1 {lab_l}")
    for s in range(4): issue(s,range(3),[0])
    q0=list(e.vm)
    e(f"s_cmp_eq_u32 {S(sW)}, 3"); e(f"s_cbranch_scc1 {lab_h}")
    vXa,vTa,vAcc,vF=2,6,32,96
    xaddr(vXa,4,32,16,False)
    tr_lane_base(e,vTa,tmp,"head")
    pA,nA,pB,nB=sD+10,sD+11,sD+12,sD+13
    e(f"s_min_u32 {S(pA)}, {S(sW)}, 1"); e(f"s_lshr_b32 {S(nA)}, {S(sW)}, 1"); e(f"s_lshl_b32 {S(pB)}, {S(pA)}, 1")
    e(f"s_and_b32 {S(nB)}, {S(sW)}, 1"); e(f"s_xor_b32 {S(nB)}, {S(nB)}, 1")
    for r,p,n in ((vTa+1,pB,nB),(vTa,pA,nA)):
        e(f"s_lshl_b32 {S(sT0)}, {S(n)}, 6"); e(f"v_xor_b32 {R(r)}, {S(sT0)}, {R(vTa)}")
        e(f"s_lshl_b32 {S(sT0)}, {S(p)}, 13"); e(f"s_add_u32 {S(sT0)}, {S(sT0)}, {WOF}"); e(f"v_add_u32 {R(r)}, {S(sT0)}, {R(r)}")
    def rd(t):
        b=vF+(t&1)*16; ks=t&3
        trread(e,b+8,vTa,ks*2048,("a",t)); e.lds(f"ds_read_b128 {R(b,4)}, {R(vXa+ks)}",("a",t))
        e.lds(f"ds_read_b128 {R(b+4,4)}, {R(vXa+ks)} offset:4096",("b",t)); trread(e,b+12,vTa+1,ks*2048,("c",t))
    e.wvm(("S",0)); e.bar(); stamp(e,1); rd(0)
    for t in range(32):
        if t+1<32:
            if (t+1)%4==0:
                s=(t+1)//4
                e.wvm(("S",s)); e.wlg0(); bump(range(vXa,vXa+6),s-1); e.bar(); stamp(e,1+s)
            rd(t+1)
        b=vF+(t&1)*16
        e.wlg(("a",t)); mfma32(e,vAcc,b+8,b,t==0)
        e.wlg(("b",t)); mfma32(e,vAcc+16,b+8,b+4,t==0)
        e.wlg(("c",t)); mfma32(e,vAcc+32,b+12,b,t==0); mfma32(e,vAcc+48,b+12,b+4,t==0)
    vC,vSt,vWA,vWB,vP=128,160,2,3,168
    e(f"v_lshrrev_b32 {R(tmp)}, 5, {R(vL)}"); e(f"v_and_b32 {R(tmp+1)}, 31, {R(vL)}")
    for r,p,n in ((4,pA,nA),(5,pB,nB)):
        e(f"s_lshl_b32 {S(sT0)}, {S(p)}, 8"); e(f"s_lshl_b32 {S(sT1)}, {S(n)}, 7"); e(f"s_add_u32 {S(sT0)}, {S(sT0)}, {S(sT1)}")
        e(f"s_add_u32 {S(sT0)}, {S(sT0)}, {CS1}"); e(f"v_lshl_add_u32 {R(r)}, {R(tmp)}, 6, {S(sT0)}")
    e(f"v_lshlrev_b32 {R(6)}, 3, {R(tmp+1)}"); e(f"v_add_u32 {R(6)}, {ST1+128:#x}, {R(6)}")
    e(f"v_mul_u32_u24 {R(vWA)}, 144, {R(tmp+1)}"); e(f"v_lshl_add_u32 {R(vWA)}, {R(tmp)}, 5, {R(vWA)}")
    e(f"v_mul_u32_u24 {R(vWB)}, 272, {R(tmp+1)}"); e(f"v_lshl_add_u32 {R(vWB)}, {R(tmp)}, 6, {R(vWB)}")
    e(f"s_mul_i32 {S(sT0)}, {S(pA)}, {KB+16*144}"); e(f"s_lshl_b32 {S(sT1)}, {S(nA)}, 6"); e(f"s_add_u32 {S(sT0)}, {S(sT0)}, {S(sT1)}")
    e(f"v_add_u32 {R(vWA)}, {S(sT0)}, {R(vWA)}")
    e(f"s_lshl_b32 {S(sT1)}, {S(nB)}, 7"); e(f"s_add_u32 {S(sT1)}, {S(sT1)}, {VB+16*272}"); e(f"v_add_u32 {R(vWB)}, {S(sT1)}, {R(vWB)}")
    e.bar(); stamp(e,9)
    for m in range(2): e.lds(f"ds_read_b64 {R(vSt+2*m,2)}, {R(6)} offset:{m*256}","st")
    for T in range(2):
        for g in range(4): e.lds(f"ds_read_b128 {R(vC+16*T+4*g,4)}, {R(4+T)} offset:{g*16}",("c",T))
    def corr(T,m):
        b=vAcc+32*T+16*m
        for j in range(8): e(f"v_pk_fma_f32 {R(b+2*j,2)}, {R(vC+16*T+2*j,2)}, {R(vSt+2*m,2)}, {R(b+2*j,2)} op_sel_hi:[1,0,1]")
        for j in range(8): e(f"v_pk_mul_f32 {R(b+2*j,2)}, {R(b+2*j,2)}, {R(vSt+2*m,2)} op_sel:[0,1] op_sel_hi:[1,1]")
    def wr16(T,m,off):
        b=vAcc+32*T+16*m; p=vP+8*(2*T+m)
        for j in range(8): e(f"v_cvt_pk_bf16_f32 {R(p+j)}, {R(b+2*j)}, {R(b+2*j+1)}")
        for j in range(2): e(f"ds_write_b128 {R(vWA)}, {R(p+4*j,4)} offset:{off+m*32*144+16*j}")
    e.wlg(("c",0))
    for m in range(2): corr(0,m); wr16(0,m,0)
    e.wlg0()
    for m in range(2): corr(1,m)
    lv=e.newlab("p1v"); e(f"s_cmp_lg_u32 {S(sW)}, 0"); e(f"s_cbranch_scc1 {lv}")
    for m in range(2): wr16(1,m,64)
    e(f"s_branch {lab_att}")
    e.lab(lv)
    for m in range(2):
        for j in range(4): e(f"ds_write_b128 {R(vWB)}, {R(vAcc+32+16*m+4*j,4)} offset:{m*32*272+16*j}")
    e(f"s_branch {lab_att}")
    e.lab(lab_h); e.reset(); e.vm=list(q0)
    if L==0: hello(e)
    vXa,vTh,vAcc,vXf,vWf=2,4,32,80,96
    xaddr(vXa,2,64,None,True)
    e(f"v_lshrrev_b32 {R(tmp)}, 4, {R(vL)}"); e(f"v_bfe_u32 {R(tmp+1)}, {R(vL)}, 2, 2")
    e(f"v_lshl_add_u32 {R(vTh)}, {R(tmp)}, 3, {R(tmp+1)}"); e(f"v_lshlrev_b32 {R(vTh)}, 7, {R(vTh)}")
    e(f"v_and_b32 {R(tmp)}, 1, {R(tmp)}"); e(f"v_lshlrev_b32 {R(tmp)}, 1, {R(tmp)}"); e(f"v_lshrrev_b32 {R(tmp+1)}, 1, {R(tmp+1)}")
    e(f"v_lshl_or_b32 {R(tmp)}, {R(tmp+1)}, 2, {R(tmp)}"); e(f"v_bfe_u32 {R(tmp+1)}, {R(vL)}, 1, 1"); e(f"v_or_b32 {R(tmp)}, {R(tmp)}, {R(tmp+1)}")
    e(f"v_lshl_add_u32 {R(vTh)}, {R(tmp)}, 4, {R(vTh)}"); e(f"v_and_b32 {R(tmp)}, 1, {R(vL)}"); e(f"v_lshl_add_u32 {R(vTh)}, {R(tmp)}, 3, {R(vTh)}")
    e(f"v_add_u32 {R(vTh)}, {WOF}, {R(vTh)}")
    for h in range(1,4): e(f"v_xor_b32 {R(vTh+h)}, {h*32}, {R(vTh)}")
    e(f"v_and_b32 {R(tmp)}, 15, {R(vL)}"); e(f"v_cmp_eq_u32 vcc, 0, {R(tmp)}"); e(f"v_mov_b32 {R(12)}, {S(sONE)}")
    def rdu(u):
        T,p=divmod(u,3); kk=T&1
        if p==0: e.lds(f"ds_read_b128 {R(vXf+4*(T&1),4)}, {R(vXa+kk)}",("x",T))
        for h in range(4): trread(e,vWf+(u&1)*16+4*h,vTh+h,p*8192+kk*4096,("w",u,h))
    e.wvm(("S",0)); e.bar(); rdu(0)
    for u in range(48):
        T,p=divmod(u,3)
        if u+1<48:
            if (u+1)%6==0:
                s=(u+1)//6
                e.wvm(("S",s)); e.wlg0(); bump(range(vXa,vXa+6),s-1); e.bar()
            rdu(u+1)
        if p==0:
            e.wlg(("x",T))
            for i in range(4): e(f"v_cndmask_b32 {R(vXf+4*(T&1)+i)}, {R(vXf+4*(T&1)+i)}, {R(12)}, vcc")
            e.nop(2)
        for h in range(4):
            e.wlg(("w",u,h)); mfma16(e,vAcc+16*p+4*h,vWf+(u&1)*16+4*h,vXf+4*(T&1),T==0)
    e(f"v_lshrrev_b32 {R(tmp)}, 4, {R(vL)}"); e(f"v_and_b32 {R(tmp+1)}, 15, {R(vL)}")
    e(f"v_lshlrev_b32 {R(2)}, 4, {R(tmp)}"); e(f"v_add_u32 {R(2)}, {CS1}, {R(2)}")
    e(f"v_lshlrev_b32 {R(3)}, 3, {R(tmp+1)}"); e(f"v_add_u32 {R(3)}, {ST1}, {R(3)}")
    e(f"v_mul_u32_u24 {R(4)}, 144, {R(tmp+1)}"); e(f"v_lshl_add_u32 {R(4)}, {R(tmp)}, 3, {R(4)}")
    e(f"v_mul_u32_u24 {R(5)}, 272, {R(tmp+1)}"); e(f"v_lshl_add_u32 {R(5)}, {R(tmp)}, 4, {R(5)}")
    e(f"s_and_saveexec_b64 {S(sD+14,2)}, vcc")
    for i in range(12): e(f"ds_write_b128 {R(2)}, {R(vAcc+4*i,4)} offset:{i*64}")
    e(f"s_mov_b64 exec, {S(sD+14,2)}")
    e.wlg0(); e.bar()
    vC,vSt=96,80
    e.lds(f"ds_read_b64 {R(vSt,2)}, {R(3)}","st")
    for i in range(8): e.lds(f"ds_read_b128 {R(vC+4*i,4)}, {R(2)} offset:{(4+i)*64}",("c",i))
    for i in range(8):
        e.wlg(("c",i)); b=vAcc+16+4*i
        for j in range(2): e(f"v_pk_fma_f32 {R(b+2*j,2)}, {R(vC+4*i+2*j,2)}, {R(vSt,2)}, {R(b+2*j,2)} op_sel_hi:[1,0,1]")
        for j in range(2): e(f"v_pk_mul_f32 {R(b+2*j,2)}, {R(b+2*j,2)}, {R(vSt,2)} op_sel:[0,1] op_sel_hi:[1,1]")
        if i<4:
            for j in range(2): e(f"v_cvt_pk_bf16_f32 {R(b+j)}, {R(b+2*j)}, {R(b+2*j+1)}")
            e.lds(f"ds_write_b64 {R(4)}, {R(b,2)} offset:{KB+i*32}")
        else: e.lds(f"ds_write_b128 {R(5)}, {R(b,4)} offset:{VB+(i-4)*64}")
    e(f"s_branch {lab_att}")
    e.lab(lab_l); e.reset(); e.vm=['pf','pf'] if L==0 else []
    j=sD+10; e(f"s_sub_u32 {S(j)}, {S(sW)}, 4")
    e(f"s_and_b32 {S(sD+11)}, {S(j)}, 1"); e(f"s_add_u32 {S(sD+11)}, {S(sD+11)}, 8"); xslot(sD+11,1)
    for s in range(4): issue(s,range(3),[0,1])
    wslots(j,3); xslot(j,2)
    vXa,vF,vS=2,32,12
    e(f"s_min_u32 {S(sT2)}, {S(j)}, 2"); e(f"s_lshl_b32 {S(sT2)}, {S(sT2)}, 5"); e(f"s_sub_u32 {S(sT2)}, {S(sT2)}, 16"); e(f"s_max_i32 {S(sT2)}, {S(sT2)}, 0")
    xaddr(vXa,4,32,S(sT2),False)
    e(f"v_lshlrev_b32 {R(6)}, 3, {R(tmp)}"); e(f"v_add_u32 {R(6)}, {ST1}, {R(6)}")
    for i in range(4): e(f"v_mov_b32 {R(vS+i)}, 0")
    for s in range(8):
        e.wvm(("S",s)); e.bar()
        for ks in range(4): e.lds(f"ds_read_b128 {R(vF+4*ks,4)}, {R(vXa+ks)}",("x",ks))
        if 1<=s<=4: issue(s+3,range(6),[0,1,2])
        if s==4:
            srd(e,srdS,pWS,wo,16*MB)
            e(f"s_lshl_b32 {S(sT0)}, {S(sMB)}, 16"); e(f"s_lshl_b32 {S(sT1)}, {S(sNB)}, 12"); e(f"s_add_u32 {S(sT0)}, {S(sT0)}, {S(sT1)}")
            e(f"s_and_b32 {S(sT1)}, {S(j)}, 1"); e(f"s_lshl_b32 {S(sT1)}, {S(sT1)}, 15"); e(f"s_add_u32 {S(sT0)}, {S(sT0)}, {S(sT1)}")
            e(f"s_lshr_b32 {S(sT1)}, {S(j)}, 1"); e(f"s_lshl_b32 {S(sT1)}, {S(sT1)}, 21"); e(f"s_add_u32 {S(sT0)}, {S(sT0)}, {S(sT1)}")
            e(f"v_and_b32 v7, 31, {R(vL)}"); e(f"v_lshl_add_u32 v7, v7, 7, {S(sT0)}")
            e.vmem(f"buffer_load_dword v242, v7, {S(srdS,4)}, 0 offen sc1","pf")
            e(f"s_lshl_b32 {S(sT0)}, {S(sMB)}, 12"); e(f"s_lshl_b32 {S(sT1)}, {S(sNB)}, 8"); e(f"s_add_u32 {S(sT0)}, {S(sT0)}, {S(sT1)}"); e(f"s_add_u32 {S(sT0)}, {S(sT0)}, {ST_OFF}")
            e(f"v_and_b32 v7, 1, {R(vL)}"); e(f"v_lshl_add_u32 v7, v7, 7, {S(sT0)}"); e(f"v_bfe_u32 v8, {R(vL)}, 1, 1"); e(f"v_lshl_add_u32 v7, v8, 11, v7")
            e.vmem(f"buffer_load_dword v242, v7, {S(srdS,4)}, 0 offen sc1","pf")
            if L==0:
                e(f"s_lshl_b32 {S(sT0)}, {S(sXCD)}, 7"); e(f"v_and_b32 v7, 7, {R(vL)}"); e(f"v_lshl_add_u32 v7, v7, 10, {S(sT0)}")
                e.vmem(f"buffer_load_dword v242, v7, {S(srdF,4)}, 0 offen sc1","pf")
        if s==5: prefetch(e,srdS,pWO,512*1024,4,j,7,240); prefetch(e,srdS,pW1,512*3584,4,j,7,241)
        if s<7: bump(range(vXa,vXa+4),s)
        for ks in range(4):
            e.wlg(("x",ks))
            for i in range(4):
                e(f"v_dot2_f32_bf16 {R(vS+(i&1))}, {R(vF+4*ks+i)}, {S(sONE)}, {R(vS+(i&1))}")
                e(f"v_dot2_f32_bf16 {R(vS+2+(i&1))}, {R(vF+4*ks+i)}, {R(vF+4*ks+i)}, {R(vS+2+(i&1))}")
    e.nop(3); e(f"v_add_f32 {R(vS)}, {R(vS)}, {R(vS+1)}"); e(f"v_add_f32 {R(vS+1)}, {R(vS+2)}, {R(vS+3)}")
    allsum_halves(e,vS,vS+2); allsum_halves(e,vS+1,vS+2)
    meanrstd(e,vS,vS+1,tmp); e(f"v_sub_f32 {R(vS)}, 0, {R(vS)}")
    e(f"ds_write_b64 {R(6)}, {R(vS,2)}"); e.wlg0(); e.bar()
    e.lab(lab_att); e.reset()
    vQ,vK,vV,vLg,vO=16,32,96,160,176
    mt,h=sD,sD+1
    e(f"s_lshr_b32 {S(mt)}, {S(sW)}, 2"); e(f"s_and_b32 {S(h)}, {S(sW)}, 3")
    e(f"v_and_b32 {R(tmp)}, 31, {R(vL)}"); e(f"s_lshl_b32 {S(sT0)}, {S(mt)}, 5"); e(f"v_add_u32 {R(tmp)}, {S(sT0)}, {R(tmp)}")
    e(f"v_lshrrev_b32 {R(tmp+1)}, 5, {R(vL)}")
    e(f"s_lshl_b32 {S(sT0)}, {S(h)}, 5"); e(f"v_mul_u32_u24 {R(2)}, 144, {R(tmp)}"); e(f"v_add_u32 {R(2)}, {S(sT0)}, {R(2)}")
    e(f"s_lshl_b32 {S(sT0)}, {S(h)}, 6"); e(f"v_mul_u32_u24 {R(3)}, 272, {R(tmp)}"); e(f"v_lshl_add_u32 {R(3)}, {R(tmp+1)}, 5, {R(3)}"); e(f"v_add_u32 {R(3)}, {S(sT0)}, {R(3)}")
    e(f"s_lshl_b32 {S(sT0)}, {S(sMB)}, 6"); e(f"v_add_u32 {R(4)}, {S(sT0)}, {R(tmp)}")
    e(f"s_lshl_b32 {S(sT0)}, {S(sMB)}, 1"); e(f"s_add_u32 {S(sT0)}, {S(sT0)}, {S(mt)}"); e(f"s_lshl_b32 {S(sT0)}, {S(sT0)}, 5")
    e(f"s_lshl_b32 {S(sT1)}, {S(sNB)}, 2"); e(f"s_add_u32 {S(sT0)}, {S(sT0)}, {S(sT1)}"); e(f"s_add_u32 {S(sT0)}, {S(sT0)}, {S(h)}"); e(f"s_lshl_b32 {S(sT0)}, {S(sT0)}, 10")
    e(f"v_lshl_add_u32 {R(5)}, {R(vL)}, 4, {S(sT0)}")
    e(f"v_mov_b32 {R(6)}, 0xce6e6b28"); e(f"v_mov_b32 {R(7)}, 0x3eb8aa3b")
    e.wlg0(); e.bar(); stamp(e,10)
    for i in range(2): e.lds(f"ds_read_b128 {R(vQ+4*i,4)}, {R(2)} offset:{QB+16*i}","q")
    for jj in range(8):
        for i in range(2): e.lds(f"ds_read_b128 {R(vK+8*jj+4*i,4)}, {R(2)} offset:{KB+288+(7-jj)*288+16*i}",("k",jj))
    for jj in range(8):
        e.wlg(("k",jj))
        for i in range(8): e(f"v_dot2_f32_bf16 {R(vLg+jj)}, {R(vQ+i)}, {R(vK+8*jj+i)}, {R(vLg+jj) if i else '0'}")
        for i in range(2): e.lds(f"ds_read_b128 {R(vV+8*jj+4*i,4)}, {R(3)} offset:{VB+544+(7-jj)*544+16*i}",("v",jj))
    for jj in range(1,8): e(f"v_cmp_le_u32 {S(sD+2*jj,2)}, {2*jj}, {R(4)}")
    for jj in range(1,8): e(f"v_cndmask_b32 {R(vLg+jj)}, {R(6)}, {R(vLg+jj)}, {S(sD+2*jj,2)}")
    m=8
    e(f"v_max3_f32 {R(m)}, {R(vLg)}, {R(vLg+1)}, {R(vLg+2)}"); e(f"v_max3_f32 {R(m)}, {R(m)}, {R(vLg+3)}, {R(vLg+4)}")
    e(f"v_max3_f32 {R(m)}, {R(m)}, {R(vLg+5)}, {R(vLg+6)}"); e(f"v_max_f32 {R(m)}, {R(m)}, {R(vLg+7)}")
    for jj in range(8): e(f"v_sub_f32 {R(vLg+jj)}, {R(vLg+jj)}, {R(m)}")
    for jj in range(8): e(f"v_mul_f32 {R(vLg+jj)}, {R(7)}, {R(vLg+jj)}")
    for jj in range(8): e(f"v_exp_f32 {R(vLg+jj)}, {R(vLg+jj)}")
    e.nop(1)
    e(f"v_pk_add_f32 {R(10,2)}, {R(vLg,2)}, {R(vLg+2,2)}"); e(f"v_pk_add_f32 {R(12,2)}, {R(vLg+4,2)}, {R(vLg+6,2)}")
    e(f"v_pk_add_f32 {R(10,2)}, {R(10,2)}, {R(12,2)}"); e(f"v_add_f32 {R(10)}, {R(10)}, {R(11)}"); e(f"v_rcp_f32 {R(10)}, {R(10)}")
    for jj in range(8):
        e.wlg(("v",jj)); pb=vLg+(jj&~1); o=jj&1
        for i in range(4):
            if jj==0: e(f"v_pk_mul_f32 {R(vO+2*i,2)}, {R(vV+2*i,2)}, {R(pb,2)} op_sel_hi:[1,0]")
            else: e(f"v_pk_fma_f32 {R(vO+2*i,2)}, {R(vV+8*jj+2*i,2)}, {R(pb,2)}, {R(vO+2*i,2)} op_sel:[0,{o},0] op_sel_hi:[1,{o},1]")
    for i in range(4): e(f"v_pk_mul_f32 {R(vO+2*i,2)}, {R(vO+2*i,2)}, {R(10,2)} op_sel_hi:[1,0]")
    for i in range(4): e(f"v_cvt_pk_bf16_f32 {R(vQ+i)}, {R(vO+2*i)}, {R(vO+2*i+1)}")
    if L==0: getmode(e)
    gstore(e,f"buffer_store_dwordx4 {R(vQ,4)}, {R(5)}, {S(srdO,4)}, 0 offen","st")
    publish(e,L*4)
    return ST1+1024

def desc(k):
    return f""".p2align 6
.amdhsa_kernel {k}
  .amdhsa_next_free_vgpr 256
  .amdhsa_next_free_sgpr 102
  .amdhsa_accum_offset 256
  .amdhsa_group_segment_fixed_size 0
  .amdhsa_kernarg_size 72
  .amdhsa_user_sgpr_count 2
  .amdhsa_user_sgpr_kernarg_segment_ptr 1
  .amdhsa_system_sgpr_workgroup_id_x 1
.end_amdhsa_kernel
"""
def build_multi():
    e=Em(); hdr=""; ks=[]
    for L in range(2):
        for p in (1,2,3,4):
            k=f"p{p}l{L}_kernel"; ks.append(k); nwg=224 if p==3 else 256
            e.L.append(f".globl {k}\n.p2align 8\n.type {k},@function\n{k}:"); e.endlab=f"end_{k}"; e.reset()
            prologue(e,nwg)
            lds=phase1(e,L) if p==1 else phase3(e,L) if p==3 else phase_rs(e,L,p)
            stamp_flush(e,L*4+p-1)
            e.lab(e.endlab); e("s_endpgm")
            hdr+=f"; @launch kernel={k} grid=({nwg},1,1) block=(512,1,1) lds={lds}\n"
    return hdr+'.amdgcn_target "amdgcn-amd-amdhsa--gfx950"\n.text\n'+e.text()+'.section .rodata,"a"\n'+"".join(desc(k) for k in ks)
def build_pers():
    e=Em(); k=NAME+"_kernel"
    e.L.append(f".globl {k}\n.p2align 8\n.type {k},@function\n{k}:"); e.endlab="end_all"
    prologue(e,256); srd(e,srdD,50,0,256); srd(e,srdF,pWS,FL_OFF,16384)
    for L in range(2):
        for p in (1,2,3,4):
            e.reset()
            if L or p>1: stamp(e,0)
            phase1(e,L) if p==1 else phase3(e,L) if p==3 else phase_rs(e,L,p)
            stamp_flush(e,L*4+p-1)
    e.lab(e.endlab); e("s_endpgm")
    return f"; @launch grid=(256,1,1) block=(512,1,1) lds=163840\n"+'.amdgcn_target "amdgcn-amd-amdhsa--gfx950"\n.text\n'+e.text()+'.section .rodata,"a"\n'+desc(k)
if __name__=="__main__":
    if "slow" in sys.argv: FORCE_SLOW=True
    if "prof" in sys.argv: PROF=True
    out=sys.argv[1] if len(sys.argv)>1 else f"cdna_kernels/{NAME}.s"
    open(out,"w").write(build_pers())
```

```python
import sys,os
DBG=os.environ.get('DBG','')
from em import *
NAME="interleave_layers__sliding_local_dilated__dense_activation_silu__prompt"
MB=1<<20
O_OFF,X1_OFF,H_OFF,X2_OFF,ST_OFF=0,2*MB,4*MB,12*MB,14*MB
LSTRIDE=0 if 'fresh' not in DBG else 16*MB
sW,sXCD,sJ,sT0,sT1,sT2,sT3,sMB,sNB,sKQ,sMH,sLB=3,4,5,6,7,8,9,10,11,12,13,14
sONE=15
srdA,srdW,srdR,srdO,srdS=16,20,24,28,32
pX,pQKV,pWO,pW1,pW2,pOUT,pWS=36,38,40,44,46,48,52
sD=56
vL=1
sMODE,sTAG=54,55
srdF,srdD=96,24
FL_OFF,X2H_OFF=40*MB,15*MB
vRES=248
vINFO=244
FORCE_SLOW=False
ONES=0x3F803F80

PROF=False
def stamp(e,i):
    if PROF: e(f"s_memrealtime {S(72+2*i,2)}")
def stamp_flush(e,slot,n=12):
    if not PROF: return
    sk=e.newlab("nopf"); e(f"s_cmp_lg_u32 {S(sW)}, {4 if 'w4' in DBG else 0}"); e(f"s_cbranch_scc1 {sk}")
    e("s_waitcnt vmcnt(0)"); stamp(e,n-1); e("s_waitcnt lgkmcnt(0)")
    srd(e,srdS,pWS,200*MB,MB)
    e(f"s_lshl_b32 {S(sT0)}, s2, 7"); e(f"s_add_u32 {S(sT0)}, {S(sT0)}, {slot*32768}"); e(f"v_mov_b32 v2, {S(sT0)}")
    for i in range(n):
        e(f"v_mov_b32 v4, {S(72+2*i)}"); e(f"v_mov_b32 v5, {S(73+2*i)}"); e(f"buffer_store_dwordx2 v[4:5], v2, {S(srdS,4)}, 0 offen offset:{i*8}"); e.nop(2)
    e.lab(sk)
def gstore(e,instr,tag):
    a,b=e.newlab("gs"),e.newlab("gd")
    e(f"s_cmp_eq_u32 {S(sMODE)}, 0"); e(f"s_cbranch_scc1 {a}"); e.vmem(instr+(' nt' if 'stnt' in DBG else ' sc0' if 'stsc0' in DBG else ''),tag); e(f"s_branch {b}")
    e.lab(a); e(instr+" sc1"); e.lab(b)
def spin(e,body,cond):
    lp,out=e.newlab("spin"),e.newlab("spun")
    e(f"s_mov_b32 {S(sT3)}, 0"); e.lab(lp); body()
    e(f"s_add_u32 {S(sT3)}, {S(sT3)}, 1"); e(f"s_cmp_gt_u32 {S(sT3)}, 0x40000"); e(f"s_cbranch_scc1 {out}")
    cond(lp); e.lab(out)
def publish(e,ph,pre=None):
    e.wvm0(); e.bar()
    sk=e.newlab("nopub"); e(f"s_cmp_lg_u32 {S(sW)}, 0"); e(f"s_cbranch_scc1 {sk}")
    e(f"s_lshl_b32 {S(sT0)}, {S(sXCD)}, 7"); e(f"s_lshl_b32 {S(sT1)}, {S(sJ)}, 2"); e(f"s_add_u32 {S(sT0)}, {S(sT0)}, {S(sT1)}")
    e(f"v_mov_b32 v2, {S(sT0)}"); e(f"v_mov_b32 v3, {S(sTAG)}"); e("s_mov_b64 exec, 1")
    e(f"s_mov_b32 {S(sT2)}, {ph*1024}")
    gstore(e,f"buffer_store_dword v3, v2, {S(srdF,4)}, {S(sT2)} offen","fl")
    if pre: pre()
    e("s_mov_b64 exec, -1"); e.lab(sk); e.reset()
def waitflags(e,ph,jbase,n,second=None):
    sk=e.newlab("nopoll"); e(f"s_cmp_lg_u32 {S(sW)}, 0"); e(f"s_cbranch_scc1 {sk}")
    e(f"s_lshl_b32 {S(sT0)}, {S(sXCD)}, 7"); e(f"s_lshl_b32 {S(sT1)}, {S(jbase)}, 2"); e(f"s_add_u32 {S(sT0)}, {S(sT0)}, {S(sT1)}")
    e(f"s_add_u32 {S(sT0)}, {S(sT0)}, {ph*1024}")
    e(f"v_min_u32 v2, {n-1}, {R(vL)}"); e(f"v_lshl_add_u32 v2, v2, 2, {S(sT0)}")
    if second is not None:
        e(f"v_and_b32 v3, 7, {R(vL)}"); e(f"v_lshl_add_u32 v3, v3, 2, {S(second)}"); e(f"v_cmp_gt_u32 vcc, 8, {R(vL)}"); e.nop(2); e("v_cndmask_b32 v2, v3, v2, vcc")
    def body(): e(f"buffer_load_dword v3, v2, {S(srdF,4)}, 0 offen sc1"); e("s_waitcnt vmcnt(0)"); e(f"v_cmp_ne_u32 vcc, {S(sTAG)}, v3")
    spin(e,body,lambda lp:e(f"s_cbranch_vccnz {lp}"))
    e(f"s_cmp_lg_u32 {S(sMODE)}, 0"); e(f"s_cbranch_scc1 {sk}"); e("buffer_inv sc1"); e("s_waitcnt vmcnt(0)")
    e.lab(sk); e.bar()
def hello(e):
    e(f"s_getreg_b32 {S(sT0)}, hwreg(HW_REG_XCC_ID, 0, 3)"); e(f"s_mul_i32 {S(sT0)}, {S(sT0)}, 6")
    e(f"s_lshl_b64 {S(sD+14,2)}, 1, {S(sT0)}"); e(f"s_add_u32 {S(sD+15)}, {S(sD+15)}, 0x1000000")
    e(f"s_lshl_b32 {S(sT1)}, {S(sXCD)}, 4"); e(f"v_mov_b32 v2, {S(sT1)}"); e(f"v_mov_b32 v4, {S(sD+14)}"); e(f"v_mov_b32 v5, {S(sD+15)}")
    e("s_mov_b64 exec, 1"); e.vmem(f"buffer_atomic_add_x2 v[4:5], v2, {S(srdD,4)}, 0 offen","hello")
    s2=e.newlab("notag"); e("s_cmp_lg_u32 s2, 0"); e(f"s_cbranch_scc1 {s2}")
    e("v_mov_b32 v2, 0x3000"); e(f"buffer_load_dword v3, v2, {S(srdF,4)}, 0 offen sc1"); e("s_waitcnt vmcnt(0)")
    e("v_add_u32 v3, 0x9e3779b9, v3"); e("v_max_u32 v3, 1, v3"); e(f"buffer_store_dword v3, v2, {S(srdF,4)}, 0 offen sc1")
    e("v_mov_b32 v2, 0x80"); e(f"buffer_store_dword v3, v2, {S(srdD,4)}, 0 offen sc1")
    e("s_waitcnt vmcnt(0)"); e.lab(s2); e("s_mov_b64 exec, -1"); e.nop(2)
def getmode(e):
    e(f"s_lshl_b32 {S(sT0)}, {S(sXCD)}, 4"); e(f"v_mov_b32 {R(vINFO)}, {S(sT0)}"); e(f"v_mov_b32 {R(vINFO+1)}, 0x80")
    def body():
        e(f"buffer_load_dwordx2 {R(vINFO+2,2)}, {R(vINFO)}, {S(srdD,4)}, 0 offen sc1"); e(f"buffer_load_dword {R(vINFO-1)}, {R(vINFO+1)}, {S(srdD,4)}, 0 offen sc1")
        e("s_waitcnt vmcnt(0)"); e(f"v_readfirstlane_b32 {S(sD)}, {R(vINFO+2)}"); e(f"v_readfirstlane_b32 {S(sD+1)}, {R(vINFO+3)}"); e(f"v_readfirstlane_b32 {S(sTAG)}, {R(vINFO-1)}")
    def cond(lp):
        e(f"s_lshr_b32 {S(sT0)}, {S(sD+1)}, 24"); e(f"s_cmp_lt_u32 {S(sT0)}, 32"); e(f"s_cbranch_scc1 {lp}")
        e(f"s_cmp_eq_u32 {S(sTAG)}, 0"); e(f"s_cbranch_scc1 {lp}")
    spin(e,body,cond)
    e(f"s_getreg_b32 {S(sT0)}, hwreg(HW_REG_XCC_ID, 0, 3)"); e(f"s_mul_i32 {S(sT0)}, {S(sT0)}, 6")
    e(f"s_lshr_b64 {S(sD,2)}, {S(sD,2)}, {S(sT0)}"); e(f"s_and_b32 {S(sD)}, {S(sD)}, 63"); e(f"s_cmp_eq_u32 {S(sD)}, 32")
    e(f"s_cselect_b32 {S(sMODE)}, {0 if FORCE_SLOW else 1}, 0")
def prefetch(e,sr,ptr,total,nw,sw,va,dst,extra=None,off=0,only=None,nwg=32,sj=None):
    per=total//nwg//nw; lines=per//128; sj=sJ if sj is None else sj
    srd(e,sr,ptr,off,total if extra is None else 2*MB)
    e(f"s_mul_i32 {S(sT0)}, {S(sj)}, {total//nwg}"); e(f"s_mul_i32 {S(sT1)}, {S(sw)}, {per}"); e(f"s_add_u32 {S(sT0)}, {S(sT0)}, {S(sT1)}")
    if extra is not None: e(f"s_lshl_b32 {S(sT1)}, {S(sXCD)}, {extra}"); e(f"s_add_u32 {S(sT0)}, {S(sT0)}, {S(sT1)}")
    for i in range((lines+63)//64):
        if only is not None and i!=only: continue
        n=min(64,lines-64*i)
        e(f"v_min_u32 {R(va)}, {n-1}, {R(vL)}"); e(f"v_lshl_add_u32 {R(va)}, {R(va)}, 7, {S(sT0)}")
        if i: e(f"v_add_u32 {R(va)}, {8192*i}, {R(va)}")
        e.vmem(f"buffer_load_dword {R(dst)}, {R(va)}, {S(sr,4)}, 0 offen","pf")
def pfl(e,sr,ptr,total,terms,const,lines,va):
    srd(e,sr,ptr,0,total); e(f"s_mov_b32 {S(sT0)}, {const}")
    for sg,m in terms: e(f"s_mul_i32 {S(sT1)}, {S(sg)}, {m}"); e(f"s_add_u32 {S(sT0)}, {S(sT0)}, {S(sT1)}")
    for i in range((lines+63)//64):
        e(f"v_min_u32 {R(va)}, {min(64,lines-64*i)-1}, {R(vL)}"); e(f"v_lshl_add_u32 {R(va)}, {R(va)}, 7, {S(sT0)}")
        if i: e(f"v_add_u32 {R(va)}, {8192*i}, {R(va)}")
        e.vmem(f"buffer_load_dword v240, {R(va)}, {S(sr,4)}, 0 offen","pf")
def pf_w2(e,j,part):
    if part==0: pfl(e,srdR,pW2,1792*1024,[(j,448*1024),(sJ,5120)],0,40,7)
    else: pfl(e,srdR,pW2,1792*1024,[(j,448*1024),(sJ,9216)],160*1024,72,7)
def prologue(e,nwg):
    e(f"s_cmp_ge_u32 s2, {nwg}"); e("s_cbranch_scc1 "+e.endlab)
    stamp(e,0)
    e(f"s_load_dwordx16 s[36:51], s[0:1], 0"); e(f"s_load_dwordx2 s[52:53], s[0:1], 64")
    e("v_lshrrev_b32 v2, 6, v0"); e(f"v_and_b32 {R(vL)}, 63, v0")
    e(f"v_readfirstlane_b32 {S(sW)}, v2")
    e(f"s_and_b32 {S(sXCD)}, s2, 7"); e(f"s_lshr_b32 {S(sJ)}, s2, 3")
    e(f"s_mov_b32 {S(sONE)}, {ONES:#x}")
    e("s_waitcnt lgkmcnt(0)")
def srd(e,d,p,off,size):
    if off: e(f"s_add_u32 {S(d)}, {S(p)}, {off:#x}"); e(f"s_addc_u32 {S(d+1)}, {S(p+1)}, 0")
    else: e(f"s_mov_b32 {S(d)}, {S(p)}"); e(f"s_mov_b32 {S(d+1)}, {S(p+1)}")
    e(f"s_mov_b32 {S(d+2)}, {size:#x}"); e(f"s_mov_b32 {S(d+3)}, 0x20000")
def dma(e,vaddr,srd_,soff,m0expr,tag,sc1=False):
    sg,c=m0expr
    if sg is None: e(f"s_mov_b32 m0, {c:#x}")
    else: e(f"s_add_u32 m0, {S(sg)}, {c:#x}")
    if soff: e(f"s_mov_b32 {S(sT3)}, {soff:#x}"); so=S(sT3)
    else: e("s_nop 0"); so="0"
    e.vmem(f"buffer_load_dwordx4 {R(vaddr)}, {S(srd_,4)}, {so} offen {'sc1 ' if sc1 else ''}lds",tag)
def ldfrag(e,dst,vaddr,srd_,t,tag,st):
    hi=t>>2
    if hi and (t&3==0 or st): e(f"s_mov_b32 {S(sT2)}, {hi*4096:#x}")
    so=S(sT2) if hi else "0"
    e.vmem(f"buffer_load_dwordx4 {R(dst,4)}, {R(vaddr)}, {S(srd_,4)}, {so} offen offset:{(t&3)*1024}"+' sc1',tag)
def tr_lane_base(e,dst,tmp,perm):
    a,b,c=tmp,tmp+1,tmp+2
    e(f"v_bfe_u32 {R(a)}, {R(vL)}, 2, 2")
    e(f"v_lshrrev_b32 {R(b)}, 5, {R(vL)}")
    e(f"v_lshl_add_u32 {R(dst)}, {R(b)}, 3, {R(a)}")
    e(f"v_lshlrev_b32 {R(dst)}, 7, {R(dst)}")
    e(f"v_lshrrev_b32 {R(a)}, 1, {R(a)}"); e(f"v_lshlrev_b32 {R(a)}, 2, {R(a)}")
    e(f"v_lshl_or_b32 {R(a)}, {R(b)}, 1, {R(a)}")
    if perm=="frag":
        e(f"v_bfe_u32 {R(b)}, {R(vL)}, 4, 1"); e(f"v_and_b32 {R(c)}, 1, {R(vL)}")
        e(f"v_lshl_or_b32 {R(b)}, {R(b)}, 1, {R(c)}"); e(f"v_bfe_u32 {R(c)}, {R(vL)}, 1, 1")
    else:
        e(f"v_and_b32 {R(b)}, 1, {R(vL)}"); e(f"v_bfe_u32 {R(c)}, {R(vL)}, 4, 1")
        e(f"v_lshl_or_b32 {R(b)}, {R(b)}, 1, {R(c)}"); e(f"v_bfe_u32 {R(c)}, {R(vL)}, 1, 1")
    e(f"v_xor_b32 {R(a)}, {R(a)}, {R(b)}")
    e(f"v_lshl_add_u32 {R(dst)}, {R(a)}, 4, {R(dst)}")
    e(f"v_lshl_add_u32 {R(dst)}, {R(c)}, 3, {R(dst)}")
def wdma_lane(e,dst,tmp,rowstride,odd):
    a,b=tmp,tmp+1
    e(f"v_lshrrev_b32 {R(a)}, 3, {R(vL)}")
    e(f"s_mov_b32 {S(sT0)}, {rowstride}"); e(f"v_mul_lo_u32 {R(dst)}, {R(a)}, {S(sT0)}")
    e(f"v_bfe_u32 {R(a)}, {R(vL)}, 4, 1"); e(f"v_lshlrev_b32 {R(a)}, 2, {R(a)}")
    if isinstance(odd,int):
        if odd: e(f"v_or_b32 {R(a)}, 2, {R(a)}")
    else: e(f"v_lshl_or_b32 {R(a)}, {odd}, 1, {R(a)}")
    e(f"v_and_b32 {R(b)}, 7, {R(vL)}"); e(f"v_xor_b32 {R(a)}, {R(a)}, {R(b)}")
    e(f"v_lshl_add_u32 {R(dst)}, {R(a)}, 4, {R(dst)}")
def mfma32(e,d,a,b,first): e(f"v_mfma_f32_32x32x16_bf16 {R(d,16)}, {R(a,4)}, {R(b,4)}, {'0' if first else R(d,16)}")
def mfma16(e,d,a,b,first): e(f"v_mfma_f32_16x16x32_bf16 {R(d,4)}, {R(a,4)}, {R(b,4)}, {'0' if first else R(d,4)}")
def trread(e,dst,va,off,tag):
    e.lds(f"ds_read_b64_tr_b16 {R(dst,2)}, {R(va)} offset:{off}",tag)
    e.lds(f"ds_read_b64_tr_b16 {R(dst+2,2)}, {R(va)} offset:{off+512}",tag)
def allsum_halves(e,a,t):
    e(f"v_mov_b32 {R(t)}, {R(a)}"); e.nop(2); e(f"v_permlane32_swap_b32 {R(t)}, {R(a)}"); e.nop(1); e(f"v_add_f32 {R(a)}, {R(a)}, {R(t)}")
def meanrstd(e,s_,q,t):
    e(f"v_mul_f32 {R(s_)}, 0x3b000000, {R(s_)}"); e(f"v_mul_f32 {R(q)}, 0x3b000000, {R(q)}")
    e(f"v_fma_f32 {R(q)}, -{R(s_)}, {R(s_)}, {R(q)}"); e(f"v_max_f32 {R(q)}, 0, {R(q)}")
    e(f"v_add_f32 {R(q)}, 0x3727c5ac, {R(q)}"); e(f"v_rsq_f32 {R(q)}, {R(q)}"); e.nop(1)

WO_LDS=96*1024
def ids64(e):
    e(f"s_lshr_b32 {S(sMB)}, {S(sJ)}, 3"); e(f"s_lshl_b32 {S(sT0)}, {S(sXCD)}, 2"); e(f"s_add_u32 {S(sMB)}, {S(sMB)}, {S(sT0)}")
    e(f"s_and_b32 {S(sNB)}, {S(sJ)}, 7"); e(f"s_and_b32 {S(sKQ)}, {S(sW)}, 3"); e(f"s_lshr_b32 {S(sMH)}, {S(sW)}, 2")
def bsrc(e,vB,tmp,KS,kq,mh,ldsbase,slab,sdst):
    wdma_lane(e,vB,tmp,1024,S(mh) if mh is not None else 0)
    e(f"s_mul_i32 {S(sT0)}, {S(kq)}, {KS*16*1024}"); e(f"s_and_b32 {S(sT1)}, {S(sJ)}, 7"); e(f"s_lshl_b32 {S(sT1)}, {S(sT1)}, 7"); e(f"s_add_u32 {S(sT0)}, {S(sT0)}, {S(sT1)}")
    e(f"s_mul_i32 {S(sdst)}, {S(kq)}, {slab}"); e(f"s_add_u32 {S(sdst)}, {S(sdst)}, {ldsbase}")
    if mh is not None:
        e(f"s_lshl_b32 {S(sT1)}, {S(mh)}, 13"); e(f"s_add_u32 {S(sT0)}, {S(sT0)}, {S(sT1)}")
        e(f"s_lshl_b32 {S(sT1)}, {S(mh)}, 10"); e(f"s_add_u32 {S(sdst)}, {S(sdst)}, {S(sT1)}")
    e(f"v_add_u32 {R(vB)}, {S(sT0)}, {R(vB)}")
def p4_preload(e,j,part):
    if part==0:
        srd(e,srdW,pW2,0,1792*1024); bsrc(e,14,9,28,j,None,0,40960,sLB)
        e("v_xor_b32 v15, 32, v14"); e("v_add_u32 v15, 0x2000, v15")
    for t in range(10*part,10*part+10):
        for h in range(2): dma(e,14+h,srdW,t*16384,(sLB,t*2048+h*1024),"pre")
def phase_rs(e,L,which):
    P2=which==2
    K=512 if P2 else 1792; KS=K//64; RING=8 if P2 else 20; SLAB=RING*2048; LB=WO_LDS if P2 else 0; RB=0 if P2 else 112*1024; LA=8 if P2 else 12
    wo=L*LSTRIDE
    ids64(e)
    if P2:
        srd(e,srdA,pWS,wo+O_OFF,2*MB)
        if L==0: srd(e,srdR,pX,0,2*MB)
        srd(e,srdO,pWS,wo+X1_OFF,2*MB); srd(e,srdS,pWS,wo+ST_OFF,128*1024)
    else:
        srd(e,srdA,pWS,wo+H_OFF,7*MB); srd(e,srdW,pW2,0,1792*1024); srd(e,srdR,pWS,X2H_OFF,128*1024)
        if L==0: srd(e,srdO,pWS,X2_OFF,2*MB)
        else: srd(e,srdO,pOUT,0,2*MB)
    vA,vB,vF,vRM,vT0,vT1,vRD,vRes,vAcc,vBf,vAf=12,13,4,5,6,7,8,vRES,16,48,80
    tmp=9; mt=sD+10; sb=sD+11
    e(f"s_lshl_b32 {S(mt)}, {S(sMB)}, 1"); e(f"s_add_u32 {S(mt)}, {S(mt)}, {S(sMH)}")
    e(f"s_mul_i32 {S(sT0)}, {S(mt)}, {K//16*1024}"); e(f"s_mul_i32 {S(sT1)}, {S(sKQ)}, {KS*1024}"); e(f"s_add_u32 {S(sT0)}, {S(sT0)}, {S(sT1)}")
    e(f"v_lshl_add_u32 {R(vA)}, {R(vL)}, 4, {S(sT0)}")
    if not P2: bsrc(e,vB,tmp,KS,sKQ,sMH,0,SLAB,sb)
    e(f"s_lshl_b32 {S(sT0)}, {S(mt)}, 5"); e(f"s_lshl_b32 {S(sT1)}, {S(sNB)}, 2"); e(f"s_add_u32 {S(sT1)}, {S(sT1)}, {S(sKQ)}")
    e(f"s_add_u32 {S(sT0)}, {S(sT0)}, {S(sT1)}"); e(f"s_lshl_b32 {S(sT0)}, {S(sT0)}, 10")
    e(f"v_lshl_add_u32 {R(vF)}, {R(vL)}, 4, {S(sT0)}")
    e(f"s_lshl_b32 {S(sT0)}, {S(mt)}, 15"); e(f"s_lshl_b32 {S(sT1)}, {S(sT1)}, 5"); e(f"s_add_u32 {S(sT0)}, {S(sT0)}, {S(sT1)}")
    e(f"v_and_b32 {R(tmp)}, 31, {R(vL)}"); e(f"v_lshlrev_b32 {R(tmp)}, 10, {R(tmp)}"); e(f"v_lshrrev_b32 {R(tmp+1)}, 5, {R(vL)}")
    e(f"v_lshl_add_u32 {R(tmp)}, {R(tmp+1)}, 4, {R(tmp)}"); e(f"v_add_u32 {R(vRM)}, {S(sT0)}, {R(tmp)}")
    tr_lane_base(e,vT0,tmp,"frag")
    e(f"s_mul_i32 {S(sT0)}, {S(sKQ)}, {SLAB}"); e(f"s_add_u32 {S(sT0)}, {S(sT0)}, {LB}")
    e(f"v_add_u32 {R(vT0)}, {S(sT0)}, {R(vT0)}"); e(f"v_xor_b32 {R(vT1)}, 64, {R(vT0)}")
    e(f"s_mul_i32 {S(sT0)}, {S(sMH)}, {12*2048}"); e(f"s_add_u32 {S(sT0)}, {S(sT0)}, {RB}"); e(f"v_lshl_add_u32 {R(vRD)}, {R(vL)}, 4, {S(sT0)}")
    def rd(t,nt): trread(e,vBf+(t&1)*8+nt*4,vT0+nt,(t%RING)*2048,("f",t,nt))
    rd(0,0); rd(0,1)
    if P2: e(f"s_and_b32 {S(sD+2)}, {S(sJ)}, 24"); waitflags(e,L*4,sD+2,8)
    else: e(f"s_lshr_b32 {S(sD+2)}, {S(sJ)}, 4"); e(f"s_mul_i32 {S(sD+2)}, {S(sD+2)}, 14"); waitflags(e,L*4+2,sD+2,14)
    stamp(e,9)
    for t in range(LA): ldfrag(e,vAf+4*t,vA,srdA,t,("A",t),False)
    if P2: pfl(e,srdW,pW1,512*3584,[(sJ,24576),(sW,3072)],MB,24,tmp)
    if P2 and L==0: e.vmem(f"buffer_load_dwordx4 {R(vRes,4)}, {R(vRM)}, {S(srdR,4)}, 0 offen","res")
    for t in range(KS):
        if t+LA<KS: ldfrag(e,vAf+4*(t+LA),vA,srdA,t+LA,("A",t+LA),False)
        if not P2 and t==9:
            e.bar()
            for u in range(RING,KS): dma(e,vB,srdW,u*16384,(sb,(u%RING)*2048),"B")
        if t+1==RING and t+1<KS: e.wvm("B"); e.bar()
        e.wvm(("A",t))
        if t%4==0: stamp(e,1+t//4)
        for nt in range(2):
            if t+1<KS: rd(t+1,nt)
            e.wlg(("f",t,nt)); mfma32(e,vAcc+16*nt,vBf+(t&1)*8+nt*4,vAf+4*t,t==0)
        if not P2 and L==0 and t==16: pfl(e,srdS,pQKV,512*3072,[(sJ,18432),(sW,2304)],0,18,9)
        if not P2 and L==0 and t==22: p1_setup(e,1)
    if not P2: e.bar()
    stamp(e,10); e.nop(10)
    own=vBf
    done=e.newlab("rdone"); labs=[e.newlab("rv") for _ in range(4)]
    for q in range(1,4): e(f"s_cmp_eq_u32 {S(sKQ)}, {q}"); e(f"s_cbranch_scc1 {labs[q]}")
    for kq in range(4):
        e.lab(labs[kq])
        for q in range(4):
            if q==kq: continue
            for j in range(2): e(f"ds_write_b128 {R(vRD)}, {R(vAcc+8*q+4*j,4)} offset:{(q*3+((kq-q)&3)-1)*2048+j*1024}")
        for j in range(8): e(f"v_mov_b32 {R(own+j)}, {R(vAcc+8*kq+j)}")
        if kq<3: e(f"s_branch {done}")
    e.lab(done)
    e(f"s_mul_i32 {S(sT0)}, {S(sKQ)}, {3*2048}"); e(f"v_add_u32 {R(vRD)}, {S(sT0)}, {R(vRD)}")
    if not P2 and L==0:
        for s_ in range(3): p1_issue(e,1,s_,range(3),[])
    e.wlg0(); e.bar()
    for i in range(1,4):
        for j in range(2): e.lds(f"ds_read_b128 {R(own+8*i+4*j,4)}, {R(vRD)} offset:{(i-1)*2048+j*1024}",("p",i))
    e.wvm("res")
    rf=vAcc
    for j in range(4):
        e(f"v_lshlrev_b32 {R(rf+2*j)}, 16, {R(vRes+j)}"); e(f"v_and_b32 {R(rf+2*j+1)}, 0xffff0000, {R(vRes+j)}")
    for j in range(4): e(f"v_pk_add_f32 {R(own+2*j,2)}, {R(own+2*j,2)}, {R(rf+2*j,2)}")
    for i in range(1,4):
        e.wlg(("p",i))
        for j in range(4): e(f"v_pk_add_f32 {R(own+2*j,2)}, {R(own+2*j,2)}, {R(own+8*i+2*j,2)}")
    for j in range(4): e(f"v_cvt_pk_bf16_f32 {R(vRes+j)}, {R(own+2*j)}, {R(own+2*j+1)}")
    ins=f"buffer_store_dwordx4 {R(vRes,4)}, {R(vF if P2 else vRM)}, {S(srdO,4)}, 0 offen"
    if P2 or L==0: gstore(e,ins,"st")
    else: e.vmem(ins,"st")
    if not P2 and L==0:
        sk=e.newlab("nohalo"); e(f"s_and_b32 {S(sT0)}, {S(mt)}, 7"); e(f"s_cmp_lg_u32 {S(sT0)}, 7"); e(f"s_cbranch_scc1 {sk}")
        e(f"s_lshl_b32 {S(sT0)}, {S(mt)}, 15"); e(f"s_lshl_b32 {S(sT1)}, {S(sXCD)}, 14"); e(f"s_sub_u32 {S(sT0)}, {S(sT0)}, {S(sT1)}"); e(f"s_add_u32 {S(sT0)}, {S(sT0)}, 0x4000")
        e(f"v_subrev_u32 {R(tmp)}, {S(sT0)}, {R(vRM)}"); e("s_mov_b32 exec_lo, 0xffff0000"); e("s_mov_b32 exec_hi, 0xffff0000")
        e(f"buffer_store_dwordx4 {R(vRes,4)}, {R(tmp)}, {S(srdR,4)}, 0 offen sc1"); e("s_mov_b64 exec, -1"); e.lab(sk)
        def xflag():
            sk=e.newlab("noxf"); e(f"s_cmp_lt_u32 {S(sJ)}, 24"); e(f"s_cbranch_scc1 {sk}")
            e(f"s_mov_b32 {S(sT2)}, {7*1024}"); e(f"buffer_store_dword v3, v2, {S(srdF,4)}, {S(sT2)} offen sc1"); e.lab(sk)
        publish(e,3,xflag)
    if P2:
        a,b=rf,rf+1
        e(f"v_dot2_f32_bf16 {R(a)}, {R(vRes)}, {S(sONE)}, 0"); e(f"v_dot2_f32_bf16 {R(b)}, {R(vRes)}, {R(vRes)}, 0")
        for j in range(1,4):
            e(f"v_dot2_f32_bf16 {R(a)}, {R(vRes+j)}, {S(sONE)}, {R(a)}"); e(f"v_dot2_f32_bf16 {R(b)}, {R(vRes+j)}, {R(vRes+j)}, {R(b)}")
        e(f"s_lshl_b32 {S(sT0)}, {S(sW)}, 8"); e(f"s_add_u32 {S(sT0)}, {S(sT0)}, 0xc000")
        e(f"v_lshl_add_u32 {R(tmp)}, {R(vL)}, 2, {S(sT0)}"); e.nop(2)
        e(f"v_permlane32_swap_b32 {R(a)}, {R(b)}"); e.nop(1); e(f"v_add_f32 {R(a)}, {R(a)}, {R(b)}")
        e(f"ds_write_b32 {R(tmp)}, {R(a)}"); e.wlg0(); e.bar()
        sk=e.newlab("nost"); e(f"s_cmp_lg_u32 {S(sKQ)}, 0"); e(f"s_cbranch_scc1 {sk}")
        for i in range(1,4): e(f"ds_read_b32 {R(rf+1+i)}, {R(tmp)} offset:{i*256}")
        e(f"s_lshl_b32 {S(sT0)}, {S(mt)}, 3"); e(f"s_add_u32 {S(sT0)}, {S(sT0)}, {S(sNB)}"); e(f"s_lshl_b32 {S(sT0)}, {S(sT0)}, 8")
        e(f"v_lshl_add_u32 {R(tmp)}, {R(vL)}, 2, {S(sT0)}"); e.wlg0()
        e(f"v_add_f32 {R(a)}, {R(a)}, {R(rf+2)}"); e(f"v_add_f32 {R(rf+3)}, {R(rf+3)}, {R(rf+4)}"); e(f"v_add_f32 {R(a)}, {R(a)}, {R(rf+3)}")
        gstore(e,f"buffer_store_dword {R(a)}, {R(tmp)}, {S(srdS,4)}, 0 offen","st")
        e.lab(sk)
        publish(e,L*4+1)

def phase3(e,L):
    wo=L*LSTRIDE; LA=8
    e(f"s_cmp_ge_u32 {S(sJ)}, 14"); e(f"s_cselect_b32 {S(sT0)}, 1, 0"); e(f"s_cselect_b32 {S(sT1)}, 14, 0")
    e(f"s_sub_u32 {S(sNB)}, {S(sJ)}, {S(sT1)}"); e(f"s_lshl_b32 {S(sMB)}, {S(sXCD)}, 1"); e(f"s_add_u32 {S(sMB)}, {S(sMB)}, {S(sT0)}")
    srd(e,srdA,pWS,wo+X1_OFF,2*MB); srd(e,srdW,pW1,0,512*3584); srd(e,srdO,pWS,wo+H_OFF,7*MB); srd(e,srdS,pWS,wo+ST_OFF,128*1024)
    CS=131072
    ld=e.newlab("p3ld"); fin=e.newlab("p3fin"); skip=e.newlab("p3skip"); sk2=e.newlab("p3end")
    j=sD; e(f"s_sub_u32 {S(j)}, {S(sW)}, 4")
    e(f"s_cmp_ge_u32 {S(sJ)}, 28"); e(f"s_cbranch_scc1 {skip}")
    tmp=9
    e(f"s_cmp_ge_u32 {S(sW)}, 4"); e(f"s_cbranch_scc1 {ld}")
    vA,vT,vH,vM,vS,vSt,vAcc,vBf,vAf=12,4,13,14,2,16,24,88,120
    mt=sD
    e(f"s_lshl_b32 {S(mt)}, {S(sMB)}, 2"); e(f"s_add_u32 {S(mt)}, {S(mt)}, {S(sW)}")
    e(f"s_lshl_b32 {S(sT0)}, {S(mt)}, 15"); e(f"v_lshl_add_u32 {R(vA)}, {R(vL)}, 4, {S(sT0)}")
    e(f"s_lshl_b32 {S(sT0)}, {S(mt)}, 11"); e(f"v_lshl_add_u32 {R(vH)}, {R(vL)}, 2, {S(sT0)}")
    tr_lane_base(e,vT,tmp,"frag")
    e(f"v_xor_b32 {R(vT+1)}, 64, {R(vT)}"); e(f"v_add_u32 {R(vT+2)}, 0x10000, {R(vT)}"); e(f"v_add_u32 {R(vT+3)}, 0x10000, {R(vT+1)}")
    e(f"s_and_b32 {S(sD+2)}, {S(sMB)}, 1"); e(f"s_lshl_b32 {S(sD+2)}, {S(sD+2)}, 4"); waitflags(e,L*4+1,sD+2,16); stamp(e,9)
    for t in range(LA): ldfrag(e,vAf+4*t,vA,srdA,t,("A",t),False)
    def rd(t,nt): trread(e,vBf+(t&1)*16+nt*4,vT+nt,t*2048,("f",t,nt))
    e.bar()
    for nt in range(4): rd(0,nt)
    for t in range(32):
        for u in (LA+2*t,LA+2*t+1):
            if u<32: ldfrag(e,vAf+4*u,vA,srdA,u,("A",u),False)
        if t==12:
            for i in range(8): e.vmem(f"buffer_load_dword {R(vSt+i)}, {R(vH)}, {S(srdS,4)}, 0 offen offset:{i*256} sc1","st")
            e(f"s_mul_i32 {S(sT0)}, {S(mt)}, {112*1024}"); e(f"s_lshl_b32 {S(sT1)}, {S(sNB)}, 13"); e(f"s_add_u32 {S(sT0)}, {S(sT0)}, {S(sT1)}")
            e(f"v_lshl_add_u32 {R(vH)}, {R(vL)}, 4, {S(sT0)}")
        if (t+1)%4==0 and t+1<=16: e.bar()
        e.wvm(("A",t))
        if t%4==0: stamp(e,1+t//4)
        for nt in range(4):
            if t+1<32: rd(t+1,nt)
            e.wlg(("f",t,nt)); mfma32(e,vAcc+16*nt,vBf+(t&1)*16+nt*4,vAf+4*t,t==0)
        if t==30:
            e.wvm("st")
            for i in (4,2,1):
                for jj in range(i): e(f"v_add_f32 {R(vSt+jj)}, {R(vSt+jj)}, {R(vSt+jj+i)}")
            e(f"v_mov_b32 {R(vSt+1)}, {R(vSt)}"); e.nop(2); e(f"v_permlane32_swap_b32 {R(vSt)}, {R(vSt+1)}"); e.nop(1)
            meanrstd(e,vSt,vSt+1,tmp)
            e(f"v_mul_f32 {R(vM)}, 0xbfb8aa3b, {R(vSt+1)}"); e(f"v_mul_f32 {R(vM+1)}, {R(vM)}, {R(vSt)}"); e(f"v_sub_f32 {R(vM+1)}, 0, {R(vM+1)}")
            e(f"v_mov_b32 {R(vS)}, 0xbfb8aa3b")
    e(f"v_lshrrev_b32 {R(tmp)}, 5, {R(vL)}"); e(f"v_lshlrev_b32 {R(tmp)}, 4, {R(tmp)}"); e(f"v_add_u32 {R(tmp)}, {CS:#x}, {R(tmp)}")
    e.bar(); stamp(e,10)
    vC=vAf
    for nt in range(4):
        for g in range(4): e.lds(f"ds_read_b128 {R(vC+16*nt+4*g,4)}, {R(tmp)} offset:{nt*128+g*32}",("c",nt))
    for jj in range(32): e(f"v_pk_mul_f32 {R(vAcc+2*jj,2)}, {R(vAcc+2*jj,2)}, {R(vM,2)} op_sel_hi:[1,0]") if jj>=24 or True else None
    e.wlg0(); e.bar()
    U=vBf; PK=vAf+64
    for nt in range(4):
        for hh in range(2):
            b=vAcc+16*nt+8*hh; c=vC+16*nt+8*hh; o=PK+(nt*2+hh)*4
            for jj in range(4): e(f"v_pk_fma_f32 {R(b+2*jj,2)}, {R(c+2*jj,2)}, {R(vM,2)}, {R(b+2*jj,2)} op_sel:[0,1,0] op_sel_hi:[1,1,1]")
            for jj in range(8): e(f"v_exp_f32 {R(U+jj)}, {R(b+jj)}")
            e.nop(1)
            for jj in range(4): e(f"v_pk_fma_f32 {R(U+2*jj,2)}, {R(U+2*jj,2)}, {R(vS,2)}, {R(vS,2)} op_sel_hi:[1,0,0]")
            for jj in range(8): e(f"v_rcp_f32 {R(U+jj)}, {R(U+jj)}")
            e.nop(1)
            for jj in range(4): e(f"v_pk_mul_f32 {R(b+2*jj,2)}, {R(b+2*jj,2)}, {R(U+2*jj,2)}")
            for jj in range(4): e(f"v_cvt_pk_bf16_f32 {R(o+jj)}, {R(b+2*jj)}, {R(b+2*jj+1)}")
            t=nt*2+hh
            if t==4: e(f"s_movk_i32 {S(sT2)}, 0x1000")
            gstore(e,f"buffer_store_dwordx4 {R(o,4)}, {R(vH)}, {S(srdO,4)}, {S(sT2) if t>=4 else '0'} offen offset:{(t&3)*1024}","st")
    e(f"s_branch {fin}")
    e.lab(ld); e.reset(); e('s_setprio 2')
    vB,vT,vCs,vBf=2,4,5,16
    wdma_lane(e,vB,tmp,3584,0)
    e(f"s_and_b32 {S(sD+1)}, {S(j)}, 1"); e(f"s_lshr_b32 {S(sD+2)}, {S(j)}, 1")
    e(f"s_mul_i32 {S(sT0)}, {S(sD+2)}, {32*3584}"); e(f"s_lshl_b32 {S(sT1)}, {S(sD+1)}, 7"); e(f"s_add_u32 {S(sT0)}, {S(sT0)}, {S(sT1)}")
    e(f"s_lshl_b32 {S(sT1)}, {S(sNB)}, 8"); e(f"s_add_u32 {S(sT0)}, {S(sT0)}, {S(sT1)}")
    e(f"v_add_u32 {R(vB)}, {S(sT0)}, {R(vB)}"); e(f"v_xor_b32 {R(vB+1)}, 32, {R(vB)}")
    e(f"s_lshl_b32 {S(sLB)}, {S(sD+1)}, 16"); e(f"s_lshl_b32 {S(sT1)}, {S(sD+2)}, 12"); e(f"s_add_u32 {S(sLB)}, {S(sLB)}, {S(sT1)}")
    def wch(ch):
        for i in range(4): dma(e,vB+(i&1),srdW,(ch*64+8*i)*3584,(sLB,ch*8192+i*1024),("B",ch))
    for ch in range(3): wch(ch)
    tr_lane_base(e,vT,tmp,"frag")
    e(f"s_lshl_b32 {S(sT0)}, {S(sD+1)}, 6"); e(f"v_xor_b32 {R(vT)}, {S(sT0)}, {R(vT)}")
    e(f"s_lshl_b32 {S(sT0)}, {S(sD+2)}, 16"); e(f"v_add_u32 {R(vT)}, {S(sT0)}, {R(vT)}")
    e(f"v_mov_b32 {R(vCs)}, 0"); e(f"v_mov_b32 {R(vCs+1)}, 0")
    e.bar()
    for ch in range(8):
        if ch<=4: e.wvm(("B",ch if ch<4 else 7)); e.bar()
        if ch==0: stamp(e,9)
        if ch==4: stamp(e,1)
        for t in range(4): trread(e,vBf+4*t,vT,(ch*4+t)*2048,("f",t))
        for c2 in {0:(3,4),1:(5,6),2:(7,)}.get(ch,()): wch(c2)
        if ch==3:
            e(f"s_lshl_b32 {S(sT0)}, {S(sMB)}, 2"); e(f"s_add_u32 {S(sT0)}, {S(sT0)}, {S(j)}"); e(f"s_mul_i32 {S(sT0)}, {S(sT0)}, {112*1024}")
            e(f"s_lshl_b32 {S(sT1)}, {S(sNB)}, 13"); e(f"s_add_u32 {S(sT0)}, {S(sT0)}, {S(sT1)}"); e(f"v_lshl_add_u32 v7, {R(vL)}, 7, {S(sT0)}")
            e.vmem(f"buffer_load_dword v242, v7, {S(srdO,4)}, 0 offen sc1","pf")
        if ch==4: pf_w2(e,j,0)
        for t in range(4):
            e.wlg(("f",t))
            for i in range(4): e(f"v_dot2_f32_bf16 {R(vCs+(i&1))}, {R(vBf+4*t+i)}, {S(sONE)}, {R(vCs+(i&1))}")
    e(f"s_lshl_b32 {S(sT0)}, {S(j)}, 7"); e(f"s_add_u32 {S(sT0)}, {S(sT0)}, {CS:#x}")
    e(f"v_and_b32 {R(tmp)}, 31, {R(vL)}"); e(f"v_lshl_add_u32 {R(tmp)}, {R(tmp)}, 2, {S(sT0)}"); e.nop(2)
    e(f"v_add_f32 {R(vCs)}, {R(vCs)}, {R(vCs+1)}")
    allsum_halves(e,vCs,vCs+1)
    e(f"ds_write_b32 {R(tmp)}, {R(vCs)}")
    stamp(e,3)
    if 'w4' in DBG: e.wvm0()
    stamp(e,4); e.wlg0(); e('s_setprio 0'); e.bar(); e.bar(); stamp(e,5)
    p4_preload(e,j,0); stamp(e,6); pf_w2(e,j,1)
    if L==0: x2touch(e,j,4,7)
    stamp(e,7); e.wvm("pre"); stamp(e,8); e.bar(); stamp(e,10); e(f"s_branch {sk2}")
    e.lab(fin); publish(e,L*4+2); e(f"s_branch {sk2}")
    e.lab(skip)
    sk3=e.newlab("p3np"); e(f"s_cmp_lt_u32 {S(sW)}, 4"); e(f"s_cbranch_scc1 {sk3}"); pf_w2(e,j,0); pf_w2(e,j,1)
    if L==0: x2touch(e,j,4,7)
    p4_preload(e,j,0); e.lab(sk3)
    e.wvm0(); e.bar(); e.lab(sk2)
    sk4=e.newlab("p3nq"); e(f"s_cmp_lt_u32 {S(sW)}, 4"); e(f"s_cbranch_scc1 {sk4}"); p4_preload(e,j,1); e.lab(sk4)

STG=34816; WOF=10240; CS1=4*STG; ST1=CS1+1024; QB,KB,VB=0,9216,20736
vW,vX,vb=200,206,209
dW,dX=sD,sD+6
def wslots(e,sw,k0):
    for a in range(3):
        e(f"s_mul_i32 {S(sT0)}, {S(sw)}, 3"); e(f"s_add_u32 {S(sT0)}, {S(sT0)}, {a}")
        e(f"s_lshl_b32 {S(dW+k0+a)}, {S(sT0)}, 10"); e(f"s_add_u32 {S(dW+k0+a)}, {S(dW+k0+a)}, {WOF}")
        e(f"s_and_b32 {S(sT1)}, {S(sT0)}, 1"); e(f"s_lshl_b32 {S(sT1)}, {S(sT1)}, 5"); e(f"v_xor_b32 {R(vW+k0+a)}, {S(sT1)}, {R(vb)}")
        e(f"s_and_b32 {S(sT1)}, {S(sT0)}, 7"); e(f"s_mul_i32 {S(sT1)}, {S(sT1)}, {8*3072}")
        e(f"s_lshr_b32 {S(sT0)}, {S(sT0)}, 3"); e(f"s_lshl_b32 {S(sT0)}, {S(sT0)}, 10"); e(f"s_add_u32 {S(sT0)}, {S(sT0)}, {S(sT1)}")
        e(f"v_add_u32 {R(vW+k0+a)}, {S(sT0)}, {R(vW+k0+a)}")
def p1_setup(e,L):
    tmp=9
    srd(e,srdW,pQKV,0,512*3072)
    wdma_lane(e,vb,tmp,3072,0)
    e(f"s_lshl_b32 {S(sT0)}, {S(sNB)}, 7"); e(f"v_add_u32 {R(vb)}, {S(sT0)}, {R(vb)}")
    e(f"v_lshrrev_b32 {R(tmp)}, 3, {R(vL)}"); e(f"v_lshrrev_b32 {R(tmp+1)}, 4, {R(vL)}"); e(f"v_and_b32 {R(tmp+2)}, 7, {R(vL)}")
    e(f"v_xor_b32 {R(tmp+1)}, {R(tmp+1)}, {R(tmp+2)}"); e(f"v_lshlrev_b32 {R(tmp+1)}, 4, {R(tmp+1)}")
    e(f"v_lshl_add_u32 {R(vb+1)}, {R(tmp)}, 10, {R(tmp+1)}")
    wslots(e,sW,0)
def p1_issue(e,L,s,ws,xs):
    b=(s%4)*STG
    for k in xs: dma(e,vX+k,srdA,s*128,(dX+k,b),("S",s),L==1)
    for k in ws: dma(e,vW+k,srdW,s*64*3072,(dW+k,b),("S",s))
def p1_trickle(e,L,s,j):
    wo=L*LSTRIDE; va=211
    if s==5 and "nopt" not in DBG:
        srd(e,srdS,pWS,wo,16*MB)
        e(f"s_lshl_b32 {S(sT0)}, {S(sMB)}, 16"); e(f"s_lshl_b32 {S(sT1)}, {S(sNB)}, 12"); e(f"s_add_u32 {S(sT0)}, {S(sT0)}, {S(sT1)}")
        e(f"s_and_b32 {S(sT1)}, {S(j)}, 1"); e(f"s_lshl_b32 {S(sT1)}, {S(sT1)}, 15"); e(f"s_add_u32 {S(sT0)}, {S(sT0)}, {S(sT1)}")
        e(f"s_lshr_b32 {S(sT1)}, {S(j)}, 1"); e(f"s_lshl_b32 {S(sT1)}, {S(sT1)}, 21"); e(f"s_add_u32 {S(sT0)}, {S(sT0)}, {S(sT1)}")
        e(f"v_and_b32 {R(va)}, 31, {R(vL)}"); e(f"v_lshl_add_u32 {R(va)}, {R(va)}, 7, {S(sT0)}")
        e.vmem(f"buffer_load_dword v242, {R(va)}, {S(srdS,4)}, 0 offen sc1","pf")
        e(f"s_lshl_b32 {S(sT0)}, {S(sMB)}, 12"); e(f"s_lshl_b32 {S(sT1)}, {S(sNB)}, 8"); e(f"s_add_u32 {S(sT0)}, {S(sT0)}, {S(sT1)}"); e(f"s_add_u32 {S(sT0)}, {S(sT0)}, {ST_OFF}")
        e(f"v_and_b32 {R(va)}, 1, {R(vL)}"); e(f"v_lshl_add_u32 {R(va)}, {R(va)}, 7, {S(sT0)}"); e(f"v_bfe_u32 {R(va+1)}, {R(vL)}, 1, 1"); e(f"v_lshl_add_u32 {R(va)}, {R(va+1)}, 11, {R(va)}")
        e.vmem(f"buffer_load_dword v242, {R(va)}, {S(srdS,4)}, 0 offen sc1","pf")
        if L==0:
            e(f"s_lshl_b32 {S(sT0)}, {S(sXCD)}, 7"); e(f"v_and_b32 {R(va)}, 7, {R(vL)}"); e(f"v_lshl_add_u32 {R(va)}, {R(va)}, 10, {S(sT0)}")
            e.vmem(f"buffer_load_dword v242, {R(va)}, {S(srdF,4)}, 0 offen sc1","pf")
    if s==5: prefetch(e,srdS,pWO,512*1024,4,j,va,240)
    if s==6: pfl(e,srdS,pW1,512*3584,[(sJ,32768),(j,8192)],0,64,va)
def x2touch(e,sw,nw,va):
    e(f"s_lshr_b32 {S(sT0)}, {S(sJ)}, 3"); e(f"s_lshl_b32 {S(sT1)}, {S(sXCD)}, 2"); e(f"s_add_u32 {S(sT0)}, {S(sT0)}, {S(sT1)}"); e(f"s_lshl_b32 {S(sT0)}, {S(sT0)}, 16")
    e(f"s_mul_i32 {S(sT1)}, {S(sw)}, {65536//nw}"); e(f"s_add_u32 {S(sT0)}, {S(sT0)}, {S(sT1)}")
    e(f"s_and_b32 {S(sT1)}, {S(sJ)}, 7"); e(f"s_lshl_b32 {S(sT1)}, {S(sT1)}, 7"); e(f"s_add_u32 {S(sT0)}, {S(sT0)}, {S(sT1)}")
    srd(e,srdR,pWS,X2_OFF,2*MB)
    e(f"v_and_b32 {R(va)}, {64//nw-1}, {R(vL)}"); e(f"v_lshl_add_u32 {R(va)}, {R(va)}, 10, {S(sT0)}")
    e.vmem(f"buffer_load_dword v242, {R(va)}, {S(srdR,4)}, 0 offen sc1","pf")
def phase1(e,L):
    wo=L*LSTRIDE
    ids64(e)
    if L==0: srd(e,srdA,pX,0,2*MB); p1_setup(e,0)
    else: srd(e,srdA,pWS,X2_OFF,4*MB)
    srd(e,srdO,pWS,wo+O_OFF,2*MB)
    tmp=9
    lab_h,lab_l,lab_att=e.newlab("p1h"),e.newlab("p1l"),e.newlab("p1att")
    issue=lambda s,ws,xs: p1_issue(e,L,s,ws,xs)
    w0=range(3) if L==0 else []
    def xslot(si,k):
        e(f"s_lshl_b32 {S(dX+k)}, {S(si)}, 10")
        e(f"s_and_b32 {S(sT1)}, {S(si)}, 1"); e(f"s_lshl_b32 {S(sT1)}, {S(sT1)}, 6"); e(f"v_xor_b32 {R(vX+k)}, {S(sT1)}, {R(vb+1)}")
        e(f"s_lshl_b32 {S(sT0)}, {S(sMB)}, 16"); e(f"s_lshl_b32 {S(sT1)}, {S(si)}, 13"); e(f"s_add_u32 {S(sT0)}, {S(sT0)}, {S(sT1)}")
        e(f"s_sub_u32 {S(sT0)}, {S(sT0)}, 0x4000")
        if L==1:
            e(f"s_lshl_b32 {S(sT2)}, {S(sXCD)}, 14"); e(f"s_add_u32 {S(sT2)}, {S(sT2)}, {S(sT1)}"); e(f"s_add_u32 {S(sT2)}, {S(sT2)}, {X2H_OFF-X2_OFF-0x4000}")
            e(f"s_cmp_lt_u32 {S(si)}, 2"); e(f"s_cselect_b32 {S(sT1)}, {S(sD+9)}, 0"); e(f"s_cmp_lg_u32 {S(sT1)}, 0"); e(f"s_cselect_b32 {S(sT0)}, {S(sT2)}, {S(sT0)}")
        e(f"v_add_u32 {R(vX+k)}, {S(sT0)}, {R(vX+k)}")
    def bump(regs,s):
        d=STG if s%4!=3 else -3*STG
        for r in regs: e(f"v_add_u32 {R(r)}, {d&0xffffffff:#x}, {R(r)}")
    def xaddr(dst,n,step,rowbase,w16):
        if w16: e(f"v_and_b32 {R(tmp)}, 15, {R(vL)}"); e(f"v_lshrrev_b32 {R(tmp+1)}, 4, {R(vL)}")
        else: e(f"v_and_b32 {R(tmp)}, 31, {R(vL)}"); e(f"v_lshrrev_b32 {R(tmp+1)}, 5, {R(vL)}")
        if rowbase is not None: e(f"v_add_u32 {R(tmp)}, {rowbase}, {R(tmp)}")
        e(f"v_bfe_u32 {R(tmp+2)}, {R(tmp)}, 1, 3"); e(f"v_xor_b32 {R(tmp+1)}, {R(tmp+1)}, {R(tmp+2)}")
        e(f"v_lshlrev_b32 {R(tmp+1)}, 4, {R(tmp+1)}"); e(f"v_lshl_add_u32 {R(dst)}, {R(tmp)}, 7, {R(tmp+1)}")
        for i in range(1,n): e(f"v_xor_b32 {R(dst+i)}, {i*step}, {R(dst)}")
    if L==1:
        e(f"s_cmp_lt_u32 {S(sJ)}, 8"); e(f"s_cselect_b32 {S(sD+9)}, {S(sXCD)}, 0")
        e(f"s_and_b32 {S(sD+12)}, {S(sJ)}, 24"); e(f"s_max_u32 {S(sT0)}, {S(sD+12)}, 8"); e(f"s_sub_u32 {S(sT0)}, {S(sT0)}, 8"); e(f"s_lshl_b32 {S(sT0)}, {S(sT0)}, 2")
        e(f"s_lshl_b32 {S(sT1)}, {S(sXCD)}, 7"); e(f"s_add_u32 {S(sT0)}, {S(sT0)}, {S(sT1)}"); e(f"s_add_u32 {S(sT0)}, {S(sT0)}, {3*1024}")
        e(f"s_add_u32 {S(sT1)}, {S(sT1)}, {7*1024-128+96}"); e(f"s_cmp_lg_u32 {S(sD+9)}, 0"); e(f"s_cselect_b32 {S(sD+13)}, {S(sT1)}, {S(sT0)}")
    xslot(sW,0)
    if L==1: waitflags(e,3,sD+12,8,sD+13)
    e(f"s_cmp_ge_u32 {S(sW)}, 4"); e(f"s_cbranch_scc1 {lab_l}")
    for s in range(3): issue(s,w0,[0])
    q0=list(e.vm)
    e(f"s_cmp_eq_u32 {S(sW)}, 3"); e(f"s_cbranch_scc1 {lab_h}")
    vXa,vTa,vAcc,vF=2,6,32,96
    xaddr(vXa,4,32,16,False)
    tr_lane_base(e,vTa,tmp,"head")
    pA,nA,pB,nB=sD+10,sD+11,sD+12,sD+13
    e(f"s_min_u32 {S(pA)}, {S(sW)}, 1"); e(f"s_lshr_b32 {S(nA)}, {S(sW)}, 1"); e(f"s_lshl_b32 {S(pB)}, {S(pA)}, 1")
    e(f"s_and_b32 {S(nB)}, {S(sW)}, 1"); e(f"s_xor_b32 {S(nB)}, {S(nB)}, 1")
    for r,p,n in ((vTa+1,pB,nB),(vTa,pA,nA)):
        e(f"s_lshl_b32 {S(sT0)}, {S(n)}, 6"); e(f"v_xor_b32 {R(r)}, {S(sT0)}, {R(vTa)}")
        e(f"s_lshl_b32 {S(sT0)}, {S(p)}, 13"); e(f"s_add_u32 {S(sT0)}, {S(sT0)}, {WOF}"); e(f"v_add_u32 {R(r)}, {S(sT0)}, {R(r)}")
    def rd(t,p):
        b=vF+(t&1)*16; ks=t&3
        if p==0: trread(e,b+8,vTa,ks*2048,("a",t))
        if p==1: e.lds(f"ds_read_b128 {R(b,4)}, {R(vXa+ks)}",("a",t)); e.lds(f"ds_read_b128 {R(b+4,4)}, {R(vXa+ks)} offset:4096",("b",t))
        if p==2: trread(e,b+12,vTa+1,ks*2048,("c",t))
    e.wvm(("S",0)); e.bar(); stamp(e,1)
    for p in range(3): rd(0,p)
    for t in range(32):
        nx=t+1<32
        if nx and (t+1)%4==0:
            s=(t+1)//4
            e.wvm(("S",s)); (e.wlg0() if s<=4 else None); bump(range(vXa,vXa+6),s-1); (e.bar() if s<7 else None); stamp(e,1+s)
        b=vF+(t&1)*16
        if nx: rd(t+1,0)
        e.wlg(("a",t)); mfma32(e,vAcc,b+8,b,t==0)
        if nx: rd(t+1,1)
        e.wlg(("b",t)); mfma32(e,vAcc+16,b+8,b+4,t==0)
        if nx: rd(t+1,2)
        e.wlg(("c",t)); mfma32(e,vAcc+32,b+12,b,t==0); mfma32(e,vAcc+48,b+12,b+4,t==0)
    vC,vSt,vWA,vWB,vP=128,160,2,3,168
    e(f"v_lshrrev_b32 {R(tmp)}, 5, {R(vL)}"); e(f"v_and_b32 {R(tmp+1)}, 31, {R(vL)}")
    for r,p,n in ((4,pA,nA),(5,pB,nB)):
        e(f"s_lshl_b32 {S(sT0)}, {S(p)}, 8"); e(f"s_lshl_b32 {S(sT1)}, {S(n)}, 7"); e(f"s_add_u32 {S(sT0)}, {S(sT0)}, {S(sT1)}")
        e(f"s_add_u32 {S(sT0)}, {S(sT0)}, {CS1}"); e(f"v_lshl_add_u32 {R(r)}, {R(tmp)}, 6, {S(sT0)}")
    e(f"v_lshlrev_b32 {R(6)}, 3, {R(tmp+1)}"); e(f"v_add_u32 {R(6)}, {ST1+128:#x}, {R(6)}")
    e(f"v_mul_u32_u24 {R(vWA)}, 144, {R(tmp+1)}"); e(f"v_lshl_add_u32 {R(vWA)}, {R(tmp)}, 5, {R(vWA)}")
    e(f"v_mul_u32_u24 {R(vWB)}, 272, {R(tmp+1)}"); e(f"v_lshl_add_u32 {R(vWB)}, {R(tmp)}, 6, {R(vWB)}")
    e(f"s_mul_i32 {S(sT0)}, {S(pA)}, {KB+16*144}"); e(f"s_lshl_b32 {S(sT1)}, {S(nA)}, 6"); e(f"s_add_u32 {S(sT0)}, {S(sT0)}, {S(sT1)}")
    e(f"v_add_u32 {R(vWA)}, {S(sT0)}, {R(vWA)}")
    e(f"s_lshl_b32 {S(sT1)}, {S(nB)}, 7"); e(f"s_add_u32 {S(sT1)}, {S(sT1)}, {VB+16*272}"); e(f"v_add_u32 {R(vWB)}, {S(sT1)}, {R(vWB)}")
    e.bar(); stamp(e,9)
    for m in range(2): e.lds(f"ds_read_b64 {R(vSt+2*m,2)}, {R(6)} offset:{m*256}","st")
    for T in range(2):
        for g in range(4): e.lds(f"ds_read_b128 {R(vC+16*T+4*g,4)}, {R(4+T)} offset:{g*16}",("c",T))
    def corr(T,m):
        b=vAcc+32*T+16*m
        for j in range(8): e(f"v_pk_fma_f32 {R(b+2*j,2)}, {R(vC+16*T+2*j,2)}, {R(vSt+2*m,2)}, {R(b+2*j,2)} op_sel_hi:[1,0,1]")
        for j in range(8): e(f"v_pk_mul_f32 {R(b+2*j,2)}, {R(b+2*j,2)}, {R(vSt+2*m,2)} op_sel:[0,1] op_sel_hi:[1,1]")
    def wr16(T,m,off):
        b=vAcc+32*T+16*m; p=vP+8*(2*T+m)
        for j in range(8): e(f"v_cvt_pk_bf16_f32 {R(p+j)}, {R(b+2*j)}, {R(b+2*j+1)}")
        for j in range(2): e(f"ds_write_b128 {R(vWA)}, {R(p+4*j,4)} offset:{off+m*32*144+16*j}")
    e.wlg(("c",0))
    for m in range(2): corr(0,m); wr16(0,m,0)
    e.wlg0()
    for m in range(2): corr(1,m)
    lv=e.newlab("p1v"); e(f"s_cmp_lg_u32 {S(sW)}, 0"); e(f"s_cbranch_scc1 {lv}")
    for m in range(2): wr16(1,m,64)
    e(f"s_branch {lab_att}")
    e.lab(lv)
    for m in range(2):
        for j in range(4): e(f"ds_write_b128 {R(vWB)}, {R(vAcc+32+16*m+4*j,4)} offset:{m*32*272+16*j}")
    e(f"s_branch {lab_att}")
    e.lab(lab_h); e.reset(); e.vm=list(q0)
    if L==0: hello(e)
    vXa,vTh,vAcc,vXf,vWf=2,4,32,80,96
    xaddr(vXa,2,64,None,True)
    e(f"v_lshrrev_b32 {R(tmp)}, 4, {R(vL)}"); e(f"v_bfe_u32 {R(tmp+1)}, {R(vL)}, 2, 2")
    e(f"v_lshl_add_u32 {R(vTh)}, {R(tmp)}, 3, {R(tmp+1)}"); e(f"v_lshlrev_b32 {R(vTh)}, 7, {R(vTh)}")
    e(f"v_and_b32 {R(tmp)}, 1, {R(tmp)}"); e(f"v_lshlrev_b32 {R(tmp)}, 1, {R(tmp)}"); e(f"v_lshrrev_b32 {R(tmp+1)}, 1, {R(tmp+1)}")
    e(f"v_lshl_or_b32 {R(tmp)}, {R(tmp+1)}, 2, {R(tmp)}"); e(f"v_bfe_u32 {R(tmp+1)}, {R(vL)}, 1, 1"); e(f"v_or_b32 {R(tmp)}, {R(tmp)}, {R(tmp+1)}")
    e(f"v_lshl_add_u32 {R(vTh)}, {R(tmp)}, 4, {R(vTh)}"); e(f"v_and_b32 {R(tmp)}, 1, {R(vL)}"); e(f"v_lshl_add_u32 {R(vTh)}, {R(tmp)}, 3, {R(vTh)}")
    e(f"v_add_u32 {R(vTh)}, {WOF}, {R(vTh)}")
    for h in range(1,4): e(f"v_xor_b32 {R(vTh+h)}, {h*32}, {R(vTh)}")
    e(f"v_and_b32 {R(tmp)}, 15, {R(vL)}"); e(f"v_cmp_eq_u32 vcc, 0, {R(tmp)}"); e(f"v_mov_b32 {R(12)}, {S(sONE)}")
    def rdu(u,h):
        T,p=divmod(u,3); kk=T&1
        if p==0 and h==0: e.lds(f"ds_read_b128 {R(vXf+4*(T&1),4)}, {R(vXa+kk)}",("x",T))
        trread(e,vWf+(u&1)*16+4*h,vTh+h,p*8192+kk*4096,("w",u,h))
    e.wvm(("S",0)); e.bar()
    for h in range(4): rdu(0,h)
    for u in range(48):
        T,p=divmod(u,3)
        if u+1<48 and (u+1)%6==0:
            s=(u+1)//6
            e.wvm(("S",s)); (e.wlg0() if s<=4 else None); bump(range(vXa,vXa+6),s-1); (e.bar() if s<7 else None)
        if p==0:
            e.wlg(("x",T))
            for i in range(4): e(f"v_cndmask_b32 {R(vXf+4*(T&1)+i)}, {R(vXf+4*(T&1)+i)}, {R(12)}, vcc")
            e.nop(2)
        for h in range(4):
            if u+1<48: rdu(u+1,h)
            e.wlg(("w",u,h)); mfma16(e,vAcc+16*p+4*h,vWf+(u&1)*16+4*h,vXf+4*(T&1),T==0)
    e(f"v_lshrrev_b32 {R(tmp)}, 4, {R(vL)}"); e(f"v_and_b32 {R(tmp+1)}, 15, {R(vL)}")
    e(f"v_lshlrev_b32 {R(2)}, 4, {R(tmp)}"); e(f"v_add_u32 {R(2)}, {CS1}, {R(2)}")
    e(f"v_lshlrev_b32 {R(3)}, 3, {R(tmp+1)}"); e(f"v_add_u32 {R(3)}, {ST1}, {R(3)}")
    e(f"v_mul_u32_u24 {R(4)}, 144, {R(tmp+1)}"); e(f"v_lshl_add_u32 {R(4)}, {R(tmp)}, 3, {R(4)}")
    e(f"v_mul_u32_u24 {R(5)}, 272, {R(tmp+1)}"); e(f"v_lshl_add_u32 {R(5)}, {R(tmp)}, 4, {R(5)}")
    e(f"s_and_saveexec_b64 {S(sD+14,2)}, vcc")
    for i in range(12): e(f"ds_write_b128 {R(2)}, {R(vAcc+4*i,4)} offset:{i*64}")
    e(f"s_mov_b64 exec, {S(sD+14,2)}")
    e.wlg0(); e.bar()
    vC,vSt=96,80
    e.lds(f"ds_read_b64 {R(vSt,2)}, {R(3)}","st")
    for i in range(8): e.lds(f"ds_read_b128 {R(vC+4*i,4)}, {R(2)} offset:{(4+i)*64}",("c",i))
    for i in range(8):
        e.wlg(("c",i)); b=vAcc+16+4*i
        for j in range(2): e(f"v_pk_fma_f32 {R(b+2*j,2)}, {R(vC+4*i+2*j,2)}, {R(vSt,2)}, {R(b+2*j,2)} op_sel_hi:[1,0,1]")
        for j in range(2): e(f"v_pk_mul_f32 {R(b+2*j,2)}, {R(b+2*j,2)}, {R(vSt,2)} op_sel:[0,1] op_sel_hi:[1,1]")
        if i<4:
            for j in range(2): e(f"v_cvt_pk_bf16_f32 {R(b+j)}, {R(b+2*j)}, {R(b+2*j+1)}")
            e.lds(f"ds_write_b64 {R(4)}, {R(b,2)} offset:{KB+i*32}")
        else: e.lds(f"ds_write_b128 {R(5)}, {R(b,4)} offset:{VB+(i-4)*64}")
    e(f"s_branch {lab_att}")
    e.lab(lab_l); e.reset(); e('s_setprio 2')
    j=sD+10; e(f"s_sub_u32 {S(j)}, {S(sW)}, 4")
    e(f"s_and_b32 {S(sD+11)}, {S(j)}, 1"); e(f"s_add_u32 {S(sD+11)}, {S(sD+11)}, 8"); xslot(sD+11,1)
    for s in range(3): issue(s,w0,[0,1])
    wslots(e,j,3); xslot(j,2)
    vXa,vF,vS=2,32,12
    e(f"s_min_u32 {S(sT2)}, {S(j)}, 2"); e(f"s_lshl_b32 {S(sT2)}, {S(sT2)}, 5"); e(f"s_sub_u32 {S(sT2)}, {S(sT2)}, 16"); e(f"s_max_i32 {S(sT2)}, {S(sT2)}, 0")
    xaddr(vXa,4,32,S(sT2),False)
    e(f"v_lshlrev_b32 {R(6)}, 3, {R(tmp)}"); e(f"v_add_u32 {R(6)}, {ST1}, {R(6)}")
    for i in range(4): e(f"v_mov_b32 {R(vS+i)}, 0")
    for s in range(8):
        if s<7: e.wvm(("S",s if s<6 else 7)); e.bar()
        for ks in range(4): e.lds(f"ds_read_b128 {R(vF+4*ks,4)}, {R(vXa+ks)}",("x",ks))
        if s<=4: issue(s+3,range(6),[0,1,2])
        if s==0: pfl(e,srdS,pQKV,512*3072,[(sJ,30720),(j,7680)],192*3072,60,7)
        p1_trickle(e,L,s,j)
        if s<7: bump(range(vXa,vXa+4),s)
        for ks in range(4):
            e.wlg(("x",ks))
            for i in range(4):
                e(f"v_dot2_f32_bf16 {R(vS+(i&1))}, {R(vF+4*ks+i)}, {S(sONE)}, {R(vS+(i&1))}")
                e(f"v_dot2_f32_bf16 {R(vS+2+(i&1))}, {R(vF+4*ks+i)}, {R(vF+4*ks+i)}, {R(vS+2+(i&1))}")
    e.nop(3); e(f"v_add_f32 {R(vS)}, {R(vS)}, {R(vS+1)}"); e(f"v_add_f32 {R(vS+1)}, {R(vS+2)}, {R(vS+3)}")
    allsum_halves(e,vS,vS+2); allsum_halves(e,vS+1,vS+2)
    meanrstd(e,vS,vS+1,tmp); e(f"v_sub_f32 {R(vS)}, 0, {R(vS)}")
    e(f"ds_write_b64 {R(6)}, {R(vS,2)}"); e.wlg0(); e.bar()
    e.lab(lab_att); e.reset(); e('s_setprio 0')
    vQ,vK,vV,vLg,vO=16,32,96,160,176
    mt,h=sD,sD+1
    e(f"s_lshr_b32 {S(mt)}, {S(sW)}, 2"); e(f"s_and_b32 {S(h)}, {S(sW)}, 3")
    e(f"v_and_b32 {R(tmp)}, 31, {R(vL)}"); e(f"s_lshl_b32 {S(sT0)}, {S(mt)}, 5"); e(f"v_add_u32 {R(tmp)}, {S(sT0)}, {R(tmp)}")
    e(f"v_lshrrev_b32 {R(tmp+1)}, 5, {R(vL)}")
    e(f"s_lshl_b32 {S(sT0)}, {S(h)}, 5"); e(f"v_mul_u32_u24 {R(2)}, 144, {R(tmp)}"); e(f"v_add_u32 {R(2)}, {S(sT0)}, {R(2)}")
    e(f"s_lshl_b32 {S(sT0)}, {S(h)}, 6"); e(f"v_mul_u32_u24 {R(3)}, 272, {R(tmp)}"); e(f"v_lshl_add_u32 {R(3)}, {R(tmp+1)}, 5, {R(3)}"); e(f"v_add_u32 {R(3)}, {S(sT0)}, {R(3)}")
    e(f"s_lshl_b32 {S(sT0)}, {S(sMB)}, 6"); e(f"v_add_u32 {R(4)}, {S(sT0)}, {R(tmp)}")
    e(f"s_lshl_b32 {S(sT0)}, {S(sMB)}, 1"); e(f"s_add_u32 {S(sT0)}, {S(sT0)}, {S(mt)}"); e(f"s_lshl_b32 {S(sT0)}, {S(sT0)}, 5")
    e(f"s_lshl_b32 {S(sT1)}, {S(sNB)}, 2"); e(f"s_add_u32 {S(sT0)}, {S(sT0)}, {S(sT1)}"); e(f"s_add_u32 {S(sT0)}, {S(sT0)}, {S(h)}"); e(f"s_lshl_b32 {S(sT0)}, {S(sT0)}, 10")
    e(f"v_lshl_add_u32 {R(5)}, {R(vL)}, 4, {S(sT0)}")
    srd(e,srdW,pWO,0,512*1024); bsrc(e,14,tmp,8,sKQ,sMH,WO_LDS,16384,sLB)
    e(f"v_mov_b32 {R(6)}, 0xce6e6b28"); e(f"v_mov_b32 {R(7)}, 0x3eb8aa3b")
    e.wlg0(); e.bar(); stamp(e,10)
    for i in range(2): e.lds(f"ds_read_b128 {R(vQ+4*i,4)}, {R(2)} offset:{QB+16*i}","q")
    for jj in range(8):
        for i in range(2): e.lds(f"ds_read_b128 {R(vK+8*jj+4*i,4)}, {R(2)} offset:{KB+288+(7-jj)*288+16*i}",("k",jj))
    for jj in range(8):
        dma(e,14,srdW,jj*16384,(sLB,jj*2048),"pre")
        e.wlg(("k",jj))
        for i in range(8): e(f"v_dot2_f32_bf16 {R(vLg+jj)}, {R(vQ+i)}, {R(vK+8*jj+i)}, {R(vLg+jj) if i else '0'}")
        for i in range(2): e.lds(f"ds_read_b128 {R(vV+8*jj+4*i,4)}, {R(3)} offset:{VB+544+(7-jj)*544+16*i}",("v",jj))
    for jj in range(1,8): e(f"v_cmp_le_u32 {S(sD+2*jj,2)}, {2*jj}, {R(4)}")
    for jj in range(1,8): e(f"v_cndmask_b32 {R(vLg+jj)}, {R(6)}, {R(vLg+jj)}, {S(sD+2*jj,2)}")
    m=8
    e(f"v_max3_f32 {R(m)}, {R(vLg)}, {R(vLg+1)}, {R(vLg+2)}"); e(f"v_max3_f32 {R(m)}, {R(m)}, {R(vLg+3)}, {R(vLg+4)}")
    e(f"v_max3_f32 {R(m)}, {R(m)}, {R(vLg+5)}, {R(vLg+6)}"); e(f"v_max_f32 {R(m)}, {R(m)}, {R(vLg+7)}")
    for jj in range(8): e(f"v_sub_f32 {R(vLg+jj)}, {R(vLg+jj)}, {R(m)}")
    for jj in range(8): e(f"v_mul_f32 {R(vLg+jj)}, {R(7)}, {R(vLg+jj)}")
    for jj in range(8): e(f"v_exp_f32 {R(vLg+jj)}, {R(vLg+jj)}")
    e.nop(1)
    e(f"v_pk_add_f32 {R(10,2)}, {R(vLg,2)}, {R(vLg+2,2)}"); e(f"v_pk_add_f32 {R(12,2)}, {R(vLg+4,2)}, {R(vLg+6,2)}")
    e(f"v_pk_add_f32 {R(10,2)}, {R(10,2)}, {R(12,2)}"); e(f"v_add_f32 {R(10)}, {R(10)}, {R(11)}"); e(f"v_rcp_f32 {R(10)}, {R(10)}")
    for jj in range(8):
        e.wlg(("v",jj)); pb=vLg+(jj&~1); o=jj&1
        for i in range(4):
            if jj==0: e(f"v_pk_mul_f32 {R(vO+2*i,2)}, {R(vV+2*i,2)}, {R(pb,2)} op_sel_hi:[1,0]")
            else: e(f"v_pk_fma_f32 {R(vO+2*i,2)}, {R(vV+8*jj+2*i,2)}, {R(pb,2)}, {R(vO+2*i,2)} op_sel:[0,{o},0] op_sel_hi:[1,{o},1]")
    for i in range(4): e(f"v_pk_mul_f32 {R(vO+2*i,2)}, {R(vO+2*i,2)}, {R(10,2)} op_sel_hi:[1,0]")
    for i in range(4): e(f"v_cvt_pk_bf16_f32 {R(vQ+i)}, {R(vO+2*i)}, {R(vO+2*i+1)}")
    if L==0: getmode(e)
    gstore(e,f"buffer_store_dwordx4 {R(vQ,4)}, {R(5)}, {S(srdO,4)}, 0 offen","st")
    publish(e,L*4)
    return ST1+1024

def desc(k):
    return f""".p2align 6
.amdhsa_kernel {k}
  .amdhsa_next_free_vgpr 256
  .amdhsa_next_free_sgpr 102
  .amdhsa_accum_offset 256
  .amdhsa_group_segment_fixed_size 0
  .amdhsa_kernarg_size 72
  .amdhsa_user_sgpr_count 2
  .amdhsa_user_sgpr_kernarg_segment_ptr 1
  .amdhsa_system_sgpr_workgroup_id_x 1
.end_amdhsa_kernel
"""
def build_multi():
    e=Em(); hdr=""; ks=[]
    for L in range(2):
        for p in (1,2,3,4):
            k=f"p{p}l{L}_kernel"; ks.append(k); nwg=224 if p==3 else 256
            e.L.append(f".globl {k}\n.p2align 8\n.type {k},@function\n{k}:"); e.endlab=f"end_{k}"; e.reset()
            prologue(e,nwg)
            lds=phase1(e,L) if p==1 else phase3(e,L) if p==3 else phase_rs(e,L,p)
            stamp_flush(e,L*4+p-1)
            e.lab(e.endlab); e("s_endpgm")
            hdr+=f"; @launch kernel={k} grid=({nwg},1,1) block=(512,1,1) lds={lds}\n"
    return hdr+'.amdgcn_target "amdgcn-amd-amdhsa--gfx950"\n.text\n'+e.text()+'.section .rodata,"a"\n'+"".join(desc(k) for k in ks)
def build_pers():
    e=Em(); k=NAME+"_kernel"
    e.L.append(f".globl {k}\n.p2align 8\n.type {k},@function\n{k}:"); e.endlab="end_all"
    prologue(e,256); srd(e,srdD,50,0,256); srd(e,srdF,pWS,FL_OFF,16384)
    for L in range(2):
        for p in (1,2,3,4):
            e.reset()
            if L or p>1: stamp(e,0)
            phase1(e,L) if p==1 else phase3(e,L) if p==3 else phase_rs(e,L,p)
            stamp_flush(e,L*4+p-1)
    e.lab(e.endlab); e("s_endpgm")
    return f"; @launch grid=(256,1,1) block=(512,1,1) lds=163840\n"+'.amdgcn_target "amdgcn-amd-amdhsa--gfx950"\n.text\n'+e.text()+'.section .rodata,"a"\n'+desc(k)
if __name__=="__main__":
    if "slow" in sys.argv: FORCE_SLOW=True
    if "prof" in sys.argv: PROF=True
    out=sys.argv[1] if len(sys.argv)>1 else f"cdna_kernels/{NAME}.s"
    open(out,"w").write(build_pers())
```

```python
import sys,os
DBG=os.environ.get('DBG','')
from em import *
NAME="interleave_layers__sliding_local_dilated__dense_activation_silu__prompt"
MB=1<<20
O_OFF,X1_OFF,H_OFF,X2_OFF,ST_OFF=0,2*MB,4*MB,12*MB,14*MB
LSTRIDE=0 if 'fresh' not in DBG else 16*MB
sW,sXCD,sJ,sT0,sT1,sT2,sT3,sMB,sNB,sKQ,sMH,sLB=3,4,5,6,7,8,9,10,11,12,13,14
sONE=15
srdA,srdW,srdR,srdO,srdS=16,20,24,28,32
pX,pQKV,pWO,pW1,pW2,pOUT,pWS=36,38,40,44,46,48,52
sD=56
vL=1
sMODE,sTAG=54,55
sL,sFO=100,101
import contextlib
@contextlib.contextmanager
def ifL(e,v):
    sk=e.newlab('ifl'); e(f's_cmp_lg_u32 {S(sL)}, {v}'); e(f's_cbranch_scc1 {sk}'); q=list(e.vm)
    yield
    e.lab(sk); e.vm=q
def srdsel(e,d,p0,o0,z0,p1,o1,z1):
    srd(e,d,p1,o1,z1)
    with ifL(e,0): srd(e,d,p0,o0,z0)
srdF,srdD=96,24
FL_OFF,X2H_OFF=40*MB,15*MB
vRES=248
vINFO=244
FORCE_SLOW=False
ONES=0x3F803F80

PROF=False
def stamp(e,i):
    if PROF: e(f"s_memrealtime {S(72+2*i,2)}")
def stamp_flush(e,slot,n=12):
    if not PROF: return
    sk=e.newlab("nopf"); e(f"s_cmp_lg_u32 {S(sW)}, {4 if 'w4' in DBG else 0}"); e(f"s_cbranch_scc1 {sk}")
    e("s_waitcnt vmcnt(0)"); stamp(e,n-1); e("s_waitcnt lgkmcnt(0)")
    srd(e,srdS,pWS,200*MB,MB)
    e(f"s_lshl_b32 {S(sT0)}, s2, 7"); e(f"s_add_u32 {S(sT0)}, {S(sT0)}, {slot*32768}"); e(f"s_lshl_b32 {S(sT1)}, {S(sL)}, 17"); e(f"s_add_u32 {S(sT0)}, {S(sT0)}, {S(sT1)}"); e(f"v_mov_b32 v2, {S(sT0)}")
    for i in range(n):
        e(f"v_mov_b32 v4, {S(72+2*i)}"); e(f"v_mov_b32 v5, {S(73+2*i)}"); e(f"buffer_store_dwordx2 v[4:5], v2, {S(srdS,4)}, 0 offen offset:{i*8}"); e.nop(2)
    e.lab(sk)
def gstore(e,instr,tag):
    a,b=e.newlab("gs"),e.newlab("gd")
    e(f"s_cmp_eq_u32 {S(sMODE)}, 0"); e(f"s_cbranch_scc1 {a}"); e.vmem(instr+(' nt' if 'stnt' in DBG else ' sc0' if 'stsc0' in DBG else ''),tag); e(f"s_branch {b}")
    e.lab(a); e(instr+" sc1"); e.lab(b)
def spin(e,body,cond):
    lp,out=e.newlab("spin"),e.newlab("spun")
    e(f"s_mov_b32 {S(sT3)}, 0"); e.lab(lp); body()
    e(f"s_add_u32 {S(sT3)}, {S(sT3)}, 1"); e(f"s_cmp_gt_u32 {S(sT3)}, 0x40000"); e(f"s_cbranch_scc1 {out}")
    cond(lp); e.lab(out)
def publish(e,ph,pre=None):
    e.wvm0(); e.bar()
    sk=e.newlab("nopub"); e(f"s_cmp_lg_u32 {S(sW)}, 0"); e(f"s_cbranch_scc1 {sk}")
    e(f"s_lshl_b32 {S(sT0)}, {S(sXCD)}, 7"); e(f"s_lshl_b32 {S(sT1)}, {S(sJ)}, 2"); e(f"s_add_u32 {S(sT0)}, {S(sT0)}, {S(sT1)}")
    e(f"v_mov_b32 v2, {S(sT0)}"); e(f"v_mov_b32 v3, {S(sTAG)}"); e("s_mov_b64 exec, 1")
    e(f"s_add_u32 {S(sT2)}, {S(sFO)}, {ph*1024}")
    gstore(e,f"buffer_store_dword v3, v2, {S(srdF,4)}, {S(sT2)} offen","fl")
    if pre: pre()
    e("s_mov_b64 exec, -1"); e.lab(sk); e.reset()
def waitflags(e,ph,jbase,n,second=None):
    sk=e.newlab("nopoll"); e(f"s_cmp_lg_u32 {S(sW)}, 0"); e(f"s_cbranch_scc1 {sk}")
    e(f"s_lshl_b32 {S(sT0)}, {S(sXCD)}, 7"); e(f"s_lshl_b32 {S(sT1)}, {S(jbase)}, 2"); e(f"s_add_u32 {S(sT0)}, {S(sT0)}, {S(sT1)}")
    e(f"s_add_u32 {S(sT0)}, {S(sT0)}, {ph*1024}")
    if ph<3: e(f"s_add_u32 {S(sT0)}, {S(sT0)}, {S(sFO)}")
    e(f"v_min_u32 v2, {n-1}, {R(vL)}"); e(f"v_lshl_add_u32 v2, v2, 2, {S(sT0)}")
    if second is not None:
        e(f"v_and_b32 v3, 7, {R(vL)}"); e(f"v_lshl_add_u32 v3, v3, 2, {S(second)}"); e(f"v_cmp_gt_u32 vcc, 8, {R(vL)}"); e.nop(2); e("v_cndmask_b32 v2, v3, v2, vcc")
    def body(): e(f"buffer_load_dword v3, v2, {S(srdF,4)}, 0 offen sc1"); e("s_waitcnt vmcnt(0)"); e(f"v_cmp_ne_u32 vcc, {S(sTAG)}, v3")
    spin(e,body,lambda lp:e(f"s_cbranch_vccnz {lp}"))
    e(f"s_cmp_lg_u32 {S(sMODE)}, 0"); e(f"s_cbranch_scc1 {sk}"); e("buffer_inv sc1"); e("s_waitcnt vmcnt(0)")
    e.lab(sk); e.bar()
def hello(e):
    e(f"s_getreg_b32 {S(sT0)}, hwreg(HW_REG_XCC_ID, 0, 3)"); e(f"s_mul_i32 {S(sT0)}, {S(sT0)}, 6")
    e(f"s_lshl_b64 {S(sD+14,2)}, 1, {S(sT0)}"); e(f"s_add_u32 {S(sD+15)}, {S(sD+15)}, 0x1000000")
    e(f"s_lshl_b32 {S(sT1)}, {S(sXCD)}, 4"); e(f"v_mov_b32 v212, {S(sT1)}"); e(f"v_mov_b32 v214, {S(sD+14)}"); e(f"v_mov_b32 v215, {S(sD+15)}")
    e("s_mov_b64 exec, 1"); e.vmem(f"buffer_atomic_add_x2 v[214:215], v212, {S(srdD,4)}, 0 offen","hello")
    s2=e.newlab("notag"); e("s_cmp_lg_u32 s2, 0"); e(f"s_cbranch_scc1 {s2}")
    e("v_mov_b32 v212, 0x3000"); e(f"buffer_load_dword v213, v212, {S(srdF,4)}, 0 offen sc1"); e("s_waitcnt vmcnt(0)")
    e("v_add_u32 v213, 0x9e3779b9, v213"); e("v_max_u32 v213, 1, v213"); e(f"buffer_store_dword v213, v212, {S(srdF,4)}, 0 offen sc1")
    e("v_mov_b32 v212, 0x80"); e(f"buffer_store_dword v213, v212, {S(srdD,4)}, 0 offen sc1")
    e.lab(s2); e("s_mov_b64 exec, -1"); e.nop(4)
def getmode(e):
    e(f"s_lshl_b32 {S(sT0)}, {S(sXCD)}, 4"); e(f"v_mov_b32 {R(vINFO)}, {S(sT0)}"); e(f"v_mov_b32 {R(vINFO+1)}, 0x80")
    def body():
        e(f"buffer_load_dwordx2 {R(vINFO+2,2)}, {R(vINFO)}, {S(srdD,4)}, 0 offen sc1"); e(f"buffer_load_dword {R(vINFO-1)}, {R(vINFO+1)}, {S(srdD,4)}, 0 offen sc1")
        e("s_waitcnt vmcnt(0)"); e(f"v_readfirstlane_b32 {S(sD)}, {R(vINFO+2)}"); e(f"v_readfirstlane_b32 {S(sD+1)}, {R(vINFO+3)}"); e(f"v_readfirstlane_b32 {S(sTAG)}, {R(vINFO-1)}")
    def cond(lp):
        e(f"s_lshr_b32 {S(sT0)}, {S(sD+1)}, 24"); e(f"s_cmp_lt_u32 {S(sT0)}, 32"); e(f"s_cbranch_scc1 {lp}")
        e(f"s_cmp_eq_u32 {S(sTAG)}, 0"); e(f"s_cbranch_scc1 {lp}")
    spin(e,body,cond)
    e(f"s_getreg_b32 {S(sT0)}, hwreg(HW_REG_XCC_ID, 0, 3)"); e(f"s_mul_i32 {S(sT0)}, {S(sT0)}, 6")
    e(f"s_lshr_b64 {S(sD,2)}, {S(sD,2)}, {S(sT0)}"); e(f"s_and_b32 {S(sD)}, {S(sD)}, 63"); e(f"s_cmp_eq_u32 {S(sD)}, 32")
    e(f"s_cselect_b32 {S(sMODE)}, {0 if FORCE_SLOW else 1}, 0")
def prefetch(e,sr,ptr,total,nw,sw,va,dst,extra=None,off=0,only=None,nwg=32,sj=None):
    per=total//nwg//nw; lines=per//128; sj=sJ if sj is None else sj
    srd(e,sr,ptr,off,total if extra is None else 2*MB)
    e(f"s_mul_i32 {S(sT0)}, {S(sj)}, {total//nwg}"); e(f"s_mul_i32 {S(sT1)}, {S(sw)}, {per}"); e(f"s_add_u32 {S(sT0)}, {S(sT0)}, {S(sT1)}")
    if extra is not None: e(f"s_lshl_b32 {S(sT1)}, {S(sXCD)}, {extra}"); e(f"s_add_u32 {S(sT0)}, {S(sT0)}, {S(sT1)}")
    for i in range((lines+63)//64):
        if only is not None and i!=only: continue
        n=min(64,lines-64*i)
        e(f"v_min_u32 {R(va)}, {n-1}, {R(vL)}"); e(f"v_lshl_add_u32 {R(va)}, {R(va)}, 7, {S(sT0)}")
        if i: e(f"v_add_u32 {R(va)}, {8192*i}, {R(va)}")
        e.vmem(f"buffer_load_dword {R(dst)}, {R(va)}, {S(sr,4)}, 0 offen","pf")
def pfl(e,sr,ptr,total,terms,const,lines,va):
    srd(e,sr,ptr,0,total); e(f"s_mov_b32 {S(sT0)}, {const}")
    for sg,m in terms: e(f"s_mul_i32 {S(sT1)}, {S(sg)}, {m}"); e(f"s_add_u32 {S(sT0)}, {S(sT0)}, {S(sT1)}")
    for i in range((lines+63)//64):
        e(f"v_min_u32 {R(va)}, {min(64,lines-64*i)-1}, {R(vL)}"); e(f"v_lshl_add_u32 {R(va)}, {R(va)}, 7, {S(sT0)}")
        if i: e(f"v_add_u32 {R(va)}, {8192*i}, {R(va)}")
        e.vmem(f"buffer_load_dword v240, {R(va)}, {S(sr,4)}, 0 offen","pf")
def pf_w2(e,j,part):
    if part==0: pfl(e,srdR,pW2,1792*1024,[(j,448*1024),(sJ,5120)],0,40,7)
    else: pfl(e,srdR,pW2,1792*1024,[(j,448*1024),(sJ,9216)],160*1024,72,7)
def prologue(e,nwg):
    e(f"s_cmp_ge_u32 s2, {nwg}"); e("s_cbranch_scc1 "+e.endlab)
    stamp(e,0)
    e(f"s_load_dwordx16 s[36:51], s[0:1], 0"); e(f"s_load_dwordx2 s[52:53], s[0:1], 64")
    e("v_lshrrev_b32 v2, 6, v0"); e(f"v_and_b32 {R(vL)}, 63, v0")
    e(f"v_readfirstlane_b32 {S(sW)}, v2")
    e(f"s_and_b32 {S(sXCD)}, s2, 7"); e(f"s_lshr_b32 {S(sJ)}, s2, 3")
    e(f"s_mov_b32 {S(sONE)}, {ONES:#x}")
    e("s_waitcnt lgkmcnt(0)")
def srd(e,d,p,off,size):
    if off: e(f"s_add_u32 {S(d)}, {S(p)}, {off:#x}"); e(f"s_addc_u32 {S(d+1)}, {S(p+1)}, 0")
    else: e(f"s_mov_b32 {S(d)}, {S(p)}"); e(f"s_mov_b32 {S(d+1)}, {S(p+1)}")
    e(f"s_mov_b32 {S(d+2)}, {size:#x}"); e(f"s_mov_b32 {S(d+3)}, 0x20000")
def dma(e,vaddr,srd_,soff,m0expr,tag,sc1=False):
    sg,c=m0expr
    if sg is None: e(f"s_mov_b32 m0, {c:#x}")
    else: e(f"s_add_u32 m0, {S(sg)}, {c:#x}")
    if soff: e(f"s_mov_b32 {S(sT3)}, {soff:#x}"); so=S(sT3)
    else: e("s_nop 0"); so="0"
    e.vmem(f"buffer_load_dwordx4 {R(vaddr)}, {S(srd_,4)}, {so} offen {'sc1 ' if sc1 else ''}lds",tag)
def ldfrag(e,dst,vaddr,srd_,t,tag,st):
    hi=t>>2
    if hi and (t&3==0 or st): e(f"s_mov_b32 {S(sT2)}, {hi*4096:#x}")
    so=S(sT2) if hi else "0"
    e.vmem(f"buffer_load_dwordx4 {R(dst,4)}, {R(vaddr)}, {S(srd_,4)}, {so} offen offset:{(t&3)*1024}"+' sc1',tag)
def tr_lane_base(e,dst,tmp,perm):
    a,b,c=tmp,tmp+1,tmp+2
    e(f"v_bfe_u32 {R(a)}, {R(vL)}, 2, 2")
    e(f"v_lshrrev_b32 {R(b)}, 5, {R(vL)}")
    e(f"v_lshl_add_u32 {R(dst)}, {R(b)}, 3, {R(a)}")
    e(f"v_lshlrev_b32 {R(dst)}, 7, {R(dst)}")
    e(f"v_lshrrev_b32 {R(a)}, 1, {R(a)}"); e(f"v_lshlrev_b32 {R(a)}, 2, {R(a)}")
    e(f"v_lshl_or_b32 {R(a)}, {R(b)}, 1, {R(a)}")
    if perm=="frag":
        e(f"v_bfe_u32 {R(b)}, {R(vL)}, 4, 1"); e(f"v_and_b32 {R(c)}, 1, {R(vL)}")
        e(f"v_lshl_or_b32 {R(b)}, {R(b)}, 1, {R(c)}"); e(f"v_bfe_u32 {R(c)}, {R(vL)}, 1, 1")
    else:
        e(f"v_and_b32 {R(b)}, 1, {R(vL)}"); e(f"v_bfe_u32 {R(c)}, {R(vL)}, 4, 1")
        e(f"v_lshl_or_b32 {R(b)}, {R(b)}, 1, {R(c)}"); e(f"v_bfe_u32 {R(c)}, {R(vL)}, 1, 1")
    e(f"v_xor_b32 {R(a)}, {R(a)}, {R(b)}")
    e(f"v_lshl_add_u32 {R(dst)}, {R(a)}, 4, {R(dst)}")
    e(f"v_lshl_add_u32 {R(dst)}, {R(c)}, 3, {R(dst)}")
def wdma_lane(e,dst,tmp,rowstride,odd):
    a,b=tmp,tmp+1
    e(f"v_lshrrev_b32 {R(a)}, 3, {R(vL)}")
    e(f"s_mov_b32 {S(sT0)}, {rowstride}"); e(f"v_mul_lo_u32 {R(dst)}, {R(a)}, {S(sT0)}")
    e(f"v_bfe_u32 {R(a)}, {R(vL)}, 4, 1"); e(f"v_lshlrev_b32 {R(a)}, 2, {R(a)}")
    if isinstance(odd,int):
        if odd: e(f"v_or_b32 {R(a)}, 2, {R(a)}")
    else: e(f"v_lshl_or_b32 {R(a)}, {odd}, 1, {R(a)}")
    e(f"v_and_b32 {R(b)}, 7, {R(vL)}"); e(f"v_xor_b32 {R(a)}, {R(a)}, {R(b)}")
    e(f"v_lshl_add_u32 {R(dst)}, {R(a)}, 4, {R(dst)}")
def mfma32(e,d,a,b,first): e(f"v_mfma_f32_32x32x16_bf16 {R(d,16)}, {R(a,4)}, {R(b,4)}, {'0' if first else R(d,16)}")
def mfma16(e,d,a,b,first): e(f"v_mfma_f32_16x16x32_bf16 {R(d,4)}, {R(a,4)}, {R(b,4)}, {'0' if first else R(d,4)}")
def trread(e,dst,va,off,tag):
    e.lds(f"ds_read_b64_tr_b16 {R(dst,2)}, {R(va)} offset:{off}",tag)
    e.lds(f"ds_read_b64_tr_b16 {R(dst+2,2)}, {R(va)} offset:{off+512}",tag)
def allsum_halves(e,a,t):
    e(f"v_mov_b32 {R(t)}, {R(a)}"); e.nop(2); e(f"v_permlane32_swap_b32 {R(t)}, {R(a)}"); e.nop(1); e(f"v_add_f32 {R(a)}, {R(a)}, {R(t)}")
def meanrstd(e,s_,q,t):
    e(f"v_mul_f32 {R(s_)}, 0x3b000000, {R(s_)}"); e(f"v_mul_f32 {R(q)}, 0x3b000000, {R(q)}")
    e(f"v_fma_f32 {R(q)}, -{R(s_)}, {R(s_)}, {R(q)}"); e(f"v_max_f32 {R(q)}, 0, {R(q)}")
    e(f"v_add_f32 {R(q)}, 0x3727c5ac, {R(q)}"); e(f"v_rsq_f32 {R(q)}, {R(q)}"); e.nop(1)

WO_LDS=96*1024
def ids64(e):
    e(f"s_lshr_b32 {S(sMB)}, {S(sJ)}, 3"); e(f"s_lshl_b32 {S(sT0)}, {S(sXCD)}, 2"); e(f"s_add_u32 {S(sMB)}, {S(sMB)}, {S(sT0)}")
    e(f"s_and_b32 {S(sNB)}, {S(sJ)}, 7"); e(f"s_and_b32 {S(sKQ)}, {S(sW)}, 3"); e(f"s_lshr_b32 {S(sMH)}, {S(sW)}, 2")
def bsrc(e,vB,tmp,KS,kq,mh,ldsbase,slab,sdst):
    wdma_lane(e,vB,tmp,1024,S(mh) if mh is not None else 0)
    e(f"s_mul_i32 {S(sT0)}, {S(kq)}, {KS*16*1024}"); e(f"s_and_b32 {S(sT1)}, {S(sJ)}, 7"); e(f"s_lshl_b32 {S(sT1)}, {S(sT1)}, 7"); e(f"s_add_u32 {S(sT0)}, {S(sT0)}, {S(sT1)}")
    e(f"s_mul_i32 {S(sdst)}, {S(kq)}, {slab}"); e(f"s_add_u32 {S(sdst)}, {S(sdst)}, {ldsbase}")
    if mh is not None:
        e(f"s_lshl_b32 {S(sT1)}, {S(mh)}, 13"); e(f"s_add_u32 {S(sT0)}, {S(sT0)}, {S(sT1)}")
        e(f"s_lshl_b32 {S(sT1)}, {S(mh)}, 10"); e(f"s_add_u32 {S(sdst)}, {S(sdst)}, {S(sT1)}")
    e(f"v_add_u32 {R(vB)}, {S(sT0)}, {R(vB)}")
def p4_preload(e,j,part):
    if part==0:
        srd(e,srdW,pW2,0,1792*1024); bsrc(e,14,9,28,j,None,0,40960,sLB)
        e("v_xor_b32 v15, 32, v14"); e("v_add_u32 v15, 0x2000, v15")
    for t in range(10*part,10*part+10):
        for h in range(2): dma(e,14+h,srdW,t*16384,(sLB,t*2048+h*1024),"pre")
def phase_rs(e,L,which):
    P2=which==2
    K=512 if P2 else 1792; KS=K//64; RING=8 if P2 else 20; SLAB=RING*2048; LB=WO_LDS if P2 else 0; RB=0 if P2 else 112*1024; LA=8 if P2 else 12
    wo=L*LSTRIDE
    ids64(e)
    if P2:
        srd(e,srdA,pWS,wo+O_OFF,2*MB)
        srd(e,srdR,pX,0,2*MB)
        srd(e,srdO,pWS,wo+X1_OFF,2*MB); srd(e,srdS,pWS,wo+ST_OFF,128*1024)
    else:
        srd(e,srdA,pWS,wo+H_OFF,7*MB); srd(e,srdW,pW2,0,1792*1024); srd(e,srdR,pWS,X2H_OFF,128*1024)
        srdsel(e,srdO,pWS,X2_OFF,2*MB,pOUT,0,2*MB)
    vA,vB,vF,vRM,vT0,vT1,vRD,vRes,vAcc,vBf,vAf=12,13,4,5,6,7,8,vRES,16,48,80
    tmp=9; mt=sD+10; sb=sD+11
    e(f"s_lshl_b32 {S(mt)}, {S(sMB)}, 1"); e(f"s_add_u32 {S(mt)}, {S(mt)}, {S(sMH)}")
    e(f"s_mul_i32 {S(sT0)}, {S(mt)}, {K//16*1024}"); e(f"s_mul_i32 {S(sT1)}, {S(sKQ)}, {KS*1024}"); e(f"s_add_u32 {S(sT0)}, {S(sT0)}, {S(sT1)}")
    e(f"v_lshl_add_u32 {R(vA)}, {R(vL)}, 4, {S(sT0)}")
    if not P2: bsrc(e,vB,tmp,KS,sKQ,sMH,0,SLAB,sb)
    e(f"s_lshl_b32 {S(sT0)}, {S(mt)}, 5"); e(f"s_lshl_b32 {S(sT1)}, {S(sNB)}, 2"); e(f"s_add_u32 {S(sT1)}, {S(sT1)}, {S(sKQ)}")
    e(f"s_add_u32 {S(sT0)}, {S(sT0)}, {S(sT1)}"); e(f"s_lshl_b32 {S(sT0)}, {S(sT0)}, 10")
    e(f"v_lshl_add_u32 {R(vF)}, {R(vL)}, 4, {S(sT0)}")
    e(f"s_lshl_b32 {S(sT0)}, {S(mt)}, 15"); e(f"s_lshl_b32 {S(sT1)}, {S(sT1)}, 5"); e(f"s_add_u32 {S(sT0)}, {S(sT0)}, {S(sT1)}")
    e(f"v_and_b32 {R(tmp)}, 31, {R(vL)}"); e(f"v_lshlrev_b32 {R(tmp)}, 10, {R(tmp)}"); e(f"v_lshrrev_b32 {R(tmp+1)}, 5, {R(vL)}")
    e(f"v_lshl_add_u32 {R(tmp)}, {R(tmp+1)}, 4, {R(tmp)}"); e(f"v_add_u32 {R(vRM)}, {S(sT0)}, {R(tmp)}")
    tr_lane_base(e,vT0,tmp,"frag")
    e(f"s_mul_i32 {S(sT0)}, {S(sKQ)}, {SLAB}"); e(f"s_add_u32 {S(sT0)}, {S(sT0)}, {LB}")
    e(f"v_add_u32 {R(vT0)}, {S(sT0)}, {R(vT0)}"); e(f"v_xor_b32 {R(vT1)}, 64, {R(vT0)}")
    e(f"s_mul_i32 {S(sT0)}, {S(sMH)}, {12*2048}"); e(f"s_add_u32 {S(sT0)}, {S(sT0)}, {RB}"); e(f"v_lshl_add_u32 {R(vRD)}, {R(vL)}, 4, {S(sT0)}")
    def rd(t,nt): trread(e,vBf+(t&1)*8+nt*4,vT0+nt,(t%RING)*2048,("f",t,nt))
    if P2:
        with ifL(e,0): e(f"buffer_load_dwordx4 {R(vRes,4)}, {R(vRM)}, {S(srdR,4)}, 0 offen")
    if P2: e(f"s_and_b32 {S(sD+2)}, {S(sJ)}, 24"); waitflags(e,L*4,sD+2,8)
    else: e(f"s_lshr_b32 {S(sD+2)}, {S(sJ)}, 4"); e(f"s_mul_i32 {S(sD+2)}, {S(sD+2)}, 14"); waitflags(e,L*4+2,sD+2,14)
    stamp(e,9)
    for t in range(LA): ldfrag(e,vAf+4*t,vA,srdA,t,("A",t),False)
    if P2: pfl(e,srdW,pW1,512*3584,[(sJ,24576),(sW,3072)],MB,24,tmp)
    rd(0,0); rd(0,1)
    for t in range(KS):
        if t+LA<KS: ldfrag(e,vAf+4*(t+LA),vA,srdA,t+LA,("A",t+LA),False)
        if not P2 and t==9:
            e.bar()
            for u in range(RING,KS): dma(e,vB,srdW,u*16384,(sb,(u%RING)*2048),"B")
        if t+1==RING and t+1<KS: e.wvm("B"); e.bar()
        e.wvm(("A",t))
        if t%4==0: stamp(e,1+t//4)
        for nt in range(2):
            if t+1<KS: rd(t+1,nt)
            e.wlg(("f",t,nt)); mfma32(e,vAcc+16*nt,vBf+(t&1)*8+nt*4,vAf+4*t,t==0)
        if not P2 and t==16:
            with ifL(e,0): pfl(e,srdS,pQKV,512*3072,[(sJ,18432),(sW,2304)],0,18,9); p1_setup(e,1)
    if not P2: e.bar()
    stamp(e,10); e.nop(10)
    own=vBf
    done=e.newlab("rdone"); labs=[e.newlab("rv") for _ in range(4)]
    for q in range(1,4): e(f"s_cmp_eq_u32 {S(sKQ)}, {q}"); e(f"s_cbranch_scc1 {labs[q]}")
    for kq in range(4):
        e.lab(labs[kq])
        for q in range(4):
            if q==kq: continue
            for j in range(2): e(f"ds_write_b128 {R(vRD)}, {R(vAcc+8*q+4*j,4)} offset:{(q*3+((kq-q)&3)-1)*2048+j*1024}")
        for j in range(8): e(f"v_mov_b32 {R(own+j)}, {R(vAcc+8*kq+j)}")
        if kq<3: e(f"s_branch {done}")
    e.lab(done)
    e(f"s_mul_i32 {S(sT0)}, {S(sKQ)}, {3*2048}"); e(f"v_add_u32 {R(vRD)}, {S(sT0)}, {R(vRD)}")
    if not P2:
        with ifL(e,0):
            for s_ in range(3): p1_issue(e,1,s_,range(3),[])
    e.wlg0(); e.bar()
    for i in range(1,4):
        for j in range(2): e.lds(f"ds_read_b128 {R(own+8*i+4*j,4)}, {R(vRD)} offset:{(i-1)*2048+j*1024}",("p",i))
    e.wvm("res")
    rf=vAcc
    for j in range(4):
        e(f"v_lshlrev_b32 {R(rf+2*j)}, 16, {R(vRes+j)}"); e(f"v_and_b32 {R(rf+2*j+1)}, 0xffff0000, {R(vRes+j)}")
    for j in range(4): e(f"v_pk_add_f32 {R(own+2*j,2)}, {R(own+2*j,2)}, {R(rf+2*j,2)}")
    for i in range(1,4):
        e.wlg(("p",i))
        for j in range(4): e(f"v_pk_add_f32 {R(own+2*j,2)}, {R(own+2*j,2)}, {R(own+8*i+2*j,2)}")
    for j in range(4): e(f"v_cvt_pk_bf16_f32 {R(vRes+j)}, {R(own+2*j)}, {R(own+2*j+1)}")
    ins=f"buffer_store_dwordx4 {R(vRes,4)}, {R(vF if P2 else vRM)}, {S(srdO,4)}, 0 offen"
    gstore(e,ins,"st")
    if not P2:
        if PROF:
            with ifL(e,1): stamp_flush(e,3)
        e(f"s_cmp_lg_u32 {S(sL)}, 0"); e(f"s_cbranch_scc1 {e.endlab}")
        sk=e.newlab("nohalo"); e(f"s_and_b32 {S(sT0)}, {S(mt)}, 7"); e(f"s_cmp_lg_u32 {S(sT0)}, 7"); e(f"s_cbranch_scc1 {sk}")
        e(f"s_lshl_b32 {S(sT0)}, {S(mt)}, 15"); e(f"s_lshl_b32 {S(sT1)}, {S(sXCD)}, 14"); e(f"s_sub_u32 {S(sT0)}, {S(sT0)}, {S(sT1)}"); e(f"s_add_u32 {S(sT0)}, {S(sT0)}, 0x4000")
        e(f"v_subrev_u32 {R(tmp)}, {S(sT0)}, {R(vRM)}"); e("s_mov_b32 exec_lo, 0xffff0000"); e("s_mov_b32 exec_hi, 0xffff0000")
        e(f"buffer_store_dwordx4 {R(vRes,4)}, {R(tmp)}, {S(srdR,4)}, 0 offen sc1"); e("s_mov_b64 exec, -1"); e.lab(sk)
        def xflag():
            sk=e.newlab("noxf"); e(f"s_cmp_lt_u32 {S(sJ)}, 24"); e(f"s_cbranch_scc1 {sk}")
            e(f"s_mov_b32 {S(sT2)}, {7*1024}"); e(f"buffer_store_dword v3, v2, {S(srdF,4)}, {S(sT2)} offen sc1"); e.lab(sk)
        publish(e,3,xflag)
    if P2:
        a,b=rf,rf+1
        e(f"v_dot2_f32_bf16 {R(a)}, {R(vRes)}, {S(sONE)}, 0"); e(f"v_dot2_f32_bf16 {R(b)}, {R(vRes)}, {R(vRes)}, 0")
        for j in range(1,4):
            e(f"v_dot2_f32_bf16 {R(a)}, {R(vRes+j)}, {S(sONE)}, {R(a)}"); e(f"v_dot2_f32_bf16 {R(b)}, {R(vRes+j)}, {R(vRes+j)}, {R(b)}")
        e(f"s_lshl_b32 {S(sT0)}, {S(sW)}, 8"); e(f"s_add_u32 {S(sT0)}, {S(sT0)}, 0xc000")
        e(f"v_lshl_add_u32 {R(tmp)}, {R(vL)}, 2, {S(sT0)}"); e.nop(2)
        e(f"v_permlane32_swap_b32 {R(a)}, {R(b)}"); e.nop(1); e(f"v_add_f32 {R(a)}, {R(a)}, {R(b)}")
        e(f"ds_write_b32 {R(tmp)}, {R(a)}"); e.wlg0(); e.bar()
        sk=e.newlab("nost"); e(f"s_cmp_lg_u32 {S(sKQ)}, 0"); e(f"s_cbranch_scc1 {sk}")
        for i in range(1,4): e(f"ds_read_b32 {R(rf+1+i)}, {R(tmp)} offset:{i*256}")
        e(f"s_lshl_b32 {S(sT0)}, {S(mt)}, 3"); e(f"s_add_u32 {S(sT0)}, {S(sT0)}, {S(sNB)}"); e(f"s_lshl_b32 {S(sT0)}, {S(sT0)}, 8")
        e(f"v_lshl_add_u32 {R(tmp)}, {R(vL)}, 2, {S(sT0)}"); e.wlg0()
        e(f"v_add_f32 {R(a)}, {R(a)}, {R(rf+2)}"); e(f"v_add_f32 {R(rf+3)}, {R(rf+3)}, {R(rf+4)}"); e(f"v_add_f32 {R(a)}, {R(a)}, {R(rf+3)}")
        gstore(e,f"buffer_store_dword {R(a)}, {R(tmp)}, {S(srdS,4)}, 0 offen","st")
        e.lab(sk)
        publish(e,L*4+1)

def phase3(e,L):
    wo=L*LSTRIDE; LA=8
    e(f"s_cmp_ge_u32 {S(sJ)}, 14"); e(f"s_cselect_b32 {S(sT0)}, 1, 0"); e(f"s_cselect_b32 {S(sT1)}, 14, 0")
    e(f"s_sub_u32 {S(sNB)}, {S(sJ)}, {S(sT1)}"); e(f"s_lshl_b32 {S(sMB)}, {S(sXCD)}, 1"); e(f"s_add_u32 {S(sMB)}, {S(sMB)}, {S(sT0)}")
    srd(e,srdA,pWS,wo+X1_OFF,2*MB); srd(e,srdW,pW1,0,512*3584); srd(e,srdO,pWS,wo+H_OFF,7*MB); srd(e,srdS,pWS,wo+ST_OFF,128*1024)
    CS=131072
    ld=e.newlab("p3ld"); fin=e.newlab("p3fin"); skip=e.newlab("p3skip"); sk2=e.newlab("p3end")
    j=sD; e(f"s_sub_u32 {S(j)}, {S(sW)}, 4")
    e(f"s_cmp_ge_u32 {S(sJ)}, 28"); e(f"s_cbranch_scc1 {skip}")
    tmp=9
    e(f"s_cmp_ge_u32 {S(sW)}, 4"); e(f"s_cbranch_scc1 {ld}")
    vA,vT,vH,vM,vS,vSt,vAcc,vBf,vAf=12,4,13,14,2,16,24,88,120
    mt=sD
    e(f"s_lshl_b32 {S(mt)}, {S(sMB)}, 2"); e(f"s_add_u32 {S(mt)}, {S(mt)}, {S(sW)}")
    e(f"s_lshl_b32 {S(sT0)}, {S(mt)}, 15"); e(f"v_lshl_add_u32 {R(vA)}, {R(vL)}, 4, {S(sT0)}")
    e(f"s_lshl_b32 {S(sT0)}, {S(mt)}, 11"); e(f"v_lshl_add_u32 {R(vH)}, {R(vL)}, 2, {S(sT0)}")
    tr_lane_base(e,vT,tmp,"frag")
    e(f"v_xor_b32 {R(vT+1)}, 64, {R(vT)}"); e(f"v_add_u32 {R(vT+2)}, 0x10000, {R(vT)}"); e(f"v_add_u32 {R(vT+3)}, 0x10000, {R(vT+1)}")
    e(f"s_and_b32 {S(sD+2)}, {S(sMB)}, 1"); e(f"s_lshl_b32 {S(sD+2)}, {S(sD+2)}, 4"); waitflags(e,L*4+1,sD+2,16); stamp(e,9)
    for t in range(LA): ldfrag(e,vAf+4*t,vA,srdA,t,("A",t),False)
    def rd(t,nt): trread(e,vBf+(t&1)*16+nt*4,vT+nt,t*2048,("f",t,nt))
    e.bar()
    for nt in range(4): rd(0,nt)
    for t in range(32):
        for u in (LA+2*t,LA+2*t+1):
            if u<32: ldfrag(e,vAf+4*u,vA,srdA,u,("A",u),False)
        if t==12:
            for i in range(8): e.vmem(f"buffer_load_dword {R(vSt+i)}, {R(vH)}, {S(srdS,4)}, 0 offen offset:{i*256} sc1","st")
            e(f"s_mul_i32 {S(sT0)}, {S(mt)}, {112*1024}"); e(f"s_lshl_b32 {S(sT1)}, {S(sNB)}, 13"); e(f"s_add_u32 {S(sT0)}, {S(sT0)}, {S(sT1)}")
            e(f"v_lshl_add_u32 {R(vH)}, {R(vL)}, 4, {S(sT0)}")
        if (t+1)%4==0 and t+1<=16: e.bar()
        e.wvm(("A",t))
        if t%4==0: stamp(e,1+t//4)
        for nt in range(4):
            if t+1<32: rd(t+1,nt)
            e.wlg(("f",t,nt)); mfma32(e,vAcc+16*nt,vBf+(t&1)*16+nt*4,vAf+4*t,t==0)
        if t==30:
            e.wvm("st")
            for i in (4,2,1):
                for jj in range(i): e(f"v_add_f32 {R(vSt+jj)}, {R(vSt+jj)}, {R(vSt+jj+i)}")
            e(f"v_mov_b32 {R(vSt+1)}, {R(vSt)}"); e.nop(2); e(f"v_permlane32_swap_b32 {R(vSt)}, {R(vSt+1)}"); e.nop(1)
            meanrstd(e,vSt,vSt+1,tmp)
            e(f"v_mul_f32 {R(vM)}, 0xbfb8aa3b, {R(vSt+1)}"); e(f"v_mul_f32 {R(vM+1)}, {R(vM)}, {R(vSt)}"); e(f"v_sub_f32 {R(vM+1)}, 0, {R(vM+1)}")
            e(f"v_mov_b32 {R(vS)}, 0xbfb8aa3b")
    e(f"v_lshrrev_b32 {R(tmp)}, 5, {R(vL)}"); e(f"v_lshlrev_b32 {R(tmp)}, 4, {R(tmp)}"); e(f"v_add_u32 {R(tmp)}, {CS:#x}, {R(tmp)}")
    e.bar(); stamp(e,10)
    vC=vAf
    for nt in range(4):
        for g in range(4): e.lds(f"ds_read_b128 {R(vC+16*nt+4*g,4)}, {R(tmp)} offset:{nt*128+g*32}",("c",nt))
    for jj in range(32): e(f"v_pk_mul_f32 {R(vAcc+2*jj,2)}, {R(vAcc+2*jj,2)}, {R(vM,2)} op_sel_hi:[1,0]") if jj>=24 or True else None
    e.wlg0(); e.bar()
    U=vBf; PK=vAf+64
    for nt in range(4):
        for hh in range(2):
            b=vAcc+16*nt+8*hh; c=vC+16*nt+8*hh; o=PK+(nt*2+hh)*4
            for jj in range(4): e(f"v_pk_fma_f32 {R(b+2*jj,2)}, {R(c+2*jj,2)}, {R(vM,2)}, {R(b+2*jj,2)} op_sel:[0,1,0] op_sel_hi:[1,1,1]")
            for jj in range(8): e(f"v_exp_f32 {R(U+jj)}, {R(b+jj)}")
            e.nop(1)
            for jj in range(4): e(f"v_pk_fma_f32 {R(U+2*jj,2)}, {R(U+2*jj,2)}, {R(vS,2)}, {R(vS,2)} op_sel_hi:[1,0,0]")
            for jj in range(8): e(f"v_rcp_f32 {R(U+jj)}, {R(U+jj)}")
            e.nop(1)
            for jj in range(4): e(f"v_pk_mul_f32 {R(b+2*jj,2)}, {R(b+2*jj,2)}, {R(U+2*jj,2)}")
            for jj in range(4): e(f"v_cvt_pk_bf16_f32 {R(o+jj)}, {R(b+2*jj)}, {R(b+2*jj+1)}")
            t=nt*2+hh
            if t==4: e(f"s_movk_i32 {S(sT2)}, 0x1000")
            gstore(e,f"buffer_store_dwordx4 {R(o,4)}, {R(vH)}, {S(srdO,4)}, {S(sT2) if t>=4 else '0'} offen offset:{(t&3)*1024}","st")
    e(f"s_branch {fin}")
    e.lab(ld); e.reset(); e('s_setprio 2')
    vB,vT,vCs,vBf=2,4,5,16
    wdma_lane(e,vB,tmp,3584,0)
    e(f"s_and_b32 {S(sD+1)}, {S(j)}, 1"); e(f"s_lshr_b32 {S(sD+2)}, {S(j)}, 1")
    e(f"s_mul_i32 {S(sT0)}, {S(sD+2)}, {32*3584}"); e(f"s_lshl_b32 {S(sT1)}, {S(sD+1)}, 7"); e(f"s_add_u32 {S(sT0)}, {S(sT0)}, {S(sT1)}")
    e(f"s_lshl_b32 {S(sT1)}, {S(sNB)}, 8"); e(f"s_add_u32 {S(sT0)}, {S(sT0)}, {S(sT1)}")
    e(f"v_add_u32 {R(vB)}, {S(sT0)}, {R(vB)}"); e(f"v_xor_b32 {R(vB+1)}, 32, {R(vB)}")
    e(f"s_lshl_b32 {S(sLB)}, {S(sD+1)}, 16"); e(f"s_lshl_b32 {S(sT1)}, {S(sD+2)}, 12"); e(f"s_add_u32 {S(sLB)}, {S(sLB)}, {S(sT1)}")
    def wch(ch):
        for i in range(4): dma(e,vB+(i&1),srdW,(ch*64+8*i)*3584,(sLB,ch*8192+i*1024),("B",ch))
    for ch in range(3): wch(ch)
    tr_lane_base(e,vT,tmp,"frag")
    e(f"s_lshl_b32 {S(sT0)}, {S(sD+1)}, 6"); e(f"v_xor_b32 {R(vT)}, {S(sT0)}, {R(vT)}")
    e(f"s_lshl_b32 {S(sT0)}, {S(sD+2)}, 16"); e(f"v_add_u32 {R(vT)}, {S(sT0)}, {R(vT)}")
    e(f"v_mov_b32 {R(vCs)}, 0"); e(f"v_mov_b32 {R(vCs+1)}, 0")
    e.bar()
    for ch in range(8):
        if ch<=4: e.wvm(("B",ch if ch<4 else 7)); e.bar()
        if ch==0: stamp(e,9)
        if ch==4: stamp(e,1)
        for t in range(4): trread(e,vBf+4*t,vT,(ch*4+t)*2048,("f",t))
        for c2 in {0:(3,4),1:(5,6),2:(7,)}.get(ch,()): wch(c2)
        if ch==3:
            e(f"s_lshl_b32 {S(sT0)}, {S(sMB)}, 2"); e(f"s_add_u32 {S(sT0)}, {S(sT0)}, {S(j)}"); e(f"s_mul_i32 {S(sT0)}, {S(sT0)}, {112*1024}")
            e(f"s_lshl_b32 {S(sT1)}, {S(sNB)}, 13"); e(f"s_add_u32 {S(sT0)}, {S(sT0)}, {S(sT1)}"); e(f"v_lshl_add_u32 v7, {R(vL)}, 7, {S(sT0)}")
            e.vmem(f"buffer_load_dword v242, v7, {S(srdO,4)}, 0 offen sc1","pf")
        if ch==4: pf_w2(e,j,0)
        for t in range(4):
            e.wlg(("f",t))
            for i in range(4): e(f"v_dot2_f32_bf16 {R(vCs+(i&1))}, {R(vBf+4*t+i)}, {S(sONE)}, {R(vCs+(i&1))}")
    e(f"s_lshl_b32 {S(sT0)}, {S(j)}, 7"); e(f"s_add_u32 {S(sT0)}, {S(sT0)}, {CS:#x}")
    e(f"v_and_b32 {R(tmp)}, 31, {R(vL)}"); e(f"v_lshl_add_u32 {R(tmp)}, {R(tmp)}, 2, {S(sT0)}"); e.nop(2)
    e(f"v_add_f32 {R(vCs)}, {R(vCs)}, {R(vCs+1)}")
    allsum_halves(e,vCs,vCs+1)
    e(f"ds_write_b32 {R(tmp)}, {R(vCs)}")
    stamp(e,3)
    if 'w4' in DBG: e.wvm0()
    stamp(e,4); e.wlg0(); e('s_setprio 0'); e.bar(); e.bar(); stamp(e,5)
    p4_preload(e,j,0); e.bar(); e.wvm0(); pf_w2(e,j,1)
    with ifL(e,0): x2touch(e,j,4,7)
    e(f"s_branch {sk2}")
    e.lab(fin); publish(e,L*4+2); e(f"s_branch {sk2}")
    e.lab(skip)
    sk3=e.newlab("p3np"); e(f"s_cmp_lt_u32 {S(sW)}, 4"); e(f"s_cbranch_scc1 {sk3}"); pf_w2(e,j,0); pf_w2(e,j,1)
    with ifL(e,0): x2touch(e,j,4,7)
    p4_preload(e,j,0); e.lab(sk3)
    e.wvm0(); e.bar(); e.lab(sk2)
    sk4=e.newlab("p3nq"); e(f"s_cmp_lt_u32 {S(sW)}, 4"); e(f"s_cbranch_scc1 {sk4}"); p4_preload(e,j,1); e.lab(sk4)

STG=34816; WOF=10240; CS1=4*STG; ST1=CS1+1024; QB,KB,VB=0,9216,20736
vW,vX,vb=200,206,209
dW,dX=sD,sD+6
def wslots(e,sw,k0):
    for a in range(3):
        e(f"s_mul_i32 {S(sT0)}, {S(sw)}, 3"); e(f"s_add_u32 {S(sT0)}, {S(sT0)}, {a}")
        e(f"s_lshl_b32 {S(dW+k0+a)}, {S(sT0)}, 10"); e(f"s_add_u32 {S(dW+k0+a)}, {S(dW+k0+a)}, {WOF}")
        e(f"s_and_b32 {S(sT1)}, {S(sT0)}, 1"); e(f"s_lshl_b32 {S(sT1)}, {S(sT1)}, 5"); e(f"v_xor_b32 {R(vW+k0+a)}, {S(sT1)}, {R(vb)}")
        e(f"s_and_b32 {S(sT1)}, {S(sT0)}, 7"); e(f"s_mul_i32 {S(sT1)}, {S(sT1)}, {8*3072}")
        e(f"s_lshr_b32 {S(sT0)}, {S(sT0)}, 3"); e(f"s_lshl_b32 {S(sT0)}, {S(sT0)}, 10"); e(f"s_add_u32 {S(sT0)}, {S(sT0)}, {S(sT1)}")
        e(f"v_add_u32 {R(vW+k0+a)}, {S(sT0)}, {R(vW+k0+a)}")
def p1_setup(e,L):
    tmp=9
    srd(e,srdW,pQKV,0,512*3072)
    wdma_lane(e,vb,tmp,3072,0)
    e(f"s_lshl_b32 {S(sT0)}, {S(sNB)}, 7"); e(f"v_add_u32 {R(vb)}, {S(sT0)}, {R(vb)}")
    e(f"v_lshrrev_b32 {R(tmp)}, 3, {R(vL)}"); e(f"v_lshrrev_b32 {R(tmp+1)}, 4, {R(vL)}"); e(f"v_and_b32 {R(tmp+2)}, 7, {R(vL)}")
    e(f"v_xor_b32 {R(tmp+1)}, {R(tmp+1)}, {R(tmp+2)}"); e(f"v_lshlrev_b32 {R(tmp+1)}, 4, {R(tmp+1)}")
    e(f"v_lshl_add_u32 {R(vb+1)}, {R(tmp)}, 10, {R(tmp+1)}")
    wslots(e,sW,0)
def p1_issue(e,L,s,ws,xs):
    b=(s%4)*STG
    for k in xs: dma(e,vX+k,srdA,s*128,(dX+k,b),("S",s),True)
    for k in ws: dma(e,vW+k,srdW,s*64*3072,(dW+k,b),("S",s))
def p1_trickle(e,L,s,j):
    wo=L*LSTRIDE; va=211
    if s==5 and "nopt" not in DBG:
        srd(e,srdS,pWS,wo,16*MB)
        e(f"s_lshl_b32 {S(sT0)}, {S(sMB)}, 16"); e(f"s_lshl_b32 {S(sT1)}, {S(sNB)}, 12"); e(f"s_add_u32 {S(sT0)}, {S(sT0)}, {S(sT1)}")
        e(f"s_and_b32 {S(sT1)}, {S(j)}, 1"); e(f"s_lshl_b32 {S(sT1)}, {S(sT1)}, 15"); e(f"s_add_u32 {S(sT0)}, {S(sT0)}, {S(sT1)}")
        e(f"s_lshr_b32 {S(sT1)}, {S(j)}, 1"); e(f"s_lshl_b32 {S(sT1)}, {S(sT1)}, 21"); e(f"s_add_u32 {S(sT0)}, {S(sT0)}, {S(sT1)}")
        e(f"v_and_b32 {R(va)}, 31, {R(vL)}"); e(f"v_lshl_add_u32 {R(va)}, {R(va)}, 7, {S(sT0)}")
        e.vmem(f"buffer_load_dword v242, {R(va)}, {S(srdS,4)}, 0 offen sc1","pf")
        e(f"s_lshl_b32 {S(sT0)}, {S(sMB)}, 12"); e(f"s_lshl_b32 {S(sT1)}, {S(sNB)}, 8"); e(f"s_add_u32 {S(sT0)}, {S(sT0)}, {S(sT1)}"); e(f"s_add_u32 {S(sT0)}, {S(sT0)}, {ST_OFF}")
        e(f"v_and_b32 {R(va)}, 1, {R(vL)}"); e(f"v_lshl_add_u32 {R(va)}, {R(va)}, 7, {S(sT0)}"); e(f"v_bfe_u32 {R(va+1)}, {R(vL)}, 1, 1"); e(f"v_lshl_add_u32 {R(va)}, {R(va+1)}, 11, {R(va)}")
        e.vmem(f"buffer_load_dword v242, {R(va)}, {S(srdS,4)}, 0 offen sc1","pf")
        if True:
            e(f"s_lshl_b32 {S(sT0)}, {S(sXCD)}, 7"); e(f"v_and_b32 {R(va)}, 7, {R(vL)}"); e(f"v_lshl_add_u32 {R(va)}, {R(va)}, 10, {S(sT0)}")
            e.vmem(f"buffer_load_dword v242, {R(va)}, {S(srdF,4)}, 0 offen sc1","pf")
    if s==5: prefetch(e,srdS,pWO,512*1024,4,j,va,240)
    if s==6: pfl(e,srdS,pW1,512*3584,[(sJ,32768),(j,8192)],0,64,va)
def x2touch(e,sw,nw,va):
    e(f"s_lshr_b32 {S(sT0)}, {S(sJ)}, 3"); e(f"s_lshl_b32 {S(sT1)}, {S(sXCD)}, 2"); e(f"s_add_u32 {S(sT0)}, {S(sT0)}, {S(sT1)}"); e(f"s_lshl_b32 {S(sT0)}, {S(sT0)}, 16")
    e(f"s_mul_i32 {S(sT1)}, {S(sw)}, {65536//nw}"); e(f"s_add_u32 {S(sT0)}, {S(sT0)}, {S(sT1)}")
    e(f"s_and_b32 {S(sT1)}, {S(sJ)}, 7"); e(f"s_lshl_b32 {S(sT1)}, {S(sT1)}, 7"); e(f"s_add_u32 {S(sT0)}, {S(sT0)}, {S(sT1)}")
    srd(e,srdR,pWS,X2_OFF,2*MB)
    e(f"v_and_b32 {R(va)}, {64//nw-1}, {R(vL)}"); e(f"v_lshl_add_u32 {R(va)}, {R(va)}, 10, {S(sT0)}")
    e.vmem(f"buffer_load_dword v242, {R(va)}, {S(srdR,4)}, 0 offen sc1","pf")
def phase1(e,L):
    wo=L*LSTRIDE
    ids64(e)
    srdsel(e,srdA,pX,0,2*MB,pWS,X2_OFF,4*MB)
    srd(e,srdO,pWS,wo+O_OFF,2*MB)
    tmp=9
    lab_h,lab_l,lab_att=e.newlab("p1h"),e.newlab("p1l"),e.newlab("p1att")
    issue=lambda s,ws,xs: p1_issue(e,L,s,ws,xs)
    w0=[]
    def xslot(si,k):
        e(f"s_lshl_b32 {S(dX+k)}, {S(si)}, 10")
        e(f"s_and_b32 {S(sT1)}, {S(si)}, 1"); e(f"s_lshl_b32 {S(sT1)}, {S(sT1)}, 6"); e(f"v_xor_b32 {R(vX+k)}, {S(sT1)}, {R(vb+1)}")
        e(f"s_lshl_b32 {S(sT0)}, {S(sMB)}, 16"); e(f"s_lshl_b32 {S(sT1)}, {S(si)}, 13"); e(f"s_add_u32 {S(sT0)}, {S(sT0)}, {S(sT1)}")
        e(f"s_sub_u32 {S(sT0)}, {S(sT0)}, 0x4000")
        if True:
            e(f"s_lshl_b32 {S(sT2)}, {S(sXCD)}, 14"); e(f"s_add_u32 {S(sT2)}, {S(sT2)}, {S(sT1)}"); e(f"s_add_u32 {S(sT2)}, {S(sT2)}, {X2H_OFF-X2_OFF-0x4000}")
            e(f"s_cmp_lt_u32 {S(si)}, 2"); e(f"s_cselect_b32 {S(sT1)}, {S(sD+9)}, 0"); e(f"s_cmp_lg_u32 {S(sT1)}, 0"); e(f"s_cselect_b32 {S(sT0)}, {S(sT2)}, {S(sT0)}")
        e(f"v_add_u32 {R(vX+k)}, {S(sT0)}, {R(vX+k)}")
    def bump(regs,s):
        d=STG if s%4!=3 else -3*STG
        for r in regs: e(f"v_add_u32 {R(r)}, {d&0xffffffff:#x}, {R(r)}")
    def xaddr(dst,n,step,rowbase,w16):
        if w16: e(f"v_and_b32 {R(tmp)}, 15, {R(vL)}"); e(f"v_lshrrev_b32 {R(tmp+1)}, 4, {R(vL)}")
        else: e(f"v_and_b32 {R(tmp)}, 31, {R(vL)}"); e(f"v_lshrrev_b32 {R(tmp+1)}, 5, {R(vL)}")
        if rowbase is not None: e(f"v_add_u32 {R(tmp)}, {rowbase}, {R(tmp)}")
        e(f"v_bfe_u32 {R(tmp+2)}, {R(tmp)}, 1, 3"); e(f"v_xor_b32 {R(tmp+1)}, {R(tmp+1)}, {R(tmp+2)}")
        e(f"v_lshlrev_b32 {R(tmp+1)}, 4, {R(tmp+1)}"); e(f"v_lshl_add_u32 {R(dst)}, {R(tmp)}, 7, {R(tmp+1)}")
        for i in range(1,n): e(f"v_xor_b32 {R(dst+i)}, {i*step}, {R(dst)}")
    if True:
        e(f"s_cmp_lt_u32 {S(sJ)}, 8"); e(f"s_cselect_b32 {S(sD+9)}, {S(sXCD)}, 0"); e(f"s_mul_i32 {S(sD+9)}, {S(sD+9)}, {S(sL)}")
        e(f"s_and_b32 {S(sD+12)}, {S(sJ)}, 24"); e(f"s_max_u32 {S(sT0)}, {S(sD+12)}, 8"); e(f"s_sub_u32 {S(sT0)}, {S(sT0)}, 8"); e(f"s_lshl_b32 {S(sT0)}, {S(sT0)}, 2")
        e(f"s_lshl_b32 {S(sT1)}, {S(sXCD)}, 7"); e(f"s_add_u32 {S(sT0)}, {S(sT0)}, {S(sT1)}"); e(f"s_add_u32 {S(sT0)}, {S(sT0)}, {3*1024}")
        e(f"s_add_u32 {S(sT1)}, {S(sT1)}, {7*1024-128+96}"); e(f"s_cmp_lg_u32 {S(sD+9)}, 0"); e(f"s_cselect_b32 {S(sD+13)}, {S(sT1)}, {S(sT0)}")
    xslot(sW,0)
    with ifL(e,1): waitflags(e,3,sD+12,8,sD+13)
    e(f"s_cmp_ge_u32 {S(sW)}, 4"); e(f"s_cbranch_scc1 {lab_l}")
    for s in range(3): issue(s,w0,[0])
    q0=list(e.vm)
    e(f"s_cmp_eq_u32 {S(sW)}, 3"); e(f"s_cbranch_scc1 {lab_h}")
    vXa,vTa,vAcc,vF=2,6,32,96
    xaddr(vXa,4,32,16,False)
    tr_lane_base(e,vTa,tmp,"head")
    pA,nA,pB,nB=sD+10,sD+11,sD+12,sD+13
    e(f"s_min_u32 {S(pA)}, {S(sW)}, 1"); e(f"s_lshr_b32 {S(nA)}, {S(sW)}, 1"); e(f"s_lshl_b32 {S(pB)}, {S(pA)}, 1")
    e(f"s_and_b32 {S(nB)}, {S(sW)}, 1"); e(f"s_xor_b32 {S(nB)}, {S(nB)}, 1")
    for r,p,n in ((vTa+1,pB,nB),(vTa,pA,nA)):
        e(f"s_lshl_b32 {S(sT0)}, {S(n)}, 6"); e(f"v_xor_b32 {R(r)}, {S(sT0)}, {R(vTa)}")
        e(f"s_lshl_b32 {S(sT0)}, {S(p)}, 13"); e(f"s_add_u32 {S(sT0)}, {S(sT0)}, {WOF}"); e(f"v_add_u32 {R(r)}, {S(sT0)}, {R(r)}")
    def rd(t,p):
        b=vF+(t&1)*16; ks=t&3
        if p==0: trread(e,b+8,vTa,ks*2048,("a",t))
        if p==1: e.lds(f"ds_read_b128 {R(b,4)}, {R(vXa+ks)}",("a",t)); e.lds(f"ds_read_b128 {R(b+4,4)}, {R(vXa+ks)} offset:4096",("b",t))
        if p==2: trread(e,b+12,vTa+1,ks*2048,("c",t))
    e.wvm(("S",0)); e.bar(); stamp(e,1)
    for p in range(3): rd(0,p)
    for t in range(32):
        nx=t+1<32
        if nx and (t+1)%4==0:
            s=(t+1)//4
            e.wvm(("S",s)); (e.wlg0() if s<=4 else None); bump(range(vXa,vXa+6),s-1); (e.bar() if s<7 else None); stamp(e,1+s)
        b=vF+(t&1)*16
        if nx: rd(t+1,0)
        e.wlg(("a",t)); mfma32(e,vAcc,b+8,b,t==0)
        if nx: rd(t+1,1)
        e.wlg(("b",t)); mfma32(e,vAcc+16,b+8,b+4,t==0)
        if nx: rd(t+1,2)
        e.wlg(("c",t)); mfma32(e,vAcc+32,b+12,b,t==0); mfma32(e,vAcc+48,b+12,b+4,t==0)
    vC,vSt,vWA,vWB,vP=128,160,2,3,168
    e(f"v_lshrrev_b32 {R(tmp)}, 5, {R(vL)}"); e(f"v_and_b32 {R(tmp+1)}, 31, {R(vL)}")
    for r,p,n in ((4,pA,nA),(5,pB,nB)):
        e(f"s_lshl_b32 {S(sT0)}, {S(p)}, 8"); e(f"s_lshl_b32 {S(sT1)}, {S(n)}, 7"); e(f"s_add_u32 {S(sT0)}, {S(sT0)}, {S(sT1)}")
        e(f"s_add_u32 {S(sT0)}, {S(sT0)}, {CS1}"); e(f"v_lshl_add_u32 {R(r)}, {R(tmp)}, 6, {S(sT0)}")
    e(f"v_lshlrev_b32 {R(6)}, 3, {R(tmp+1)}"); e(f"v_add_u32 {R(6)}, {ST1+128:#x}, {R(6)}")
    e(f"v_mul_u32_u24 {R(vWA)}, 144, {R(tmp+1)}"); e(f"v_lshl_add_u32 {R(vWA)}, {R(tmp)}, 5, {R(vWA)}")
    e(f"v_mul_u32_u24 {R(vWB)}, 272, {R(tmp+1)}"); e(f"v_lshl_add_u32 {R(vWB)}, {R(tmp)}, 6, {R(vWB)}")
    e(f"s_mul_i32 {S(sT0)}, {S(pA)}, {KB+16*144}"); e(f"s_lshl_b32 {S(sT1)}, {S(nA)}, 6"); e(f"s_add_u32 {S(sT0)}, {S(sT0)}, {S(sT1)}")
    e(f"v_add_u32 {R(vWA)}, {S(sT0)}, {R(vWA)}")
    e(f"s_lshl_b32 {S(sT1)}, {S(nB)}, 7"); e(f"s_add_u32 {S(sT1)}, {S(sT1)}, {VB+16*272}"); e(f"v_add_u32 {R(vWB)}, {S(sT1)}, {R(vWB)}")
    e.bar(); stamp(e,9)
    for m in range(2): e.lds(f"ds_read_b64 {R(vSt+2*m,2)}, {R(6)} offset:{m*256}","st")
    for T in range(2):
        for g in range(4): e.lds(f"ds_read_b128 {R(vC+16*T+4*g,4)}, {R(4+T)} offset:{g*16}",("c",T))
    def corr(T,m):
        b=vAcc+32*T+16*m
        for j in range(8): e(f"v_pk_fma_f32 {R(b+2*j,2)}, {R(vC+16*T+2*j,2)}, {R(vSt+2*m,2)}, {R(b+2*j,2)} op_sel_hi:[1,0,1]")
        for j in range(8): e(f"v_pk_mul_f32 {R(b+2*j,2)}, {R(b+2*j,2)}, {R(vSt+2*m,2)} op_sel:[0,1] op_sel_hi:[1,1]")
    def wr16(T,m,off):
        b=vAcc+32*T+16*m; p=vP+8*(2*T+m)
        for j in range(8): e(f"v_cvt_pk_bf16_f32 {R(p+j)}, {R(b+2*j)}, {R(b+2*j+1)}")
        for j in range(2): e(f"ds_write_b128 {R(vWA)}, {R(p+4*j,4)} offset:{off+m*32*144+16*j}")
    e.wlg(("c",0))
    for m in range(2): corr(0,m); wr16(0,m,0)
    e.wlg0()
    for m in range(2): corr(1,m)
    lv=e.newlab("p1v"); e(f"s_cmp_lg_u32 {S(sW)}, 0"); e(f"s_cbranch_scc1 {lv}")
    for m in range(2): wr16(1,m,64)
    e(f"s_branch {lab_att}")
    e.lab(lv)
    for m in range(2):
        for j in range(4): e(f"ds_write_b128 {R(vWB)}, {R(vAcc+32+16*m+4*j,4)} offset:{m*32*272+16*j}")
    e(f"s_branch {lab_att}")
    e.lab(lab_h); e.reset(); e.vm=list(q0)
    vXa,vTh,vAcc,vXf,vWf=2,4,32,80,96
    xaddr(vXa,2,64,None,True)
    e(f"v_lshrrev_b32 {R(tmp)}, 4, {R(vL)}"); e(f"v_bfe_u32 {R(tmp+1)}, {R(vL)}, 2, 2")
    e(f"v_lshl_add_u32 {R(vTh)}, {R(tmp)}, 3, {R(tmp+1)}"); e(f"v_lshlrev_b32 {R(vTh)}, 7, {R(vTh)}")
    e(f"v_and_b32 {R(tmp)}, 1, {R(tmp)}"); e(f"v_lshlrev_b32 {R(tmp)}, 1, {R(tmp)}"); e(f"v_lshrrev_b32 {R(tmp+1)}, 1, {R(tmp+1)}")
    e(f"v_lshl_or_b32 {R(tmp)}, {R(tmp+1)}, 2, {R(tmp)}"); e(f"v_bfe_u32 {R(tmp+1)}, {R(vL)}, 1, 1"); e(f"v_or_b32 {R(tmp)}, {R(tmp)}, {R(tmp+1)}")
    e(f"v_lshl_add_u32 {R(vTh)}, {R(tmp)}, 4, {R(vTh)}"); e(f"v_and_b32 {R(tmp)}, 1, {R(vL)}"); e(f"v_lshl_add_u32 {R(vTh)}, {R(tmp)}, 3, {R(vTh)}")
    e(f"v_add_u32 {R(vTh)}, {WOF}, {R(vTh)}")
    for h in range(1,4): e(f"v_xor_b32 {R(vTh+h)}, {h*32}, {R(vTh)}")
    e(f"v_and_b32 {R(tmp)}, 15, {R(vL)}"); e(f"v_cmp_eq_u32 vcc, 0, {R(tmp)}"); e(f"v_mov_b32 {R(12)}, {S(sONE)}")
    def rdu(u,h):
        T,p=divmod(u,3); kk=T&1
        if p==0 and h==0: e.lds(f"ds_read_b128 {R(vXf+4*(T&1),4)}, {R(vXa+kk)}",("x",T))
        trread(e,vWf+(u&1)*16+4*h,vTh+h,p*8192+kk*4096,("w",u,h))
    e.wvm(("S",0)); e.bar()
    for h in range(4): rdu(0,h)
    for u in range(48):
        T,p=divmod(u,3)
        if u+1<48 and (u+1)%6==0:
            s=(u+1)//6
            e.wvm(("S",s)); (e.wlg0() if s<=4 else None); bump(range(vXa,vXa+6),s-1); (e.bar() if s<7 else None)
            if s==2:
                with ifL(e,0): hello(e)
        if p==0:
            e.wlg(("x",T))
            for i in range(4): e(f"v_cndmask_b32 {R(vXf+4*(T&1)+i)}, {R(vXf+4*(T&1)+i)}, {R(12)}, vcc")
            e.nop(2)
        for h in range(4):
            if u+1<48: rdu(u+1,h)
            e.wlg(("w",u,h)); mfma16(e,vAcc+16*p+4*h,vWf+(u&1)*16+4*h,vXf+4*(T&1),T==0)
    e(f"v_lshrrev_b32 {R(tmp)}, 4, {R(vL)}"); e(f"v_and_b32 {R(tmp+1)}, 15, {R(vL)}")
    e(f"v_lshlrev_b32 {R(2)}, 4, {R(tmp)}"); e(f"v_add_u32 {R(2)}, {CS1}, {R(2)}")
    e(f"v_lshlrev_b32 {R(3)}, 3, {R(tmp+1)}"); e(f"v_add_u32 {R(3)}, {ST1}, {R(3)}")
    e(f"v_mul_u32_u24 {R(4)}, 144, {R(tmp+1)}"); e(f"v_lshl_add_u32 {R(4)}, {R(tmp)}, 3, {R(4)}")
    e(f"v_mul_u32_u24 {R(5)}, 272, {R(tmp+1)}"); e(f"v_lshl_add_u32 {R(5)}, {R(tmp)}, 4, {R(5)}")
    e(f"s_and_saveexec_b64 {S(sD+14,2)}, vcc")
    for i in range(12): e(f"ds_write_b128 {R(2)}, {R(vAcc+4*i,4)} offset:{i*64}")
    e(f"s_mov_b64 exec, {S(sD+14,2)}")
    e.wlg0(); e.bar()
    vC,vSt=96,80
    e.lds(f"ds_read_b64 {R(vSt,2)}, {R(3)}","st")
    for i in range(8): e.lds(f"ds_read_b128 {R(vC+4*i,4)}, {R(2)} offset:{(4+i)*64}",("c",i))
    for i in range(8):
        e.wlg(("c",i)); b=vAcc+16+4*i
        for j in range(2): e(f"v_pk_fma_f32 {R(b+2*j,2)}, {R(vC+4*i+2*j,2)}, {R(vSt,2)}, {R(b+2*j,2)} op_sel_hi:[1,0,1]")
        for j in range(2): e(f"v_pk_mul_f32 {R(b+2*j,2)}, {R(b+2*j,2)}, {R(vSt,2)} op_sel:[0,1] op_sel_hi:[1,1]")
        if i<4:
            for j in range(2): e(f"v_cvt_pk_bf16_f32 {R(b+j)}, {R(b+2*j)}, {R(b+2*j+1)}")
            e.lds(f"ds_write_b64 {R(4)}, {R(b,2)} offset:{KB+i*32}")
        else: e.lds(f"ds_write_b128 {R(5)}, {R(b,4)} offset:{VB+(i-4)*64}")
    e(f"s_branch {lab_att}")
    e.lab(lab_l); e.reset(); e('s_setprio 2')
    j=sD+10; e(f"s_sub_u32 {S(j)}, {S(sW)}, 4")
    e(f"s_and_b32 {S(sD+11)}, {S(j)}, 1"); e(f"s_add_u32 {S(sD+11)}, {S(sD+11)}, 8"); xslot(sD+11,1)
    for s in range(3): issue(s,w0,[0,1])
    wslots(e,j,3); xslot(j,2)
    vXa,vF,vS=2,32,12
    e(f"s_min_u32 {S(sT2)}, {S(j)}, 2"); e(f"s_lshl_b32 {S(sT2)}, {S(sT2)}, 5"); e(f"s_sub_u32 {S(sT2)}, {S(sT2)}, 16"); e(f"s_max_i32 {S(sT2)}, {S(sT2)}, 0")
    xaddr(vXa,4,32,S(sT2),False)
    e(f"v_lshlrev_b32 {R(6)}, 3, {R(tmp)}"); e(f"v_add_u32 {R(6)}, {ST1}, {R(6)}")
    for i in range(4): e(f"v_mov_b32 {R(vS+i)}, 0")
    for s in range(8):
        if s<7: e.wvm(("S",s if s<6 else 7)); e.bar()
        for ks in range(4): e.lds(f"ds_read_b128 {R(vF+4*ks,4)}, {R(vXa+ks)}",("x",ks))
        if s<=4: issue(s+3,range(6),[0,1,2])
        if s==0: pfl(e,srdS,pQKV,512*3072,[(sJ,30720),(j,7680)],192*3072,60,7)
        p1_trickle(e,L,s,j)
        if s<7: bump(range(vXa,vXa+4),s)
        for ks in range(4):
            e.wlg(("x",ks))
            for i in range(4):
                e(f"v_dot2_f32_bf16 {R(vS+(i&1))}, {R(vF+4*ks+i)}, {S(sONE)}, {R(vS+(i&1))}")
                e(f"v_dot2_f32_bf16 {R(vS+2+(i&1))}, {R(vF+4*ks+i)}, {R(vF+4*ks+i)}, {R(vS+2+(i&1))}")
    e.nop(3); e(f"v_add_f32 {R(vS)}, {R(vS)}, {R(vS+1)}"); e(f"v_add_f32 {R(vS+1)}, {R(vS+2)}, {R(vS+3)}")
    allsum_halves(e,vS,vS+2); allsum_halves(e,vS+1,vS+2)
    meanrstd(e,vS,vS+1,tmp); e(f"v_sub_f32 {R(vS)}, 0, {R(vS)}")
    e(f"ds_write_b64 {R(6)}, {R(vS,2)}"); e.wlg0(); e.bar()
    e.lab(lab_att); e.reset(); e('s_setprio 0')
    vQ,vK,vV,vLg,vO=16,32,96,160,176
    mt,h=sD,sD+1
    e(f"s_lshr_b32 {S(mt)}, {S(sW)}, 2"); e(f"s_and_b32 {S(h)}, {S(sW)}, 3")
    e(f"v_and_b32 {R(tmp)}, 31, {R(vL)}"); e(f"s_lshl_b32 {S(sT0)}, {S(mt)}, 5"); e(f"v_add_u32 {R(tmp)}, {S(sT0)}, {R(tmp)}")
    e(f"v_lshrrev_b32 {R(tmp+1)}, 5, {R(vL)}")
    e(f"s_lshl_b32 {S(sT0)}, {S(h)}, 5"); e(f"v_mul_u32_u24 {R(2)}, 144, {R(tmp)}"); e(f"v_add_u32 {R(2)}, {S(sT0)}, {R(2)}")
    e(f"s_lshl_b32 {S(sT0)}, {S(h)}, 6"); e(f"v_mul_u32_u24 {R(3)}, 272, {R(tmp)}"); e(f"v_lshl_add_u32 {R(3)}, {R(tmp+1)}, 5, {R(3)}"); e(f"v_add_u32 {R(3)}, {S(sT0)}, {R(3)}")
    e(f"s_lshl_b32 {S(sT0)}, {S(sMB)}, 6"); e(f"v_add_u32 {R(4)}, {S(sT0)}, {R(tmp)}")
    e(f"s_lshl_b32 {S(sT0)}, {S(sMB)}, 1"); e(f"s_add_u32 {S(sT0)}, {S(sT0)}, {S(mt)}"); e(f"s_lshl_b32 {S(sT0)}, {S(sT0)}, 5")
    e(f"s_lshl_b32 {S(sT1)}, {S(sNB)}, 2"); e(f"s_add_u32 {S(sT0)}, {S(sT0)}, {S(sT1)}"); e(f"s_add_u32 {S(sT0)}, {S(sT0)}, {S(h)}"); e(f"s_lshl_b32 {S(sT0)}, {S(sT0)}, 10")
    e(f"v_lshl_add_u32 {R(5)}, {R(vL)}, 4, {S(sT0)}")
    srd(e,srdW,pWO,0,512*1024); bsrc(e,14,tmp,8,sKQ,sMH,WO_LDS,16384,sLB)
    e(f"v_mov_b32 {R(6)}, 0xce6e6b28"); e(f"v_mov_b32 {R(7)}, 0x3eb8aa3b")
    e.wlg0(); e.bar(); stamp(e,10)
    for i in range(2): e.lds(f"ds_read_b128 {R(vQ+4*i,4)}, {R(2)} offset:{QB+16*i}","q")
    for jj in range(8):
        for i in range(2): e.lds(f"ds_read_b128 {R(vK+8*jj+4*i,4)}, {R(2)} offset:{KB+288+(7-jj)*288+16*i}",("k",jj))
    for jj in range(8):
        dma(e,14,srdW,jj*16384,(sLB,jj*2048),"pre")
        e.wlg(("k",jj))
        for i in range(8): e(f"v_dot2_f32_bf16 {R(vLg+jj)}, {R(vQ+i)}, {R(vK+8*jj+i)}, {R(vLg+jj) if i else '0'}")
        for i in range(2): e.lds(f"ds_read_b128 {R(vV+8*jj+4*i,4)}, {R(3)} offset:{VB+544+(7-jj)*544+16*i}",("v",jj))
    for jj in range(1,8): e(f"v_cmp_le_u32 {S(sD+2*jj,2)}, {2*jj}, {R(4)}")
    for jj in range(1,8): e(f"v_cndmask_b32 {R(vLg+jj)}, {R(6)}, {R(vLg+jj)}, {S(sD+2*jj,2)}")
    m=8
    e(f"v_max3_f32 {R(m)}, {R(vLg)}, {R(vLg+1)}, {R(vLg+2)}"); e(f"v_max3_f32 {R(m)}, {R(m)}, {R(vLg+3)}, {R(vLg+4)}")
    e(f"v_max3_f32 {R(m)}, {R(m)}, {R(vLg+5)}, {R(vLg+6)}"); e(f"v_max_f32 {R(m)}, {R(m)}, {R(vLg+7)}")
    for jj in range(8): e(f"v_sub_f32 {R(vLg+jj)}, {R(vLg+jj)}, {R(m)}")
    for jj in range(8): e(f"v_mul_f32 {R(vLg+jj)}, {R(7)}, {R(vLg+jj)}")
    for jj in range(8): e(f"v_exp_f32 {R(vLg+jj)}, {R(vLg+jj)}")
    e.nop(1)
    e(f"v_pk_add_f32 {R(10,2)}, {R(vLg,2)}, {R(vLg+2,2)}"); e(f"v_pk_add_f32 {R(12,2)}, {R(vLg+4,2)}, {R(vLg+6,2)}")
    e(f"v_pk_add_f32 {R(10,2)}, {R(10,2)}, {R(12,2)}"); e(f"v_add_f32 {R(10)}, {R(10)}, {R(11)}"); e(f"v_rcp_f32 {R(10)}, {R(10)}")
    for jj in range(8):
        e.wlg(("v",jj)); pb=vLg+(jj&~1); o=jj&1
        for i in range(4):
            if jj==0: e(f"v_pk_mul_f32 {R(vO+2*i,2)}, {R(vV+2*i,2)}, {R(pb,2)} op_sel_hi:[1,0]")
            else: e(f"v_pk_fma_f32 {R(vO+2*i,2)}, {R(vV+8*jj+2*i,2)}, {R(pb,2)}, {R(vO+2*i,2)} op_sel:[0,{o},0] op_sel_hi:[1,{o},1]")
    for i in range(4): e(f"v_pk_mul_f32 {R(vO+2*i,2)}, {R(vO+2*i,2)}, {R(10,2)} op_sel_hi:[1,0]")
    for i in range(4): e(f"v_cvt_pk_bf16_f32 {R(vQ+i)}, {R(vO+2*i)}, {R(vO+2*i+1)}")
    with ifL(e,0): getmode(e)
    gstore(e,f"buffer_store_dwordx4 {R(vQ,4)}, {R(5)}, {S(srdO,4)}, 0 offen","st")
    publish(e,L*4)
    return ST1+1024

def desc(k):
    return f""".p2align 6
.amdhsa_kernel {k}
  .amdhsa_next_free_vgpr 256
  .amdhsa_next_free_sgpr 102
  .amdhsa_accum_offset 256
  .amdhsa_group_segment_fixed_size 0
  .amdhsa_kernarg_size 72
  .amdhsa_user_sgpr_count 2
  .amdhsa_user_sgpr_kernarg_segment_ptr 1
  .amdhsa_system_sgpr_workgroup_id_x 1
.end_amdhsa_kernel
"""
def build_multi():
    e=Em(); hdr=""; ks=[]
    for L in range(2):
        for p in (1,2,3,4):
            k=f"p{p}l{L}_kernel"; ks.append(k); nwg=224 if p==3 else 256
            e.L.append(f".globl {k}\n.p2align 8\n.type {k},@function\n{k}:"); e.endlab=f"end_{k}"; e.reset()
            prologue(e,nwg)
            lds=phase1(e,L) if p==1 else phase3(e,L) if p==3 else phase_rs(e,L,p)
            stamp_flush(e,L*4+p-1)
            e.lab(e.endlab); e("s_endpgm")
            hdr+=f"; @launch kernel={k} grid=({nwg},1,1) block=(512,1,1) lds={lds}\n"
    return hdr+'.amdgcn_target "amdgcn-amd-amdhsa--gfx950"\n.text\n'+e.text()+'.section .rodata,"a"\n'+"".join(desc(k) for k in ks)
def build_pers():
    e=Em(); k=NAME+"_kernel"
    e.L.append(f".globl {k}\n.p2align 8\n.type {k},@function\n{k}:"); e.endlab="end_all"
    prologue(e,256); srd(e,srdD,50,0,256); srd(e,srdF,pWS,FL_OFF,16384)
    e(f"s_mov_b32 {S(sL)}, 0"); e(f"s_mov_b32 {S(sFO)}, 0"); e("v_mov_b32 v15, 0")
    ids64(e); p1_setup(e,0)
    for s_ in range(3): p1_issue(e,0,s_,range(3),[])
    e.lab("layer")
    for p in (1,2,3,4):
        e.reset()
        if p>1: stamp(e,0)
        phase1(e,0) if p==1 else phase3(e,0) if p==3 else phase_rs(e,0,p)
        stamp_flush(e,p-1)
    e(f"s_mov_b32 {S(sL)}, 1"); e(f"s_mov_b32 {S(sFO)}, 4096"); stamp(e,0); e("s_branch layer")
    e.lab(e.endlab); e("s_endpgm")
    return f"; @launch grid=(256,1,1) block=(512,1,1) lds=163840\n"+'.amdgcn_target "amdgcn-amd-amdhsa--gfx950"\n.text\n'+e.text()+'.section .rodata,"a"\n'+desc(k)
if __name__=="__main__":
    if "slow" in sys.argv: FORCE_SLOW=True
    if "prof" in sys.argv: PROF=True
    out=sys.argv[1] if len(sys.argv)>1 else f"cdna_kernels/{NAME}.s"
    open(out,"w").write(build_pers())
```

```python
class Em:
    def __init__(s):
        s.L=[]; s.vm=[]; s.lg=[]; s.uid=0; s.alt=None; s.only0=False
    def __call__(s,t): s.L.append("    "+t)
    def lab(s,n): s.L.append(n+":")
    def newlab(s,p="L"):
        s.uid+=1; return f"{p}_{s.uid}"
    def reset(s): s.vm=[]; s.lg=[]; s.alt=None
    def vmem(s,t,tag=None):
        s(t)
        if not s.only0: s.vm.append(tag)
        if s.alt is not None: s.alt.append(tag)
    def lds(s,t,tag=None): s(t); s.lg.append(tag)
    def _n(s,q,tags):
        if not isinstance(tags,list): tags=[tags]
        last=-1
        for i,x in enumerate(q):
            if x in tags: last=i
        return last
    def wvm(s,tags):
        i=s._n(s.vm,tags)
        if i<0: return
        n=len(s.vm)-1-i
        assert n<=63
        if s.alt is not None:
            i0=s._n(s.alt,tags); n0=len(s.alt)-1-i0; s.alt=s.alt[i0+1:]
            if n0!=n:
                a,b=s.newlab("w0"),s.newlab("w1")
                s("s_cmp_eq_u32 s100, 0"); s(f"s_cbranch_scc1 {a}"); s(f"s_waitcnt vmcnt({n})"); s(f"s_branch {b}")
                s.lab(a); s(f"s_waitcnt vmcnt({n0})"); s.lab(b); s.vm=s.vm[i+1:]
                return
        s(f"s_waitcnt vmcnt({n})"); s.vm=s.vm[i+1:]
    def wlg(s,tags):
        i=s._n(s.lg,tags)
        if i<0: return
        n=min(len(s.lg)-1-i,15)
        s(f"s_waitcnt lgkmcnt({n})"); s.lg=s.lg[len(s.lg)-n:] if n else []
    def wlg0(s): s("s_waitcnt lgkmcnt(0)"); s.lg=[]
    def wvm0(s): s("s_waitcnt vmcnt(0)"); s.vm=[]; s.alt=None
    def nop(s,n):
        while n>0:
            k=min(n,16); s(f"s_nop {k-1}"); n-=k
    def bar(s): s("s_barrier")
    def text(s): return "\n".join(s.L)+"\n"
def R(b,n=1): return f"v{b}" if n==1 else f"v[{b}:{b+n-1}]"
def S(b,n=1): return f"s{b}" if n==1 else f"s[{b}:{b+n-1}]"
```

```python
import sys,os
DBG=os.environ.get('DBG','')
from em import *
NAME="interleave_layers__sliding_local_dilated__dense_activation_silu__prompt"
MB=1<<20
O_OFF,X1_OFF,H_OFF,X2_OFF,ST_OFF=0,2*MB,4*MB,12*MB,14*MB
LSTRIDE=0 if 'fresh' not in DBG else 16*MB
sW,sXCD,sJ,sT0,sT1,sT2,sT3,sMB,sNB,sKQ,sMH,sLB=3,4,5,6,7,8,9,10,11,12,13,14
sONE=15
srdA,srdW,srdR,srdO,srdS=16,20,24,28,32
pX,pQKV,pWO,pW1,pW2,pOUT,pWS=36,38,40,44,46,48,52
sD=56
vL=1
sMODE,sTAG=54,55
sL,sFO=100,101
import contextlib
@contextlib.contextmanager
def ifL(e,v):
    sk=e.newlab('ifl'); e(f's_cmp_lg_u32 {S(sL)}, {v}'); e(f's_cbranch_scc1 {sk}'); q=list(e.vm)
    yield
    e.lab(sk); e.vm=q
def srdsel(e,d,p0,o0,z0,p1,o1,z1):
    srd(e,d,p1,o1,z1)
    with ifL(e,0): srd(e,d,p0,o0,z0)
srdF,srdD=96,24
FL_OFF,X2H_OFF=40*MB,15*MB
vRES=248
vINFO=244
FORCE_SLOW=False
ONES=0x3F803F80

PROF=False
def stamp(e,i):
    if PROF: e(f"s_memrealtime {S(72+2*i,2)}")
def stamp_flush(e,slot,n=12):
    if not PROF: return
    sk=e.newlab("nopf"); e(f"s_cmp_lg_u32 {S(sW)}, {4 if 'w4' in DBG else 0}"); e(f"s_cbranch_scc1 {sk}")
    e("s_waitcnt vmcnt(0)"); stamp(e,n-1); e("s_waitcnt lgkmcnt(0)")
    srd(e,srdS,pWS,200*MB,MB)
    e(f"s_lshl_b32 {S(sT0)}, s2, 7"); e(f"s_add_u32 {S(sT0)}, {S(sT0)}, {slot*32768}"); e(f"s_lshl_b32 {S(sT1)}, {S(sL)}, 17"); e(f"s_add_u32 {S(sT0)}, {S(sT0)}, {S(sT1)}"); e(f"v_mov_b32 v2, {S(sT0)}")
    for i in range(n):
        e(f"v_mov_b32 v4, {S(72+2*i)}"); e(f"v_mov_b32 v5, {S(73+2*i)}"); e(f"buffer_store_dwordx2 v[4:5], v2, {S(srdS,4)}, 0 offen offset:{i*8}"); e.nop(2)
    e.lab(sk)
def gstore(e,instr,tag):
    a,b=e.newlab("gs"),e.newlab("gd")
    e(f"s_cmp_eq_u32 {S(sMODE)}, 0"); e(f"s_cbranch_scc1 {a}"); e.vmem(instr+(' nt' if 'stnt' in DBG else ' sc0' if 'stsc0' in DBG else ''),tag); e(f"s_branch {b}")
    e.lab(a); e(instr+" sc1"); e.lab(b)
def spin(e,body,cond):
    lp,out=e.newlab("spin"),e.newlab("spun")
    e(f"s_mov_b32 {S(sT3)}, 0"); e.lab(lp); body()
    e(f"s_add_u32 {S(sT3)}, {S(sT3)}, 1"); e(f"s_cmp_gt_u32 {S(sT3)}, 0x40000"); e(f"s_cbranch_scc1 {out}")
    cond(lp); e.lab(out)
def publish(e,ph,pre=None):
    e.wvm0(); e.bar()
    sk=e.newlab("nopub"); e(f"s_cmp_lg_u32 {S(sW)}, 0"); e(f"s_cbranch_scc1 {sk}")
    e(f"s_lshl_b32 {S(sT0)}, {S(sXCD)}, 7"); e(f"s_lshl_b32 {S(sT1)}, {S(sJ)}, 2"); e(f"s_add_u32 {S(sT0)}, {S(sT0)}, {S(sT1)}")
    e(f"v_mov_b32 v2, {S(sT0)}"); e(f"v_mov_b32 v3, {S(sTAG)}"); e("s_mov_b64 exec, 1")
    e(f"s_add_u32 {S(sT2)}, {S(sFO)}, {ph*1024}")
    gstore(e,f"buffer_store_dword v3, v2, {S(srdF,4)}, {S(sT2)} offen","fl")
    if pre: pre()
    e("s_mov_b64 exec, -1"); e.lab(sk); e.reset()
def waitflags(e,ph,jbase,n,second=None):
    sk=e.newlab("nopoll"); e(f"s_cmp_lg_u32 {S(sW)}, 0"); e(f"s_cbranch_scc1 {sk}")
    e(f"s_lshl_b32 {S(sT0)}, {S(sXCD)}, 7"); e(f"s_lshl_b32 {S(sT1)}, {S(jbase)}, 2"); e(f"s_add_u32 {S(sT0)}, {S(sT0)}, {S(sT1)}")
    e(f"s_add_u32 {S(sT0)}, {S(sT0)}, {ph*1024}")
    if ph<3: e(f"s_add_u32 {S(sT0)}, {S(sT0)}, {S(sFO)}")
    e(f"v_min_u32 v2, {n-1}, {R(vL)}"); e(f"v_lshl_add_u32 v2, v2, 2, {S(sT0)}")
    if second is not None:
        e(f"v_and_b32 v3, 7, {R(vL)}"); e(f"v_lshl_add_u32 v3, v3, 2, {S(second)}"); e(f"v_cmp_gt_u32 vcc, 8, {R(vL)}"); e.nop(2); e("v_cndmask_b32 v2, v3, v2, vcc")
    def body(): e(f"buffer_load_dword v3, v2, {S(srdF,4)}, 0 offen sc1"); e("s_waitcnt vmcnt(0)"); e(f"v_cmp_ne_u32 vcc, {S(sTAG)}, v3")
    spin(e,body,lambda lp:e(f"s_cbranch_vccnz {lp}"))
    e(f"s_cmp_lg_u32 {S(sMODE)}, 0"); e(f"s_cbranch_scc1 {sk}"); e("buffer_inv sc1"); e("s_waitcnt vmcnt(0)")
    e.lab(sk); e.bar()
def hello(e):
    e(f"s_getreg_b32 {S(sT0)}, hwreg(HW_REG_XCC_ID, 0, 3)"); e(f"s_mul_i32 {S(sT0)}, {S(sT0)}, 6")
    e(f"s_lshl_b64 {S(sD+14,2)}, 1, {S(sT0)}"); e(f"s_add_u32 {S(sD+15)}, {S(sD+15)}, 0x1000000")
    e(f"s_lshl_b32 {S(sT1)}, {S(sXCD)}, 4"); e(f"v_mov_b32 v212, {S(sT1)}"); e(f"v_mov_b32 v214, {S(sD+14)}"); e(f"v_mov_b32 v215, {S(sD+15)}")
    e("s_mov_b64 exec, 1"); e.vmem(f"buffer_atomic_add_x2 v[214:215], v212, {S(srdD,4)}, 0 offen","hello")
    s2=e.newlab("notag"); e("s_cmp_lg_u32 s2, 0"); e(f"s_cbranch_scc1 {s2}")
    e("v_mov_b32 v212, 0x3000"); e(f"buffer_load_dword v213, v212, {S(srdF,4)}, 0 offen sc1"); e("s_waitcnt vmcnt(0)")
    e("v_add_u32 v213, 0x9e3779b9, v213"); e("v_max_u32 v213, 1, v213"); e(f"buffer_store_dword v213, v212, {S(srdF,4)}, 0 offen sc1")
    e("v_mov_b32 v212, 0x80"); e(f"buffer_store_dword v213, v212, {S(srdD,4)}, 0 offen sc1")
    e.lab(s2); e("s_mov_b64 exec, -1"); e.nop(4)
def getmode(e):
    e(f"s_lshl_b32 {S(sT0)}, {S(sXCD)}, 4"); e(f"v_mov_b32 {R(vINFO)}, {S(sT0)}"); e(f"v_mov_b32 {R(vINFO+1)}, 0x80")
    def body():
        e(f"buffer_load_dwordx2 {R(vINFO+2,2)}, {R(vINFO)}, {S(srdD,4)}, 0 offen sc1"); e(f"buffer_load_dword {R(vINFO-1)}, {R(vINFO+1)}, {S(srdD,4)}, 0 offen sc1")
        e("s_waitcnt vmcnt(0)"); e(f"v_readfirstlane_b32 {S(sD)}, {R(vINFO+2)}"); e(f"v_readfirstlane_b32 {S(sD+1)}, {R(vINFO+3)}"); e(f"v_readfirstlane_b32 {S(sTAG)}, {R(vINFO-1)}")
    def cond(lp):
        e(f"s_lshr_b32 {S(sT0)}, {S(sD+1)}, 24"); e(f"s_cmp_lt_u32 {S(sT0)}, 32"); e(f"s_cbranch_scc1 {lp}")
        e(f"s_cmp_eq_u32 {S(sTAG)}, 0"); e(f"s_cbranch_scc1 {lp}")
    spin(e,body,cond)
    e(f"s_getreg_b32 {S(sT0)}, hwreg(HW_REG_XCC_ID, 0, 3)"); e(f"s_mul_i32 {S(sT0)}, {S(sT0)}, 6")
    e(f"s_lshr_b64 {S(sD,2)}, {S(sD,2)}, {S(sT0)}"); e(f"s_and_b32 {S(sD)}, {S(sD)}, 63"); e(f"s_cmp_eq_u32 {S(sD)}, 32")
    e(f"s_cselect_b32 {S(sMODE)}, {0 if FORCE_SLOW else 1}, 0")
def prefetch(e,sr,ptr,total,nw,sw,va,dst,extra=None,off=0,only=None,nwg=32,sj=None):
    per=total//nwg//nw; lines=per//128; sj=sJ if sj is None else sj
    srd(e,sr,ptr,off,total if extra is None else 2*MB)
    e(f"s_mul_i32 {S(sT0)}, {S(sj)}, {total//nwg}"); e(f"s_mul_i32 {S(sT1)}, {S(sw)}, {per}"); e(f"s_add_u32 {S(sT0)}, {S(sT0)}, {S(sT1)}")
    if extra is not None: e(f"s_lshl_b32 {S(sT1)}, {S(sXCD)}, {extra}"); e(f"s_add_u32 {S(sT0)}, {S(sT0)}, {S(sT1)}")
    for i in range((lines+63)//64):
        if only is not None and i!=only: continue
        n=min(64,lines-64*i)
        e(f"v_min_u32 {R(va)}, {n-1}, {R(vL)}"); e(f"v_lshl_add_u32 {R(va)}, {R(va)}, 7, {S(sT0)}")
        if i: e(f"v_add_u32 {R(va)}, {8192*i}, {R(va)}")
        e.vmem(f"buffer_load_dword {R(dst)}, {R(va)}, {S(sr,4)}, 0 offen"+(' nt' if 'ntp' in DBG and NTS[sr] else ''),"pf")
def pfl(e,sr,ptr,total,terms,const,lines,va):
    srd(e,sr,ptr,0,total); e(f"s_mov_b32 {S(sT0)}, {const}")
    for sg,m in terms: e(f"s_mul_i32 {S(sT1)}, {S(sg)}, {m}"); e(f"s_add_u32 {S(sT0)}, {S(sT0)}, {S(sT1)}")
    for i in range((lines+63)//64):
        e(f"v_min_u32 {R(va)}, {min(64,lines-64*i)-1}, {R(vL)}"); e(f"v_lshl_add_u32 {R(va)}, {R(va)}, 7, {S(sT0)}")
        if i: e(f"v_add_u32 {R(va)}, {8192*i}, {R(va)}")
        e.vmem(f"buffer_load_dword v240, {R(va)}, {S(sr,4)}, 0 offen"+(' nt' if 'ntp' in DBG and NTS[sr] else ''),"pf")
def pf_w2(e,j,part):
    if part==0: pfl(e,srdR,pW2,1792*1024,[(j,448*1024),(sJ,5120)],0,40,7)
    else: pfl(e,srdR,pW2,1792*1024,[(j,448*1024),(sJ,9216)],160*1024,72,7)
def prologue(e,nwg):
    e(f"s_cmp_ge_u32 s2, {nwg}"); e("s_cbranch_scc1 "+e.endlab)
    stamp(e,0)
    e(f"s_load_dwordx16 s[36:51], s[0:1], 0"); e(f"s_load_dwordx2 s[52:53], s[0:1], 64")
    e("v_lshrrev_b32 v2, 6, v0"); e(f"v_and_b32 {R(vL)}, 63, v0")
    e(f"v_readfirstlane_b32 {S(sW)}, v2")
    e(f"s_and_b32 {S(sXCD)}, s2, 7"); e(f"s_lshr_b32 {S(sJ)}, s2, 3")
    e(f"s_mov_b32 {S(sONE)}, {ONES:#x}")
    e("s_waitcnt lgkmcnt(0)")
NTS={}
def srd(e,d,p,off,size):
    NTS[d]=(p in (pW1,pW2))
    if off: e(f"s_add_u32 {S(d)}, {S(p)}, {off:#x}"); e(f"s_addc_u32 {S(d+1)}, {S(p+1)}, 0")
    else: e(f"s_mov_b32 {S(d)}, {S(p)}"); e(f"s_mov_b32 {S(d+1)}, {S(p+1)}")
    e(f"s_mov_b32 {S(d+2)}, {size:#x}"); e(f"s_mov_b32 {S(d+3)}, 0x20000")
def dma(e,vaddr,srd_,soff,m0expr,tag,sc1=False):
    sg,c=m0expr
    if sg is None: e(f"s_mov_b32 m0, {c:#x}")
    else: e(f"s_add_u32 m0, {S(sg)}, {c:#x}")
    if soff: e(f"s_mov_b32 {S(sT3)}, {soff:#x}"); so=S(sT3)
    else: e("s_nop 0"); so="0"
    e.vmem(f"buffer_load_dwordx4 {R(vaddr)}, {S(srd_,4)}, {so} offen {'sc1 ' if sc1 else ''}{'nt ' if 'ntd' in DBG and NTS[srd_] else ''}lds",tag)
def ldfrag(e,dst,vaddr,srd_,t,tag,st):
    hi=t>>2
    if hi and (t&3==0 or st): e(f"s_mov_b32 {S(sT2)}, {hi*4096:#x}")
    so=S(sT2) if hi else "0"
    e.vmem(f"buffer_load_dwordx4 {R(dst,4)}, {R(vaddr)}, {S(srd_,4)}, {so} offen offset:{(t&3)*1024}"+' sc1'+(' nt' if 'nta' in DBG else ''),tag)
def tr_lane_base(e,dst,tmp,perm):
    a,b,c=tmp,tmp+1,tmp+2
    e(f"v_bfe_u32 {R(a)}, {R(vL)}, 2, 2")
    e(f"v_lshrrev_b32 {R(b)}, 5, {R(vL)}")
    e(f"v_lshl_add_u32 {R(dst)}, {R(b)}, 3, {R(a)}")
    e(f"v_lshlrev_b32 {R(dst)}, 7, {R(dst)}")
    e(f"v_lshrrev_b32 {R(a)}, 1, {R(a)}"); e(f"v_lshlrev_b32 {R(a)}, 2, {R(a)}")
    e(f"v_lshl_or_b32 {R(a)}, {R(b)}, 1, {R(a)}")
    if perm=="frag":
        e(f"v_bfe_u32 {R(b)}, {R(vL)}, 4, 1"); e(f"v_and_b32 {R(c)}, 1, {R(vL)}")
        e(f"v_lshl_or_b32 {R(b)}, {R(b)}, 1, {R(c)}"); e(f"v_bfe_u32 {R(c)}, {R(vL)}, 1, 1")
    else:
        e(f"v_and_b32 {R(b)}, 1, {R(vL)}"); e(f"v_bfe_u32 {R(c)}, {R(vL)}, 4, 1")
        e(f"v_lshl_or_b32 {R(b)}, {R(b)}, 1, {R(c)}"); e(f"v_bfe_u32 {R(c)}, {R(vL)}, 1, 1")
    e(f"v_xor_b32 {R(a)}, {R(a)}, {R(b)}")
    e(f"v_lshl_add_u32 {R(dst)}, {R(a)}, 4, {R(dst)}")
    e(f"v_lshl_add_u32 {R(dst)}, {R(c)}, 3, {R(dst)}")
def wdma_lane(e,dst,tmp,rowstride,odd):
    a,b=tmp,tmp+1
    e(f"v_lshrrev_b32 {R(a)}, 3, {R(vL)}")
    e(f"s_mov_b32 {S(sT0)}, {rowstride}"); e(f"v_mul_lo_u32 {R(dst)}, {R(a)}, {S(sT0)}")
    e(f"v_bfe_u32 {R(a)}, {R(vL)}, 4, 1"); e(f"v_lshlrev_b32 {R(a)}, 2, {R(a)}")
    if isinstance(odd,int):
        if odd: e(f"v_or_b32 {R(a)}, 2, {R(a)}")
    else: e(f"v_lshl_or_b32 {R(a)}, {odd}, 1, {R(a)}")
    e(f"v_and_b32 {R(b)}, 7, {R(vL)}"); e(f"v_xor_b32 {R(a)}, {R(a)}, {R(b)}")
    e(f"v_lshl_add_u32 {R(dst)}, {R(a)}, 4, {R(dst)}")
def mfma32(e,d,a,b,first): e(f"v_mfma_f32_32x32x16_bf16 {R(d,16)}, {R(a,4)}, {R(b,4)}, {'0' if first else R(d,16)}")
def mfma16(e,d,a,b,first): e(f"v_mfma_f32_16x16x32_bf16 {R(d,4)}, {R(a,4)}, {R(b,4)}, {'0' if first else R(d,4)}")
def trread(e,dst,va,off,tag):
    e.lds(f"ds_read_b64_tr_b16 {R(dst,2)}, {R(va)} offset:{off}",tag)
    e.lds(f"ds_read_b64_tr_b16 {R(dst+2,2)}, {R(va)} offset:{off+512}",tag)
def allsum_halves(e,a,t):
    e(f"v_mov_b32 {R(t)}, {R(a)}"); e.nop(2); e(f"v_permlane32_swap_b32 {R(t)}, {R(a)}"); e.nop(1); e(f"v_add_f32 {R(a)}, {R(a)}, {R(t)}")
def meanrstd(e,s_,q,t):
    e(f"v_mul_f32 {R(s_)}, 0x3b000000, {R(s_)}"); e(f"v_mul_f32 {R(q)}, 0x3b000000, {R(q)}")
    e(f"v_fma_f32 {R(q)}, -{R(s_)}, {R(s_)}, {R(q)}"); e(f"v_max_f32 {R(q)}, 0, {R(q)}")
    e(f"v_add_f32 {R(q)}, 0x3727c5ac, {R(q)}"); e(f"v_rsq_f32 {R(q)}, {R(q)}"); e.nop(1)

WO_LDS=96*1024
NPRE=int(os.environ.get('NPRE',14))
def ids64(e):
    e(f"s_lshr_b32 {S(sMB)}, {S(sJ)}, 3"); e(f"s_lshl_b32 {S(sT0)}, {S(sXCD)}, 2"); e(f"s_add_u32 {S(sMB)}, {S(sMB)}, {S(sT0)}")
    e(f"s_and_b32 {S(sNB)}, {S(sJ)}, 7"); e(f"s_and_b32 {S(sKQ)}, {S(sW)}, 3"); e(f"s_lshr_b32 {S(sMH)}, {S(sW)}, 2")
def bsrc(e,vB,tmp,KS,kq,mh,ldsbase,slab,sdst):
    wdma_lane(e,vB,tmp,1024,S(mh) if mh is not None else 0)
    e(f"s_mul_i32 {S(sT0)}, {S(kq)}, {KS*16*1024}"); e(f"s_and_b32 {S(sT1)}, {S(sJ)}, 7"); e(f"s_lshl_b32 {S(sT1)}, {S(sT1)}, 7"); e(f"s_add_u32 {S(sT0)}, {S(sT0)}, {S(sT1)}")
    e(f"s_mul_i32 {S(sdst)}, {S(kq)}, {slab}"); e(f"s_add_u32 {S(sdst)}, {S(sdst)}, {ldsbase}")
    if mh is not None:
        e(f"s_lshl_b32 {S(sT1)}, {S(mh)}, 13"); e(f"s_add_u32 {S(sT0)}, {S(sT0)}, {S(sT1)}")
        e(f"s_lshl_b32 {S(sT1)}, {S(mh)}, 10"); e(f"s_add_u32 {S(sdst)}, {S(sdst)}, {S(sT1)}")
    e(f"v_add_u32 {R(vB)}, {S(sT0)}, {R(vB)}")
def p4_preload(e,j,part):
    if part==0:
        srd(e,srdW,pW2,0,1792*1024); bsrc(e,14,9,28,j,None,0,40960,sLB)
        e("v_xor_b32 v15, 32, v14"); e("v_add_u32 v15, 0x2000, v15")
    for t in range(NPRE):
        for h in range(2): dma(e,14+h,srdW,t*16384,(sLB,t*2048+h*1024),"pre")
def phase_rs(e,L,which):
    P2=which==2
    K=512 if P2 else 1792; KS=K//64; RING=8 if P2 else 20; SLAB=RING*2048; LB=WO_LDS if P2 else 0; RB=0 if P2 else 112*1024; LA=8 if P2 else int(os.environ.get('LA',6))
    wo=L*LSTRIDE
    ids64(e)
    if P2:
        srd(e,srdA,pWS,wo+O_OFF,2*MB)
        srd(e,srdR,pX,0,2*MB)
        srd(e,srdO,pWS,wo+X1_OFF,2*MB); srd(e,srdS,pWS,wo+ST_OFF,128*1024)
    else:
        srd(e,srdA,pWS,wo+H_OFF,7*MB); srd(e,srdW,pW2,0,1792*1024); srd(e,srdR,pWS,X2H_OFF,128*1024)
        srdsel(e,srdO,pWS,X2_OFF,2*MB,pOUT,0,2*MB)
    vA,vB,vF,vRM,vT0,vT1,vRD,vRes,vAcc,vBf,vAf=12,13,4,5,6,7,8,vRES,16,48,80
    tmp=9; mt=sD+10; sb=sD+11
    e(f"s_lshl_b32 {S(mt)}, {S(sMB)}, 1"); e(f"s_add_u32 {S(mt)}, {S(mt)}, {S(sMH)}")
    e(f"s_mul_i32 {S(sT0)}, {S(mt)}, {K//16*1024}"); e(f"s_mul_i32 {S(sT1)}, {S(sKQ)}, {KS*1024}"); e(f"s_add_u32 {S(sT0)}, {S(sT0)}, {S(sT1)}")
    e(f"v_lshl_add_u32 {R(vA)}, {R(vL)}, 4, {S(sT0)}")
    if not P2: bsrc(e,vB,tmp,KS,sKQ,sMH,0,SLAB,sb)
    e(f"s_lshl_b32 {S(sT0)}, {S(mt)}, 5"); e(f"s_lshl_b32 {S(sT1)}, {S(sNB)}, 2"); e(f"s_add_u32 {S(sT1)}, {S(sT1)}, {S(sKQ)}")
    e(f"s_add_u32 {S(sT0)}, {S(sT0)}, {S(sT1)}"); e(f"s_lshl_b32 {S(sT0)}, {S(sT0)}, 10")
    e(f"v_lshl_add_u32 {R(vF)}, {R(vL)}, 4, {S(sT0)}")
    e(f"s_lshl_b32 {S(sT0)}, {S(mt)}, 15"); e(f"s_lshl_b32 {S(sT1)}, {S(sT1)}, 5"); e(f"s_add_u32 {S(sT0)}, {S(sT0)}, {S(sT1)}")
    e(f"v_and_b32 {R(tmp)}, 31, {R(vL)}"); e(f"v_lshlrev_b32 {R(tmp)}, 10, {R(tmp)}"); e(f"v_lshrrev_b32 {R(tmp+1)}, 5, {R(vL)}")
    e(f"v_lshl_add_u32 {R(tmp)}, {R(tmp+1)}, 4, {R(tmp)}"); e(f"v_add_u32 {R(vRM)}, {S(sT0)}, {R(tmp)}")
    tr_lane_base(e,vT0,tmp,"frag")
    e(f"s_mul_i32 {S(sT0)}, {S(sKQ)}, {SLAB}"); e(f"s_add_u32 {S(sT0)}, {S(sT0)}, {LB}")
    e(f"v_add_u32 {R(vT0)}, {S(sT0)}, {R(vT0)}"); e(f"v_xor_b32 {R(vT1)}, 64, {R(vT0)}")
    e(f"s_mul_i32 {S(sT0)}, {S(sMH)}, {12*2048}"); e(f"s_add_u32 {S(sT0)}, {S(sT0)}, {RB}"); e(f"v_lshl_add_u32 {R(vRD)}, {R(vL)}, 4, {S(sT0)}")
    def rd(t,nt): trread(e,vBf+(t&1)*8+nt*4,vT0+nt,(t%RING)*2048,("f",t,nt))
    if P2:
        with ifL(e,0): e(f"buffer_load_dwordx4 {R(vRes,4)}, {R(vRM)}, {S(srdR,4)}, 0 offen")
    if not P2:
        for u in range(NPRE,RING): dma(e,vB,srdW,u*16384,(sb,u*2048),"B1")
    if P2: e(f"s_and_b32 {S(sD+2)}, {S(sJ)}, 24"); waitflags(e,L*4,sD+2,8)
    else: e(f"s_lshr_b32 {S(sD+2)}, {S(sJ)}, 4"); e(f"s_mul_i32 {S(sD+2)}, {S(sD+2)}, 14"); waitflags(e,L*4+2,sD+2,14)
    stamp(e,9)
    for t in range(LA): ldfrag(e,vAf+4*t,vA,srdA,t,("A",t),False)
    if P2: pfl(e,srdW,pW1,512*3584,[(sJ,24576),(sW,3072)],MB,24,tmp)
    rd(0,0); rd(0,1)
    for t in range(KS):
        if t+LA<KS: ldfrag(e,vAf+4*(t+LA),vA,srdA,t+LA,("A",t+LA),False)
        if not P2 and t==9:
            e.bar()
        if not P2 and 9<=t<17: u=RING+t-9; dma(e,vB,srdW,u*16384,(sb,(u%RING)*2048),"B")
        if t+1==RING and t+1<KS: e.wvm("B"); e.bar()
        e.wvm(("A",t))
        if t%4==0: stamp(e,1+t//4)
        for nt in range(2):
            if t+1<KS: rd(t+1,nt)
            e.wlg(("f",t,nt)); mfma32(e,vAcc+16*nt,vBf+(t&1)*8+nt*4,vAf+4*t,t==0)
        if not P2 and t==KS-LA:
            with ifL(e,0): pfl(e,srdS,pQKV,512*3072,[(sJ,18432),(sW,2304)],0,18,9); p1_setup(e,1)
    if not P2: e.bar()
    stamp(e,10); e.nop(10)
    own=vBf
    done=e.newlab("rdone"); labs=[e.newlab("rv") for _ in range(4)]
    for q in range(1,4): e(f"s_cmp_eq_u32 {S(sKQ)}, {q}"); e(f"s_cbranch_scc1 {labs[q]}")
    for kq in range(4):
        e.lab(labs[kq])
        for q in range(4):
            if q==kq: continue
            for j in range(2): e(f"ds_write_b128 {R(vRD)}, {R(vAcc+8*q+4*j,4)} offset:{(q*3+((kq-q)&3)-1)*2048+j*1024}")
        for j in range(8): e(f"v_mov_b32 {R(own+j)}, {R(vAcc+8*kq+j)}")
        if kq<3: e(f"s_branch {done}")
    e.lab(done)
    e(f"s_mul_i32 {S(sT0)}, {S(sKQ)}, {3*2048}"); e(f"v_add_u32 {R(vRD)}, {S(sT0)}, {R(vRD)}")
    if not P2:
        with ifL(e,0):
            for s_ in range(3): p1_issue(e,1,s_,range(3),[])
    e.wlg0(); e.bar()
    for i in range(1,4):
        for j in range(2): e.lds(f"ds_read_b128 {R(own+8*i+4*j,4)}, {R(vRD)} offset:{(i-1)*2048+j*1024}",("p",i))
    e.wvm("res")
    rf=vAcc
    for j in range(4):
        e(f"v_lshlrev_b32 {R(rf+2*j)}, 16, {R(vRes+j)}"); e(f"v_and_b32 {R(rf+2*j+1)}, 0xffff0000, {R(vRes+j)}")
    for j in range(4): e(f"v_pk_add_f32 {R(own+2*j,2)}, {R(own+2*j,2)}, {R(rf+2*j,2)}")
    for i in range(1,4):
        e.wlg(("p",i))
        for j in range(4): e(f"v_pk_add_f32 {R(own+2*j,2)}, {R(own+2*j,2)}, {R(own+8*i+2*j,2)}")
    for j in range(4): e(f"v_cvt_pk_bf16_f32 {R(vRes+j)}, {R(own+2*j)}, {R(own+2*j+1)}")
    ins=f"buffer_store_dwordx4 {R(vRes,4)}, {R(vF if P2 else vRM)}, {S(srdO,4)}, 0 offen"
    gstore(e,ins,"st")
    if not P2:
        if PROF:
            with ifL(e,1): stamp_flush(e,3)
        e(f"s_cmp_lg_u32 {S(sL)}, 0"); e(f"s_cbranch_scc1 {e.endlab}")
        sk=e.newlab("nohalo"); e(f"s_and_b32 {S(sT0)}, {S(mt)}, 7"); e(f"s_cmp_lg_u32 {S(sT0)}, 7"); e(f"s_cbranch_scc1 {sk}")
        e(f"s_lshl_b32 {S(sT0)}, {S(mt)}, 15"); e(f"s_lshl_b32 {S(sT1)}, {S(sXCD)}, 14"); e(f"s_sub_u32 {S(sT0)}, {S(sT0)}, {S(sT1)}"); e(f"s_add_u32 {S(sT0)}, {S(sT0)}, 0x4000")
        e(f"v_subrev_u32 {R(tmp)}, {S(sT0)}, {R(vRM)}"); e("s_mov_b32 exec_lo, 0xffff0000"); e("s_mov_b32 exec_hi, 0xffff0000")
        e(f"buffer_store_dwordx4 {R(vRes,4)}, {R(tmp)}, {S(srdR,4)}, 0 offen sc1"); e("s_mov_b64 exec, -1"); e.lab(sk)
        def xflag():
            sk=e.newlab("noxf"); e(f"s_cmp_lt_u32 {S(sJ)}, 24"); e(f"s_cbranch_scc1 {sk}")
            e(f"s_mov_b32 {S(sT2)}, {7*1024}"); e(f"buffer_store_dword v3, v2, {S(srdF,4)}, {S(sT2)} offen sc1"); e.lab(sk)
        publish(e,3,xflag)
    if P2:
        a,b=rf,rf+1
        e(f"v_dot2_f32_bf16 {R(a)}, {R(vRes)}, {S(sONE)}, 0"); e(f"v_dot2_f32_bf16 {R(b)}, {R(vRes)}, {R(vRes)}, 0")
        for j in range(1,4):
            e(f"v_dot2_f32_bf16 {R(a)}, {R(vRes+j)}, {S(sONE)}, {R(a)}"); e(f"v_dot2_f32_bf16 {R(b)}, {R(vRes+j)}, {R(vRes+j)}, {R(b)}")
        e(f"s_lshl_b32 {S(sT0)}, {S(sW)}, 8"); e(f"s_add_u32 {S(sT0)}, {S(sT0)}, 0xc000")
        e(f"v_lshl_add_u32 {R(tmp)}, {R(vL)}, 2, {S(sT0)}"); e.nop(2)
        e(f"v_permlane32_swap_b32 {R(a)}, {R(b)}"); e.nop(1); e(f"v_add_f32 {R(a)}, {R(a)}, {R(b)}")
        e(f"ds_write_b32 {R(tmp)}, {R(a)}"); e.wlg0(); e.bar()
        sk=e.newlab("nost"); e(f"s_cmp_lg_u32 {S(sKQ)}, 0"); e(f"s_cbranch_scc1 {sk}")
        for i in range(1,4): e(f"ds_read_b32 {R(rf+1+i)}, {R(tmp)} offset:{i*256}")
        e(f"s_lshl_b32 {S(sT0)}, {S(mt)}, 3"); e(f"s_add_u32 {S(sT0)}, {S(sT0)}, {S(sNB)}"); e(f"s_lshl_b32 {S(sT0)}, {S(sT0)}, 8")
        e(f"v_lshl_add_u32 {R(tmp)}, {R(vL)}, 2, {S(sT0)}"); e.wlg0()
        e(f"v_add_f32 {R(a)}, {R(a)}, {R(rf+2)}"); e(f"v_add_f32 {R(rf+3)}, {R(rf+3)}, {R(rf+4)}"); e(f"v_add_f32 {R(a)}, {R(a)}, {R(rf+3)}")
        gstore(e,f"buffer_store_dword {R(a)}, {R(tmp)}, {S(srdS,4)}, 0 offen","st")
        e.lab(sk)
        publish(e,L*4+1)

def phase3(e,L):
    wo=L*LSTRIDE; LA=8
    e(f"s_cmp_ge_u32 {S(sJ)}, 14"); e(f"s_cselect_b32 {S(sT0)}, 1, 0"); e(f"s_cselect_b32 {S(sT1)}, 14, 0")
    e(f"s_sub_u32 {S(sNB)}, {S(sJ)}, {S(sT1)}"); e(f"s_lshl_b32 {S(sMB)}, {S(sXCD)}, 1"); e(f"s_add_u32 {S(sMB)}, {S(sMB)}, {S(sT0)}")
    srd(e,srdA,pWS,wo+X1_OFF,2*MB); srd(e,srdW,pW1,0,512*3584); srd(e,srdO,pWS,wo+H_OFF,7*MB); srd(e,srdS,pWS,wo+ST_OFF,128*1024)
    CS=131072
    ld=e.newlab("p3ld"); fin=e.newlab("p3fin"); skip=e.newlab("p3skip"); sk2=e.newlab("p3end")
    j=sD; e(f"s_sub_u32 {S(j)}, {S(sW)}, 4")
    e(f"s_cmp_ge_u32 {S(sJ)}, 28"); e(f"s_cbranch_scc1 {skip}")
    tmp=9
    e(f"s_cmp_ge_u32 {S(sW)}, 4"); e(f"s_cbranch_scc1 {ld}")
    vA,vT,vH,vM,vS,vSt,vAcc,vBf,vAf=12,4,13,14,2,16,24,88,120
    mt=sD
    e(f"s_lshl_b32 {S(mt)}, {S(sMB)}, 2"); e(f"s_add_u32 {S(mt)}, {S(mt)}, {S(sW)}")
    e(f"s_lshl_b32 {S(sT0)}, {S(mt)}, 15"); e(f"v_lshl_add_u32 {R(vA)}, {R(vL)}, 4, {S(sT0)}")
    e(f"s_lshl_b32 {S(sT0)}, {S(mt)}, 11"); e(f"v_lshl_add_u32 {R(vH)}, {R(vL)}, 2, {S(sT0)}")
    tr_lane_base(e,vT,tmp,"frag")
    e(f"v_xor_b32 {R(vT+1)}, 64, {R(vT)}"); e(f"v_add_u32 {R(vT+2)}, 0x10000, {R(vT)}"); e(f"v_add_u32 {R(vT+3)}, 0x10000, {R(vT+1)}")
    e(f"s_and_b32 {S(sD+2)}, {S(sMB)}, 1"); e(f"s_lshl_b32 {S(sD+2)}, {S(sD+2)}, 4"); waitflags(e,L*4+1,sD+2,16); stamp(e,9)
    for t in range(LA): ldfrag(e,vAf+4*t,vA,srdA,t,("A",t),False)
    def rd(t,nt): trread(e,vBf+(t&1)*16+nt*4,vT+nt,t*2048,("f",t,nt))
    e.bar()
    for nt in range(4): rd(0,nt)
    for t in range(32):
        for u in (LA+2*t,LA+2*t+1):
            if u<32: ldfrag(e,vAf+4*u,vA,srdA,u,("A",u),False)
        if t==12:
            for i in range(8): e.vmem(f"buffer_load_dword {R(vSt+i)}, {R(vH)}, {S(srdS,4)}, 0 offen offset:{i*256} sc1","st")
            e(f"s_mul_i32 {S(sT0)}, {S(mt)}, {112*1024}"); e(f"s_lshl_b32 {S(sT1)}, {S(sNB)}, 13"); e(f"s_add_u32 {S(sT0)}, {S(sT0)}, {S(sT1)}")
            e(f"v_lshl_add_u32 {R(vH)}, {R(vL)}, 4, {S(sT0)}")
        if (t+1)%4==0 and t+1<=16: e.bar()
        e.wvm(("A",t))
        if t%4==0: stamp(e,1+t//4)
        for nt in range(4):
            if t+1<32: rd(t+1,nt)
            e.wlg(("f",t,nt)); mfma32(e,vAcc+16*nt,vBf+(t&1)*16+nt*4,vAf+4*t,t==0)
        if t==30:
            e.wvm("st")
            for i in (4,2,1):
                for jj in range(i): e(f"v_add_f32 {R(vSt+jj)}, {R(vSt+jj)}, {R(vSt+jj+i)}")
            e(f"v_mov_b32 {R(vSt+1)}, {R(vSt)}"); e.nop(2); e(f"v_permlane32_swap_b32 {R(vSt)}, {R(vSt+1)}"); e.nop(1)
            meanrstd(e,vSt,vSt+1,tmp)
            e(f"v_mul_f32 {R(vM)}, 0xbfb8aa3b, {R(vSt+1)}"); e(f"v_mul_f32 {R(vM+1)}, {R(vM)}, {R(vSt)}"); e(f"v_sub_f32 {R(vM+1)}, 0, {R(vM+1)}")
            e(f"v_mov_b32 {R(vS)}, 0xbfb8aa3b")
    e(f"v_lshrrev_b32 {R(tmp)}, 5, {R(vL)}"); e(f"v_lshlrev_b32 {R(tmp)}, 4, {R(tmp)}"); e(f"v_add_u32 {R(tmp)}, {CS:#x}, {R(tmp)}")
    e.bar(); stamp(e,10)
    vC=vAf
    for nt in range(4):
        for g in range(4): e.lds(f"ds_read_b128 {R(vC+16*nt+4*g,4)}, {R(tmp)} offset:{nt*128+g*32}",("c",nt))
    for jj in range(32): e(f"v_pk_mul_f32 {R(vAcc+2*jj,2)}, {R(vAcc+2*jj,2)}, {R(vM,2)} op_sel_hi:[1,0]") if jj>=24 or True else None
    e.wlg0(); e.bar()
    U=vBf; PK=vAf+64
    for nt in range(4):
        for hh in range(2):
            b=vAcc+16*nt+8*hh; c=vC+16*nt+8*hh; o=PK+(nt*2+hh)*4
            for jj in range(4): e(f"v_pk_fma_f32 {R(b+2*jj,2)}, {R(c+2*jj,2)}, {R(vM,2)}, {R(b+2*jj,2)} op_sel:[0,1,0] op_sel_hi:[1,1,1]")
            for jj in range(8): e(f"v_exp_f32 {R(U+jj)}, {R(b+jj)}")
            e.nop(1)
            for jj in range(4): e(f"v_pk_fma_f32 {R(U+2*jj,2)}, {R(U+2*jj,2)}, {R(vS,2)}, {R(vS,2)} op_sel_hi:[1,0,0]")
            for jj in range(8): e(f"v_rcp_f32 {R(U+jj)}, {R(U+jj)}")
            e.nop(1)
            for jj in range(4): e(f"v_pk_mul_f32 {R(b+2*jj,2)}, {R(b+2*jj,2)}, {R(U+2*jj,2)}")
            for jj in range(4): e(f"v_cvt_pk_bf16_f32 {R(o+jj)}, {R(b+2*jj)}, {R(b+2*jj+1)}")
            t=nt*2+hh
            if t==4: e(f"s_movk_i32 {S(sT2)}, 0x1000")
            gstore(e,f"buffer_store_dwordx4 {R(o,4)}, {R(vH)}, {S(srdO,4)}, {S(sT2) if t>=4 else '0'} offen offset:{(t&3)*1024}","st")
    e(f"s_branch {fin}")
    e.lab(ld); e.reset(); e('s_setprio 2')
    vB,vT,vCs,vBf=2,4,5,16
    wdma_lane(e,vB,tmp,3584,0)
    e(f"s_and_b32 {S(sD+1)}, {S(j)}, 1"); e(f"s_lshr_b32 {S(sD+2)}, {S(j)}, 1")
    e(f"s_mul_i32 {S(sT0)}, {S(sD+2)}, {32*3584}"); e(f"s_lshl_b32 {S(sT1)}, {S(sD+1)}, 7"); e(f"s_add_u32 {S(sT0)}, {S(sT0)}, {S(sT1)}")
    e(f"s_lshl_b32 {S(sT1)}, {S(sNB)}, 8"); e(f"s_add_u32 {S(sT0)}, {S(sT0)}, {S(sT1)}")
    e(f"v_add_u32 {R(vB)}, {S(sT0)}, {R(vB)}"); e(f"v_xor_b32 {R(vB+1)}, 32, {R(vB)}")
    e(f"s_lshl_b32 {S(sLB)}, {S(sD+1)}, 16"); e(f"s_lshl_b32 {S(sT1)}, {S(sD+2)}, 12"); e(f"s_add_u32 {S(sLB)}, {S(sLB)}, {S(sT1)}")
    def wch(ch):
        for i in range(4): dma(e,vB+(i&1),srdW,(ch*64+8*i)*3584,(sLB,ch*8192+i*1024),("B",ch))
    for ch in range(3): wch(ch)
    tr_lane_base(e,vT,tmp,"frag")
    e(f"s_lshl_b32 {S(sT0)}, {S(sD+1)}, 6"); e(f"v_xor_b32 {R(vT)}, {S(sT0)}, {R(vT)}")
    e(f"s_lshl_b32 {S(sT0)}, {S(sD+2)}, 16"); e(f"v_add_u32 {R(vT)}, {S(sT0)}, {R(vT)}")
    e(f"v_mov_b32 {R(vCs)}, 0"); e(f"v_mov_b32 {R(vCs+1)}, 0")
    e.bar()
    for ch in range(8):
        if ch<=4: e.wvm(("B",ch if ch<4 else 7)); e.bar()
        if ch==0: stamp(e,9)
        if ch==4: stamp(e,1)
        for t in range(4): trread(e,vBf+4*t,vT,(ch*4+t)*2048,("f",t))
        for c2 in {0:(3,4),1:(5,6),2:(7,)}.get(ch,()): wch(c2)
        if ch==3:
            e(f"s_lshl_b32 {S(sT0)}, {S(sMB)}, 2"); e(f"s_add_u32 {S(sT0)}, {S(sT0)}, {S(j)}"); e(f"s_mul_i32 {S(sT0)}, {S(sT0)}, {112*1024}")
            e(f"s_lshl_b32 {S(sT1)}, {S(sNB)}, 13"); e(f"s_add_u32 {S(sT0)}, {S(sT0)}, {S(sT1)}"); e(f"v_lshl_add_u32 v7, {R(vL)}, 7, {S(sT0)}")
            e.vmem(f"buffer_load_dword v242, v7, {S(srdO,4)}, 0 offen sc1","pf")
        if ch==4:
            pf_w2(e,j,0); pf_w2(e,j,1)
            with ifL(e,0): x2touch(e,j,4,7)
        for t in range(4):
            e.wlg(("f",t))
            for i in range(4): e(f"v_dot2_f32_bf16 {R(vCs+(i&1))}, {R(vBf+4*t+i)}, {S(sONE)}, {R(vCs+(i&1))}")
    e(f"s_lshl_b32 {S(sT0)}, {S(j)}, 7"); e(f"s_add_u32 {S(sT0)}, {S(sT0)}, {CS:#x}")
    e(f"v_and_b32 {R(tmp)}, 31, {R(vL)}"); e(f"v_lshl_add_u32 {R(tmp)}, {R(tmp)}, 2, {S(sT0)}"); e.nop(2)
    e(f"v_add_f32 {R(vCs)}, {R(vCs)}, {R(vCs+1)}")
    allsum_halves(e,vCs,vCs+1)
    e(f"ds_write_b32 {R(tmp)}, {R(vCs)}")
    stamp(e,3)
    if 'w4' in DBG: e.wvm0()
    stamp(e,4); e.wlg0(); e('s_setprio 0'); e.bar(); e.bar(); stamp(e,5)
    p4_preload(e,j,0); e.bar(); e.wvm0()
    e(f"s_branch {sk2}")
    e.lab(fin); publish(e,L*4+2); e(f"s_branch {sk2}")
    e.lab(skip)
    sk3=e.newlab("p3np"); e(f"s_cmp_lt_u32 {S(sW)}, 4"); e(f"s_cbranch_scc1 {sk3}"); pf_w2(e,j,0); pf_w2(e,j,1)
    with ifL(e,0): x2touch(e,j,4,7)
    p4_preload(e,j,0); e.lab(sk3)
    e.wvm0(); e.bar(); e.lab(sk2)

STG=34816; WOF=10240; CS1=4*STG; ST1=CS1+1024; QB,KB,VB=0,9216,20736
vW,vX,vb=200,206,209
dW,dX=sD,sD+6
def wslots(e,sw,k0):
    for a in range(3):
        e(f"s_mul_i32 {S(sT0)}, {S(sw)}, 3"); e(f"s_add_u32 {S(sT0)}, {S(sT0)}, {a}")
        e(f"s_lshl_b32 {S(dW+k0+a)}, {S(sT0)}, 10"); e(f"s_add_u32 {S(dW+k0+a)}, {S(dW+k0+a)}, {WOF}")
        e(f"s_and_b32 {S(sT1)}, {S(sT0)}, 1"); e(f"s_lshl_b32 {S(sT1)}, {S(sT1)}, 5"); e(f"v_xor_b32 {R(vW+k0+a)}, {S(sT1)}, {R(vb)}")
        e(f"s_and_b32 {S(sT1)}, {S(sT0)}, 7"); e(f"s_mul_i32 {S(sT1)}, {S(sT1)}, {8*3072}")
        e(f"s_lshr_b32 {S(sT0)}, {S(sT0)}, 3"); e(f"s_lshl_b32 {S(sT0)}, {S(sT0)}, 10"); e(f"s_add_u32 {S(sT0)}, {S(sT0)}, {S(sT1)}")
        e(f"v_add_u32 {R(vW+k0+a)}, {S(sT0)}, {R(vW+k0+a)}")
def p1_setup(e,L):
    tmp=9
    srd(e,srdW,pQKV,0,512*3072)
    wdma_lane(e,vb,tmp,3072,0)
    e(f"s_lshl_b32 {S(sT0)}, {S(sNB)}, 7"); e(f"v_add_u32 {R(vb)}, {S(sT0)}, {R(vb)}")
    e(f"v_lshrrev_b32 {R(tmp)}, 3, {R(vL)}"); e(f"v_lshrrev_b32 {R(tmp+1)}, 4, {R(vL)}"); e(f"v_and_b32 {R(tmp+2)}, 7, {R(vL)}")
    e(f"v_xor_b32 {R(tmp+1)}, {R(tmp+1)}, {R(tmp+2)}"); e(f"v_lshlrev_b32 {R(tmp+1)}, 4, {R(tmp+1)}")
    e(f"v_lshl_add_u32 {R(vb+1)}, {R(tmp)}, 10, {R(tmp+1)}")
    wslots(e,sW,0)
def p1_issue(e,L,s,ws,xs):
    b=(s%4)*STG
    for k in xs: dma(e,vX+k,srdA,s*128,(dX+k,b),("S",s),True)
    for k in ws: dma(e,vW+k,srdW,s*64*3072,(dW+k,b),("S",s))
def p1_trickle(e,L,s,j):
    wo=L*LSTRIDE; va=211
    if s==5 and "nopt" not in DBG:
        srd(e,srdS,pWS,wo,16*MB)
        e(f"s_lshl_b32 {S(sT0)}, {S(sMB)}, 16"); e(f"s_lshl_b32 {S(sT1)}, {S(sNB)}, 12"); e(f"s_add_u32 {S(sT0)}, {S(sT0)}, {S(sT1)}")
        e(f"s_and_b32 {S(sT1)}, {S(j)}, 1"); e(f"s_lshl_b32 {S(sT1)}, {S(sT1)}, 15"); e(f"s_add_u32 {S(sT0)}, {S(sT0)}, {S(sT1)}")
        e(f"s_lshr_b32 {S(sT1)}, {S(j)}, 1"); e(f"s_lshl_b32 {S(sT1)}, {S(sT1)}, 21"); e(f"s_add_u32 {S(sT0)}, {S(sT0)}, {S(sT1)}")
        e(f"v_and_b32 {R(va)}, 31, {R(vL)}"); e(f"v_lshl_add_u32 {R(va)}, {R(va)}, 7, {S(sT0)}")
        e.vmem(f"buffer_load_dword v242, {R(va)}, {S(srdS,4)}, 0 offen sc1","pf")
        e(f"s_lshl_b32 {S(sT0)}, {S(sMB)}, 12"); e(f"s_lshl_b32 {S(sT1)}, {S(sNB)}, 8"); e(f"s_add_u32 {S(sT0)}, {S(sT0)}, {S(sT1)}"); e(f"s_add_u32 {S(sT0)}, {S(sT0)}, {ST_OFF}")
        e(f"v_and_b32 {R(va)}, 1, {R(vL)}"); e(f"v_lshl_add_u32 {R(va)}, {R(va)}, 7, {S(sT0)}"); e(f"v_bfe_u32 {R(va+1)}, {R(vL)}, 1, 1"); e(f"v_lshl_add_u32 {R(va)}, {R(va+1)}, 11, {R(va)}")
        e.vmem(f"buffer_load_dword v242, {R(va)}, {S(srdS,4)}, 0 offen sc1","pf")
        if True:
            e(f"s_lshl_b32 {S(sT0)}, {S(sXCD)}, 7"); e(f"v_and_b32 {R(va)}, 7, {R(vL)}"); e(f"v_lshl_add_u32 {R(va)}, {R(va)}, 10, {S(sT0)}")
            e.vmem(f"buffer_load_dword v242, {R(va)}, {S(srdF,4)}, 0 offen sc1","pf")
    if s==5: prefetch(e,srdS,pWO,512*1024,4,j,va,240)
    if s==6: pfl(e,srdS,pW1,512*3584,[(sJ,32768),(j,8192)],0,64,va)
def x2touch(e,sw,nw,va):
    e(f"s_lshr_b32 {S(sT0)}, {S(sJ)}, 3"); e(f"s_lshl_b32 {S(sT1)}, {S(sXCD)}, 2"); e(f"s_add_u32 {S(sT0)}, {S(sT0)}, {S(sT1)}"); e(f"s_lshl_b32 {S(sT0)}, {S(sT0)}, 16")
    e(f"s_mul_i32 {S(sT1)}, {S(sw)}, {65536//nw}"); e(f"s_add_u32 {S(sT0)}, {S(sT0)}, {S(sT1)}")
    e(f"s_and_b32 {S(sT1)}, {S(sJ)}, 7"); e(f"s_lshl_b32 {S(sT1)}, {S(sT1)}, 7"); e(f"s_add_u32 {S(sT0)}, {S(sT0)}, {S(sT1)}")
    srd(e,srdR,pWS,X2_OFF,2*MB)
    e(f"v_and_b32 {R(va)}, {64//nw-1}, {R(vL)}"); e(f"v_lshl_add_u32 {R(va)}, {R(va)}, 10, {S(sT0)}")
    e.vmem(f"buffer_load_dword v242, {R(va)}, {S(srdR,4)}, 0 offen sc1","pf")
def phase1(e,L):
    wo=L*LSTRIDE
    ids64(e)
    srdsel(e,srdA,pX,0,2*MB,pWS,X2_OFF,4*MB)
    srd(e,srdO,pWS,wo+O_OFF,2*MB)
    tmp=9
    lab_h,lab_l,lab_att=e.newlab("p1h"),e.newlab("p1l"),e.newlab("p1att")
    issue=lambda s,ws,xs: p1_issue(e,L,s,ws,xs)
    def first3(xs):
        e.alt=[]
        for s in range(3):
            if s:
                with ifL(e,0): e.only0=True; issue(s,range(3),[]); e.only0=False
            issue(s,[],xs)
    def xslot(si,k):
        e(f"s_lshl_b32 {S(dX+k)}, {S(si)}, 10")
        e(f"s_and_b32 {S(sT1)}, {S(si)}, 1"); e(f"s_lshl_b32 {S(sT1)}, {S(sT1)}, 6"); e(f"v_xor_b32 {R(vX+k)}, {S(sT1)}, {R(vb+1)}")
        e(f"s_lshl_b32 {S(sT0)}, {S(sMB)}, 16"); e(f"s_lshl_b32 {S(sT1)}, {S(si)}, 13"); e(f"s_add_u32 {S(sT0)}, {S(sT0)}, {S(sT1)}")
        e(f"s_sub_u32 {S(sT0)}, {S(sT0)}, 0x4000")
        if True:
            e(f"s_lshl_b32 {S(sT2)}, {S(sXCD)}, 14"); e(f"s_add_u32 {S(sT2)}, {S(sT2)}, {S(sT1)}"); e(f"s_add_u32 {S(sT2)}, {S(sT2)}, {X2H_OFF-X2_OFF-0x4000}")
            e(f"s_cmp_lt_u32 {S(si)}, 2"); e(f"s_cselect_b32 {S(sT1)}, {S(sD+9)}, 0"); e(f"s_cmp_lg_u32 {S(sT1)}, 0"); e(f"s_cselect_b32 {S(sT0)}, {S(sT2)}, {S(sT0)}")
        e(f"v_add_u32 {R(vX+k)}, {S(sT0)}, {R(vX+k)}")
    def bump(regs,s):
        d=STG if s%4!=3 else -3*STG
        for r in regs: e(f"v_add_u32 {R(r)}, {d&0xffffffff:#x}, {R(r)}")
    def xaddr(dst,n,step,rowbase,w16):
        if w16: e(f"v_and_b32 {R(tmp)}, 15, {R(vL)}"); e(f"v_lshrrev_b32 {R(tmp+1)}, 4, {R(vL)}")
        else: e(f"v_and_b32 {R(tmp)}, 31, {R(vL)}"); e(f"v_lshrrev_b32 {R(tmp+1)}, 5, {R(vL)}")
        if rowbase is not None: e(f"v_add_u32 {R(tmp)}, {rowbase}, {R(tmp)}")
        e(f"v_bfe_u32 {R(tmp+2)}, {R(tmp)}, 1, 3"); e(f"v_xor_b32 {R(tmp+1)}, {R(tmp+1)}, {R(tmp+2)}")
        e(f"v_lshlrev_b32 {R(tmp+1)}, 4, {R(tmp+1)}"); e(f"v_lshl_add_u32 {R(dst)}, {R(tmp)}, 7, {R(tmp+1)}")
        for i in range(1,n): e(f"v_xor_b32 {R(dst+i)}, {i*step}, {R(dst)}")
    if True:
        e(f"s_cmp_lt_u32 {S(sJ)}, 8"); e(f"s_cselect_b32 {S(sD+9)}, {S(sXCD)}, 0"); e(f"s_mul_i32 {S(sD+9)}, {S(sD+9)}, {S(sL)}")
        e(f"s_and_b32 {S(sD+12)}, {S(sJ)}, 24"); e(f"s_max_u32 {S(sT0)}, {S(sD+12)}, 8"); e(f"s_sub_u32 {S(sT0)}, {S(sT0)}, 8"); e(f"s_lshl_b32 {S(sT0)}, {S(sT0)}, 2")
        e(f"s_lshl_b32 {S(sT1)}, {S(sXCD)}, 7"); e(f"s_add_u32 {S(sT0)}, {S(sT0)}, {S(sT1)}"); e(f"s_add_u32 {S(sT0)}, {S(sT0)}, {3*1024}")
        e(f"s_add_u32 {S(sT1)}, {S(sT1)}, {7*1024-128+96}"); e(f"s_cmp_lg_u32 {S(sD+9)}, 0"); e(f"s_cselect_b32 {S(sD+13)}, {S(sT1)}, {S(sT0)}")
    xslot(sW,0)
    with ifL(e,1): waitflags(e,3,sD+12,8,sD+13)
    e(f"s_cmp_ge_u32 {S(sW)}, 4"); e(f"s_cbranch_scc1 {lab_l}")
    first3([0])
    q0=list(e.vm); q1=list(e.alt)
    e(f"s_cmp_eq_u32 {S(sW)}, 3"); e(f"s_cbranch_scc1 {lab_h}")
    vXa,vTa,vAcc,vF=2,6,32,96
    xaddr(vXa,4,32,16,False)
    tr_lane_base(e,vTa,tmp,"head")
    pA,nA,pB,nB=sD+10,sD+11,sD+12,sD+13
    e(f"s_min_u32 {S(pA)}, {S(sW)}, 1"); e(f"s_lshr_b32 {S(nA)}, {S(sW)}, 1"); e(f"s_lshl_b32 {S(pB)}, {S(pA)}, 1")
    e(f"s_and_b32 {S(nB)}, {S(sW)}, 1"); e(f"s_xor_b32 {S(nB)}, {S(nB)}, 1")
    for r,p,n in ((vTa+1,pB,nB),(vTa,pA,nA)):
        e(f"s_lshl_b32 {S(sT0)}, {S(n)}, 6"); e(f"v_xor_b32 {R(r)}, {S(sT0)}, {R(vTa)}")
        e(f"s_lshl_b32 {S(sT0)}, {S(p)}, 13"); e(f"s_add_u32 {S(sT0)}, {S(sT0)}, {WOF}"); e(f"v_add_u32 {R(r)}, {S(sT0)}, {R(r)}")
    def rd(t,p):
        b=vF+(t&1)*16; ks=t&3
        if p==0: trread(e,b+8,vTa,ks*2048,("a",t))
        if p==1: e.lds(f"ds_read_b128 {R(b,4)}, {R(vXa+ks)}",("a",t)); e.lds(f"ds_read_b128 {R(b+4,4)}, {R(vXa+ks)} offset:4096",("b",t))
        if p==2: trread(e,b+12,vTa+1,ks*2048,("c",t))
    e.wvm(("S",0)); e.bar(); stamp(e,1)
    for p in range(3): rd(0,p)
    for t in range(32):
        nx=t+1<32
        if nx and (t+1)%4==0:
            s=(t+1)//4
            e.wvm(("S",s)); (e.wlg0() if s<=4 else None); bump(range(vXa,vXa+6),s-1); (e.bar() if s<7 else None); stamp(e,1+s)
        b=vF+(t&1)*16
        if nx: rd(t+1,0)
        e.wlg(("a",t)); mfma32(e,vAcc,b+8,b,t==0)
        if nx: rd(t+1,1)
        e.wlg(("b",t)); mfma32(e,vAcc+16,b+8,b+4,t==0)
        if nx: rd(t+1,2)
        e.wlg(("c",t)); mfma32(e,vAcc+32,b+12,b,t==0); mfma32(e,vAcc+48,b+12,b+4,t==0)
    vC,vSt,vWA,vWB,vP=128,160,2,3,168
    e(f"v_lshrrev_b32 {R(tmp)}, 5, {R(vL)}"); e(f"v_and_b32 {R(tmp+1)}, 31, {R(vL)}")
    for r,p,n in ((4,pA,nA),(5,pB,nB)):
        e(f"s_lshl_b32 {S(sT0)}, {S(p)}, 8"); e(f"s_lshl_b32 {S(sT1)}, {S(n)}, 7"); e(f"s_add_u32 {S(sT0)}, {S(sT0)}, {S(sT1)}")
        e(f"s_add_u32 {S(sT0)}, {S(sT0)}, {CS1}"); e(f"v_lshl_add_u32 {R(r)}, {R(tmp)}, 6, {S(sT0)}")
    e(f"v_lshlrev_b32 {R(6)}, 3, {R(tmp+1)}"); e(f"v_add_u32 {R(6)}, {ST1+128:#x}, {R(6)}")
    e(f"v_mul_u32_u24 {R(vWA)}, 144, {R(tmp+1)}"); e(f"v_lshl_add_u32 {R(vWA)}, {R(tmp)}, 5, {R(vWA)}")
    e(f"v_mul_u32_u24 {R(vWB)}, 272, {R(tmp+1)}"); e(f"v_lshl_add_u32 {R(vWB)}, {R(tmp)}, 6, {R(vWB)}")
    e(f"s_mul_i32 {S(sT0)}, {S(pA)}, {KB+16*144}"); e(f"s_lshl_b32 {S(sT1)}, {S(nA)}, 6"); e(f"s_add_u32 {S(sT0)}, {S(sT0)}, {S(sT1)}")
    e(f"v_add_u32 {R(vWA)}, {S(sT0)}, {R(vWA)}")
    e(f"s_lshl_b32 {S(sT1)}, {S(nB)}, 7"); e(f"s_add_u32 {S(sT1)}, {S(sT1)}, {VB+16*272}"); e(f"v_add_u32 {R(vWB)}, {S(sT1)}, {R(vWB)}")
    e.bar(); stamp(e,9)
    for m in range(2): e.lds(f"ds_read_b64 {R(vSt+2*m,2)}, {R(6)} offset:{m*256}","st")
    for T in range(2):
        for g in range(4): e.lds(f"ds_read_b128 {R(vC+16*T+4*g,4)}, {R(4+T)} offset:{g*16}",("c",T))
    def corr(T,m):
        b=vAcc+32*T+16*m
        for j in range(8): e(f"v_pk_fma_f32 {R(b+2*j,2)}, {R(vC+16*T+2*j,2)}, {R(vSt+2*m,2)}, {R(b+2*j,2)} op_sel_hi:[1,0,1]")
        for j in range(8): e(f"v_pk_mul_f32 {R(b+2*j,2)}, {R(b+2*j,2)}, {R(vSt+2*m,2)} op_sel:[0,1] op_sel_hi:[1,1]")
    def wr16(T,m,off):
        b=vAcc+32*T+16*m; p=vP+8*(2*T+m)
        for j in range(8): e(f"v_cvt_pk_bf16_f32 {R(p+j)}, {R(b+2*j)}, {R(b+2*j+1)}")
        for j in range(2): e(f"ds_write_b128 {R(vWA)}, {R(p+4*j,4)} offset:{off+m*32*144+16*j}")
    e.wlg(("c",0))
    for m in range(2): corr(0,m); wr16(0,m,0)
    e.wlg0()
    for m in range(2): corr(1,m)
    lv=e.newlab("p1v"); e(f"s_cmp_lg_u32 {S(sW)}, 0"); e(f"s_cbranch_scc1 {lv}")
    for m in range(2): wr16(1,m,64)
    e(f"s_branch {lab_att}")
    e.lab(lv)
    for m in range(2):
        for j in range(4): e(f"ds_write_b128 {R(vWB)}, {R(vAcc+32+16*m+4*j,4)} offset:{m*32*272+16*j}")
    e(f"s_branch {lab_att}")
    e.lab(lab_h); e.reset(); e.vm=list(q0); e.alt=list(q1)
    vXa,vTh,vAcc,vXf,vWf=2,4,32,80,96
    xaddr(vXa,2,64,None,True)
    e(f"v_lshrrev_b32 {R(tmp)}, 4, {R(vL)}"); e(f"v_bfe_u32 {R(tmp+1)}, {R(vL)}, 2, 2")
    e(f"v_lshl_add_u32 {R(vTh)}, {R(tmp)}, 3, {R(tmp+1)}"); e(f"v_lshlrev_b32 {R(vTh)}, 7, {R(vTh)}")
    e(f"v_and_b32 {R(tmp)}, 1, {R(tmp)}"); e(f"v_lshlrev_b32 {R(tmp)}, 1, {R(tmp)}"); e(f"v_lshrrev_b32 {R(tmp+1)}, 1, {R(tmp+1)}")
    e(f"v_lshl_or_b32 {R(tmp)}, {R(tmp+1)}, 2, {R(tmp)}"); e(f"v_bfe_u32 {R(tmp+1)}, {R(vL)}, 1, 1"); e(f"v_or_b32 {R(tmp)}, {R(tmp)}, {R(tmp+1)}")
    e(f"v_lshl_add_u32 {R(vTh)}, {R(tmp)}, 4, {R(vTh)}"); e(f"v_and_b32 {R(tmp)}, 1, {R(vL)}"); e(f"v_lshl_add_u32 {R(vTh)}, {R(tmp)}, 3, {R(vTh)}")
    e(f"v_add_u32 {R(vTh)}, {WOF}, {R(vTh)}")
    for h in range(1,4): e(f"v_xor_b32 {R(vTh+h)}, {h*32}, {R(vTh)}")
    e(f"v_and_b32 {R(tmp)}, 15, {R(vL)}"); e(f"v_cmp_eq_u32 vcc, 0, {R(tmp)}"); e(f"v_mov_b32 {R(12)}, {S(sONE)}")
    def rdu(u,h):
        T,p=divmod(u,3); kk=T&1
        if p==0 and h==0: e.lds(f"ds_read_b128 {R(vXf+4*(T&1),4)}, {R(vXa+kk)}",("x",T))
        trread(e,vWf+(u&1)*16+4*h,vTh+h,p*8192+kk*4096,("w",u,h))
    e.wvm(("S",0)); e.bar()
    for h in range(4): rdu(0,h)
    for u in range(48):
        T,p=divmod(u,3)
        if u+1<48 and (u+1)%6==0:
            s=(u+1)//6
            e.wvm(("S",s)); (e.wlg0() if s<=4 else None); bump(range(vXa,vXa+6),s-1); (e.bar() if s<7 else None)
            if s==2:
                with ifL(e,0): hello(e)
        if p==0:
            e.wlg(("x",T))
            for i in range(4): e(f"v_cndmask_b32 {R(vXf+4*(T&1)+i)}, {R(vXf+4*(T&1)+i)}, {R(12)}, vcc")
            e.nop(2)
        for h in range(4):
            if u+1<48: rdu(u+1,h)
            e.wlg(("w",u,h)); mfma16(e,vAcc+16*p+4*h,vWf+(u&1)*16+4*h,vXf+4*(T&1),T==0)
    e(f"v_lshrrev_b32 {R(tmp)}, 4, {R(vL)}"); e(f"v_and_b32 {R(tmp+1)}, 15, {R(vL)}")
    e(f"v_lshlrev_b32 {R(2)}, 4, {R(tmp)}"); e(f"v_add_u32 {R(2)}, {CS1}, {R(2)}")
    e(f"v_lshlrev_b32 {R(3)}, 3, {R(tmp+1)}"); e(f"v_add_u32 {R(3)}, {ST1}, {R(3)}")
    e(f"v_mul_u32_u24 {R(4)}, 144, {R(tmp+1)}"); e(f"v_lshl_add_u32 {R(4)}, {R(tmp)}, 3, {R(4)}")
    e(f"v_mul_u32_u24 {R(5)}, 272, {R(tmp+1)}"); e(f"v_lshl_add_u32 {R(5)}, {R(tmp)}, 4, {R(5)}")
    e(f"s_and_saveexec_b64 {S(sD+14,2)}, vcc")
    for i in range(12): e(f"ds_write_b128 {R(2)}, {R(vAcc+4*i,4)} offset:{i*64}")
    e(f"s_mov_b64 exec, {S(sD+14,2)}")
    e.wlg0(); e.bar()
    vC,vSt=96,80
    e.lds(f"ds_read_b64 {R(vSt,2)}, {R(3)}","st")
    for i in range(8): e.lds(f"ds_read_b128 {R(vC+4*i,4)}, {R(2)} offset:{(4+i)*64}",("c",i))
    for i in range(8):
        e.wlg(("c",i)); b=vAcc+16+4*i
        for j in range(2): e(f"v_pk_fma_f32 {R(b+2*j,2)}, {R(vC+4*i+2*j,2)}, {R(vSt,2)}, {R(b+2*j,2)} op_sel_hi:[1,0,1]")
        for j in range(2): e(f"v_pk_mul_f32 {R(b+2*j,2)}, {R(b+2*j,2)}, {R(vSt,2)} op_sel:[0,1] op_sel_hi:[1,1]")
        if i<4:
            for j in range(2): e(f"v_cvt_pk_bf16_f32 {R(b+j)}, {R(b+2*j)}, {R(b+2*j+1)}")
            e.lds(f"ds_write_b64 {R(4)}, {R(b,2)} offset:{KB+i*32}")
        else: e.lds(f"ds_write_b128 {R(5)}, {R(b,4)} offset:{VB+(i-4)*64}")
    e(f"s_branch {lab_att}")
    e.lab(lab_l); e.reset(); e('s_setprio 2')
    j=sD+10; e(f"s_sub_u32 {S(j)}, {S(sW)}, 4")
    e(f"s_and_b32 {S(sD+11)}, {S(j)}, 1"); e(f"s_add_u32 {S(sD+11)}, {S(sD+11)}, 8"); xslot(sD+11,1)
    first3([0,1])
    wslots(e,j,3); xslot(j,2)
    vXa,vF,vS=2,32,12
    e(f"s_min_u32 {S(sT2)}, {S(j)}, 2"); e(f"s_lshl_b32 {S(sT2)}, {S(sT2)}, 5"); e(f"s_sub_u32 {S(sT2)}, {S(sT2)}, 16"); e(f"s_max_i32 {S(sT2)}, {S(sT2)}, 0")
    xaddr(vXa,4,32,S(sT2),False)
    e(f"v_lshlrev_b32 {R(6)}, 3, {R(tmp)}"); e(f"v_add_u32 {R(6)}, {ST1}, {R(6)}")
    for i in range(4): e(f"v_mov_b32 {R(vS+i)}, 0")
    for s in range(8):
        if s<7: e.wvm(("S",s if s<6 else 7)); e.bar()
        for ks in range(4): e.lds(f"ds_read_b128 {R(vF+4*ks,4)}, {R(vXa+ks)}",("x",ks))
        if s<=4: issue(s+3,range(6),[0,1,2])
        if s==0: pfl(e,srdS,pQKV,512*3072,[(sJ,30720),(j,7680)],192*3072,60,7)
        p1_trickle(e,L,s,j)
        if s<7: bump(range(vXa,vXa+4),s)
        for ks in range(4):
            e.wlg(("x",ks))
            for i in range(4):
                e(f"v_dot2_f32_bf16 {R(vS+(i&1))}, {R(vF+4*ks+i)}, {S(sONE)}, {R(vS+(i&1))}")
                e(f"v_dot2_f32_bf16 {R(vS+2+(i&1))}, {R(vF+4*ks+i)}, {R(vF+4*ks+i)}, {R(vS+2+(i&1))}")
    e.nop(3); e(f"v_add_f32 {R(vS)}, {R(vS)}, {R(vS+1)}"); e(f"v_add_f32 {R(vS+1)}, {R(vS+2)}, {R(vS+3)}")
    allsum_halves(e,vS,vS+2); allsum_halves(e,vS+1,vS+2)
    meanrstd(e,vS,vS+1,tmp); e(f"v_sub_f32 {R(vS)}, 0, {R(vS)}")
    e(f"ds_write_b64 {R(6)}, {R(vS,2)}"); e.wlg0(); e.bar()
    e.lab(lab_att); e.reset(); e('s_setprio 0')
    vQ,vK,vV,vLg,vO=16,32,96,160,176
    mt,h=sD,sD+1
    e(f"s_lshr_b32 {S(mt)}, {S(sW)}, 2"); e(f"s_and_b32 {S(h)}, {S(sW)}, 3")
    e(f"v_and_b32 {R(tmp)}, 31, {R(vL)}"); e(f"s_lshl_b32 {S(sT0)}, {S(mt)}, 5"); e(f"v_add_u32 {R(tmp)}, {S(sT0)}, {R(tmp)}")
    e(f"v_lshrrev_b32 {R(tmp+1)}, 5, {R(vL)}")
    e(f"s_lshl_b32 {S(sT0)}, {S(h)}, 5"); e(f"v_mul_u32_u24 {R(2)}, 144, {R(tmp)}"); e(f"v_add_u32 {R(2)}, {S(sT0)}, {R(2)}"); e(f"v_lshl_add_u32 {R(2)}, {R(tmp+1)}, 4, {R(2)}")
    e(f"s_lshl_b32 {S(sT0)}, {S(h)}, 6"); e(f"v_mul_u32_u24 {R(3)}, 272, {R(tmp)}"); e(f"v_lshl_add_u32 {R(3)}, {R(tmp+1)}, 5, {R(3)}"); e(f"v_add_u32 {R(3)}, {S(sT0)}, {R(3)}")
    e(f"s_lshl_b32 {S(sT0)}, {S(sMB)}, 6"); e(f"v_add_u32 {R(4)}, {S(sT0)}, {R(tmp)}")
    e(f"s_lshl_b32 {S(sT0)}, {S(sMB)}, 1"); e(f"s_add_u32 {S(sT0)}, {S(sT0)}, {S(mt)}"); e(f"s_lshl_b32 {S(sT0)}, {S(sT0)}, 5")
    e(f"s_lshl_b32 {S(sT1)}, {S(sNB)}, 2"); e(f"s_add_u32 {S(sT0)}, {S(sT0)}, {S(sT1)}"); e(f"s_add_u32 {S(sT0)}, {S(sT0)}, {S(h)}"); e(f"s_lshl_b32 {S(sT0)}, {S(sT0)}, 10")
    e(f"v_lshl_add_u32 {R(5)}, {R(vL)}, 4, {S(sT0)}")
    srd(e,srdW,pWO,0,512*1024); bsrc(e,14,tmp,8,sKQ,sMH,WO_LDS,16384,sLB)
    e(f"v_mov_b32 {R(6)}, 0xce6e6b28"); e(f"v_mov_b32 {R(7)}, 0x3eb8aa3b")
    e.wlg0(); e.bar(); stamp(e,10)
    e.lds(f"ds_read_b128 {R(vQ,4)}, {R(2)} offset:{QB}","q")
    for jj in range(8): e.lds(f"ds_read_b128 {R(vK+4*jj,4)}, {R(2)} offset:{KB+288+(7-jj)*288}",("k",jj))
    for jj in range(8):
        for i in range(2): e.lds(f"ds_read_b128 {R(vV+8*jj+4*i,4)}, {R(3)} offset:{VB+544+(7-jj)*544+16*i}",("v",jj))
        if jj in (1,3,5,7):
            e.wlg(("k",jj))
            for i in range(4):
                for j2 in (jj-1,jj): e(f"v_dot2_f32_bf16 {R(vLg+j2)}, {R(vQ+i)}, {R(vK+4*j2+i)}, {R(vLg+j2) if i else '0'}")
        dma(e,14,srdW,jj*16384,(sLB,jj*2048),"pre")
    vT=vK
    for jj in range(8): e(f"v_mov_b32 {R(vT+jj)}, {R(vLg+jj)}")
    for jj in range(8): e(f"v_permlane32_swap_b32 {R(vT+jj)}, {R(vLg+jj)}")
    for jj in range(4): e(f"v_pk_add_f32 {R(vLg+2*jj,2)}, {R(vLg+2*jj,2)}, {R(vT+2*jj,2)}")
    for jj in range(1,8): e(f"v_cmp_le_u32 {S(sD+2*jj,2)}, {2*jj}, {R(4)}")
    for jj in range(1,8): e(f"v_cndmask_b32 {R(vLg+jj)}, {R(6)}, {R(vLg+jj)}, {S(sD+2*jj,2)}")
    m=8
    e(f"v_max3_f32 {R(m)}, {R(vLg)}, {R(vLg+1)}, {R(vLg+2)}"); e(f"v_max3_f32 {R(m)}, {R(m)}, {R(vLg+3)}, {R(vLg+4)}")
    e(f"v_max3_f32 {R(m)}, {R(m)}, {R(vLg+5)}, {R(vLg+6)}"); e(f"v_max_f32 {R(m)}, {R(m)}, {R(vLg+7)}")
    for jj in range(8): e(f"v_sub_f32 {R(vLg+jj)}, {R(vLg+jj)}, {R(m)}")
    for jj in range(8): e(f"v_mul_f32 {R(vLg+jj)}, {R(7)}, {R(vLg+jj)}")
    for jj in range(8): e(f"v_exp_f32 {R(vLg+jj)}, {R(vLg+jj)}")
    e.nop(1)
    e(f"v_pk_add_f32 {R(10,2)}, {R(vLg,2)}, {R(vLg+2,2)}"); e(f"v_pk_add_f32 {R(12,2)}, {R(vLg+4,2)}, {R(vLg+6,2)}")
    e(f"v_pk_add_f32 {R(10,2)}, {R(10,2)}, {R(12,2)}"); e(f"v_add_f32 {R(10)}, {R(10)}, {R(11)}"); e(f"v_rcp_f32 {R(10)}, {R(10)}")
    for jj in range(8):
        e.wlg(("v",jj)); pb=vLg+(jj&~1); o=jj&1
        for i in range(4):
            if jj==0: e(f"v_pk_mul_f32 {R(vO+2*i,2)}, {R(vV+2*i,2)}, {R(pb,2)} op_sel_hi:[1,0]")
            else: e(f"v_pk_fma_f32 {R(vO+2*i,2)}, {R(vV+8*jj+2*i,2)}, {R(pb,2)}, {R(vO+2*i,2)} op_sel:[0,{o},0] op_sel_hi:[1,{o},1]")
    for i in range(4): e(f"v_pk_mul_f32 {R(vO+2*i,2)}, {R(vO+2*i,2)}, {R(10,2)} op_sel_hi:[1,0]")
    for i in range(4): e(f"v_cvt_pk_bf16_f32 {R(vQ+i)}, {R(vO+2*i)}, {R(vO+2*i+1)}")
    with ifL(e,0): getmode(e)
    gstore(e,f"buffer_store_dwordx4 {R(vQ,4)}, {R(5)}, {S(srdO,4)}, 0 offen","st")
    publish(e,L*4)
    return ST1+1024

def desc(k):
    return f""".p2align 6
.amdhsa_kernel {k}
  .amdhsa_next_free_vgpr 256
  .amdhsa_next_free_sgpr 102
  .amdhsa_accum_offset 256
  .amdhsa_group_segment_fixed_size 0
  .amdhsa_kernarg_size 72
  .amdhsa_user_sgpr_count 2
  .amdhsa_user_sgpr_kernarg_segment_ptr 1
  .amdhsa_system_sgpr_workgroup_id_x 1
.end_amdhsa_kernel
"""
def build_multi():
    e=Em(); hdr=""; ks=[]
    for L in range(2):
        for p in (1,2,3,4):
            k=f"p{p}l{L}_kernel"; ks.append(k); nwg=224 if p==3 else 256
            e.L.append(f".globl {k}\n.p2align 8\n.type {k},@function\n{k}:"); e.endlab=f"end_{k}"; e.reset()
            prologue(e,nwg)
            lds=phase1(e,L) if p==1 else phase3(e,L) if p==3 else phase_rs(e,L,p)
            stamp_flush(e,L*4+p-1)
            e.lab(e.endlab); e("s_endpgm")
            hdr+=f"; @launch kernel={k} grid=({nwg},1,1) block=(512,1,1) lds={lds}\n"
    return hdr+'.amdgcn_target "amdgcn-amd-amdhsa--gfx950"\n.text\n'+e.text()+'.section .rodata,"a"\n'+"".join(desc(k) for k in ks)
def build_pers():
    e=Em(); k=NAME+"_kernel"
    e.L.append(f".globl {k}\n.p2align 8\n.type {k},@function\n{k}:"); e.endlab="end_all"
    prologue(e,256)
    e(f"s_mov_b32 {S(sL)}, 0"); e(f"s_mov_b32 {S(sFO)}, 0"); e("v_mov_b32 v15, 0")
    ids64(e); p1_setup(e,0)
    p1_issue(e,0,0,range(3),[])
    srd(e,srdD,50,0,256); srd(e,srdF,pWS,FL_OFF,16384)
    e.lab("layer")
    for p in (1,2,3,4):
        e.reset()
        if p>1: stamp(e,0)
        phase1(e,0) if p==1 else phase3(e,0) if p==3 else phase_rs(e,0,p)
        stamp_flush(e,p-1)
    e(f"s_mov_b32 {S(sL)}, 1"); e(f"s_mov_b32 {S(sFO)}, 4096"); stamp(e,0); e("s_branch layer")
    e.lab(e.endlab); e("s_endpgm")
    return f"; @launch grid=(256,1,1) block=(512,1,1) lds=163840\n"+'.amdgcn_target "amdgcn-amd-amdhsa--gfx950"\n.text\n'+e.text()+'.section .rodata,"a"\n'+desc(k)
if __name__=="__main__":
    if "slow" in sys.argv: FORCE_SLOW=True
    if "prof" in sys.argv: PROF=True
    out=sys.argv[1] if len(sys.argv)>1 else f"cdna_kernels/{NAME}.s"
    open(out,"w").write(build_pers())
```

```python
import sys,os
DBG=os.environ.get('DBG','')
from em import *
NAME="interleave_layers__sliding_local_dilated__dense_activation_silu__prompt"
MB=1<<20
O_OFF,X1_OFF,H_OFF,X2_OFF,ST_OFF=0,2*MB,4*MB,12*MB,14*MB
LSTRIDE=0 if 'fresh' not in DBG else 16*MB
sW,sXCD,sJ,sT0,sT1,sT2,sT3,sMB,sNB,sKQ,sMH,sLB=3,4,5,6,7,8,9,10,11,12,13,14
sONE=15
srdA,srdW,srdR,srdO,srdS=16,20,24,28,32
pX,pQKV,pWO,pW1,pW2,pOUT,pWS=36,38,40,44,46,48,52
sD=56
vL=1
sMODE,sTAG=54,55
sL,sFO=100,101
import contextlib
@contextlib.contextmanager
def ifL(e,v):
    sk=e.newlab('ifl'); e(f's_cmp_lg_u32 {S(sL)}, {v}'); e(f's_cbranch_scc1 {sk}'); q=list(e.vm)
    yield
    e.lab(sk); e.vm=q
def srdsel(e,d,p0,o0,z0,p1,o1,z1):
    srd(e,d,p1,o1,z1)
    with ifL(e,0): srd(e,d,p0,o0,z0)
srdF,srdD=96,24
FL_OFF,X2H_OFF=40*MB,15*MB
vRES=248
vINFO=244
FORCE_SLOW=False
ONES=0x3F803F80

PROF=False
def stamp(e,i):
    if PROF: e(f"s_memrealtime {S(72+2*i,2)}")
def stamp_flush(e,slot,n=12):
    if not PROF: return
    sk=e.newlab("nopf"); e(f"s_cmp_lg_u32 {S(sW)}, {4 if 'w4' in DBG else 0}"); e(f"s_cbranch_scc1 {sk}")
    e("s_waitcnt vmcnt(0)"); stamp(e,n-1); e("s_waitcnt lgkmcnt(0)")
    srd(e,srdS,pWS,200*MB,MB)
    e(f"s_lshl_b32 {S(sT0)}, s2, 7"); e(f"s_add_u32 {S(sT0)}, {S(sT0)}, {slot*32768}"); e(f"s_lshl_b32 {S(sT1)}, {S(sL)}, 17"); e(f"s_add_u32 {S(sT0)}, {S(sT0)}, {S(sT1)}"); e(f"v_mov_b32 v2, {S(sT0)}")
    for i in range(n):
        e(f"v_mov_b32 v4, {S(72+2*i)}"); e(f"v_mov_b32 v5, {S(73+2*i)}"); e(f"buffer_store_dwordx2 v[4:5], v2, {S(srdS,4)}, 0 offen offset:{i*8}"); e.nop(2)
    e.lab(sk)
def gstore(e,instr,tag):
    a,b=e.newlab("gs"),e.newlab("gd")
    e(f"s_cmp_eq_u32 {S(sMODE)}, 0"); e(f"s_cbranch_scc1 {a}"); e.vmem(instr+(' nt' if 'stnt' in DBG else ' sc0' if 'stsc0' in DBG else ''),tag); e(f"s_branch {b}")
    e.lab(a); e(instr+" sc1"); e.lab(b)
def spin(e,body,cond):
    lp,out=e.newlab("spin"),e.newlab("spun")
    e(f"s_mov_b32 {S(sT3)}, 0"); e.lab(lp); body()
    e(f"s_add_u32 {S(sT3)}, {S(sT3)}, 1"); e(f"s_cmp_gt_u32 {S(sT3)}, 0x40000"); e(f"s_cbranch_scc1 {out}")
    cond(lp); e.lab(out)
def publish(e,ph,pre=None):
    e.wvm0(); e.bar()
    sk=e.newlab("nopub"); e(f"s_cmp_lg_u32 {S(sW)}, 0"); e(f"s_cbranch_scc1 {sk}")
    e(f"s_lshl_b32 {S(sT0)}, {S(sXCD)}, 7"); e(f"s_lshl_b32 {S(sT1)}, {S(sJ)}, 2"); e(f"s_add_u32 {S(sT0)}, {S(sT0)}, {S(sT1)}")
    e(f"v_mov_b32 v2, {S(sT0)}"); e(f"v_mov_b32 v3, {S(sTAG)}"); e("s_mov_b64 exec, 1")
    e(f"s_add_u32 {S(sT2)}, {S(sFO)}, {ph*1024}")
    gstore(e,f"buffer_store_dword v3, v2, {S(srdF,4)}, {S(sT2)} offen","fl")
    if pre: pre()
    e("s_mov_b64 exec, -1"); e.lab(sk); e.reset()
def waitflags(e,ph,jbase,n,second=None):
    sk=e.newlab("nopoll"); e(f"s_cmp_lg_u32 {S(sW)}, 0"); e(f"s_cbranch_scc1 {sk}")
    e(f"s_lshl_b32 {S(sT0)}, {S(sXCD)}, 7"); e(f"s_lshl_b32 {S(sT1)}, {S(jbase)}, 2"); e(f"s_add_u32 {S(sT0)}, {S(sT0)}, {S(sT1)}")
    e(f"s_add_u32 {S(sT0)}, {S(sT0)}, {ph*1024}")
    if ph<3: e(f"s_add_u32 {S(sT0)}, {S(sT0)}, {S(sFO)}")
    e(f"v_min_u32 v2, {n-1}, {R(vL)}"); e(f"v_lshl_add_u32 v2, v2, 2, {S(sT0)}")
    if second is not None:
        e(f"v_and_b32 v3, 7, {R(vL)}"); e(f"v_lshl_add_u32 v3, v3, 2, {S(second)}"); e(f"v_cmp_gt_u32 vcc, 8, {R(vL)}"); e.nop(2); e("v_cndmask_b32 v2, v3, v2, vcc")
    def body(): e(f"buffer_load_dword v3, v2, {S(srdF,4)}, 0 offen sc1"); e("s_waitcnt vmcnt(0)"); e(f"v_cmp_ne_u32 vcc, {S(sTAG)}, v3")
    spin(e,body,lambda lp:e(f"s_cbranch_vccnz {lp}"))
    e(f"s_cmp_lg_u32 {S(sMODE)}, 0"); e(f"s_cbranch_scc1 {sk}"); e("buffer_inv sc1"); e("s_waitcnt vmcnt(0)")
    e.lab(sk); e.bar()
def hello(e):
    e(f"s_getreg_b32 {S(sT0)}, hwreg(HW_REG_XCC_ID, 0, 3)"); e(f"s_mul_i32 {S(sT0)}, {S(sT0)}, 6")
    e(f"s_lshl_b64 {S(sD+14,2)}, 1, {S(sT0)}"); e(f"s_add_u32 {S(sD+15)}, {S(sD+15)}, 0x1000000")
    e(f"s_lshl_b32 {S(sT1)}, {S(sXCD)}, 4"); e(f"v_mov_b32 v212, {S(sT1)}"); e(f"v_mov_b32 v214, {S(sD+14)}"); e(f"v_mov_b32 v215, {S(sD+15)}")
    e("s_mov_b64 exec, 1"); e.vmem(f"buffer_atomic_add_x2 v[214:215], v212, {S(srdD,4)}, 0 offen","hello")
    s2=e.newlab("notag"); e("s_cmp_lg_u32 s2, 0"); e(f"s_cbranch_scc1 {s2}")
    e("v_mov_b32 v212, 0x3000"); e(f"buffer_load_dword v213, v212, {S(srdF,4)}, 0 offen sc1"); e("s_waitcnt vmcnt(0)")
    e("v_add_u32 v213, 0x9e3779b9, v213"); e("v_max_u32 v213, 1, v213"); e(f"buffer_store_dword v213, v212, {S(srdF,4)}, 0 offen sc1")
    e("v_mov_b32 v212, 0x80"); e(f"buffer_store_dword v213, v212, {S(srdD,4)}, 0 offen sc1")
    e.lab(s2); e("s_mov_b64 exec, -1"); e.nop(4)
def getmode(e):
    e(f"s_lshl_b32 {S(sT0)}, {S(sXCD)}, 4"); e(f"v_mov_b32 {R(vINFO)}, {S(sT0)}"); e(f"v_mov_b32 {R(vINFO+1)}, 0x80")
    def body():
        e(f"buffer_load_dwordx2 {R(vINFO+2,2)}, {R(vINFO)}, {S(srdD,4)}, 0 offen sc1"); e(f"buffer_load_dword {R(vINFO-1)}, {R(vINFO+1)}, {S(srdD,4)}, 0 offen sc1")
        e("s_waitcnt vmcnt(0)"); e(f"v_readfirstlane_b32 {S(sD)}, {R(vINFO+2)}"); e(f"v_readfirstlane_b32 {S(sD+1)}, {R(vINFO+3)}"); e(f"v_readfirstlane_b32 {S(sTAG)}, {R(vINFO-1)}")
    def cond(lp):
        e(f"s_lshr_b32 {S(sT0)}, {S(sD+1)}, 24"); e(f"s_cmp_lt_u32 {S(sT0)}, 32"); e(f"s_cbranch_scc1 {lp}")
        e(f"s_cmp_eq_u32 {S(sTAG)}, 0"); e(f"s_cbranch_scc1 {lp}")
    spin(e,body,cond)
    e(f"s_getreg_b32 {S(sT0)}, hwreg(HW_REG_XCC_ID, 0, 3)"); e(f"s_mul_i32 {S(sT0)}, {S(sT0)}, 6")
    e(f"s_lshr_b64 {S(sD,2)}, {S(sD,2)}, {S(sT0)}"); e(f"s_and_b32 {S(sD)}, {S(sD)}, 63"); e(f"s_cmp_eq_u32 {S(sD)}, 32")
    e(f"s_cselect_b32 {S(sMODE)}, {0 if FORCE_SLOW else 1}, 0")
def prefetch(e,sr,ptr,total,nw,sw,va,dst,extra=None,off=0,only=None,nwg=32,sj=None):
    per=total//nwg//nw; lines=per//128; sj=sJ if sj is None else sj
    srd(e,sr,ptr,off,total if extra is None else 2*MB)
    e(f"s_mul_i32 {S(sT0)}, {S(sj)}, {total//nwg}"); e(f"s_mul_i32 {S(sT1)}, {S(sw)}, {per}"); e(f"s_add_u32 {S(sT0)}, {S(sT0)}, {S(sT1)}")
    if extra is not None: e(f"s_lshl_b32 {S(sT1)}, {S(sXCD)}, {extra}"); e(f"s_add_u32 {S(sT0)}, {S(sT0)}, {S(sT1)}")
    for i in range((lines+63)//64):
        if only is not None and i!=only: continue
        n=min(64,lines-64*i)
        e(f"v_min_u32 {R(va)}, {n-1}, {R(vL)}"); e(f"v_lshl_add_u32 {R(va)}, {R(va)}, 7, {S(sT0)}")
        if i: e(f"v_add_u32 {R(va)}, {8192*i}, {R(va)}")
        e.vmem(f"buffer_load_dword {R(dst)}, {R(va)}, {S(sr,4)}, 0 offen"+(' nt' if 'ntp' in DBG and NTS[sr] else ''),"pf")
def pfl(e,sr,ptr,total,terms,const,lines,va):
    srd(e,sr,ptr,0,total); e(f"s_mov_b32 {S(sT0)}, {const}")
    for sg,m in terms: e(f"s_mul_i32 {S(sT1)}, {S(sg)}, {m}"); e(f"s_add_u32 {S(sT0)}, {S(sT0)}, {S(sT1)}")
    for i in range((lines+63)//64):
        e(f"v_min_u32 {R(va)}, {min(64,lines-64*i)-1}, {R(vL)}"); e(f"v_lshl_add_u32 {R(va)}, {R(va)}, 7, {S(sT0)}")
        if i: e(f"v_add_u32 {R(va)}, {8192*i}, {R(va)}")
        e.vmem(f"buffer_load_dword v240, {R(va)}, {S(sr,4)}, 0 offen"+(' nt' if 'ntp' in DBG and NTS[sr] else ''),"pf")
def pf_w2(e,j,part):
    if part==0: pfl(e,srdR,pW2,1792*1024,[(j,448*1024),(sJ,5120)],0,40,7)
    else: pfl(e,srdR,pW2,1792*1024,[(j,448*1024),(sJ,9216)],160*1024,72,7)
def prologue(e,nwg):
    e(f"s_cmp_ge_u32 s2, {nwg}"); e("s_cbranch_scc1 "+e.endlab)
    stamp(e,0)
    e(f"s_load_dwordx16 s[36:51], s[0:1], 0"); e(f"s_load_dwordx2 s[52:53], s[0:1], 64")
    e("v_lshrrev_b32 v2, 6, v0"); e(f"v_and_b32 {R(vL)}, 63, v0")
    e(f"v_readfirstlane_b32 {S(sW)}, v2")
    e(f"s_and_b32 {S(sXCD)}, s2, 7"); e(f"s_lshr_b32 {S(sJ)}, s2, 3")
    e(f"s_mov_b32 {S(sONE)}, {ONES:#x}")
    e("s_waitcnt lgkmcnt(0)")
NTS={}
def srd(e,d,p,off,size):
    NTS[d]=(p in (pW1,pW2))
    if off: e(f"s_add_u32 {S(d)}, {S(p)}, {off:#x}"); e(f"s_addc_u32 {S(d+1)}, {S(p+1)}, 0")
    else: e(f"s_mov_b32 {S(d)}, {S(p)}"); e(f"s_mov_b32 {S(d+1)}, {S(p+1)}")
    e(f"s_mov_b32 {S(d+2)}, {size:#x}"); e(f"s_mov_b32 {S(d+3)}, 0x20000")
def dma(e,vaddr,srd_,soff,m0expr,tag,sc1=False):
    sg,c=m0expr
    if sg is None: e(f"s_mov_b32 m0, {c:#x}")
    else: e(f"s_add_u32 m0, {S(sg)}, {c:#x}")
    if soff: e(f"s_mov_b32 {S(sT3)}, {soff:#x}"); so=S(sT3)
    else: e("s_nop 0"); so="0"
    e.vmem(f"buffer_load_dwordx4 {R(vaddr)}, {S(srd_,4)}, {so} offen {'sc1 ' if sc1 else ''}{'nt ' if 'ntd' in DBG and NTS[srd_] else ''}lds",tag)
def ldfrag(e,dst,vaddr,srd_,t,tag,st):
    hi=t>>2
    if hi and (t&3==0 or st): e(f"s_mov_b32 {S(sT2)}, {hi*4096:#x}")
    so=S(sT2) if hi else "0"
    e.vmem(f"buffer_load_dwordx4 {R(dst,4)}, {R(vaddr)}, {S(srd_,4)}, {so} offen offset:{(t&3)*1024}"+' sc1'+(' nt' if 'nta' in DBG else ''),tag)
def tr_lane_base(e,dst,tmp,perm):
    a,b,c=tmp,tmp+1,tmp+2
    e(f"v_bfe_u32 {R(a)}, {R(vL)}, 2, 2")
    e(f"v_lshrrev_b32 {R(b)}, 5, {R(vL)}")
    e(f"v_lshl_add_u32 {R(dst)}, {R(b)}, 3, {R(a)}")
    e(f"v_lshlrev_b32 {R(dst)}, 7, {R(dst)}")
    e(f"v_lshrrev_b32 {R(a)}, 1, {R(a)}"); e(f"v_lshlrev_b32 {R(a)}, 2, {R(a)}")
    e(f"v_lshl_or_b32 {R(a)}, {R(b)}, 1, {R(a)}")
    if perm=="frag":
        e(f"v_bfe_u32 {R(b)}, {R(vL)}, 4, 1"); e(f"v_and_b32 {R(c)}, 1, {R(vL)}")
        e(f"v_lshl_or_b32 {R(b)}, {R(b)}, 1, {R(c)}"); e(f"v_bfe_u32 {R(c)}, {R(vL)}, 1, 1")
    else:
        e(f"v_and_b32 {R(b)}, 1, {R(vL)}"); e(f"v_bfe_u32 {R(c)}, {R(vL)}, 4, 1")
        e(f"v_lshl_or_b32 {R(b)}, {R(b)}, 1, {R(c)}"); e(f"v_bfe_u32 {R(c)}, {R(vL)}, 1, 1")
    e(f"v_xor_b32 {R(a)}, {R(a)}, {R(b)}")
    e(f"v_lshl_add_u32 {R(dst)}, {R(a)}, 4, {R(dst)}")
    e(f"v_lshl_add_u32 {R(dst)}, {R(c)}, 3, {R(dst)}")
def wdma_lane(e,dst,tmp,rowstride,odd):
    a,b=tmp,tmp+1
    e(f"v_lshrrev_b32 {R(a)}, 3, {R(vL)}")
    e(f"s_mov_b32 {S(sT0)}, {rowstride}"); e(f"v_mul_lo_u32 {R(dst)}, {R(a)}, {S(sT0)}")
    e(f"v_bfe_u32 {R(a)}, {R(vL)}, 4, 1"); e(f"v_lshlrev_b32 {R(a)}, 2, {R(a)}")
    if isinstance(odd,int):
        if odd: e(f"v_or_b32 {R(a)}, 2, {R(a)}")
    else: e(f"v_lshl_or_b32 {R(a)}, {odd}, 1, {R(a)}")
    e(f"v_and_b32 {R(b)}, 7, {R(vL)}"); e(f"v_xor_b32 {R(a)}, {R(a)}, {R(b)}")
    e(f"v_lshl_add_u32 {R(dst)}, {R(a)}, 4, {R(dst)}")
def mfma32(e,d,a,b,first): e(f"v_mfma_f32_32x32x16_bf16 {R(d,16)}, {R(a,4)}, {R(b,4)}, {'0' if first else R(d,16)}")
def mfma16(e,d,a,b,first): e(f"v_mfma_f32_16x16x32_bf16 {R(d,4)}, {R(a,4)}, {R(b,4)}, {'0' if first else R(d,4)}")
def trread(e,dst,va,off,tag):
    e.lds(f"ds_read_b64_tr_b16 {R(dst,2)}, {R(va)} offset:{off}",tag)
    e.lds(f"ds_read_b64_tr_b16 {R(dst+2,2)}, {R(va)} offset:{off+512}",tag)
def allsum_halves(e,a,t):
    e(f"v_mov_b32 {R(t)}, {R(a)}"); e.nop(2); e(f"v_permlane32_swap_b32 {R(t)}, {R(a)}"); e.nop(1); e(f"v_add_f32 {R(a)}, {R(a)}, {R(t)}")
def meanrstd(e,s_,q,t):
    e(f"v_mul_f32 {R(s_)}, 0x3b000000, {R(s_)}"); e(f"v_mul_f32 {R(q)}, 0x3b000000, {R(q)}")
    e(f"v_fma_f32 {R(q)}, -{R(s_)}, {R(s_)}, {R(q)}"); e(f"v_max_f32 {R(q)}, 0, {R(q)}")
    e(f"v_add_f32 {R(q)}, 0x3727c5ac, {R(q)}"); e(f"v_rsq_f32 {R(q)}, {R(q)}"); e.nop(1)

WO_LDS=96*1024
NPRE=int(os.environ.get('NPRE',14))
def ids64(e):
    e(f"s_lshr_b32 {S(sMB)}, {S(sJ)}, 3"); e(f"s_lshl_b32 {S(sT0)}, {S(sXCD)}, 2"); e(f"s_add_u32 {S(sMB)}, {S(sMB)}, {S(sT0)}")
    e(f"s_and_b32 {S(sNB)}, {S(sJ)}, 7"); e(f"s_and_b32 {S(sKQ)}, {S(sW)}, 3"); e(f"s_lshr_b32 {S(sMH)}, {S(sW)}, 2")
def bsrc(e,vB,tmp,KS,kq,mh,ldsbase,slab,sdst):
    wdma_lane(e,vB,tmp,1024,S(mh) if mh is not None else 0)
    e(f"s_mul_i32 {S(sT0)}, {S(kq)}, {KS*16*1024}"); e(f"s_and_b32 {S(sT1)}, {S(sJ)}, 7"); e(f"s_lshl_b32 {S(sT1)}, {S(sT1)}, 7"); e(f"s_add_u32 {S(sT0)}, {S(sT0)}, {S(sT1)}")
    e(f"s_mul_i32 {S(sdst)}, {S(kq)}, {slab}"); e(f"s_add_u32 {S(sdst)}, {S(sdst)}, {ldsbase}")
    if mh is not None:
        e(f"s_lshl_b32 {S(sT1)}, {S(mh)}, 13"); e(f"s_add_u32 {S(sT0)}, {S(sT0)}, {S(sT1)}")
        e(f"s_lshl_b32 {S(sT1)}, {S(mh)}, 10"); e(f"s_add_u32 {S(sdst)}, {S(sdst)}, {S(sT1)}")
    e(f"v_add_u32 {R(vB)}, {S(sT0)}, {R(vB)}")
def p4_preload(e,j,part):
    if part==0:
        srd(e,srdW,pW2,0,1792*1024); bsrc(e,14,9,28,j,None,0,40960,sLB)
        e("v_xor_b32 v15, 32, v14"); e("v_add_u32 v15, 0x2000, v15")
    for t in range(NPRE):
        for h in range(2): dma(e,14+h,srdW,t*16384,(sLB,t*2048+h*1024),"pre")
def phase_rs(e,L,which):
    P2=which==2
    K=512 if P2 else 1792; KS=K//64; RING=8 if P2 else 20; SLAB=RING*2048; LB=WO_LDS if P2 else 0; RB=0 if P2 else 112*1024; LA=8 if P2 else int(os.environ.get('LA',6))
    wo=L*LSTRIDE
    ids64(e)
    if P2:
        srd(e,srdA,pWS,wo+O_OFF,2*MB)
        srd(e,srdR,pX,0,2*MB)
        srd(e,srdO,pWS,wo+X1_OFF,2*MB); srd(e,srdS,pWS,wo+ST_OFF,128*1024)
    else:
        srd(e,srdA,pWS,wo+H_OFF,7*MB); srd(e,srdW,pW2,0,1792*1024); srd(e,srdR,pWS,X2H_OFF,128*1024)
        srdsel(e,srdO,pWS,X2_OFF,2*MB,pOUT,0,2*MB)
    vA,vB,vF,vRM,vT0,vT1,vRD,vRes,vAcc,vBf,vAf=12,13,4,5,6,7,8,vRES,16,48,80
    tmp=9; mt=sD+10; sb=sD+11
    e(f"s_lshl_b32 {S(mt)}, {S(sMB)}, 1"); e(f"s_add_u32 {S(mt)}, {S(mt)}, {S(sMH)}")
    e(f"s_mul_i32 {S(sT0)}, {S(mt)}, {K//16*1024}"); e(f"s_mul_i32 {S(sT1)}, {S(sKQ)}, {KS*1024}"); e(f"s_add_u32 {S(sT0)}, {S(sT0)}, {S(sT1)}")
    e(f"v_lshl_add_u32 {R(vA)}, {R(vL)}, 4, {S(sT0)}")
    if not P2: bsrc(e,vB,tmp,KS,sKQ,sMH,0,SLAB,sb)
    e(f"s_lshl_b32 {S(sT0)}, {S(mt)}, 5"); e(f"s_lshl_b32 {S(sT1)}, {S(sNB)}, 2"); e(f"s_add_u32 {S(sT1)}, {S(sT1)}, {S(sKQ)}")
    e(f"s_add_u32 {S(sT0)}, {S(sT0)}, {S(sT1)}"); e(f"s_lshl_b32 {S(sT0)}, {S(sT0)}, 10")
    e(f"v_lshl_add_u32 {R(vF)}, {R(vL)}, 4, {S(sT0)}")
    e(f"s_lshl_b32 {S(sT0)}, {S(mt)}, 15"); e(f"s_lshl_b32 {S(sT1)}, {S(sT1)}, 5"); e(f"s_add_u32 {S(sT0)}, {S(sT0)}, {S(sT1)}")
    e(f"v_and_b32 {R(tmp)}, 31, {R(vL)}"); e(f"v_lshlrev_b32 {R(tmp)}, 10, {R(tmp)}"); e(f"v_lshrrev_b32 {R(tmp+1)}, 5, {R(vL)}")
    e(f"v_lshl_add_u32 {R(tmp)}, {R(tmp+1)}, 4, {R(tmp)}"); e(f"v_add_u32 {R(vRM)}, {S(sT0)}, {R(tmp)}")
    tr_lane_base(e,vT0,tmp,"frag")
    e(f"s_mul_i32 {S(sT0)}, {S(sKQ)}, {SLAB}"); e(f"s_add_u32 {S(sT0)}, {S(sT0)}, {LB}")
    e(f"v_add_u32 {R(vT0)}, {S(sT0)}, {R(vT0)}"); e(f"v_xor_b32 {R(vT1)}, 64, {R(vT0)}")
    e(f"s_mul_i32 {S(sT0)}, {S(sMH)}, {12*2048}"); e(f"s_add_u32 {S(sT0)}, {S(sT0)}, {RB}"); e(f"v_lshl_add_u32 {R(vRD)}, {R(vL)}, 4, {S(sT0)}")
    def rd(t,nt): trread(e,vBf+(t&1)*8+nt*4,vT0+nt,(t%RING)*2048,("f",t,nt))
    if P2:
        with ifL(e,0): e(f"buffer_load_dwordx4 {R(vRes,4)}, {R(vRM)}, {S(srdR,4)}, 0 offen")
    if not P2:
        for u in range(NPRE,RING): dma(e,vB,srdW,u*16384,(sb,u*2048),"B1")
    if P2: e(f"s_and_b32 {S(sD+2)}, {S(sJ)}, 24"); waitflags(e,L*4,sD+2,8)
    else: e(f"s_lshr_b32 {S(sD+2)}, {S(sJ)}, 4"); e(f"s_mul_i32 {S(sD+2)}, {S(sD+2)}, 14"); waitflags(e,L*4+2,sD+2,14)
    stamp(e,9)
    for t in range(LA): ldfrag(e,vAf+4*t,vA,srdA,t,("A",t),False)
    if P2: pfl(e,srdW,pW1,512*3584,[(sJ,24576),(sW,3072)],MB,24,tmp)
    rd(0,0); rd(0,1)
    for t in range(KS):
        if t+LA<KS: ldfrag(e,vAf+4*(t+LA),vA,srdA,t+LA,("A",t+LA),False)
        if not P2 and t==9:
            e.bar()
        if not P2 and 9<=t<17: u=RING+t-9; dma(e,vB,srdW,u*16384,(sb,(u%RING)*2048),"B")
        if t+1==RING and t+1<KS: e.wvm("B"); e.bar()
        e.wvm(("A",t))
        if t%4==0: stamp(e,1+t//4)
        for nt in range(2):
            if t+1<KS: rd(t+1,nt)
            e.wlg(("f",t,nt)); mfma32(e,vAcc+16*nt,vBf+(t&1)*8+nt*4,vAf+4*t,t==0)
        if not P2 and t==KS-LA:
            with ifL(e,0): pfl(e,srdS,pQKV,512*3072,[(sJ,18432),(sW,2304)],0,18,9); p1_setup(e,1)
    if not P2: e.bar()
    stamp(e,10); e.nop(10)
    own=vBf
    done=e.newlab("rdone"); labs=[e.newlab("rv") for _ in range(4)]
    for q in range(1,4): e(f"s_cmp_eq_u32 {S(sKQ)}, {q}"); e(f"s_cbranch_scc1 {labs[q]}")
    for kq in range(4):
        e.lab(labs[kq])
        for q in range(4):
            if q==kq: continue
            for j in range(2): e(f"ds_write_b128 {R(vRD)}, {R(vAcc+8*q+4*j,4)} offset:{(q*3+((kq-q)&3)-1)*2048+j*1024}")
        for j in range(8): e(f"v_mov_b32 {R(own+j)}, {R(vAcc+8*kq+j)}")
        if kq<3: e(f"s_branch {done}")
    e.lab(done)
    e(f"s_mul_i32 {S(sT0)}, {S(sKQ)}, {3*2048}"); e(f"v_add_u32 {R(vRD)}, {S(sT0)}, {R(vRD)}")
    if not P2:
        with ifL(e,0):
            for s_ in range(3): p1_issue(e,1,s_,range(3),[])
    e.wlg0(); e.bar()
    for i in range(1,4):
        for j in range(2): e.lds(f"ds_read_b128 {R(own+8*i+4*j,4)}, {R(vRD)} offset:{(i-1)*2048+j*1024}",("p",i))
    e.wvm("res")
    rf=vAcc
    for j in range(4):
        e(f"v_lshlrev_b32 {R(rf+2*j)}, 16, {R(vRes+j)}"); e(f"v_and_b32 {R(rf+2*j+1)}, 0xffff0000, {R(vRes+j)}")
    for j in range(4): e(f"v_pk_add_f32 {R(own+2*j,2)}, {R(own+2*j,2)}, {R(rf+2*j,2)}")
    for i in range(1,4):
        e.wlg(("p",i))
        for j in range(4): e(f"v_pk_add_f32 {R(own+2*j,2)}, {R(own+2*j,2)}, {R(own+8*i+2*j,2)}")
    for j in range(4): e(f"v_cvt_pk_bf16_f32 {R(vRes+j)}, {R(own+2*j)}, {R(own+2*j+1)}")
    ins=f"buffer_store_dwordx4 {R(vRes,4)}, {R(vF if P2 else vRM)}, {S(srdO,4)}, 0 offen"
    gstore(e,ins,"st")
    if not P2:
        if PROF:
            with ifL(e,1): stamp_flush(e,3)
        e(f"s_cmp_lg_u32 {S(sL)}, 0"); e(f"s_cbranch_scc1 {e.endlab}")
        sk=e.newlab("nohalo"); e(f"s_and_b32 {S(sT0)}, {S(mt)}, 7"); e(f"s_cmp_lg_u32 {S(sT0)}, 7"); e(f"s_cbranch_scc1 {sk}")
        e(f"s_lshl_b32 {S(sT0)}, {S(mt)}, 15"); e(f"s_lshl_b32 {S(sT1)}, {S(sXCD)}, 14"); e(f"s_sub_u32 {S(sT0)}, {S(sT0)}, {S(sT1)}"); e(f"s_add_u32 {S(sT0)}, {S(sT0)}, 0x4000")
        e(f"v_subrev_u32 {R(tmp)}, {S(sT0)}, {R(vRM)}"); e("s_mov_b32 exec_lo, 0xffff0000"); e("s_mov_b32 exec_hi, 0xffff0000")
        e(f"buffer_store_dwordx4 {R(vRes,4)}, {R(tmp)}, {S(srdR,4)}, 0 offen sc1"); e("s_mov_b64 exec, -1"); e.lab(sk)
        def xflag():
            sk=e.newlab("noxf"); e(f"s_cmp_lt_u32 {S(sJ)}, 24"); e(f"s_cbranch_scc1 {sk}")
            e(f"s_mov_b32 {S(sT2)}, {7*1024}"); e(f"buffer_store_dword v3, v2, {S(srdF,4)}, {S(sT2)} offen sc1"); e.lab(sk)
        publish(e,3,xflag)
    if P2:
        a,b=rf,rf+1
        e(f"v_dot2_f32_bf16 {R(a)}, {R(vRes)}, {S(sONE)}, 0"); e(f"v_dot2_f32_bf16 {R(b)}, {R(vRes)}, {R(vRes)}, 0")
        for j in range(1,4):
            e(f"v_dot2_f32_bf16 {R(a)}, {R(vRes+j)}, {S(sONE)}, {R(a)}"); e(f"v_dot2_f32_bf16 {R(b)}, {R(vRes+j)}, {R(vRes+j)}, {R(b)}")
        e(f"s_lshl_b32 {S(sT0)}, {S(sW)}, 8"); e(f"s_add_u32 {S(sT0)}, {S(sT0)}, 0xc000")
        e(f"v_lshl_add_u32 {R(tmp)}, {R(vL)}, 2, {S(sT0)}"); e.nop(2)
        e(f"v_permlane32_swap_b32 {R(a)}, {R(b)}"); e.nop(1); e(f"v_add_f32 {R(a)}, {R(a)}, {R(b)}")
        e(f"ds_write_b32 {R(tmp)}, {R(a)}"); e.wlg0(); e.bar()
        sk=e.newlab("nost"); e(f"s_cmp_lg_u32 {S(sKQ)}, 0"); e(f"s_cbranch_scc1 {sk}")
        for i in range(1,4): e(f"ds_read_b32 {R(rf+1+i)}, {R(tmp)} offset:{i*256}")
        e(f"s_lshl_b32 {S(sT0)}, {S(mt)}, 3"); e(f"s_add_u32 {S(sT0)}, {S(sT0)}, {S(sNB)}"); e(f"s_lshl_b32 {S(sT0)}, {S(sT0)}, 8")
        e(f"v_lshl_add_u32 {R(tmp)}, {R(vL)}, 2, {S(sT0)}"); e.wlg0()
        e(f"v_add_f32 {R(a)}, {R(a)}, {R(rf+2)}"); e(f"v_add_f32 {R(rf+3)}, {R(rf+3)}, {R(rf+4)}"); e(f"v_add_f32 {R(a)}, {R(a)}, {R(rf+3)}")
        gstore(e,f"buffer_store_dword {R(a)}, {R(tmp)}, {S(srdS,4)}, 0 offen","st")
        e.lab(sk)
        publish(e,L*4+1)

def phase3(e,L):
    wo=L*LSTRIDE; LA=8
    e(f"s_cmp_ge_u32 {S(sJ)}, 14"); e(f"s_cselect_b32 {S(sT0)}, 1, 0"); e(f"s_cselect_b32 {S(sT1)}, 14, 0")
    e(f"s_sub_u32 {S(sNB)}, {S(sJ)}, {S(sT1)}"); e(f"s_lshl_b32 {S(sMB)}, {S(sXCD)}, 1"); e(f"s_add_u32 {S(sMB)}, {S(sMB)}, {S(sT0)}")
    srd(e,srdA,pWS,wo+X1_OFF,2*MB); srd(e,srdW,pW1,0,512*3584); srd(e,srdO,pWS,wo+H_OFF,7*MB); srd(e,srdS,pWS,wo+ST_OFF,128*1024)
    CS=131072
    ld=e.newlab("p3ld"); fin=e.newlab("p3fin"); skip=e.newlab("p3skip"); sk2=e.newlab("p3end")
    j=sD; e(f"s_sub_u32 {S(j)}, {S(sW)}, 4")
    e(f"s_cmp_ge_u32 {S(sJ)}, 28"); e(f"s_cbranch_scc1 {skip}")
    tmp=9
    e(f"s_cmp_ge_u32 {S(sW)}, 4"); e(f"s_cbranch_scc1 {ld}")
    vA,vT,vH,vM,vS,vSt,vAcc,vBf,vAf=12,4,13,14,2,16,24,88,120
    mt=sD
    e(f"s_lshl_b32 {S(mt)}, {S(sMB)}, 2"); e(f"s_add_u32 {S(mt)}, {S(mt)}, {S(sW)}")
    e(f"s_lshl_b32 {S(sT0)}, {S(mt)}, 15"); e(f"v_lshl_add_u32 {R(vA)}, {R(vL)}, 4, {S(sT0)}")
    e(f"s_lshl_b32 {S(sT0)}, {S(mt)}, 11"); e(f"v_lshl_add_u32 {R(vH)}, {R(vL)}, 2, {S(sT0)}")
    tr_lane_base(e,vT,tmp,"frag")
    e(f"v_xor_b32 {R(vT+1)}, 64, {R(vT)}"); e(f"v_add_u32 {R(vT+2)}, 0x10000, {R(vT)}"); e(f"v_add_u32 {R(vT+3)}, 0x10000, {R(vT+1)}")
    e(f"s_and_b32 {S(sD+2)}, {S(sMB)}, 1"); e(f"s_lshl_b32 {S(sD+2)}, {S(sD+2)}, 4"); waitflags(e,L*4+1,sD+2,16); stamp(e,9)
    for t in range(LA): ldfrag(e,vAf+4*t,vA,srdA,t,("A",t),False)
    def rd(t,nt): trread(e,vBf+(t&1)*16+nt*4,vT+nt,t*2048,("f",t,nt))
    e.bar()
    for nt in range(4): rd(0,nt)
    for t in range(32):
        for u in (LA+2*t,LA+2*t+1):
            if u<32: ldfrag(e,vAf+4*u,vA,srdA,u,("A",u),False)
        if t==12:
            for i in range(8): e.vmem(f"buffer_load_dword {R(vSt+i)}, {R(vH)}, {S(srdS,4)}, 0 offen offset:{i*256} sc1","st")
            e(f"s_mul_i32 {S(sT0)}, {S(mt)}, {112*1024}"); e(f"s_lshl_b32 {S(sT1)}, {S(sNB)}, 13"); e(f"s_add_u32 {S(sT0)}, {S(sT0)}, {S(sT1)}")
            e(f"v_lshl_add_u32 {R(vH)}, {R(vL)}, 4, {S(sT0)}")
        if (t+1)%4==0 and t+1<=16: e.bar()
        e.wvm(("A",t))
        if t%4==0: stamp(e,1+t//4)
        for nt in range(4):
            if t+1<32: rd(t+1,nt)
            e.wlg(("f",t,nt)); mfma32(e,vAcc+16*nt,vBf+(t&1)*16+nt*4,vAf+4*t,t==0)
        if t==30:
            e.wvm("st")
            for i in (4,2,1):
                for jj in range(i): e(f"v_add_f32 {R(vSt+jj)}, {R(vSt+jj)}, {R(vSt+jj+i)}")
            e(f"v_mov_b32 {R(vSt+1)}, {R(vSt)}"); e.nop(2); e(f"v_permlane32_swap_b32 {R(vSt)}, {R(vSt+1)}"); e.nop(1)
            meanrstd(e,vSt,vSt+1,tmp)
            e(f"v_mul_f32 {R(vM)}, 0xbfb8aa3b, {R(vSt+1)}"); e(f"v_mul_f32 {R(vM+1)}, {R(vM)}, {R(vSt)}"); e(f"v_sub_f32 {R(vM+1)}, 0, {R(vM+1)}")
            e(f"v_mov_b32 {R(vS)}, 0xbfb8aa3b")
    e(f"v_lshrrev_b32 {R(tmp)}, 5, {R(vL)}"); e(f"v_lshlrev_b32 {R(tmp)}, 4, {R(tmp)}"); e(f"v_add_u32 {R(tmp)}, {CS:#x}, {R(tmp)}")
    e.bar(); stamp(e,10)
    vC=vAf
    for nt in range(4):
        for g in range(4): e.lds(f"ds_read_b128 {R(vC+16*nt+4*g,4)}, {R(tmp)} offset:{nt*128+g*32}",("c",nt))
    for jj in range(32): e(f"v_pk_mul_f32 {R(vAcc+2*jj,2)}, {R(vAcc+2*jj,2)}, {R(vM,2)} op_sel_hi:[1,0]") if jj>=24 or True else None
    e.wlg0(); e.bar()
    U=vBf; PK=vAf+64
    for nt in range(4):
        for hh in range(2):
            b=vAcc+16*nt+8*hh; c=vC+16*nt+8*hh; o=PK+(nt*2+hh)*4
            for jj in range(4): e(f"v_pk_fma_f32 {R(b+2*jj,2)}, {R(c+2*jj,2)}, {R(vM,2)}, {R(b+2*jj,2)} op_sel:[0,1,0] op_sel_hi:[1,1,1]")
            for jj in range(8): e(f"v_exp_f32 {R(U+jj)}, {R(b+jj)}")
            e.nop(1)
            for jj in range(4): e(f"v_pk_fma_f32 {R(U+2*jj,2)}, {R(U+2*jj,2)}, {R(vS,2)}, {R(vS,2)} op_sel_hi:[1,0,0]")
            for jj in range(8): e(f"v_rcp_f32 {R(U+jj)}, {R(U+jj)}")
            e.nop(1)
            for jj in range(4): e(f"v_pk_mul_f32 {R(b+2*jj,2)}, {R(b+2*jj,2)}, {R(U+2*jj,2)}")
            for jj in range(4): e(f"v_cvt_pk_bf16_f32 {R(o+jj)}, {R(b+2*jj)}, {R(b+2*jj+1)}")
            t=nt*2+hh
            if t==4: e(f"s_movk_i32 {S(sT2)}, 0x1000")
            gstore(e,f"buffer_store_dwordx4 {R(o,4)}, {R(vH)}, {S(srdO,4)}, {S(sT2) if t>=4 else '0'} offen offset:{(t&3)*1024}","st")
    e(f"s_branch {fin}")
    e.lab(ld); e.reset(); e('s_setprio 2')
    vB,vT,vCs,vBf=2,4,5,16
    wdma_lane(e,vB,tmp,3584,0)
    e(f"s_and_b32 {S(sD+1)}, {S(j)}, 1"); e(f"s_lshr_b32 {S(sD+2)}, {S(j)}, 1")
    e(f"s_mul_i32 {S(sT0)}, {S(sD+2)}, {32*3584}"); e(f"s_lshl_b32 {S(sT1)}, {S(sD+1)}, 7"); e(f"s_add_u32 {S(sT0)}, {S(sT0)}, {S(sT1)}")
    e(f"s_lshl_b32 {S(sT1)}, {S(sNB)}, 8"); e(f"s_add_u32 {S(sT0)}, {S(sT0)}, {S(sT1)}")
    e(f"v_add_u32 {R(vB)}, {S(sT0)}, {R(vB)}"); e(f"v_xor_b32 {R(vB+1)}, 32, {R(vB)}")
    e(f"s_lshl_b32 {S(sLB)}, {S(sD+1)}, 16"); e(f"s_lshl_b32 {S(sT1)}, {S(sD+2)}, 12"); e(f"s_add_u32 {S(sLB)}, {S(sLB)}, {S(sT1)}")
    def wch(ch):
        for i in range(4): dma(e,vB+(i&1),srdW,(ch*64+8*i)*3584,(sLB,ch*8192+i*1024),("B",ch))
    for ch in range(3): wch(ch)
    tr_lane_base(e,vT,tmp,"frag")
    e(f"s_lshl_b32 {S(sT0)}, {S(sD+1)}, 6"); e(f"v_xor_b32 {R(vT)}, {S(sT0)}, {R(vT)}")
    e(f"s_lshl_b32 {S(sT0)}, {S(sD+2)}, 16"); e(f"v_add_u32 {R(vT)}, {S(sT0)}, {R(vT)}")
    e(f"v_mov_b32 {R(vCs)}, 0"); e(f"v_mov_b32 {R(vCs+1)}, 0")
    e.bar()
    for ch in range(8):
        if ch<=4: e.wvm(("B",ch if ch<4 else 7)); e.bar()
        if ch==0: stamp(e,9)
        if ch==4: stamp(e,1)
        for t in range(4): trread(e,vBf+4*t,vT,(ch*4+t)*2048,("f",t))
        for c2 in {0:(3,4),1:(5,6),2:(7,)}.get(ch,()): wch(c2)
        if ch==3:
            e(f"s_lshl_b32 {S(sT0)}, {S(sMB)}, 2"); e(f"s_add_u32 {S(sT0)}, {S(sT0)}, {S(j)}"); e(f"s_mul_i32 {S(sT0)}, {S(sT0)}, {112*1024}")
            e(f"s_lshl_b32 {S(sT1)}, {S(sNB)}, 13"); e(f"s_add_u32 {S(sT0)}, {S(sT0)}, {S(sT1)}"); e(f"v_lshl_add_u32 v7, {R(vL)}, 7, {S(sT0)}")
            e.vmem(f"buffer_load_dword v242, v7, {S(srdO,4)}, 0 offen sc1","pf")
        if ch==4:
            pf_w2(e,j,0); pf_w2(e,j,1)
            with ifL(e,0): x2touch(e,j,4,7)
        for t in range(4):
            e.wlg(("f",t))
            for i in range(4): e(f"v_dot2_f32_bf16 {R(vCs+(i&1))}, {R(vBf+4*t+i)}, {S(sONE)}, {R(vCs+(i&1))}")
    e(f"s_lshl_b32 {S(sT0)}, {S(j)}, 7"); e(f"s_add_u32 {S(sT0)}, {S(sT0)}, {CS:#x}")
    e(f"v_and_b32 {R(tmp)}, 31, {R(vL)}"); e(f"v_lshl_add_u32 {R(tmp)}, {R(tmp)}, 2, {S(sT0)}"); e.nop(2)
    e(f"v_add_f32 {R(vCs)}, {R(vCs)}, {R(vCs+1)}")
    allsum_halves(e,vCs,vCs+1)
    e(f"ds_write_b32 {R(tmp)}, {R(vCs)}")
    stamp(e,3)
    if 'w4' in DBG: e.wvm0()
    stamp(e,4); e.wlg0(); e('s_setprio 0'); e.bar(); e.bar(); stamp(e,5)
    p4_preload(e,j,0); e.bar(); e.wvm0()
    e(f"s_branch {sk2}")
    e.lab(fin); publish(e,L*4+2); e(f"s_branch {sk2}")
    e.lab(skip)
    sk3=e.newlab("p3np"); e(f"s_cmp_lt_u32 {S(sW)}, 4"); e(f"s_cbranch_scc1 {sk3}"); pf_w2(e,j,0); pf_w2(e,j,1)
    with ifL(e,0): x2touch(e,j,4,7)
    p4_preload(e,j,0); e.lab(sk3)
    e.wvm0(); e.bar(); e.lab(sk2)

STG=34816; WOF=10240; CS1=4*STG; ST1=CS1+1024; QB,KB,VB=0,9216,20736
vW,vX,vb=200,206,209
dW,dX=sD,sD+6
def wslots(e,sw,k0):
    for a in range(3):
        e(f"s_mul_i32 {S(sT0)}, {S(sw)}, 3"); e(f"s_add_u32 {S(sT0)}, {S(sT0)}, {a}")
        e(f"s_lshl_b32 {S(dW+k0+a)}, {S(sT0)}, 10"); e(f"s_add_u32 {S(dW+k0+a)}, {S(dW+k0+a)}, {WOF}")
        e(f"s_and_b32 {S(sT1)}, {S(sT0)}, 1"); e(f"s_lshl_b32 {S(sT1)}, {S(sT1)}, 5"); e(f"v_xor_b32 {R(vW+k0+a)}, {S(sT1)}, {R(vb)}")
        e(f"s_and_b32 {S(sT1)}, {S(sT0)}, 7"); e(f"s_mul_i32 {S(sT1)}, {S(sT1)}, {8*3072}")
        e(f"s_lshr_b32 {S(sT0)}, {S(sT0)}, 3"); e(f"s_lshl_b32 {S(sT0)}, {S(sT0)}, 10"); e(f"s_add_u32 {S(sT0)}, {S(sT0)}, {S(sT1)}")
        e(f"v_add_u32 {R(vW+k0+a)}, {S(sT0)}, {R(vW+k0+a)}")
def p1_setup(e,L):
    tmp=9
    srd(e,srdW,pQKV,0,512*3072)
    wdma_lane(e,vb,tmp,3072,0)
    e(f"s_lshl_b32 {S(sT0)}, {S(sNB)}, 7"); e(f"v_add_u32 {R(vb)}, {S(sT0)}, {R(vb)}")
    e(f"v_lshrrev_b32 {R(tmp)}, 3, {R(vL)}"); e(f"v_lshrrev_b32 {R(tmp+1)}, 4, {R(vL)}"); e(f"v_and_b32 {R(tmp+2)}, 7, {R(vL)}")
    e(f"v_xor_b32 {R(tmp+1)}, {R(tmp+1)}, {R(tmp+2)}"); e(f"v_lshlrev_b32 {R(tmp+1)}, 4, {R(tmp+1)}")
    e(f"v_lshl_add_u32 {R(vb+1)}, {R(tmp)}, 10, {R(tmp+1)}")
    wslots(e,sW,0)
def p1_issue(e,L,s,ws,xs):
    b=(s%4)*STG
    for k in xs: dma(e,vX+k,srdA,s*128,(dX+k,b),("S",s),True)
    for k in ws: dma(e,vW+k,srdW,s*64*3072,(dW+k,b),("S",s))
def p1_trickle(e,L,s,j):
    wo=L*LSTRIDE; va=211
    if s==5 and "nopt" not in DBG:
        srd(e,srdS,pWS,wo,16*MB)
        e(f"s_lshl_b32 {S(sT0)}, {S(sMB)}, 16"); e(f"s_lshl_b32 {S(sT1)}, {S(sNB)}, 12"); e(f"s_add_u32 {S(sT0)}, {S(sT0)}, {S(sT1)}")
        e(f"s_and_b32 {S(sT1)}, {S(j)}, 1"); e(f"s_lshl_b32 {S(sT1)}, {S(sT1)}, 15"); e(f"s_add_u32 {S(sT0)}, {S(sT0)}, {S(sT1)}")
        e(f"s_lshr_b32 {S(sT1)}, {S(j)}, 1"); e(f"s_lshl_b32 {S(sT1)}, {S(sT1)}, 21"); e(f"s_add_u32 {S(sT0)}, {S(sT0)}, {S(sT1)}")
        e(f"v_and_b32 {R(va)}, 31, {R(vL)}"); e(f"v_lshl_add_u32 {R(va)}, {R(va)}, 7, {S(sT0)}")
        e.vmem(f"buffer_load_dword v242, {R(va)}, {S(srdS,4)}, 0 offen sc1","pf")
        e(f"s_lshl_b32 {S(sT0)}, {S(sMB)}, 12"); e(f"s_lshl_b32 {S(sT1)}, {S(sNB)}, 8"); e(f"s_add_u32 {S(sT0)}, {S(sT0)}, {S(sT1)}"); e(f"s_add_u32 {S(sT0)}, {S(sT0)}, {ST_OFF}")
        e(f"v_and_b32 {R(va)}, 1, {R(vL)}"); e(f"v_lshl_add_u32 {R(va)}, {R(va)}, 7, {S(sT0)}"); e(f"v_bfe_u32 {R(va+1)}, {R(vL)}, 1, 1"); e(f"v_lshl_add_u32 {R(va)}, {R(va+1)}, 11, {R(va)}")
        e.vmem(f"buffer_load_dword v242, {R(va)}, {S(srdS,4)}, 0 offen sc1","pf")
        if True:
            e(f"s_lshl_b32 {S(sT0)}, {S(sXCD)}, 7"); e(f"v_and_b32 {R(va)}, 7, {R(vL)}"); e(f"v_lshl_add_u32 {R(va)}, {R(va)}, 10, {S(sT0)}")
            e.vmem(f"buffer_load_dword v242, {R(va)}, {S(srdF,4)}, 0 offen sc1","pf")
    if s==5: prefetch(e,srdS,pWO,512*1024,4,j,va,240)
    if s==6: pfl(e,srdS,pW1,512*3584,[(sJ,32768),(j,8192)],0,64,va)
def x2touch(e,sw,nw,va):
    e(f"s_lshr_b32 {S(sT0)}, {S(sJ)}, 3"); e(f"s_lshl_b32 {S(sT1)}, {S(sXCD)}, 2"); e(f"s_add_u32 {S(sT0)}, {S(sT0)}, {S(sT1)}"); e(f"s_lshl_b32 {S(sT0)}, {S(sT0)}, 16")
    e(f"s_mul_i32 {S(sT1)}, {S(sw)}, {65536//nw}"); e(f"s_add_u32 {S(sT0)}, {S(sT0)}, {S(sT1)}")
    e(f"s_and_b32 {S(sT1)}, {S(sJ)}, 7"); e(f"s_lshl_b32 {S(sT1)}, {S(sT1)}, 7"); e(f"s_add_u32 {S(sT0)}, {S(sT0)}, {S(sT1)}")
    srd(e,srdR,pWS,X2_OFF,2*MB)
    e(f"v_and_b32 {R(va)}, {64//nw-1}, {R(vL)}"); e(f"v_lshl_add_u32 {R(va)}, {R(va)}, 10, {S(sT0)}")
    e.vmem(f"buffer_load_dword v242, {R(va)}, {S(srdR,4)}, 0 offen sc1","pf")
def phase1(e,L):
    wo=L*LSTRIDE
    ids64(e)
    srdsel(e,srdA,pX,0,2*MB,pWS,X2_OFF,4*MB)
    srd(e,srdO,pWS,wo+O_OFF,2*MB)
    tmp=9
    lab_h,lab_l,lab_att=e.newlab("p1h"),e.newlab("p1l"),e.newlab("p1att")
    issue=lambda s,ws,xs: p1_issue(e,L,s,ws,xs)
    def first3(xs):
        e.alt=[]
        for s in range(3):
            if s: w0(s)
            issue(s,[],xs)
    def w0(s):
        with ifL(e,0): e.only0=True; issue(s,range(3),[]); e.only0=False
    def xslot(si,k):
        e(f"s_lshl_b32 {S(dX+k)}, {S(si)}, 10")
        e(f"s_and_b32 {S(sT1)}, {S(si)}, 1"); e(f"s_lshl_b32 {S(sT1)}, {S(sT1)}, 6"); e(f"v_xor_b32 {R(vX+k)}, {S(sT1)}, {R(vb+1)}")
        e(f"s_lshl_b32 {S(sT0)}, {S(sMB)}, 16"); e(f"s_lshl_b32 {S(sT1)}, {S(si)}, 13"); e(f"s_add_u32 {S(sT0)}, {S(sT0)}, {S(sT1)}")
        e(f"s_sub_u32 {S(sT0)}, {S(sT0)}, 0x4000")
        if True:
            e(f"s_lshl_b32 {S(sT2)}, {S(sXCD)}, 14"); e(f"s_add_u32 {S(sT2)}, {S(sT2)}, {S(sT1)}"); e(f"s_add_u32 {S(sT2)}, {S(sT2)}, {X2H_OFF-X2_OFF-0x4000}")
            e(f"s_cmp_lt_u32 {S(si)}, 2"); e(f"s_cselect_b32 {S(sT1)}, {S(sD+9)}, 0"); e(f"s_cmp_lg_u32 {S(sT1)}, 0"); e(f"s_cselect_b32 {S(sT0)}, {S(sT2)}, {S(sT0)}")
        e(f"v_add_u32 {R(vX+k)}, {S(sT0)}, {R(vX+k)}")
    def bump(regs,s):
        d=STG if s%4!=3 else -3*STG
        for r in regs: e(f"v_add_u32 {R(r)}, {d&0xffffffff:#x}, {R(r)}")
    def xaddr(dst,n,step,rowbase,w16):
        if w16: e(f"v_and_b32 {R(tmp)}, 15, {R(vL)}"); e(f"v_lshrrev_b32 {R(tmp+1)}, 4, {R(vL)}")
        else: e(f"v_and_b32 {R(tmp)}, 31, {R(vL)}"); e(f"v_lshrrev_b32 {R(tmp+1)}, 5, {R(vL)}")
        if rowbase is not None: e(f"v_add_u32 {R(tmp)}, {rowbase}, {R(tmp)}")
        e(f"v_bfe_u32 {R(tmp+2)}, {R(tmp)}, 1, 3"); e(f"v_xor_b32 {R(tmp+1)}, {R(tmp+1)}, {R(tmp+2)}")
        e(f"v_lshlrev_b32 {R(tmp+1)}, 4, {R(tmp+1)}"); e(f"v_lshl_add_u32 {R(dst)}, {R(tmp)}, 7, {R(tmp+1)}")
        for i in range(1,n): e(f"v_xor_b32 {R(dst+i)}, {i*step}, {R(dst)}")
    if True:
        e(f"s_cmp_lt_u32 {S(sJ)}, 8"); e(f"s_cselect_b32 {S(sD+9)}, {S(sXCD)}, 0"); e(f"s_mul_i32 {S(sD+9)}, {S(sD+9)}, {S(sL)}")
        e(f"s_and_b32 {S(sD+12)}, {S(sJ)}, 24"); e(f"s_max_u32 {S(sT0)}, {S(sD+12)}, 8"); e(f"s_sub_u32 {S(sT0)}, {S(sT0)}, 8"); e(f"s_lshl_b32 {S(sT0)}, {S(sT0)}, 2")
        e(f"s_lshl_b32 {S(sT1)}, {S(sXCD)}, 7"); e(f"s_add_u32 {S(sT0)}, {S(sT0)}, {S(sT1)}"); e(f"s_add_u32 {S(sT0)}, {S(sT0)}, {3*1024}")
        e(f"s_add_u32 {S(sT1)}, {S(sT1)}, {7*1024-128+96}"); e(f"s_cmp_lg_u32 {S(sD+9)}, 0"); e(f"s_cselect_b32 {S(sD+13)}, {S(sT1)}, {S(sT0)}")
    xslot(sW,0)
    with ifL(e,1): waitflags(e,3,sD+12,8,sD+13)
    e(f"s_cmp_ge_u32 {S(sW)}, 4"); e(f"s_cbranch_scc1 {lab_l}")
    first3([0])
    q0=list(e.vm); q1=list(e.alt)
    e(f"s_cmp_eq_u32 {S(sW)}, 3"); e(f"s_cbranch_scc1 {lab_h}")
    vXa,vTa,vAcc,vF=2,6,32,96
    xaddr(vXa,4,32,16,False)
    tr_lane_base(e,vTa,tmp,"head")
    pA,nA,pB,nB=sD+10,sD+11,sD+12,sD+13
    e(f"s_min_u32 {S(pA)}, {S(sW)}, 1"); e(f"s_lshr_b32 {S(nA)}, {S(sW)}, 1"); e(f"s_lshl_b32 {S(pB)}, {S(pA)}, 1")
    e(f"s_and_b32 {S(nB)}, {S(sW)}, 1"); e(f"s_xor_b32 {S(nB)}, {S(nB)}, 1")
    for r,p,n in ((vTa+1,pB,nB),(vTa,pA,nA)):
        e(f"s_lshl_b32 {S(sT0)}, {S(n)}, 6"); e(f"v_xor_b32 {R(r)}, {S(sT0)}, {R(vTa)}")
        e(f"s_lshl_b32 {S(sT0)}, {S(p)}, 13"); e(f"s_add_u32 {S(sT0)}, {S(sT0)}, {WOF}"); e(f"v_add_u32 {R(r)}, {S(sT0)}, {R(r)}")
    def rd(t,p):
        b=vF+(t&1)*16; ks=t&3
        if p==0: trread(e,b+8,vTa,ks*2048,("a",t))
        if p==1: e.lds(f"ds_read_b128 {R(b,4)}, {R(vXa+ks)}",("a",t)); e.lds(f"ds_read_b128 {R(b+4,4)}, {R(vXa+ks)} offset:4096",("b",t))
        if p==2: trread(e,b+12,vTa+1,ks*2048,("c",t))
    e.wvm(("S",0)); e.bar(); stamp(e,1)
    for p in range(3): rd(0,p)
    for t in range(32):
        nx=t+1<32
        if nx and (t+1)%4==0:
            s=(t+1)//4
            e.wvm(("S",s)); (e.wlg0() if s<=4 else None); bump(range(vXa,vXa+6),s-1); (e.bar() if s<7 else None); stamp(e,1+s)
        b=vF+(t&1)*16
        if nx: rd(t+1,0)
        e.wlg(("a",t)); mfma32(e,vAcc,b+8,b,t==0)
        if nx: rd(t+1,1)
        e.wlg(("b",t)); mfma32(e,vAcc+16,b+8,b+4,t==0)
        if nx: rd(t+1,2)
        e.wlg(("c",t)); mfma32(e,vAcc+32,b+12,b,t==0); mfma32(e,vAcc+48,b+12,b+4,t==0)
    vC,vSt,vWA,vWB,vP=128,160,2,3,168
    e(f"v_lshrrev_b32 {R(tmp)}, 5, {R(vL)}"); e(f"v_and_b32 {R(tmp+1)}, 31, {R(vL)}")
    for r,p,n in ((4,pA,nA),(5,pB,nB)):
        e(f"s_lshl_b32 {S(sT0)}, {S(p)}, 8"); e(f"s_lshl_b32 {S(sT1)}, {S(n)}, 7"); e(f"s_add_u32 {S(sT0)}, {S(sT0)}, {S(sT1)}")
        e(f"s_add_u32 {S(sT0)}, {S(sT0)}, {CS1}"); e(f"v_lshl_add_u32 {R(r)}, {R(tmp)}, 6, {S(sT0)}")
    e(f"v_lshlrev_b32 {R(6)}, 3, {R(tmp+1)}"); e(f"v_add_u32 {R(6)}, {ST1+128:#x}, {R(6)}")
    e(f"v_mul_u32_u24 {R(vWA)}, 144, {R(tmp+1)}"); e(f"v_lshl_add_u32 {R(vWA)}, {R(tmp)}, 5, {R(vWA)}")
    e(f"v_mul_u32_u24 {R(vWB)}, 272, {R(tmp+1)}"); e(f"v_lshl_add_u32 {R(vWB)}, {R(tmp)}, 6, {R(vWB)}")
    e(f"s_mul_i32 {S(sT0)}, {S(pA)}, {KB+16*144}"); e(f"s_lshl_b32 {S(sT1)}, {S(nA)}, 6"); e(f"s_add_u32 {S(sT0)}, {S(sT0)}, {S(sT1)}")
    e(f"v_add_u32 {R(vWA)}, {S(sT0)}, {R(vWA)}")
    e(f"s_lshl_b32 {S(sT1)}, {S(nB)}, 7"); e(f"s_add_u32 {S(sT1)}, {S(sT1)}, {VB+16*272}"); e(f"v_add_u32 {R(vWB)}, {S(sT1)}, {R(vWB)}")
    e.bar(); stamp(e,9)
    for m in range(2): e.lds(f"ds_read_b64 {R(vSt+2*m,2)}, {R(6)} offset:{m*256}","st")
    for T in range(2):
        for g in range(4): e.lds(f"ds_read_b128 {R(vC+16*T+4*g,4)}, {R(4+T)} offset:{g*16}",("c",T))
    def corr(T,m):
        b=vAcc+32*T+16*m
        for j in range(8): e(f"v_pk_fma_f32 {R(b+2*j,2)}, {R(vC+16*T+2*j,2)}, {R(vSt+2*m,2)}, {R(b+2*j,2)} op_sel_hi:[1,0,1]")
        for j in range(8): e(f"v_pk_mul_f32 {R(b+2*j,2)}, {R(b+2*j,2)}, {R(vSt+2*m,2)} op_sel:[0,1] op_sel_hi:[1,1]")
    def wr16(T,m,off):
        b=vAcc+32*T+16*m; p=vP+8*(2*T+m)
        for j in range(8): e(f"v_cvt_pk_bf16_f32 {R(p+j)}, {R(b+2*j)}, {R(b+2*j+1)}")
        for j in range(2): e(f"ds_write_b128 {R(vWA)}, {R(p+4*j,4)} offset:{off+m*32*144+16*j}")
    e.wlg(("c",0))
    for m in range(2): corr(0,m); wr16(0,m,0)
    e.wlg0()
    for m in range(2): corr(1,m)
    lv=e.newlab("p1v"); e(f"s_cmp_lg_u32 {S(sW)}, 0"); e(f"s_cbranch_scc1 {lv}")
    for m in range(2): wr16(1,m,64)
    e(f"s_branch {lab_att}")
    e.lab(lv)
    for m in range(2):
        for j in range(4): e(f"ds_write_b128 {R(vWB)}, {R(vAcc+32+16*m+4*j,4)} offset:{m*32*272+16*j}")
    e(f"s_branch {lab_att}")
    e.lab(lab_h); e.reset(); e.vm=list(q0); e.alt=list(q1)
    vXa,vTh,vAcc,vXf,vWf=2,4,32,80,96
    xaddr(vXa,2,64,None,True)
    e(f"v_lshrrev_b32 {R(tmp)}, 4, {R(vL)}"); e(f"v_bfe_u32 {R(tmp+1)}, {R(vL)}, 2, 2")
    e(f"v_lshl_add_u32 {R(vTh)}, {R(tmp)}, 3, {R(tmp+1)}"); e(f"v_lshlrev_b32 {R(vTh)}, 7, {R(vTh)}")
    e(f"v_and_b32 {R(tmp)}, 1, {R(tmp)}"); e(f"v_lshlrev_b32 {R(tmp)}, 1, {R(tmp)}"); e(f"v_lshrrev_b32 {R(tmp+1)}, 1, {R(tmp+1)}")
    e(f"v_lshl_or_b32 {R(tmp)}, {R(tmp+1)}, 2, {R(tmp)}"); e(f"v_bfe_u32 {R(tmp+1)}, {R(vL)}, 1, 1"); e(f"v_or_b32 {R(tmp)}, {R(tmp)}, {R(tmp+1)}")
    e(f"v_lshl_add_u32 {R(vTh)}, {R(tmp)}, 4, {R(vTh)}"); e(f"v_and_b32 {R(tmp)}, 1, {R(vL)}"); e(f"v_lshl_add_u32 {R(vTh)}, {R(tmp)}, 3, {R(vTh)}")
    e(f"v_add_u32 {R(vTh)}, {WOF}, {R(vTh)}")
    for h in range(1,4): e(f"v_xor_b32 {R(vTh+h)}, {h*32}, {R(vTh)}")
    e(f"v_and_b32 {R(tmp)}, 15, {R(vL)}"); e(f"v_cmp_eq_u32 vcc, 0, {R(tmp)}"); e(f"v_mov_b32 {R(12)}, {S(sONE)}")
    def rdu(u,h):
        T,p=divmod(u,3); kk=T&1
        if p==0 and h==0: e.lds(f"ds_read_b128 {R(vXf+4*(T&1),4)}, {R(vXa+kk)}",("x",T))
        trread(e,vWf+(u&1)*16+4*h,vTh+h,p*8192+kk*4096,("w",u,h))
    e.wvm(("S",0)); e.bar()
    for h in range(4): rdu(0,h)
    for u in range(48):
        T,p=divmod(u,3)
        if u+1<48 and (u+1)%6==0:
            s=(u+1)//6
            e.wvm(("S",s)); (e.wlg0() if s<=4 else None); bump(range(vXa,vXa+6),s-1); (e.bar() if s<7 else None)
            if s==2:
                with ifL(e,0): hello(e)
        if p==0:
            e.wlg(("x",T))
            for i in range(4): e(f"v_cndmask_b32 {R(vXf+4*(T&1)+i)}, {R(vXf+4*(T&1)+i)}, {R(12)}, vcc")
            e.nop(2)
        for h in range(4):
            if u+1<48: rdu(u+1,h)
            e.wlg(("w",u,h)); mfma16(e,vAcc+16*p+4*h,vWf+(u&1)*16+4*h,vXf+4*(T&1),T==0)
    e(f"v_lshrrev_b32 {R(tmp)}, 4, {R(vL)}"); e(f"v_and_b32 {R(tmp+1)}, 15, {R(vL)}")
    e(f"v_lshlrev_b32 {R(2)}, 4, {R(tmp)}"); e(f"v_add_u32 {R(2)}, {CS1}, {R(2)}")
    e(f"v_lshlrev_b32 {R(3)}, 3, {R(tmp+1)}"); e(f"v_add_u32 {R(3)}, {ST1}, {R(3)}")
    e(f"v_mul_u32_u24 {R(4)}, 144, {R(tmp+1)}"); e(f"v_lshl_add_u32 {R(4)}, {R(tmp)}, 3, {R(4)}")
    e(f"v_mul_u32_u24 {R(5)}, 272, {R(tmp+1)}"); e(f"v_lshl_add_u32 {R(5)}, {R(tmp)}, 4, {R(5)}")
    e(f"s_and_saveexec_b64 {S(sD+14,2)}, vcc")
    for i in range(12): e(f"ds_write_b128 {R(2)}, {R(vAcc+4*i,4)} offset:{i*64}")
    e(f"s_mov_b64 exec, {S(sD+14,2)}")
    e.wlg0(); e.bar()
    vC,vSt=96,80
    e.lds(f"ds_read_b64 {R(vSt,2)}, {R(3)}","st")
    for i in range(8): e.lds(f"ds_read_b128 {R(vC+4*i,4)}, {R(2)} offset:{(4+i)*64}",("c",i))
    for i in range(8):
        e.wlg(("c",i)); b=vAcc+16+4*i
        for j in range(2): e(f"v_pk_fma_f32 {R(b+2*j,2)}, {R(vC+4*i+2*j,2)}, {R(vSt,2)}, {R(b+2*j,2)} op_sel_hi:[1,0,1]")
        for j in range(2): e(f"v_pk_mul_f32 {R(b+2*j,2)}, {R(b+2*j,2)}, {R(vSt,2)} op_sel:[0,1] op_sel_hi:[1,1]")
        if i<4:
            for j in range(2): e(f"v_cvt_pk_bf16_f32 {R(b+j)}, {R(b+2*j)}, {R(b+2*j+1)}")
            e.lds(f"ds_write_b64 {R(4)}, {R(b,2)} offset:{KB+i*32}")
        else: e.lds(f"ds_write_b128 {R(5)}, {R(b,4)} offset:{VB+(i-4)*64}")
    e(f"s_branch {lab_att}")
    e.lab(lab_l); e.reset(); e('s_setprio 2')
    j=sD+10; e(f"s_sub_u32 {S(j)}, {S(sW)}, 4")
    e(f"s_and_b32 {S(sD+11)}, {S(j)}, 1"); e(f"s_add_u32 {S(sD+11)}, {S(sD+11)}, 8"); xslot(sD+11,1)
    first3([0,1])
    wslots(e,j,3); xslot(j,2)
    vXa,vF,vS=2,32,12
    e(f"s_min_u32 {S(sT2)}, {S(j)}, 2"); e(f"s_lshl_b32 {S(sT2)}, {S(sT2)}, 5"); e(f"s_sub_u32 {S(sT2)}, {S(sT2)}, 16"); e(f"s_max_i32 {S(sT2)}, {S(sT2)}, 0")
    xaddr(vXa,4,32,S(sT2),False)
    e(f"v_lshlrev_b32 {R(6)}, 3, {R(tmp)}"); e(f"v_add_u32 {R(6)}, {ST1}, {R(6)}")
    for i in range(4): e(f"v_mov_b32 {R(vS+i)}, 0")
    for s in range(8):
        if s<7: e.wvm(("S",s if s<6 else 7)); e.bar()
        for ks in range(4): e.lds(f"ds_read_b128 {R(vF+4*ks,4)}, {R(vXa+ks)}",("x",ks))
        if s<=4: issue(s+3,range(6),[0,1,2])
        if s==0: pfl(e,srdS,pQKV,512*3072,[(sJ,30720),(j,7680)],192*3072,60,7)
        p1_trickle(e,L,s,j)
        if s<7: bump(range(vXa,vXa+4),s)
        for ks in range(4):
            e.wlg(("x",ks))
            for i in range(4):
                e(f"v_dot2_f32_bf16 {R(vS+(i&1))}, {R(vF+4*ks+i)}, {S(sONE)}, {R(vS+(i&1))}")
                e(f"v_dot2_f32_bf16 {R(vS+2+(i&1))}, {R(vF+4*ks+i)}, {R(vF+4*ks+i)}, {R(vS+2+(i&1))}")
    e.nop(3); e(f"v_add_f32 {R(vS)}, {R(vS)}, {R(vS+1)}"); e(f"v_add_f32 {R(vS+1)}, {R(vS+2)}, {R(vS+3)}")
    allsum_halves(e,vS,vS+2); allsum_halves(e,vS+1,vS+2)
    meanrstd(e,vS,vS+1,tmp); e(f"v_sub_f32 {R(vS)}, 0, {R(vS)}")
    e(f"ds_write_b64 {R(6)}, {R(vS,2)}"); e.wlg0(); e.bar()
    e.lab(lab_att); e.reset(); e('s_setprio 0')
    vQ,vK,vV,vLg,vO=16,32,96,160,176
    mt,h=sD,sD+1
    e(f"s_lshr_b32 {S(mt)}, {S(sW)}, 2"); e(f"s_and_b32 {S(h)}, {S(sW)}, 3")
    e(f"v_and_b32 {R(tmp)}, 31, {R(vL)}"); e(f"s_lshl_b32 {S(sT0)}, {S(mt)}, 5"); e(f"v_add_u32 {R(tmp)}, {S(sT0)}, {R(tmp)}")
    e(f"v_lshrrev_b32 {R(tmp+1)}, 5, {R(vL)}")
    e(f"s_lshl_b32 {S(sT0)}, {S(h)}, 5"); e(f"v_mul_u32_u24 {R(2)}, 144, {R(tmp)}"); e(f"v_add_u32 {R(2)}, {S(sT0)}, {R(2)}"); e(f"v_lshl_add_u32 {R(2)}, {R(tmp+1)}, 4, {R(2)}")
    e(f"s_lshl_b32 {S(sT0)}, {S(h)}, 6"); e(f"v_mul_u32_u24 {R(3)}, 272, {R(tmp)}"); e(f"v_lshl_add_u32 {R(3)}, {R(tmp+1)}, 5, {R(3)}"); e(f"v_add_u32 {R(3)}, {S(sT0)}, {R(3)}")
    e(f"s_lshl_b32 {S(sT0)}, {S(sMB)}, 6"); e(f"v_add_u32 {R(4)}, {S(sT0)}, {R(tmp)}")
    e(f"s_lshl_b32 {S(sT0)}, {S(sMB)}, 1"); e(f"s_add_u32 {S(sT0)}, {S(sT0)}, {S(mt)}"); e(f"s_lshl_b32 {S(sT0)}, {S(sT0)}, 5")
    e(f"s_lshl_b32 {S(sT1)}, {S(sNB)}, 2"); e(f"s_add_u32 {S(sT0)}, {S(sT0)}, {S(sT1)}"); e(f"s_add_u32 {S(sT0)}, {S(sT0)}, {S(h)}"); e(f"s_lshl_b32 {S(sT0)}, {S(sT0)}, 10")
    e(f"v_lshl_add_u32 {R(5)}, {R(vL)}, 4, {S(sT0)}")
    srd(e,srdW,pWO,0,512*1024); bsrc(e,14,tmp,8,sKQ,sMH,WO_LDS,16384,sLB)
    e(f"v_mov_b32 {R(6)}, 0xce6e6b28"); e(f"v_mov_b32 {R(7)}, 0x3eb8aa3b")
    e.wlg0(); e.bar(); stamp(e,10)
    e.lds(f"ds_read_b128 {R(vQ,4)}, {R(2)} offset:{QB}","q")
    for jj in range(8): e.lds(f"ds_read_b128 {R(vK+4*jj,4)}, {R(2)} offset:{KB+288+(7-jj)*288}",("k",jj))
    for jj in range(8):
        for i in range(2): e.lds(f"ds_read_b128 {R(vV+8*jj+4*i,4)}, {R(3)} offset:{VB+544+(7-jj)*544+16*i}",("v",jj))
        if jj in (1,3,5,7):
            e.wlg(("k",jj))
            for i in range(4):
                for j2 in (jj-1,jj): e(f"v_dot2_f32_bf16 {R(vLg+j2)}, {R(vQ+i)}, {R(vK+4*j2+i)}, {R(vLg+j2) if i else '0'}")
        dma(e,14,srdW,jj*16384,(sLB,jj*2048),"pre")
    vT=vK
    for jj in range(8): e(f"v_mov_b32 {R(vT+jj)}, {R(vLg+jj)}")
    for jj in range(8): e(f"v_permlane32_swap_b32 {R(vT+jj)}, {R(vLg+jj)}")
    for jj in range(4): e(f"v_pk_add_f32 {R(vLg+2*jj,2)}, {R(vLg+2*jj,2)}, {R(vT+2*jj,2)}")
    for jj in range(1,8): e(f"v_cmp_le_u32 {S(sD+2*jj,2)}, {2*jj}, {R(4)}")
    for jj in range(1,8): e(f"v_cndmask_b32 {R(vLg+jj)}, {R(6)}, {R(vLg+jj)}, {S(sD+2*jj,2)}")
    m=8
    e(f"v_max3_f32 {R(m)}, {R(vLg)}, {R(vLg+1)}, {R(vLg+2)}"); e(f"v_max3_f32 {R(m)}, {R(m)}, {R(vLg+3)}, {R(vLg+4)}")
    e(f"v_max3_f32 {R(m)}, {R(m)}, {R(vLg+5)}, {R(vLg+6)}"); e(f"v_max_f32 {R(m)}, {R(m)}, {R(vLg+7)}")
    for jj in range(8): e(f"v_sub_f32 {R(vLg+jj)}, {R(vLg+jj)}, {R(m)}")
    for jj in range(8): e(f"v_mul_f32 {R(vLg+jj)}, {R(7)}, {R(vLg+jj)}")
    for jj in range(8): e(f"v_exp_f32 {R(vLg+jj)}, {R(vLg+jj)}")
    e.nop(1)
    e(f"v_pk_add_f32 {R(10,2)}, {R(vLg,2)}, {R(vLg+2,2)}"); e(f"v_pk_add_f32 {R(12,2)}, {R(vLg+4,2)}, {R(vLg+6,2)}")
    e(f"v_pk_add_f32 {R(10,2)}, {R(10,2)}, {R(12,2)}"); e(f"v_add_f32 {R(10)}, {R(10)}, {R(11)}"); e(f"v_rcp_f32 {R(10)}, {R(10)}")
    for jj in range(8):
        e.wlg(("v",jj)); pb=vLg+(jj&~1); o=jj&1
        for i in range(4):
            if jj==0: e(f"v_pk_mul_f32 {R(vO+2*i,2)}, {R(vV+2*i,2)}, {R(pb,2)} op_sel_hi:[1,0]")
            else: e(f"v_pk_fma_f32 {R(vO+2*i,2)}, {R(vV+8*jj+2*i,2)}, {R(pb,2)}, {R(vO+2*i,2)} op_sel:[0,{o},0] op_sel_hi:[1,{o},1]")
    for i in range(4): e(f"v_pk_mul_f32 {R(vO+2*i,2)}, {R(vO+2*i,2)}, {R(10,2)} op_sel_hi:[1,0]")
    for i in range(4): e(f"v_cvt_pk_bf16_f32 {R(vQ+i)}, {R(vO+2*i)}, {R(vO+2*i+1)}")
    with ifL(e,0): getmode(e)
    gstore(e,f"buffer_store_dwordx4 {R(vQ,4)}, {R(5)}, {S(srdO,4)}, 0 offen","st")
    publish(e,L*4)
    return ST1+1024

def desc(k):
    return f""".p2align 6
.amdhsa_kernel {k}
  .amdhsa_next_free_vgpr 256
  .amdhsa_next_free_sgpr 102
  .amdhsa_accum_offset 256
  .amdhsa_group_segment_fixed_size 0
  .amdhsa_kernarg_size 72
  .amdhsa_user_sgpr_count 2
  .amdhsa_user_sgpr_kernarg_segment_ptr 1
  .amdhsa_system_sgpr_workgroup_id_x 1
.end_amdhsa_kernel
"""
def build_multi():
    e=Em(); hdr=""; ks=[]
    for L in range(2):
        for p in (1,2,3,4):
            k=f"p{p}l{L}_kernel"; ks.append(k); nwg=224 if p==3 else 256
            e.L.append(f".globl {k}\n.p2align 8\n.type {k},@function\n{k}:"); e.endlab=f"end_{k}"; e.reset()
            prologue(e,nwg)
            lds=phase1(e,L) if p==1 else phase3(e,L) if p==3 else phase_rs(e,L,p)
            stamp_flush(e,L*4+p-1)
            e.lab(e.endlab); e("s_endpgm")
            hdr+=f"; @launch kernel={k} grid=({nwg},1,1) block=(512,1,1) lds={lds}\n"
    return hdr+'.amdgcn_target "amdgcn-amd-amdhsa--gfx950"\n.text\n'+e.text()+'.section .rodata,"a"\n'+"".join(desc(k) for k in ks)
def build_pers():
    e=Em(); k=NAME+"_kernel"
    e.L.append(f".globl {k}\n.p2align 8\n.type {k},@function\n{k}:"); e.endlab="end_all"
    prologue(e,256)
    e(f"s_mov_b32 {S(sL)}, 0"); e(f"s_mov_b32 {S(sFO)}, 0"); e("v_mov_b32 v15, 0")
    ids64(e); p1_setup(e,0)
    p1_issue(e,0,0,range(3),[])
    srd(e,srdD,50,0,256); srd(e,srdF,pWS,FL_OFF,16384)
    e.lab("layer")
    for p in (1,2,3,4):
        e.reset()
        if p>1: stamp(e,0)
        phase1(e,0) if p==1 else phase3(e,0) if p==3 else phase_rs(e,0,p)
        stamp_flush(e,p-1)
    e(f"s_mov_b32 {S(sL)}, 1"); e(f"s_mov_b32 {S(sFO)}, 4096"); stamp(e,0); e("s_branch layer")
    e.lab(e.endlab); e("s_endpgm")
    return f"; @launch grid=(256,1,1) block=(512,1,1) lds=163840\n"+'.amdgcn_target "amdgcn-amd-amdhsa--gfx950"\n.text\n'+e.text()+'.section .rodata,"a"\n'+desc(k)
if __name__=="__main__":
    if "slow" in sys.argv: FORCE_SLOW=True
    if "prof" in sys.argv: PROF=True
    out=sys.argv[1] if len(sys.argv)>1 else f"cdna_kernels/{NAME}.s"
    open(out,"w").write(build_pers())
```

```python
import sys,os
DBG=os.environ.get('DBG','')
from em import *
NAME="interleave_layers__sliding_local_dilated__dense_activation_silu__prompt"
MB=1<<20
O_OFF,X1_OFF,H_OFF,X2_OFF,ST_OFF=0,2*MB,4*MB,12*MB,14*MB
LSTRIDE=0 if 'fresh' not in DBG else 16*MB
sW,sXCD,sJ,sT0,sT1,sT2,sT3,sMB,sNB,sKQ,sMH,sLB=3,4,5,6,7,8,9,10,11,12,13,14
sONE=15
srdA,srdW,srdR,srdO,srdS=16,20,24,28,32
pX,pQKV,pWO,pW1,pW2,pOUT,pWS=36,38,40,44,46,48,52
sD=56
vL=1
sMODE,sTAG=54,55
sL,sFO=100,101
import contextlib
@contextlib.contextmanager
def ifL(e,v):
    sk=e.newlab('ifl'); e(f's_cmp_lg_u32 {S(sL)}, {v}'); e(f's_cbranch_scc1 {sk}'); q=list(e.vm)
    yield
    e.lab(sk); e.vm=q
def srdsel(e,d,p0,o0,z0,p1,o1,z1):
    srd(e,d,p1,o1,z1)
    with ifL(e,0): srd(e,d,p0,o0,z0)
srdF,srdD=96,24
FL_OFF,X2H_OFF=40*MB,15*MB
vRES=248
vINFO=244
FORCE_SLOW=False
ONES=0x3F803F80

PROF=False
def stamp(e,i):
    if PROF: e(f"s_memrealtime {S(72+2*i,2)}")
def stamp_flush(e,slot,n=12):
    if not PROF: return
    sk=e.newlab("nopf"); e(f"s_cmp_lg_u32 {S(sW)}, {4 if 'w4' in DBG else 0}"); e(f"s_cbranch_scc1 {sk}")
    e("s_waitcnt vmcnt(0)"); stamp(e,n-1); e("s_waitcnt lgkmcnt(0)")
    srd(e,srdS,pWS,200*MB,MB)
    e(f"s_lshl_b32 {S(sT0)}, s2, 7"); e(f"s_add_u32 {S(sT0)}, {S(sT0)}, {slot*32768}"); e(f"s_lshl_b32 {S(sT1)}, {S(sL)}, 17"); e(f"s_add_u32 {S(sT0)}, {S(sT0)}, {S(sT1)}"); e(f"v_mov_b32 v2, {S(sT0)}")
    for i in range(n):
        e(f"v_mov_b32 v4, {S(72+2*i)}"); e(f"v_mov_b32 v5, {S(73+2*i)}"); e(f"buffer_store_dwordx2 v[4:5], v2, {S(srdS,4)}, 0 offen offset:{i*8}"); e.nop(2)
    e.lab(sk)
def gstore(e,instr,tag):
    a,b=e.newlab("gs"),e.newlab("gd")
    e(f"s_cmp_eq_u32 {S(sMODE)}, 0"); e(f"s_cbranch_scc1 {a}"); e.vmem(instr+(' nt' if 'stnt' in DBG else ' sc0' if 'stsc0' in DBG else ''),tag); e(f"s_branch {b}")
    e.lab(a); e(instr+" sc1"); e.lab(b)
def spin(e,body,cond):
    lp,out=e.newlab("spin"),e.newlab("spun")
    e(f"s_mov_b32 {S(sT3)}, 0"); e.lab(lp); body()
    e(f"s_add_u32 {S(sT3)}, {S(sT3)}, 1"); e(f"s_cmp_gt_u32 {S(sT3)}, 0x40000"); e(f"s_cbranch_scc1 {out}")
    cond(lp); e.lab(out)
def publish(e,ph,pre=None):
    e.wvm0(); e.bar()
    sk=e.newlab("nopub"); e(f"s_cmp_lg_u32 {S(sW)}, 0"); e(f"s_cbranch_scc1 {sk}")
    e(f"s_lshl_b32 {S(sT0)}, {S(sXCD)}, 7"); e(f"s_lshl_b32 {S(sT1)}, {S(sJ)}, 2"); e(f"s_add_u32 {S(sT0)}, {S(sT0)}, {S(sT1)}")
    e(f"v_mov_b32 v2, {S(sT0)}"); e(f"v_mov_b32 v3, {S(sTAG)}"); e("s_mov_b64 exec, 1")
    e(f"s_add_u32 {S(sT2)}, {S(sFO)}, {ph*1024}")
    gstore(e,f"buffer_store_dword v3, v2, {S(srdF,4)}, {S(sT2)} offen","fl")
    if pre: pre()
    e("s_mov_b64 exec, -1"); e.lab(sk); e.reset()
def waitflags(e,ph,jbase,n,second=None):
    sk=e.newlab("nopoll"); e(f"s_cmp_lg_u32 {S(sW)}, 0"); e(f"s_cbranch_scc1 {sk}")
    e(f"s_lshl_b32 {S(sT0)}, {S(sXCD)}, 7"); e(f"s_lshl_b32 {S(sT1)}, {S(jbase)}, 2"); e(f"s_add_u32 {S(sT0)}, {S(sT0)}, {S(sT1)}")
    e(f"s_add_u32 {S(sT0)}, {S(sT0)}, {ph*1024}")
    if ph<3: e(f"s_add_u32 {S(sT0)}, {S(sT0)}, {S(sFO)}")
    e(f"v_min_u32 v2, {n-1}, {R(vL)}"); e(f"v_lshl_add_u32 v2, v2, 2, {S(sT0)}")
    if second is not None:
        e(f"v_and_b32 v3, 7, {R(vL)}"); e(f"v_lshl_add_u32 v3, v3, 2, {S(second)}"); e(f"v_cmp_gt_u32 vcc, 8, {R(vL)}"); e.nop(2); e("v_cndmask_b32 v2, v3, v2, vcc")
    def body(): e(f"buffer_load_dword v3, v2, {S(srdF,4)}, 0 offen sc1"); e("s_waitcnt vmcnt(0)"); e(f"v_cmp_ne_u32 vcc, {S(sTAG)}, v3")
    spin(e,body,lambda lp:e(f"s_cbranch_vccnz {lp}"))
    e(f"s_cmp_lg_u32 {S(sMODE)}, 0"); e(f"s_cbranch_scc1 {sk}"); e("buffer_inv sc1"); e("s_waitcnt vmcnt(0)")
    e.lab(sk); e.bar()
def hello(e):
    e(f"s_getreg_b32 {S(sT0)}, hwreg(HW_REG_XCC_ID, 0, 3)"); e(f"s_mul_i32 {S(sT0)}, {S(sT0)}, 6")
    e(f"s_lshl_b64 {S(sD+14,2)}, 1, {S(sT0)}"); e(f"s_add_u32 {S(sD+15)}, {S(sD+15)}, 0x1000000")
    e(f"s_lshl_b32 {S(sT1)}, {S(sXCD)}, 4"); e(f"v_mov_b32 v212, {S(sT1)}"); e(f"v_mov_b32 v214, {S(sD+14)}"); e(f"v_mov_b32 v215, {S(sD+15)}")
    e("s_mov_b64 exec, 1"); e.vmem(f"buffer_atomic_add_x2 v[214:215], v212, {S(srdD,4)}, 0 offen","hello")
    s2=e.newlab("notag"); e("s_cmp_lg_u32 s2, 0"); e(f"s_cbranch_scc1 {s2}")
    e("v_mov_b32 v212, 0x3000"); e(f"buffer_load_dword v213, v212, {S(srdF,4)}, 0 offen sc1"); e("s_waitcnt vmcnt(0)")
    e("v_add_u32 v213, 0x9e3779b9, v213"); e("v_max_u32 v213, 1, v213"); e(f"buffer_store_dword v213, v212, {S(srdF,4)}, 0 offen sc1")
    e("v_mov_b32 v212, 0x80"); e(f"buffer_store_dword v213, v212, {S(srdD,4)}, 0 offen sc1")
    e.lab(s2); e("s_mov_b64 exec, -1"); e.nop(4)
def getmode(e):
    e(f"s_lshl_b32 {S(sT0)}, {S(sXCD)}, 4"); e(f"v_mov_b32 {R(vINFO)}, {S(sT0)}"); e(f"v_mov_b32 {R(vINFO+1)}, 0x80")
    def body():
        e(f"buffer_load_dwordx2 {R(vINFO+2,2)}, {R(vINFO)}, {S(srdD,4)}, 0 offen sc1"); e(f"buffer_load_dword {R(vINFO-1)}, {R(vINFO+1)}, {S(srdD,4)}, 0 offen sc1")
        e("s_waitcnt vmcnt(0)"); e(f"v_readfirstlane_b32 {S(sD)}, {R(vINFO+2)}"); e(f"v_readfirstlane_b32 {S(sD+1)}, {R(vINFO+3)}"); e(f"v_readfirstlane_b32 {S(sTAG)}, {R(vINFO-1)}")
    def cond(lp):
        e(f"s_lshr_b32 {S(sT0)}, {S(sD+1)}, 24"); e(f"s_cmp_lt_u32 {S(sT0)}, 32"); e(f"s_cbranch_scc1 {lp}")
        e(f"s_cmp_eq_u32 {S(sTAG)}, 0"); e(f"s_cbranch_scc1 {lp}")
    spin(e,body,cond)
    e(f"s_getreg_b32 {S(sT0)}, hwreg(HW_REG_XCC_ID, 0, 3)"); e(f"s_mul_i32 {S(sT0)}, {S(sT0)}, 6")
    e(f"s_lshr_b64 {S(sD,2)}, {S(sD,2)}, {S(sT0)}"); e(f"s_and_b32 {S(sD)}, {S(sD)}, 63"); e(f"s_cmp_eq_u32 {S(sD)}, 32")
    e(f"s_cselect_b32 {S(sMODE)}, {0 if FORCE_SLOW else 1}, 0")
def prefetch(e,sr,ptr,total,nw,sw,va,dst,extra=None,off=0,only=None,nwg=32,sj=None):
    per=total//nwg//nw; lines=per//128; sj=sJ if sj is None else sj
    srd(e,sr,ptr,off,total if extra is None else 2*MB)
    e(f"s_mul_i32 {S(sT0)}, {S(sj)}, {total//nwg}"); e(f"s_mul_i32 {S(sT1)}, {S(sw)}, {per}"); e(f"s_add_u32 {S(sT0)}, {S(sT0)}, {S(sT1)}")
    if extra is not None: e(f"s_lshl_b32 {S(sT1)}, {S(sXCD)}, {extra}"); e(f"s_add_u32 {S(sT0)}, {S(sT0)}, {S(sT1)}")
    for i in range((lines+63)//64):
        if only is not None and i!=only: continue
        n=min(64,lines-64*i)
        e(f"v_min_u32 {R(va)}, {n-1}, {R(vL)}"); e(f"v_lshl_add_u32 {R(va)}, {R(va)}, 7, {S(sT0)}")
        if i: e(f"v_add_u32 {R(va)}, {8192*i}, {R(va)}")
        e.vmem(f"buffer_load_dword {R(dst)}, {R(va)}, {S(sr,4)}, 0 offen"+(' nt' if 'ntp' in DBG and NTS[sr] else ''),"pf")
def pfl(e,sr,ptr,total,terms,const,lines,va):
    srd(e,sr,ptr,0,total); e(f"s_mov_b32 {S(sT0)}, {const}")
    for sg,m in terms: e(f"s_mul_i32 {S(sT1)}, {S(sg)}, {m}"); e(f"s_add_u32 {S(sT0)}, {S(sT0)}, {S(sT1)}")
    for i in range((lines+63)//64):
        e(f"v_min_u32 {R(va)}, {min(64,lines-64*i)-1}, {R(vL)}"); e(f"v_lshl_add_u32 {R(va)}, {R(va)}, 7, {S(sT0)}")
        if i: e(f"v_add_u32 {R(va)}, {8192*i}, {R(va)}")
        e.vmem(f"buffer_load_dword v240, {R(va)}, {S(sr,4)}, 0 offen"+(' nt' if 'ntp' in DBG and NTS[sr] else ''),"pf")
def pf_w2(e,j,part):
    if part==0: pfl(e,srdR,pW2,1792*1024,[(j,448*1024),(sJ,5120)],0,40,7)
    else: pfl(e,srdR,pW2,1792*1024,[(j,448*1024),(sJ,9216)],160*1024,72,7)
def prologue(e,nwg):
    e(f"s_cmp_ge_u32 s2, {nwg}"); e("s_cbranch_scc1 "+e.endlab)
    stamp(e,0)
    e(f"s_load_dwordx16 s[36:51], s[0:1], 0"); e(f"s_load_dwordx2 s[52:53], s[0:1], 64")
    e("v_lshrrev_b32 v2, 6, v0"); e(f"v_and_b32 {R(vL)}, 63, v0")
    e(f"v_readfirstlane_b32 {S(sW)}, v2")
    e(f"s_and_b32 {S(sXCD)}, s2, 7"); e(f"s_lshr_b32 {S(sJ)}, s2, 3")
    e(f"s_mov_b32 {S(sONE)}, {ONES:#x}")
    e("s_waitcnt lgkmcnt(0)")
NTS={}
def srd(e,d,p,off,size):
    NTS[d]=(p in (pW1,pW2))
    if off: e(f"s_add_u32 {S(d)}, {S(p)}, {off:#x}"); e(f"s_addc_u32 {S(d+1)}, {S(p+1)}, 0")
    else: e(f"s_mov_b32 {S(d)}, {S(p)}"); e(f"s_mov_b32 {S(d+1)}, {S(p+1)}")
    e(f"s_mov_b32 {S(d+2)}, {size:#x}"); e(f"s_mov_b32 {S(d+3)}, 0x20000")
def dma(e,vaddr,srd_,soff,m0expr,tag,sc1=False):
    sg,c=m0expr
    if sg is None: e(f"s_mov_b32 m0, {c:#x}")
    else: e(f"s_add_u32 m0, {S(sg)}, {c:#x}")
    if soff: e(f"s_mov_b32 {S(sT3)}, {soff:#x}"); so=S(sT3)
    else: e("s_nop 0"); so="0"
    e.vmem(f"buffer_load_dwordx4 {R(vaddr)}, {S(srd_,4)}, {so} offen {'sc1 ' if sc1 else ''}{'nt ' if 'ntd' in DBG and NTS[srd_] else ''}lds",tag)
def ldfrag(e,dst,vaddr,srd_,t,tag,st):
    hi=t>>2
    if hi and (t&3==0 or st): e(f"s_mov_b32 {S(sT2)}, {hi*4096:#x}")
    so=S(sT2) if hi else "0"
    e.vmem(f"buffer_load_dwordx4 {R(dst,4)}, {R(vaddr)}, {S(srd_,4)}, {so} offen offset:{(t&3)*1024}"+' sc1'+(' nt' if 'nta' in DBG else ''),tag)
def tr_lane_base(e,dst,tmp,perm):
    a,b,c=tmp,tmp+1,tmp+2
    e(f"v_bfe_u32 {R(a)}, {R(vL)}, 2, 2")
    e(f"v_lshrrev_b32 {R(b)}, 5, {R(vL)}")
    e(f"v_lshl_add_u32 {R(dst)}, {R(b)}, 3, {R(a)}")
    e(f"v_lshlrev_b32 {R(dst)}, 7, {R(dst)}")
    e(f"v_lshrrev_b32 {R(a)}, 1, {R(a)}"); e(f"v_lshlrev_b32 {R(a)}, 2, {R(a)}")
    e(f"v_lshl_or_b32 {R(a)}, {R(b)}, 1, {R(a)}")
    if perm=="frag":
        e(f"v_bfe_u32 {R(b)}, {R(vL)}, 4, 1"); e(f"v_and_b32 {R(c)}, 1, {R(vL)}")
        e(f"v_lshl_or_b32 {R(b)}, {R(b)}, 1, {R(c)}"); e(f"v_bfe_u32 {R(c)}, {R(vL)}, 1, 1")
    else:
        e(f"v_and_b32 {R(b)}, 1, {R(vL)}"); e(f"v_bfe_u32 {R(c)}, {R(vL)}, 4, 1")
        e(f"v_lshl_or_b32 {R(b)}, {R(b)}, 1, {R(c)}"); e(f"v_bfe_u32 {R(c)}, {R(vL)}, 1, 1")
    e(f"v_xor_b32 {R(a)}, {R(a)}, {R(b)}")
    e(f"v_lshl_add_u32 {R(dst)}, {R(a)}, 4, {R(dst)}")
    e(f"v_lshl_add_u32 {R(dst)}, {R(c)}, 3, {R(dst)}")
def wdma_lane(e,dst,tmp,rowstride,odd):
    a,b=tmp,tmp+1
    e(f"v_lshrrev_b32 {R(a)}, 3, {R(vL)}")
    e(f"s_mov_b32 {S(sT0)}, {rowstride}"); e(f"v_mul_lo_u32 {R(dst)}, {R(a)}, {S(sT0)}")
    e(f"v_bfe_u32 {R(a)}, {R(vL)}, 4, 1"); e(f"v_lshlrev_b32 {R(a)}, 2, {R(a)}")
    if isinstance(odd,int):
        if odd: e(f"v_or_b32 {R(a)}, 2, {R(a)}")
    else: e(f"v_lshl_or_b32 {R(a)}, {odd}, 1, {R(a)}")
    e(f"v_and_b32 {R(b)}, 7, {R(vL)}"); e(f"v_xor_b32 {R(a)}, {R(a)}, {R(b)}")
    e(f"v_lshl_add_u32 {R(dst)}, {R(a)}, 4, {R(dst)}")
def mfma32(e,d,a,b,first): e(f"v_mfma_f32_32x32x16_bf16 {R(d,16)}, {R(a,4)}, {R(b,4)}, {'0' if first else R(d,16)}")
def mfma16(e,d,a,b,first): e(f"v_mfma_f32_16x16x32_bf16 {R(d,4)}, {R(a,4)}, {R(b,4)}, {'0' if first else R(d,4)}")
def trread(e,dst,va,off,tag):
    e.lds(f"ds_read_b64_tr_b16 {R(dst,2)}, {R(va)} offset:{off}",tag)
    e.lds(f"ds_read_b64_tr_b16 {R(dst+2,2)}, {R(va)} offset:{off+512}",tag)
def allsum_halves(e,a,t):
    e(f"v_mov_b32 {R(t)}, {R(a)}"); e.nop(2); e(f"v_permlane32_swap_b32 {R(t)}, {R(a)}"); e.nop(1); e(f"v_add_f32 {R(a)}, {R(a)}, {R(t)}")
def meanrstd(e,s_,q,t):
    e(f"v_mul_f32 {R(s_)}, 0x3b000000, {R(s_)}"); e(f"v_mul_f32 {R(q)}, 0x3b000000, {R(q)}")
    e(f"v_fma_f32 {R(q)}, -{R(s_)}, {R(s_)}, {R(q)}"); e(f"v_max_f32 {R(q)}, 0, {R(q)}")
    e(f"v_add_f32 {R(q)}, 0x3727c5ac, {R(q)}"); e(f"v_rsq_f32 {R(q)}, {R(q)}"); e.nop(1)

WO_LDS=96*1024
NPRE=int(os.environ.get('NPRE',14))
def ids64(e):
    e(f"s_lshr_b32 {S(sMB)}, {S(sJ)}, 3"); e(f"s_lshl_b32 {S(sT0)}, {S(sXCD)}, 2"); e(f"s_add_u32 {S(sMB)}, {S(sMB)}, {S(sT0)}")
    e(f"s_and_b32 {S(sNB)}, {S(sJ)}, 7"); e(f"s_and_b32 {S(sKQ)}, {S(sW)}, 3"); e(f"s_lshr_b32 {S(sMH)}, {S(sW)}, 2")
def bsrc(e,vB,tmp,KS,kq,mh,ldsbase,slab,sdst):
    wdma_lane(e,vB,tmp,1024,S(mh) if mh is not None else 0)
    e(f"s_mul_i32 {S(sT0)}, {S(kq)}, {KS*16*1024}"); e(f"s_and_b32 {S(sT1)}, {S(sJ)}, 7"); e(f"s_lshl_b32 {S(sT1)}, {S(sT1)}, 7"); e(f"s_add_u32 {S(sT0)}, {S(sT0)}, {S(sT1)}")
    e(f"s_mul_i32 {S(sdst)}, {S(kq)}, {slab}"); e(f"s_add_u32 {S(sdst)}, {S(sdst)}, {ldsbase}")
    if mh is not None:
        e(f"s_lshl_b32 {S(sT1)}, {S(mh)}, 13"); e(f"s_add_u32 {S(sT0)}, {S(sT0)}, {S(sT1)}")
        e(f"s_lshl_b32 {S(sT1)}, {S(mh)}, 10"); e(f"s_add_u32 {S(sdst)}, {S(sdst)}, {S(sT1)}")
    e(f"v_add_u32 {R(vB)}, {S(sT0)}, {R(vB)}")
def p4_preload(e,j,part):
    if part==0:
        srd(e,srdW,pW2,0,1792*1024); bsrc(e,14,9,28,j,None,0,40960,sLB)
        e("v_xor_b32 v15, 32, v14"); e("v_add_u32 v15, 0x2000, v15")
    for t in range(NPRE):
        for h in range(2): dma(e,14+h,srdW,t*16384,(sLB,t*2048+h*1024),"pre")
def phase_rs(e,L,which):
    P2=which==2
    K=512 if P2 else 1792; KS=K//64; RING=8 if P2 else 20; SLAB=RING*2048; LB=WO_LDS if P2 else 0; RB=0 if P2 else 112*1024; LA=8 if P2 else int(os.environ.get('LA',6))
    wo=L*LSTRIDE
    ids64(e)
    if P2:
        srd(e,srdA,pWS,wo+O_OFF,2*MB)
        srd(e,srdR,pX,0,2*MB)
        srd(e,srdO,pWS,wo+X1_OFF,2*MB); srd(e,srdS,pWS,wo+ST_OFF,128*1024)
    else:
        srd(e,srdA,pWS,wo+H_OFF,7*MB); srd(e,srdW,pW2,0,1792*1024); srd(e,srdR,pWS,X2H_OFF,128*1024)
        srdsel(e,srdO,pWS,X2_OFF,2*MB,pOUT,0,2*MB)
    vA,vB,vF,vRM,vT0,vT1,vRD,vRes,vAcc,vBf,vAf=12,13,4,5,6,7,8,vRES,16,48,80
    tmp=9; mt=sD+10; sb=sD+11
    e(f"s_lshl_b32 {S(mt)}, {S(sMB)}, 1"); e(f"s_add_u32 {S(mt)}, {S(mt)}, {S(sMH)}")
    e(f"s_mul_i32 {S(sT0)}, {S(mt)}, {K//16*1024}"); e(f"s_mul_i32 {S(sT1)}, {S(sKQ)}, {KS*1024}"); e(f"s_add_u32 {S(sT0)}, {S(sT0)}, {S(sT1)}")
    e(f"v_lshl_add_u32 {R(vA)}, {R(vL)}, 4, {S(sT0)}")
    if not P2: bsrc(e,vB,tmp,KS,sKQ,sMH,0,SLAB,sb)
    e(f"s_lshl_b32 {S(sT0)}, {S(mt)}, 5"); e(f"s_lshl_b32 {S(sT1)}, {S(sNB)}, 2"); e(f"s_add_u32 {S(sT1)}, {S(sT1)}, {S(sKQ)}")
    e(f"s_add_u32 {S(sT0)}, {S(sT0)}, {S(sT1)}"); e(f"s_lshl_b32 {S(sT0)}, {S(sT0)}, 10")
    e(f"v_lshl_add_u32 {R(vF)}, {R(vL)}, 4, {S(sT0)}")
    e(f"s_lshl_b32 {S(sT0)}, {S(mt)}, 15"); e(f"s_lshl_b32 {S(sT1)}, {S(sT1)}, 5"); e(f"s_add_u32 {S(sT0)}, {S(sT0)}, {S(sT1)}")
    e(f"v_and_b32 {R(tmp)}, 31, {R(vL)}"); e(f"v_lshlrev_b32 {R(tmp)}, 10, {R(tmp)}"); e(f"v_lshrrev_b32 {R(tmp+1)}, 5, {R(vL)}")
    e(f"v_lshl_add_u32 {R(tmp)}, {R(tmp+1)}, 4, {R(tmp)}"); e(f"v_add_u32 {R(vRM)}, {S(sT0)}, {R(tmp)}")
    tr_lane_base(e,vT0,tmp,"frag")
    e(f"s_mul_i32 {S(sT0)}, {S(sKQ)}, {SLAB}"); e(f"s_add_u32 {S(sT0)}, {S(sT0)}, {LB}")
    e(f"v_add_u32 {R(vT0)}, {S(sT0)}, {R(vT0)}"); e(f"v_xor_b32 {R(vT1)}, 64, {R(vT0)}")
    e(f"s_mul_i32 {S(sT0)}, {S(sMH)}, {12*2048}"); e(f"s_add_u32 {S(sT0)}, {S(sT0)}, {RB}"); e(f"v_lshl_add_u32 {R(vRD)}, {R(vL)}, 4, {S(sT0)}")
    def rd(t,nt): trread(e,vBf+(t&1)*8+nt*4,vT0+nt,(t%RING)*2048,("f",t,nt))
    if P2:
        with ifL(e,0): e(f"buffer_load_dwordx4 {R(vRes,4)}, {R(vRM)}, {S(srdR,4)}, 0 offen")
    if not P2:
        for u in range(NPRE,RING): dma(e,vB,srdW,u*16384,(sb,u*2048),"B1")
    if P2: e(f"s_and_b32 {S(sD+2)}, {S(sJ)}, 24"); waitflags(e,L*4,sD+2,8)
    else: e(f"s_lshr_b32 {S(sD+2)}, {S(sJ)}, 4"); e(f"s_mul_i32 {S(sD+2)}, {S(sD+2)}, 14"); waitflags(e,L*4+2,sD+2,14)
    stamp(e,9)
    for t in range(LA): ldfrag(e,vAf+4*t,vA,srdA,t,("A",t),False)
    if P2 and 'now1b' not in DBG and 'w1all' not in DBG: pfl(e,srdW,pW1,512*3584,[(sJ,24576),(sW,3072)],MB,24,tmp)
    rd(0,0); rd(0,1)
    for t in range(KS):
        if t+LA<KS: ldfrag(e,vAf+4*(t+LA),vA,srdA,t+LA,("A",t+LA),False)
        if not P2 and t==9:
            e.bar()
        if not P2 and 9<=t<17: u=RING+t-9; dma(e,vB,srdW,u*16384,(sb,(u%RING)*2048),"B")
        if t+1==RING and t+1<KS: e.wvm("B"); e.bar()
        e.wvm(("A",t))
        if t%4==0: stamp(e,1+t//4)
        for nt in range(2):
            if t+1<KS: rd(t+1,nt)
            e.wlg(("f",t,nt)); mfma32(e,vAcc+16*nt,vBf+(t&1)*8+nt*4,vAf+4*t,t==0)
        if not P2 and t==KS-LA:
            with ifL(e,0): (prefetch(e,srdS,pQKV,512*3072,8,sW,9,240) if 'qall' in DBG else pfl(e,srdS,pQKV,512*3072,[(sJ,18432),(sW,2304)],0,18,9)); p1_setup(e,1)
    if not P2: e.bar()
    stamp(e,10); e.nop(10)
    own=vBf
    done=e.newlab("rdone"); labs=[e.newlab("rv") for _ in range(4)]
    for q in range(1,4): e(f"s_cmp_eq_u32 {S(sKQ)}, {q}"); e(f"s_cbranch_scc1 {labs[q]}")
    for kq in range(4):
        e.lab(labs[kq])
        for q in range(4):
            if q==kq: continue
            for j in range(2): e(f"ds_write_b128 {R(vRD)}, {R(vAcc+8*q+4*j,4)} offset:{(q*3+((kq-q)&3)-1)*2048+j*1024}")
        for j in range(8): e(f"v_mov_b32 {R(own+j)}, {R(vAcc+8*kq+j)}")
        if kq<3: e(f"s_branch {done}")
    e.lab(done)
    e(f"s_mul_i32 {S(sT0)}, {S(sKQ)}, {3*2048}"); e(f"v_add_u32 {R(vRD)}, {S(sT0)}, {R(vRD)}")
    if not P2:
        with ifL(e,0):
            for s_ in range(3): p1_issue(e,1,s_,range(3),[])
    e.wlg0(); e.bar()
    for i in range(1,4):
        for j in range(2): e.lds(f"ds_read_b128 {R(own+8*i+4*j,4)}, {R(vRD)} offset:{(i-1)*2048+j*1024}",("p",i))
    e.wvm("res")
    rf=vAcc
    for j in range(4):
        e(f"v_lshlrev_b32 {R(rf+2*j)}, 16, {R(vRes+j)}"); e(f"v_and_b32 {R(rf+2*j+1)}, 0xffff0000, {R(vRes+j)}")
    for j in range(4): e(f"v_pk_add_f32 {R(own+2*j,2)}, {R(own+2*j,2)}, {R(rf+2*j,2)}")
    for i in range(1,4):
        e.wlg(("p",i))
        for j in range(4): e(f"v_pk_add_f32 {R(own+2*j,2)}, {R(own+2*j,2)}, {R(own+8*i+2*j,2)}")
    for j in range(4): e(f"v_cvt_pk_bf16_f32 {R(vRes+j)}, {R(own+2*j)}, {R(own+2*j+1)}")
    ins=f"buffer_store_dwordx4 {R(vRes,4)}, {R(vF if P2 else vRM)}, {S(srdO,4)}, 0 offen"
    gstore(e,ins,"st")
    if not P2:
        if PROF:
            with ifL(e,1): stamp_flush(e,3)
        e(f"s_cmp_lg_u32 {S(sL)}, 0"); e(f"s_cbranch_scc1 {e.endlab}")
        sk=e.newlab("nohalo"); e(f"s_and_b32 {S(sT0)}, {S(mt)}, 7"); e(f"s_cmp_lg_u32 {S(sT0)}, 7"); e(f"s_cbranch_scc1 {sk}")
        e(f"s_lshl_b32 {S(sT0)}, {S(mt)}, 15"); e(f"s_lshl_b32 {S(sT1)}, {S(sXCD)}, 14"); e(f"s_sub_u32 {S(sT0)}, {S(sT0)}, {S(sT1)}"); e(f"s_add_u32 {S(sT0)}, {S(sT0)}, 0x4000")
        e(f"v_subrev_u32 {R(tmp)}, {S(sT0)}, {R(vRM)}"); e("s_mov_b32 exec_lo, 0xffff0000"); e("s_mov_b32 exec_hi, 0xffff0000")
        e(f"buffer_store_dwordx4 {R(vRes,4)}, {R(tmp)}, {S(srdR,4)}, 0 offen sc1"); e("s_mov_b64 exec, -1"); e.lab(sk)
        def xflag():
            sk=e.newlab("noxf"); e(f"s_cmp_lt_u32 {S(sJ)}, 24"); e(f"s_cbranch_scc1 {sk}")
            e(f"s_mov_b32 {S(sT2)}, {7*1024}"); e(f"buffer_store_dword v3, v2, {S(srdF,4)}, {S(sT2)} offen sc1"); e.lab(sk)
        publish(e,3,xflag)
    if P2:
        a,b=rf,rf+1
        e(f"v_dot2_f32_bf16 {R(a)}, {R(vRes)}, {S(sONE)}, 0"); e(f"v_dot2_f32_bf16 {R(b)}, {R(vRes)}, {R(vRes)}, 0")
        for j in range(1,4):
            e(f"v_dot2_f32_bf16 {R(a)}, {R(vRes+j)}, {S(sONE)}, {R(a)}"); e(f"v_dot2_f32_bf16 {R(b)}, {R(vRes+j)}, {R(vRes+j)}, {R(b)}")
        e(f"s_lshl_b32 {S(sT0)}, {S(sW)}, 8"); e(f"s_add_u32 {S(sT0)}, {S(sT0)}, 0xc000")
        e(f"v_lshl_add_u32 {R(tmp)}, {R(vL)}, 2, {S(sT0)}"); e.nop(2)
        e(f"v_permlane32_swap_b32 {R(a)}, {R(b)}"); e.nop(1); e(f"v_add_f32 {R(a)}, {R(a)}, {R(b)}")
        e(f"ds_write_b32 {R(tmp)}, {R(a)}"); e.wlg0(); e.bar()
        sk=e.newlab("nost"); e(f"s_cmp_lg_u32 {S(sKQ)}, 0"); e(f"s_cbranch_scc1 {sk}")
        for i in range(1,4): e(f"ds_read_b32 {R(rf+1+i)}, {R(tmp)} offset:{i*256}")
        e(f"s_lshl_b32 {S(sT0)}, {S(mt)}, 3"); e(f"s_add_u32 {S(sT0)}, {S(sT0)}, {S(sNB)}"); e(f"s_lshl_b32 {S(sT0)}, {S(sT0)}, 8")
        e(f"v_lshl_add_u32 {R(tmp)}, {R(vL)}, 2, {S(sT0)}"); e.wlg0()
        e(f"v_add_f32 {R(a)}, {R(a)}, {R(rf+2)}"); e(f"v_add_f32 {R(rf+3)}, {R(rf+3)}, {R(rf+4)}"); e(f"v_add_f32 {R(a)}, {R(a)}, {R(rf+3)}")
        gstore(e,f"buffer_store_dword {R(a)}, {R(tmp)}, {S(srdS,4)}, 0 offen","st")
        e.lab(sk)
        publish(e,L*4+1)

def phase3(e,L):
    wo=L*LSTRIDE; LA=8
    e(f"s_cmp_ge_u32 {S(sJ)}, 14"); e(f"s_cselect_b32 {S(sT0)}, 1, 0"); e(f"s_cselect_b32 {S(sT1)}, 14, 0")
    e(f"s_sub_u32 {S(sNB)}, {S(sJ)}, {S(sT1)}"); e(f"s_lshl_b32 {S(sMB)}, {S(sXCD)}, 1"); e(f"s_add_u32 {S(sMB)}, {S(sMB)}, {S(sT0)}")
    srd(e,srdA,pWS,wo+X1_OFF,2*MB); srd(e,srdW,pW1,0,512*3584); srd(e,srdO,pWS,wo+H_OFF,7*MB); srd(e,srdS,pWS,wo+ST_OFF,128*1024)
    CS=131072
    ld=e.newlab("p3ld"); fin=e.newlab("p3fin"); skip=e.newlab("p3skip"); sk2=e.newlab("p3end")
    j=sD; e(f"s_sub_u32 {S(j)}, {S(sW)}, 4")
    e(f"s_cmp_ge_u32 {S(sJ)}, 28"); e(f"s_cbranch_scc1 {skip}")
    tmp=9
    e(f"s_cmp_ge_u32 {S(sW)}, 4"); e(f"s_cbranch_scc1 {ld}")
    vA,vT,vH,vM,vS,vSt,vAcc,vBf,vAf=12,4,13,14,2,16,24,88,120
    mt=sD
    e(f"s_lshl_b32 {S(mt)}, {S(sMB)}, 2"); e(f"s_add_u32 {S(mt)}, {S(mt)}, {S(sW)}")
    e(f"s_lshl_b32 {S(sT0)}, {S(mt)}, 15"); e(f"v_lshl_add_u32 {R(vA)}, {R(vL)}, 4, {S(sT0)}")
    e(f"s_lshl_b32 {S(sT0)}, {S(mt)}, 11"); e(f"v_lshl_add_u32 {R(vH)}, {R(vL)}, 2, {S(sT0)}")
    tr_lane_base(e,vT,tmp,"frag")
    e(f"v_xor_b32 {R(vT+1)}, 64, {R(vT)}"); e(f"v_add_u32 {R(vT+2)}, 0x10000, {R(vT)}"); e(f"v_add_u32 {R(vT+3)}, 0x10000, {R(vT+1)}")
    e(f"s_and_b32 {S(sD+2)}, {S(sMB)}, 1"); e(f"s_lshl_b32 {S(sD+2)}, {S(sD+2)}, 4"); waitflags(e,L*4+1,sD+2,16); stamp(e,9)
    for t in range(LA): ldfrag(e,vAf+4*t,vA,srdA,t,("A",t),False)
    def rd(t,nt): trread(e,vBf+(t&1)*16+nt*4,vT+nt,t*2048,("f",t,nt))
    e.bar()
    for nt in range(4): rd(0,nt)
    for t in range(32):
        for u in (LA+2*t,LA+2*t+1):
            if u<32: ldfrag(e,vAf+4*u,vA,srdA,u,("A",u),False)
        if t==12:
            for i in range(8): e.vmem(f"buffer_load_dword {R(vSt+i)}, {R(vH)}, {S(srdS,4)}, 0 offen offset:{i*256} sc1","st")
            e(f"s_mul_i32 {S(sT0)}, {S(mt)}, {112*1024}"); e(f"s_lshl_b32 {S(sT1)}, {S(sNB)}, 13"); e(f"s_add_u32 {S(sT0)}, {S(sT0)}, {S(sT1)}")
            e(f"v_lshl_add_u32 {R(vH)}, {R(vL)}, 4, {S(sT0)}")
        if (t+1)%4==0 and t+1<=16: e.bar()
        e.wvm(("A",t))
        if t%4==0: stamp(e,1+t//4)
        for nt in range(4):
            if t+1<32: rd(t+1,nt)
            e.wlg(("f",t,nt)); mfma32(e,vAcc+16*nt,vBf+(t&1)*16+nt*4,vAf+4*t,t==0)
        if t==30:
            e.wvm("st")
            for i in (4,2,1):
                for jj in range(i): e(f"v_add_f32 {R(vSt+jj)}, {R(vSt+jj)}, {R(vSt+jj+i)}")
            e(f"v_mov_b32 {R(vSt+1)}, {R(vSt)}"); e.nop(2); e(f"v_permlane32_swap_b32 {R(vSt)}, {R(vSt+1)}"); e.nop(1)
            meanrstd(e,vSt,vSt+1,tmp)
            e(f"v_mul_f32 {R(vM)}, 0xbfb8aa3b, {R(vSt+1)}"); e(f"v_mul_f32 {R(vM+1)}, {R(vM)}, {R(vSt)}"); e(f"v_sub_f32 {R(vM+1)}, 0, {R(vM+1)}")
            e(f"v_mov_b32 {R(vS)}, 0xbfb8aa3b")
    e(f"v_lshrrev_b32 {R(tmp)}, 5, {R(vL)}"); e(f"v_lshlrev_b32 {R(tmp)}, 4, {R(tmp)}"); e(f"v_add_u32 {R(tmp)}, {CS:#x}, {R(tmp)}")
    e.bar(); stamp(e,10)
    vC=vAf
    for nt in range(4):
        for g in range(4): e.lds(f"ds_read_b128 {R(vC+16*nt+4*g,4)}, {R(tmp)} offset:{nt*128+g*32}",("c",nt))
    for jj in range(32): e(f"v_pk_mul_f32 {R(vAcc+2*jj,2)}, {R(vAcc+2*jj,2)}, {R(vM,2)} op_sel_hi:[1,0]") if jj>=24 or True else None
    e.wlg0(); e.bar()
    U=vBf; PK=vAf+64
    for nt in range(4):
        for hh in range(2):
            b=vAcc+16*nt+8*hh; c=vC+16*nt+8*hh; o=PK+(nt*2+hh)*4
            for jj in range(4): e(f"v_pk_fma_f32 {R(b+2*jj,2)}, {R(c+2*jj,2)}, {R(vM,2)}, {R(b+2*jj,2)} op_sel:[0,1,0] op_sel_hi:[1,1,1]")
            for jj in range(8): e(f"v_exp_f32 {R(U+jj)}, {R(b+jj)}")
            e.nop(1)
            for jj in range(4): e(f"v_pk_fma_f32 {R(U+2*jj,2)}, {R(U+2*jj,2)}, {R(vS,2)}, {R(vS,2)} op_sel_hi:[1,0,0]")
            for jj in range(8): e(f"v_rcp_f32 {R(U+jj)}, {R(U+jj)}")
            e.nop(1)
            for jj in range(4): e(f"v_pk_mul_f32 {R(b+2*jj,2)}, {R(b+2*jj,2)}, {R(U+2*jj,2)}")
            for jj in range(4): e(f"v_cvt_pk_bf16_f32 {R(o+jj)}, {R(b+2*jj)}, {R(b+2*jj+1)}")
            t=nt*2+hh
            if t==4: e(f"s_movk_i32 {S(sT2)}, 0x1000")
            gstore(e,f"buffer_store_dwordx4 {R(o,4)}, {R(vH)}, {S(srdO,4)}, {S(sT2) if t>=4 else '0'} offen offset:{(t&3)*1024}","st")
    e(f"s_branch {fin}")
    e.lab(ld); e.reset(); e('s_setprio '+os.environ.get('PRIO','2'))
    vB,vT,vCs,vBf=2,4,5,16
    wdma_lane(e,vB,tmp,3584,0)
    e(f"s_and_b32 {S(sD+1)}, {S(j)}, 1"); e(f"s_lshr_b32 {S(sD+2)}, {S(j)}, 1")
    e(f"s_mul_i32 {S(sT0)}, {S(sD+2)}, {32*3584}"); e(f"s_lshl_b32 {S(sT1)}, {S(sD+1)}, 7"); e(f"s_add_u32 {S(sT0)}, {S(sT0)}, {S(sT1)}")
    e(f"s_lshl_b32 {S(sT1)}, {S(sNB)}, 8"); e(f"s_add_u32 {S(sT0)}, {S(sT0)}, {S(sT1)}")
    e(f"v_add_u32 {R(vB)}, {S(sT0)}, {R(vB)}"); e(f"v_xor_b32 {R(vB+1)}, 32, {R(vB)}")
    e(f"s_lshl_b32 {S(sLB)}, {S(sD+1)}, 16"); e(f"s_lshl_b32 {S(sT1)}, {S(sD+2)}, 12"); e(f"s_add_u32 {S(sLB)}, {S(sLB)}, {S(sT1)}")
    def wch(ch):
        for i in range(4): dma(e,vB+(i&1),srdW,(ch*64+8*i)*3584,(sLB,ch*8192+i*1024),("B",ch))
    for ch in range(3): wch(ch)
    tr_lane_base(e,vT,tmp,"frag")
    e(f"s_lshl_b32 {S(sT0)}, {S(sD+1)}, 6"); e(f"v_xor_b32 {R(vT)}, {S(sT0)}, {R(vT)}")
    e(f"s_lshl_b32 {S(sT0)}, {S(sD+2)}, 16"); e(f"v_add_u32 {R(vT)}, {S(sT0)}, {R(vT)}")
    e(f"v_mov_b32 {R(vCs)}, 0"); e(f"v_mov_b32 {R(vCs+1)}, 0")
    e.bar()
    for ch in range(8):
        if ch<=4: e.wvm(("B",ch if ch<4 else 7)); e.bar()
        if ch==0: stamp(e,9)
        if ch==4: stamp(e,1)
        for t in range(4): trread(e,vBf+4*t,vT,(ch*4+t)*2048,("f",t))
        for c2 in {0:(3,4),1:(5,6),2:(7,)}.get(ch,()): wch(c2)
        if ch==3:
            e(f"s_lshl_b32 {S(sT0)}, {S(sMB)}, 2"); e(f"s_add_u32 {S(sT0)}, {S(sT0)}, {S(j)}"); e(f"s_mul_i32 {S(sT0)}, {S(sT0)}, {112*1024}")
            e(f"s_lshl_b32 {S(sT1)}, {S(sNB)}, 13"); e(f"s_add_u32 {S(sT0)}, {S(sT0)}, {S(sT1)}"); e(f"v_lshl_add_u32 v7, {R(vL)}, 7, {S(sT0)}")
            e.vmem(f"buffer_load_dword v242, v7, {S(srdO,4)}, 0 offen sc1","pf")
        if ch==4:
            pf_w2(e,j,0); pf_w2(e,j,1)
            with ifL(e,0): x2touch(e,j,4,7)
        for t in range(4):
            e.wlg(("f",t))
            for i in range(4): e(f"v_dot2_f32_bf16 {R(vCs+(i&1))}, {R(vBf+4*t+i)}, {S(sONE)}, {R(vCs+(i&1))}")
    e(f"s_lshl_b32 {S(sT0)}, {S(j)}, 7"); e(f"s_add_u32 {S(sT0)}, {S(sT0)}, {CS:#x}")
    e(f"v_and_b32 {R(tmp)}, 31, {R(vL)}"); e(f"v_lshl_add_u32 {R(tmp)}, {R(tmp)}, 2, {S(sT0)}"); e.nop(2)
    e(f"v_add_f32 {R(vCs)}, {R(vCs)}, {R(vCs+1)}")
    allsum_halves(e,vCs,vCs+1)
    e(f"ds_write_b32 {R(tmp)}, {R(vCs)}")
    stamp(e,3)
    if 'w4' in DBG: e.wvm0()
    stamp(e,4); e.wlg0(); e('s_setprio 0'); e.bar(); e.bar(); stamp(e,5)
    p4_preload(e,j,0); e.bar(); e.wvm0()
    e(f"s_branch {sk2}")
    e.lab(fin); publish(e,L*4+2); e(f"s_branch {sk2}")
    e.lab(skip)
    sk3=e.newlab("p3np"); e(f"s_cmp_lt_u32 {S(sW)}, 4"); e(f"s_cbranch_scc1 {sk3}"); pf_w2(e,j,0); pf_w2(e,j,1)
    with ifL(e,0): x2touch(e,j,4,7)
    p4_preload(e,j,0); e.lab(sk3)
    e.wvm0(); e.bar(); e.lab(sk2)

STG=34816; WOF=10240; CS1=4*STG; ST1=CS1+1024; QB,KB,VB=0,9216,20736
vW,vX,vb=200,206,209
dW,dX=sD,sD+6
def wslots(e,sw,k0):
    for a in range(3):
        e(f"s_mul_i32 {S(sT0)}, {S(sw)}, 3"); e(f"s_add_u32 {S(sT0)}, {S(sT0)}, {a}")
        e(f"s_lshl_b32 {S(dW+k0+a)}, {S(sT0)}, 10"); e(f"s_add_u32 {S(dW+k0+a)}, {S(dW+k0+a)}, {WOF}")
        e(f"s_and_b32 {S(sT1)}, {S(sT0)}, 1"); e(f"s_lshl_b32 {S(sT1)}, {S(sT1)}, 5"); e(f"v_xor_b32 {R(vW+k0+a)}, {S(sT1)}, {R(vb)}")
        e(f"s_and_b32 {S(sT1)}, {S(sT0)}, 7"); e(f"s_mul_i32 {S(sT1)}, {S(sT1)}, {8*3072}")
        e(f"s_lshr_b32 {S(sT0)}, {S(sT0)}, 3"); e(f"s_lshl_b32 {S(sT0)}, {S(sT0)}, 10"); e(f"s_add_u32 {S(sT0)}, {S(sT0)}, {S(sT1)}")
        e(f"v_add_u32 {R(vW+k0+a)}, {S(sT0)}, {R(vW+k0+a)}")
def p1_setup(e,L):
    tmp=9
    srd(e,srdW,pQKV,0,512*3072)
    wdma_lane(e,vb,tmp,3072,0)
    e(f"s_lshl_b32 {S(sT0)}, {S(sNB)}, 7"); e(f"v_add_u32 {R(vb)}, {S(sT0)}, {R(vb)}")
    e(f"v_lshrrev_b32 {R(tmp)}, 3, {R(vL)}"); e(f"v_lshrrev_b32 {R(tmp+1)}, 4, {R(vL)}"); e(f"v_and_b32 {R(tmp+2)}, 7, {R(vL)}")
    e(f"v_xor_b32 {R(tmp+1)}, {R(tmp+1)}, {R(tmp+2)}"); e(f"v_lshlrev_b32 {R(tmp+1)}, 4, {R(tmp+1)}")
    e(f"v_lshl_add_u32 {R(vb+1)}, {R(tmp)}, 10, {R(tmp+1)}")
    wslots(e,sW,0)
def p1_issue(e,L,s,ws,xs):
    b=(s%4)*STG
    for k in xs: dma(e,vX+k,srdA,s*128,(dX+k,b),("S",s),True)
    for k in ws: dma(e,vW+k,srdW,s*64*3072,(dW+k,b),("S",s))
def p1_trickle(e,L,s,j):
    wo=L*LSTRIDE; va=211
    if s==5 and "nopt" not in DBG:
        srd(e,srdS,pWS,wo,16*MB)
        e(f"s_lshl_b32 {S(sT0)}, {S(sMB)}, 16"); e(f"s_lshl_b32 {S(sT1)}, {S(sNB)}, 12"); e(f"s_add_u32 {S(sT0)}, {S(sT0)}, {S(sT1)}")
        e(f"s_and_b32 {S(sT1)}, {S(j)}, 1"); e(f"s_lshl_b32 {S(sT1)}, {S(sT1)}, 15"); e(f"s_add_u32 {S(sT0)}, {S(sT0)}, {S(sT1)}")
        e(f"s_lshr_b32 {S(sT1)}, {S(j)}, 1"); e(f"s_lshl_b32 {S(sT1)}, {S(sT1)}, 21"); e(f"s_add_u32 {S(sT0)}, {S(sT0)}, {S(sT1)}")
        e(f"v_and_b32 {R(va)}, 31, {R(vL)}"); e(f"v_lshl_add_u32 {R(va)}, {R(va)}, 7, {S(sT0)}")
        e.vmem(f"buffer_load_dword v242, {R(va)}, {S(srdS,4)}, 0 offen sc1","pf")
        e(f"s_lshl_b32 {S(sT0)}, {S(sMB)}, 12"); e(f"s_lshl_b32 {S(sT1)}, {S(sNB)}, 8"); e(f"s_add_u32 {S(sT0)}, {S(sT0)}, {S(sT1)}"); e(f"s_add_u32 {S(sT0)}, {S(sT0)}, {ST_OFF}")
        e(f"v_and_b32 {R(va)}, 1, {R(vL)}"); e(f"v_lshl_add_u32 {R(va)}, {R(va)}, 7, {S(sT0)}"); e(f"v_bfe_u32 {R(va+1)}, {R(vL)}, 1, 1"); e(f"v_lshl_add_u32 {R(va)}, {R(va+1)}, 11, {R(va)}")
        e.vmem(f"buffer_load_dword v242, {R(va)}, {S(srdS,4)}, 0 offen sc1","pf")
        if True:
            e(f"s_lshl_b32 {S(sT0)}, {S(sXCD)}, 7"); e(f"v_and_b32 {R(va)}, 7, {R(vL)}"); e(f"v_lshl_add_u32 {R(va)}, {R(va)}, 10, {S(sT0)}")
            e.vmem(f"buffer_load_dword v242, {R(va)}, {S(srdF,4)}, 0 offen sc1","pf")
    if s==5: prefetch(e,srdS,pWO,512*1024,4,j,va,240)
    if s==6:
        if 'w1all' in DBG: prefetch(e,srdS,pW1,512*3584,4,j,va,240)
        else: pfl(e,srdS,pW1,512*3584,[(sJ,32768),(j,8192)],0,64,va)
def x2touch(e,sw,nw,va):
    e(f"s_lshr_b32 {S(sT0)}, {S(sJ)}, 3"); e(f"s_lshl_b32 {S(sT1)}, {S(sXCD)}, 2"); e(f"s_add_u32 {S(sT0)}, {S(sT0)}, {S(sT1)}"); e(f"s_lshl_b32 {S(sT0)}, {S(sT0)}, 16")
    e(f"s_mul_i32 {S(sT1)}, {S(sw)}, {65536//nw}"); e(f"s_add_u32 {S(sT0)}, {S(sT0)}, {S(sT1)}")
    e(f"s_and_b32 {S(sT1)}, {S(sJ)}, 7"); e(f"s_lshl_b32 {S(sT1)}, {S(sT1)}, 7"); e(f"s_add_u32 {S(sT0)}, {S(sT0)}, {S(sT1)}")
    srd(e,srdR,pWS,X2_OFF,2*MB)
    e(f"v_and_b32 {R(va)}, {64//nw-1}, {R(vL)}"); e(f"v_lshl_add_u32 {R(va)}, {R(va)}, 10, {S(sT0)}")
    e.vmem(f"buffer_load_dword v242, {R(va)}, {S(srdR,4)}, 0 offen sc1","pf")
def phase1(e,L):
    wo=L*LSTRIDE
    ids64(e)
    srdsel(e,srdA,pX,0,2*MB,pWS,X2_OFF,4*MB)
    srd(e,srdO,pWS,wo+O_OFF,2*MB)
    tmp=9
    lab_h,lab_l,lab_att=e.newlab("p1h"),e.newlab("p1l"),e.newlab("p1att")
    issue=lambda s,ws,xs: p1_issue(e,L,s,ws,xs)
    def first3(xs):
        e.alt=[]
        for s in range(3):
            if s: w0(s)
            issue(s,[],xs)
    def w0(s):
        with ifL(e,0): e.only0=True; issue(s,range(3),[]); e.only0=False
    def xslot(si,k):
        e(f"s_lshl_b32 {S(dX+k)}, {S(si)}, 10")
        e(f"s_and_b32 {S(sT1)}, {S(si)}, 1"); e(f"s_lshl_b32 {S(sT1)}, {S(sT1)}, 6"); e(f"v_xor_b32 {R(vX+k)}, {S(sT1)}, {R(vb+1)}")
        e(f"s_lshl_b32 {S(sT0)}, {S(sMB)}, 16"); e(f"s_lshl_b32 {S(sT1)}, {S(si)}, 13"); e(f"s_add_u32 {S(sT0)}, {S(sT0)}, {S(sT1)}")
        e(f"s_sub_u32 {S(sT0)}, {S(sT0)}, 0x4000")
        if True:
            e(f"s_lshl_b32 {S(sT2)}, {S(sXCD)}, 14"); e(f"s_add_u32 {S(sT2)}, {S(sT2)}, {S(sT1)}"); e(f"s_add_u32 {S(sT2)}, {S(sT2)}, {X2H_OFF-X2_OFF-0x4000}")
            e(f"s_cmp_lt_u32 {S(si)}, 2"); e(f"s_cselect_b32 {S(sT1)}, {S(sD+9)}, 0"); e(f"s_cmp_lg_u32 {S(sT1)}, 0"); e(f"s_cselect_b32 {S(sT0)}, {S(sT2)}, {S(sT0)}")
        e(f"v_add_u32 {R(vX+k)}, {S(sT0)}, {R(vX+k)}")
    def bump(regs,s):
        d=STG if s%4!=3 else -3*STG
        for r in regs: e(f"v_add_u32 {R(r)}, {d&0xffffffff:#x}, {R(r)}")
    def xaddr(dst,n,step,rowbase,w16):
        if w16: e(f"v_and_b32 {R(tmp)}, 15, {R(vL)}"); e(f"v_lshrrev_b32 {R(tmp+1)}, 4, {R(vL)}")
        else: e(f"v_and_b32 {R(tmp)}, 31, {R(vL)}"); e(f"v_lshrrev_b32 {R(tmp+1)}, 5, {R(vL)}")
        if rowbase is not None: e(f"v_add_u32 {R(tmp)}, {rowbase}, {R(tmp)}")
        e(f"v_bfe_u32 {R(tmp+2)}, {R(tmp)}, 1, 3"); e(f"v_xor_b32 {R(tmp+1)}, {R(tmp+1)}, {R(tmp+2)}")
        e(f"v_lshlrev_b32 {R(tmp+1)}, 4, {R(tmp+1)}"); e(f"v_lshl_add_u32 {R(dst)}, {R(tmp)}, 7, {R(tmp+1)}")
        for i in range(1,n): e(f"v_xor_b32 {R(dst+i)}, {i*step}, {R(dst)}")
    if True:
        e(f"s_cmp_lt_u32 {S(sJ)}, 8"); e(f"s_cselect_b32 {S(sD+9)}, {S(sXCD)}, 0"); e(f"s_mul_i32 {S(sD+9)}, {S(sD+9)}, {S(sL)}")
        e(f"s_and_b32 {S(sD+12)}, {S(sJ)}, 24"); e(f"s_max_u32 {S(sT0)}, {S(sD+12)}, 8"); e(f"s_sub_u32 {S(sT0)}, {S(sT0)}, 8"); e(f"s_lshl_b32 {S(sT0)}, {S(sT0)}, 2")
        e(f"s_lshl_b32 {S(sT1)}, {S(sXCD)}, 7"); e(f"s_add_u32 {S(sT0)}, {S(sT0)}, {S(sT1)}"); e(f"s_add_u32 {S(sT0)}, {S(sT0)}, {3*1024}")
        e(f"s_add_u32 {S(sT1)}, {S(sT1)}, {7*1024-128+96}"); e(f"s_cmp_lg_u32 {S(sD+9)}, 0"); e(f"s_cselect_b32 {S(sD+13)}, {S(sT1)}, {S(sT0)}")
    xslot(sW,0)
    with ifL(e,1): waitflags(e,3,sD+12,8,sD+13)
    e(f"s_cmp_ge_u32 {S(sW)}, 4"); e(f"s_cbranch_scc1 {lab_l}")
    first3([0])
    q0=list(e.vm); q1=list(e.alt)
    e(f"s_cmp_eq_u32 {S(sW)}, 3"); e(f"s_cbranch_scc1 {lab_h}")
    vXa,vTa,vAcc,vF=2,6,32,96
    xaddr(vXa,4,32,16,False)
    tr_lane_base(e,vTa,tmp,"head")
    pA,nA,pB,nB=sD+10,sD+11,sD+12,sD+13
    e(f"s_min_u32 {S(pA)}, {S(sW)}, 1"); e(f"s_lshr_b32 {S(nA)}, {S(sW)}, 1"); e(f"s_lshl_b32 {S(pB)}, {S(pA)}, 1")
    e(f"s_and_b32 {S(nB)}, {S(sW)}, 1"); e(f"s_xor_b32 {S(nB)}, {S(nB)}, 1")
    for r,p,n in ((vTa+1,pB,nB),(vTa,pA,nA)):
        e(f"s_lshl_b32 {S(sT0)}, {S(n)}, 6"); e(f"v_xor_b32 {R(r)}, {S(sT0)}, {R(vTa)}")
        e(f"s_lshl_b32 {S(sT0)}, {S(p)}, 13"); e(f"s_add_u32 {S(sT0)}, {S(sT0)}, {WOF}"); e(f"v_add_u32 {R(r)}, {S(sT0)}, {R(r)}")
    def rd(t,p):
        b=vF+(t&1)*16; ks=t&3
        if p==0: trread(e,b+8,vTa,ks*2048,("a",t))
        if p==1: e.lds(f"ds_read_b128 {R(b,4)}, {R(vXa+ks)}",("a",t)); e.lds(f"ds_read_b128 {R(b+4,4)}, {R(vXa+ks)} offset:4096",("b",t))
        if p==2: trread(e,b+12,vTa+1,ks*2048,("c",t))
    e.wvm(("S",0)); e.bar(); stamp(e,1)
    for p in range(3): rd(0,p)
    for t in range(32):
        nx=t+1<32
        if nx and (t+1)%4==0:
            s=(t+1)//4
            e.wvm(("S",s)); (e.wlg0() if s<=4 else None); bump(range(vXa,vXa+6),s-1); (e.bar() if s<7 else None); stamp(e,1+s)
        b=vF+(t&1)*16
        if nx: rd(t+1,0)
        e.wlg(("a",t)); mfma32(e,vAcc,b+8,b,t==0)
        if nx: rd(t+1,1)
        e.wlg(("b",t)); mfma32(e,vAcc+16,b+8,b+4,t==0)
        if nx: rd(t+1,2)
        e.wlg(("c",t)); mfma32(e,vAcc+32,b+12,b,t==0); mfma32(e,vAcc+48,b+12,b+4,t==0)
    vC,vSt,vWA,vWB,vP=128,160,2,3,168
    e(f"v_lshrrev_b32 {R(tmp)}, 5, {R(vL)}"); e(f"v_and_b32 {R(tmp+1)}, 31, {R(vL)}")
    for r,p,n in ((4,pA,nA),(5,pB,nB)):
        e(f"s_lshl_b32 {S(sT0)}, {S(p)}, 8"); e(f"s_lshl_b32 {S(sT1)}, {S(n)}, 7"); e(f"s_add_u32 {S(sT0)}, {S(sT0)}, {S(sT1)}")
        e(f"s_add_u32 {S(sT0)}, {S(sT0)}, {CS1}"); e(f"v_lshl_add_u32 {R(r)}, {R(tmp)}, 6, {S(sT0)}")
    e(f"v_lshlrev_b32 {R(6)}, 3, {R(tmp+1)}"); e(f"v_add_u32 {R(6)}, {ST1+128:#x}, {R(6)}")
    e(f"v_mul_u32_u24 {R(vWA)}, 144, {R(tmp+1)}"); e(f"v_lshl_add_u32 {R(vWA)}, {R(tmp)}, 5, {R(vWA)}")
    e(f"v_mul_u32_u24 {R(vWB)}, 272, {R(tmp+1)}"); e(f"v_lshl_add_u32 {R(vWB)}, {R(tmp)}, 6, {R(vWB)}")
    e(f"s_mul_i32 {S(sT0)}, {S(pA)}, {KB+16*144}"); e(f"s_lshl_b32 {S(sT1)}, {S(nA)}, 6"); e(f"s_add_u32 {S(sT0)}, {S(sT0)}, {S(sT1)}")
    e(f"v_add_u32 {R(vWA)}, {S(sT0)}, {R(vWA)}")
    e(f"s_lshl_b32 {S(sT1)}, {S(nB)}, 7"); e(f"s_add_u32 {S(sT1)}, {S(sT1)}, {VB+16*272}"); e(f"v_add_u32 {R(vWB)}, {S(sT1)}, {R(vWB)}")
    e.bar(); stamp(e,9)
    for m in range(2): e.lds(f"ds_read_b64 {R(vSt+2*m,2)}, {R(6)} offset:{m*256}","st")
    for T in range(2):
        for g in range(4): e.lds(f"ds_read_b128 {R(vC+16*T+4*g,4)}, {R(4+T)} offset:{g*16}",("c",T))
    def corr(T,m):
        b=vAcc+32*T+16*m
        for j in range(8): e(f"v_pk_fma_f32 {R(b+2*j,2)}, {R(vC+16*T+2*j,2)}, {R(vSt+2*m,2)}, {R(b+2*j,2)} op_sel_hi:[1,0,1]")
        for j in range(8): e(f"v_pk_mul_f32 {R(b+2*j,2)}, {R(b+2*j,2)}, {R(vSt+2*m,2)} op_sel:[0,1] op_sel_hi:[1,1]")
    def wr16(T,m,off):
        b=vAcc+32*T+16*m; p=vP+8*(2*T+m)
        for j in range(8): e(f"v_cvt_pk_bf16_f32 {R(p+j)}, {R(b+2*j)}, {R(b+2*j+1)}")
        for j in range(2): e(f"ds_write_b128 {R(vWA)}, {R(p+4*j,4)} offset:{off+m*32*144+16*j}")
    e.wlg(("c",0))
    for m in range(2): corr(0,m); wr16(0,m,0)
    e.wlg0()
    for m in range(2): corr(1,m)
    lv=e.newlab("p1v"); e(f"s_cmp_lg_u32 {S(sW)}, 0"); e(f"s_cbranch_scc1 {lv}")
    for m in range(2): wr16(1,m,64)
    e(f"s_branch {lab_att}")
    e.lab(lv)
    for m in range(2):
        for j in range(4): e(f"ds_write_b128 {R(vWB)}, {R(vAcc+32+16*m+4*j,4)} offset:{m*32*272+16*j}")
    e(f"s_branch {lab_att}")
    e.lab(lab_h); e.reset(); e.vm=list(q0); e.alt=list(q1)
    vXa,vTh,vAcc,vXf,vWf=2,4,32,80,96
    xaddr(vXa,2,64,None,True)
    e(f"v_lshrrev_b32 {R(tmp)}, 4, {R(vL)}"); e(f"v_bfe_u32 {R(tmp+1)}, {R(vL)}, 2, 2")
    e(f"v_lshl_add_u32 {R(vTh)}, {R(tmp)}, 3, {R(tmp+1)}"); e(f"v_lshlrev_b32 {R(vTh)}, 7, {R(vTh)}")
    e(f"v_and_b32 {R(tmp)}, 1, {R(tmp)}"); e(f"v_lshlrev_b32 {R(tmp)}, 1, {R(tmp)}"); e(f"v_lshrrev_b32 {R(tmp+1)}, 1, {R(tmp+1)}")
    e(f"v_lshl_or_b32 {R(tmp)}, {R(tmp+1)}, 2, {R(tmp)}"); e(f"v_bfe_u32 {R(tmp+1)}, {R(vL)}, 1, 1"); e(f"v_or_b32 {R(tmp)}, {R(tmp)}, {R(tmp+1)}")
    e(f"v_lshl_add_u32 {R(vTh)}, {R(tmp)}, 4, {R(vTh)}"); e(f"v_and_b32 {R(tmp)}, 1, {R(vL)}"); e(f"v_lshl_add_u32 {R(vTh)}, {R(tmp)}, 3, {R(vTh)}")
    e(f"v_add_u32 {R(vTh)}, {WOF}, {R(vTh)}")
    for h in range(1,4): e(f"v_xor_b32 {R(vTh+h)}, {h*32}, {R(vTh)}")
    e(f"v_and_b32 {R(tmp)}, 15, {R(vL)}"); e(f"v_cmp_eq_u32 vcc, 0, {R(tmp)}"); e(f"v_mov_b32 {R(12)}, {S(sONE)}")
    def rdu(u,h):
        T,p=divmod(u,3); kk=T&1
        if p==0 and h==0: e.lds(f"ds_read_b128 {R(vXf+4*(T&1),4)}, {R(vXa+kk)}",("x",T))
        trread(e,vWf+(u&1)*16+4*h,vTh+h,p*8192+kk*4096,("w",u,h))
    e.wvm(("S",0)); e.bar()
    for h in range(4): rdu(0,h)
    for u in range(48):
        T,p=divmod(u,3)
        if u+1<48 and (u+1)%6==0:
            s=(u+1)//6
            e.wvm(("S",s)); (e.wlg0() if s<=4 else None); bump(range(vXa,vXa+6),s-1); (e.bar() if s<7 else None)
            if s==2:
                with ifL(e,0): hello(e)
        if p==0:
            e.wlg(("x",T))
            for i in range(4): e(f"v_cndmask_b32 {R(vXf+4*(T&1)+i)}, {R(vXf+4*(T&1)+i)}, {R(12)}, vcc")
            e.nop(2)
        for h in range(4):
            if u+1<48: rdu(u+1,h)
            e.wlg(("w",u,h)); mfma16(e,vAcc+16*p+4*h,vWf+(u&1)*16+4*h,vXf+4*(T&1),T==0)
    e(f"v_lshrrev_b32 {R(tmp)}, 4, {R(vL)}"); e(f"v_and_b32 {R(tmp+1)}, 15, {R(vL)}")
    e(f"v_lshlrev_b32 {R(2)}, 4, {R(tmp)}"); e(f"v_add_u32 {R(2)}, {CS1}, {R(2)}")
    e(f"v_lshlrev_b32 {R(3)}, 3, {R(tmp+1)}"); e(f"v_add_u32 {R(3)}, {ST1}, {R(3)}")
    e(f"v_mul_u32_u24 {R(4)}, 144, {R(tmp+1)}"); e(f"v_lshl_add_u32 {R(4)}, {R(tmp)}, 3, {R(4)}")
    e(f"v_mul_u32_u24 {R(5)}, 272, {R(tmp+1)}"); e(f"v_lshl_add_u32 {R(5)}, {R(tmp)}, 4, {R(5)}")
    e(f"s_and_saveexec_b64 {S(sD+14,2)}, vcc")
    for i in range(12): e(f"ds_write_b128 {R(2)}, {R(vAcc+4*i,4)} offset:{i*64}")
    e(f"s_mov_b64 exec, {S(sD+14,2)}")
    e.wlg0(); e.bar()
    vC,vSt=96,80
    e.lds(f"ds_read_b64 {R(vSt,2)}, {R(3)}","st")
    for i in range(8): e.lds(f"ds_read_b128 {R(vC+4*i,4)}, {R(2)} offset:{(4+i)*64}",("c",i))
    for i in range(8):
        e.wlg(("c",i)); b=vAcc+16+4*i
        for j in range(2): e(f"v_pk_fma_f32 {R(b+2*j,2)}, {R(vC+4*i+2*j,2)}, {R(vSt,2)}, {R(b+2*j,2)} op_sel_hi:[1,0,1]")
        for j in range(2): e(f"v_pk_mul_f32 {R(b+2*j,2)}, {R(b+2*j,2)}, {R(vSt,2)} op_sel:[0,1] op_sel_hi:[1,1]")
        if i<4:
            for j in range(2): e(f"v_cvt_pk_bf16_f32 {R(b+j)}, {R(b+2*j)}, {R(b+2*j+1)}")
            e.lds(f"ds_write_b64 {R(4)}, {R(b,2)} offset:{KB+i*32}")
        else: e.lds(f"ds_write_b128 {R(5)}, {R(b,4)} offset:{VB+(i-4)*64}")
    e(f"s_branch {lab_att}")
    e.lab(lab_l); e.reset(); e('s_setprio '+os.environ.get('PRIO','2'))
    j=sD+10; e(f"s_sub_u32 {S(j)}, {S(sW)}, 4")
    e(f"s_and_b32 {S(sD+11)}, {S(j)}, 1"); e(f"s_add_u32 {S(sD+11)}, {S(sD+11)}, 8"); xslot(sD+11,1)
    first3([0,1])
    wslots(e,j,3); xslot(j,2)
    vXa,vF,vS=2,32,12
    e(f"s_min_u32 {S(sT2)}, {S(j)}, 2"); e(f"s_lshl_b32 {S(sT2)}, {S(sT2)}, 5"); e(f"s_sub_u32 {S(sT2)}, {S(sT2)}, 16"); e(f"s_max_i32 {S(sT2)}, {S(sT2)}, 0")
    xaddr(vXa,4,32,S(sT2),False)
    e(f"v_lshlrev_b32 {R(6)}, 3, {R(tmp)}"); e(f"v_add_u32 {R(6)}, {ST1}, {R(6)}")
    for i in range(4): e(f"v_mov_b32 {R(vS+i)}, 0")
    for s in range(8):
        if s<7: e.wvm(("S",s if s<6 else 7)); e.bar()
        for ks in range(4): e.lds(f"ds_read_b128 {R(vF+4*ks,4)}, {R(vXa+ks)}",("x",ks))
        if s<=4: issue(s+3,range(6),[0,1,2])
        if s==int(os.environ.get('QS',0)): pfl(e,srdS,pQKV,512*3072,[(sJ,30720),(j,7680)],192*3072,60,7)
        p1_trickle(e,L,s,j)
        if s<7: bump(range(vXa,vXa+4),s)
        for ks in range(4):
            e.wlg(("x",ks))
            for i in range(4):
                e(f"v_dot2_f32_bf16 {R(vS+(i&1))}, {R(vF+4*ks+i)}, {S(sONE)}, {R(vS+(i&1))}")
                e(f"v_dot2_f32_bf16 {R(vS+2+(i&1))}, {R(vF+4*ks+i)}, {R(vF+4*ks+i)}, {R(vS+2+(i&1))}")
    e.nop(3); e(f"v_add_f32 {R(vS)}, {R(vS)}, {R(vS+1)}"); e(f"v_add_f32 {R(vS+1)}, {R(vS+2)}, {R(vS+3)}")
    allsum_halves(e,vS,vS+2); allsum_halves(e,vS+1,vS+2)
    meanrstd(e,vS,vS+1,tmp); e(f"v_sub_f32 {R(vS)}, 0, {R(vS)}")
    e(f"ds_write_b64 {R(6)}, {R(vS,2)}"); e.wlg0(); e.bar()
    e.lab(lab_att); e.reset(); e('s_setprio 0')
    vQ,vK,vV,vLg,vO=16,32,96,160,176
    mt,h=sD,sD+1
    e(f"s_lshr_b32 {S(mt)}, {S(sW)}, 2"); e(f"s_and_b32 {S(h)}, {S(sW)}, 3")
    e(f"v_and_b32 {R(tmp)}, 31, {R(vL)}"); e(f"s_lshl_b32 {S(sT0)}, {S(mt)}, 5"); e(f"v_add_u32 {R(tmp)}, {S(sT0)}, {R(tmp)}")
    e(f"v_lshrrev_b32 {R(tmp+1)}, 5, {R(vL)}")
    e(f"s_lshl_b32 {S(sT0)}, {S(h)}, 5"); e(f"v_mul_u32_u24 {R(2)}, 144, {R(tmp)}"); e(f"v_add_u32 {R(2)}, {S(sT0)}, {R(2)}"); e(f"v_lshl_add_u32 {R(2)}, {R(tmp+1)}, 4, {R(2)}")
    e(f"s_lshl_b32 {S(sT0)}, {S(h)}, 6"); e(f"v_mul_u32_u24 {R(3)}, 272, {R(tmp)}"); e(f"v_lshl_add_u32 {R(3)}, {R(tmp+1)}, 5, {R(3)}"); e(f"v_add_u32 {R(3)}, {S(sT0)}, {R(3)}")
    e(f"s_lshl_b32 {S(sT0)}, {S(sMB)}, 6"); e(f"v_add_u32 {R(4)}, {S(sT0)}, {R(tmp)}")
    e(f"s_lshl_b32 {S(sT0)}, {S(sMB)}, 1"); e(f"s_add_u32 {S(sT0)}, {S(sT0)}, {S(mt)}"); e(f"s_lshl_b32 {S(sT0)}, {S(sT0)}, 5")
    e(f"s_lshl_b32 {S(sT1)}, {S(sNB)}, 2"); e(f"s_add_u32 {S(sT0)}, {S(sT0)}, {S(sT1)}"); e(f"s_add_u32 {S(sT0)}, {S(sT0)}, {S(h)}"); e(f"s_lshl_b32 {S(sT0)}, {S(sT0)}, 10")
    e(f"v_lshl_add_u32 {R(5)}, {R(vL)}, 4, {S(sT0)}")
    srd(e,srdW,pWO,0,512*1024); bsrc(e,14,tmp,8,sKQ,sMH,WO_LDS,16384,sLB)
    e(f"v_mov_b32 {R(6)}, 0xce6e6b28"); e(f"v_mov_b32 {R(7)}, 0x3eb8aa3b")
    e.wlg0(); e.bar(); stamp(e,10)
    e.lds(f"ds_read_b128 {R(vQ,4)}, {R(2)} offset:{QB}","q")
    for jj in range(8): e.lds(f"ds_read_b128 {R(vK+4*jj,4)}, {R(2)} offset:{KB+288+(7-jj)*288}",("k",jj))
    for jj in range(8):
        for i in range(2): e.lds(f"ds_read_b128 {R(vV+8*jj+4*i,4)}, {R(3)} offset:{VB+544+(7-jj)*544+16*i}",("v",jj))
        if jj in (1,3,5,7):
            e.wlg(("k",jj))
            for i in range(4):
                for j2 in (jj-1,jj): e(f"v_dot2_f32_bf16 {R(vLg+j2)}, {R(vQ+i)}, {R(vK+4*j2+i)}, {R(vLg+j2) if i else '0'}")
        dma(e,14,srdW,jj*16384,(sLB,jj*2048),"pre")
    vT=vK
    for jj in range(8): e(f"v_mov_b32 {R(vT+jj)}, {R(vLg+jj)}")
    for jj in range(8): e(f"v_permlane32_swap_b32 {R(vT+jj)}, {R(vLg+jj)}")
    for jj in range(4): e(f"v_pk_add_f32 {R(vLg+2*jj,2)}, {R(vLg+2*jj,2)}, {R(vT+2*jj,2)}")
    for jj in range(1,8): e(f"v_cmp_le_u32 {S(sD+2*jj,2)}, {2*jj}, {R(4)}")
    for jj in range(1,8): e(f"v_cndmask_b32 {R(vLg+jj)}, {R(6)}, {R(vLg+jj)}, {S(sD+2*jj,2)}")
    m=8
    e(f"v_max3_f32 {R(m)}, {R(vLg)}, {R(vLg+1)}, {R(vLg+2)}"); e(f"v_max3_f32 {R(m)}, {R(m)}, {R(vLg+3)}, {R(vLg+4)}")
    e(f"v_max3_f32 {R(m)}, {R(m)}, {R(vLg+5)}, {R(vLg+6)}"); e(f"v_max_f32 {R(m)}, {R(m)}, {R(vLg+7)}")
    for jj in range(8): e(f"v_sub_f32 {R(vLg+jj)}, {R(vLg+jj)}, {R(m)}")
    for jj in range(8): e(f"v_mul_f32 {R(vLg+jj)}, {R(7)}, {R(vLg+jj)}")
    for jj in range(8): e(f"v_exp_f32 {R(vLg+jj)}, {R(vLg+jj)}")
    e.nop(1)
    e(f"v_pk_add_f32 {R(10,2)}, {R(vLg,2)}, {R(vLg+2,2)}"); e(f"v_pk_add_f32 {R(12,2)}, {R(vLg+4,2)}, {R(vLg+6,2)}")
    e(f"v_pk_add_f32 {R(10,2)}, {R(10,2)}, {R(12,2)}"); e(f"v_add_f32 {R(10)}, {R(10)}, {R(11)}"); e(f"v_rcp_f32 {R(10)}, {R(10)}")
    for jj in range(8):
        e.wlg(("v",jj)); pb=vLg+(jj&~1); o=jj&1
        for i in range(4):
            if jj==0: e(f"v_pk_mul_f32 {R(vO+2*i,2)}, {R(vV+2*i,2)}, {R(pb,2)} op_sel_hi:[1,0]")
            else: e(f"v_pk_fma_f32 {R(vO+2*i,2)}, {R(vV+8*jj+2*i,2)}, {R(pb,2)}, {R(vO+2*i,2)} op_sel:[0,{o},0] op_sel_hi:[1,{o},1]")
    for i in range(4): e(f"v_pk_mul_f32 {R(vO+2*i,2)}, {R(vO+2*i,2)}, {R(10,2)} op_sel_hi:[1,0]")
    for i in range(4): e(f"v_cvt_pk_bf16_f32 {R(vQ+i)}, {R(vO+2*i)}, {R(vO+2*i+1)}")
    with ifL(e,0): getmode(e)
    gstore(e,f"buffer_store_dwordx4 {R(vQ,4)}, {R(5)}, {S(srdO,4)}, 0 offen","st")
    publish(e,L*4)
    return ST1+1024

def desc(k):
    return f""".p2align 6
.amdhsa_kernel {k}
  .amdhsa_next_free_vgpr 256
  .amdhsa_next_free_sgpr 102
  .amdhsa_accum_offset 256
  .amdhsa_group_segment_fixed_size 0
  .amdhsa_kernarg_size 72
  .amdhsa_user_sgpr_count 2
  .amdhsa_user_sgpr_kernarg_segment_ptr 1
  .amdhsa_system_sgpr_workgroup_id_x 1
.end_amdhsa_kernel
"""
def build_multi():
    e=Em(); hdr=""; ks=[]
    for L in range(2):
        for p in (1,2,3,4):
            k=f"p{p}l{L}_kernel"; ks.append(k); nwg=224 if p==3 else 256
            e.L.append(f".globl {k}\n.p2align 8\n.type {k},@function\n{k}:"); e.endlab=f"end_{k}"; e.reset()
            prologue(e,nwg)
            lds=phase1(e,L) if p==1 else phase3(e,L) if p==3 else phase_rs(e,L,p)
            stamp_flush(e,L*4+p-1)
            e.lab(e.endlab); e("s_endpgm")
            hdr+=f"; @launch kernel={k} grid=({nwg},1,1) block=(512,1,1) lds={lds}\n"
    return hdr+'.amdgcn_target "amdgcn-amd-amdhsa--gfx950"\n.text\n'+e.text()+'.section .rodata,"a"\n'+"".join(desc(k) for k in ks)
def build_pers():
    e=Em(); k=NAME+"_kernel"
    e.L.append(f".globl {k}\n.p2align 8\n.type {k},@function\n{k}:"); e.endlab="end_all"
    prologue(e,256)
    e(f"s_mov_b32 {S(sL)}, 0"); e(f"s_mov_b32 {S(sFO)}, 0"); e("v_mov_b32 v15, 0")
    ids64(e); p1_setup(e,0)
    p1_issue(e,0,0,range(3),[])
    srd(e,srdD,50,0,256); srd(e,srdF,pWS,FL_OFF,16384)
    e.lab("layer")
    for p in (1,2,3,4):
        e.reset()
        if p>1: stamp(e,0)
        phase1(e,0) if p==1 else phase3(e,0) if p==3 else phase_rs(e,0,p)
        stamp_flush(e,p-1)
    e(f"s_mov_b32 {S(sL)}, 1"); e(f"s_mov_b32 {S(sFO)}, 4096"); stamp(e,0); e("s_branch layer")
    e.lab(e.endlab); e("s_endpgm")
    return f"; @launch grid=(256,1,1) block=(512,1,1) lds=163840\n"+'.amdgcn_target "amdgcn-amd-amdhsa--gfx950"\n.text\n'+e.text()+'.section .rodata,"a"\n'+desc(k)
if __name__=="__main__":
    if "slow" in sys.argv: FORCE_SLOW=True
    if "prof" in sys.argv: PROF=True
    out=sys.argv[1] if len(sys.argv)>1 else f"cdna_kernels/{NAME}.s"
    open(out,"w").write(build_pers())
```

```python
import sys,os
DBG=os.environ.get('DBG','')
from em import *
NAME="interleave_layers__sliding_local_dilated__dense_activation_silu__prompt"
MB=1<<20
O_OFF,X1_OFF,H_OFF,X2_OFF,ST_OFF=0,2*MB,4*MB,12*MB,14*MB
LSTRIDE=0 if 'fresh' not in DBG else 16*MB
sW,sXCD,sJ,sT0,sT1,sT2,sT3,sMB,sNB,sKQ,sMH,sLB=3,4,5,6,7,8,9,10,11,12,13,14
sONE=15
srdA,srdW,srdR,srdO,srdS=16,20,24,28,32
pX,pQKV,pWO,pW1,pW2,pOUT,pWS=36,38,40,44,46,48,52
sD=56
vL=1
sMODE,sTAG=54,55
sL,sFO=100,101
import contextlib
@contextlib.contextmanager
def ifL(e,v):
    sk=e.newlab('ifl'); e(f's_cmp_lg_u32 {S(sL)}, {v}'); e(f's_cbranch_scc1 {sk}'); q=list(e.vm)
    yield
    e.lab(sk); e.vm=q
def srdsel(e,d,p0,o0,z0,p1,o1,z1):
    srd(e,d,p1,o1,z1)
    with ifL(e,0): srd(e,d,p0,o0,z0)
srdF,srdD=96,24
FL_OFF,X2H_OFF=40*MB,15*MB
vRES=248
vINFO=244
FORCE_SLOW=False
ONES=0x3F803F80

PROF=False
def stamp(e,i):
    if PROF: e(f"s_memrealtime {S(72+2*i,2)}")
def stamp_flush(e,slot,n=12):
    if not PROF: return
    sk=e.newlab("nopf"); e(f"s_cmp_lg_u32 {S(sW)}, {4 if 'w4' in DBG else 0}"); e(f"s_cbranch_scc1 {sk}")
    e("s_waitcnt vmcnt(0)"); stamp(e,n-1); e("s_waitcnt lgkmcnt(0)")
    srd(e,srdS,pWS,200*MB,MB)
    e(f"s_lshl_b32 {S(sT0)}, s2, 7"); e(f"s_add_u32 {S(sT0)}, {S(sT0)}, {slot*32768}"); e(f"s_lshl_b32 {S(sT1)}, {S(sL)}, 17"); e(f"s_add_u32 {S(sT0)}, {S(sT0)}, {S(sT1)}"); e(f"v_mov_b32 v2, {S(sT0)}")
    for i in range(n):
        e(f"v_mov_b32 v4, {S(72+2*i)}"); e(f"v_mov_b32 v5, {S(73+2*i)}"); e(f"buffer_store_dwordx2 v[4:5], v2, {S(srdS,4)}, 0 offen offset:{i*8}"); e.nop(2)
    e.lab(sk)
def gstore(e,instr,tag):
    a,b=e.newlab("gs"),e.newlab("gd")
    e(f"s_cmp_eq_u32 {S(sMODE)}, 0"); e(f"s_cbranch_scc1 {a}"); e.vmem(instr+(' nt' if 'stnt' in DBG else ' sc0' if 'stsc0' in DBG else ''),tag); e(f"s_branch {b}")
    e.lab(a); e(instr+" sc1"); e.lab(b)
def spin(e,body,cond):
    lp,out=e.newlab("spin"),e.newlab("spun")
    e(f"s_mov_b32 {S(sT3)}, 0"); e.lab(lp); body()
    e(f"s_add_u32 {S(sT3)}, {S(sT3)}, 1"); e(f"s_cmp_gt_u32 {S(sT3)}, 0x40000"); e(f"s_cbranch_scc1 {out}")
    cond(lp); e.lab(out)
def publish(e,ph,pre=None):
    e.wvm0(); e.bar()
    sk=e.newlab("nopub"); e(f"s_cmp_lg_u32 {S(sW)}, 0"); e(f"s_cbranch_scc1 {sk}")
    e(f"s_lshl_b32 {S(sT0)}, {S(sXCD)}, 7"); e(f"s_lshl_b32 {S(sT1)}, {S(sJ)}, 2"); e(f"s_add_u32 {S(sT0)}, {S(sT0)}, {S(sT1)}")
    e(f"v_mov_b32 v2, {S(sT0)}"); e(f"v_mov_b32 v3, {S(sTAG)}"); e("s_mov_b64 exec, 1")
    e(f"s_add_u32 {S(sT2)}, {S(sFO)}, {ph*1024}")
    gstore(e,f"buffer_store_dword v3, v2, {S(srdF,4)}, {S(sT2)} offen","fl")
    if pre: pre()
    e("s_mov_b64 exec, -1"); e.lab(sk); e.reset()
def waitflags(e,ph,jbase,n,second=None):
    sk=e.newlab("nopoll"); e(f"s_cmp_lg_u32 {S(sW)}, 0"); e(f"s_cbranch_scc1 {sk}")
    e(f"s_lshl_b32 {S(sT0)}, {S(sXCD)}, 7"); e(f"s_lshl_b32 {S(sT1)}, {S(jbase)}, 2"); e(f"s_add_u32 {S(sT0)}, {S(sT0)}, {S(sT1)}")
    e(f"s_add_u32 {S(sT0)}, {S(sT0)}, {ph*1024}")
    if ph<3: e(f"s_add_u32 {S(sT0)}, {S(sT0)}, {S(sFO)}")
    e(f"v_min_u32 v2, {n-1}, {R(vL)}"); e(f"v_lshl_add_u32 v2, v2, 2, {S(sT0)}")
    if second is not None:
        e(f"v_and_b32 v3, 7, {R(vL)}"); e(f"v_lshl_add_u32 v3, v3, 2, {S(second)}"); e(f"v_cmp_gt_u32 vcc, 8, {R(vL)}"); e.nop(2); e("v_cndmask_b32 v2, v3, v2, vcc")
    def body(): e(f"buffer_load_dword v3, v2, {S(srdF,4)}, 0 offen sc1"); e("s_waitcnt vmcnt(0)"); e(f"v_cmp_ne_u32 vcc, {S(sTAG)}, v3")
    spin(e,body,lambda lp:e(f"s_cbranch_vccnz {lp}"))
    e(f"s_cmp_lg_u32 {S(sMODE)}, 0"); e(f"s_cbranch_scc1 {sk}"); e("buffer_inv sc1"); e("s_waitcnt vmcnt(0)")
    e.lab(sk); e.bar()
def hello(e):
    e(f"s_getreg_b32 {S(sT0)}, hwreg(HW_REG_XCC_ID, 0, 3)"); e(f"s_mul_i32 {S(sT0)}, {S(sT0)}, 6")
    e(f"s_lshl_b64 {S(sD+14,2)}, 1, {S(sT0)}"); e(f"s_add_u32 {S(sD+15)}, {S(sD+15)}, 0x1000000")
    e(f"s_lshl_b32 {S(sT1)}, {S(sXCD)}, 4"); e(f"v_mov_b32 v212, {S(sT1)}"); e(f"v_mov_b32 v214, {S(sD+14)}"); e(f"v_mov_b32 v215, {S(sD+15)}")
    e("s_mov_b64 exec, 1"); e.vmem(f"buffer_atomic_add_x2 v[214:215], v212, {S(srdD,4)}, 0 offen","hello")
    s2=e.newlab("notag"); e("s_cmp_lg_u32 s2, 0"); e(f"s_cbranch_scc1 {s2}")
    e("v_mov_b32 v212, 0x3000"); e(f"buffer_load_dword v213, v212, {S(srdF,4)}, 0 offen sc1"); e("s_waitcnt vmcnt(0)")
    e("v_add_u32 v213, 0x9e3779b9, v213"); e("v_max_u32 v213, 1, v213"); e(f"buffer_store_dword v213, v212, {S(srdF,4)}, 0 offen sc1")
    e("v_mov_b32 v212, 0x80"); e(f"buffer_store_dword v213, v212, {S(srdD,4)}, 0 offen sc1")
    e.lab(s2); e("s_mov_b64 exec, -1"); e.nop(4)
def getmode(e):
    e(f"s_lshl_b32 {S(sT0)}, {S(sXCD)}, 4"); e(f"v_mov_b32 {R(vINFO)}, {S(sT0)}"); e(f"v_mov_b32 {R(vINFO+1)}, 0x80")
    def body():
        e(f"buffer_load_dwordx2 {R(vINFO+2,2)}, {R(vINFO)}, {S(srdD,4)}, 0 offen sc1"); e(f"buffer_load_dword {R(vINFO-1)}, {R(vINFO+1)}, {S(srdD,4)}, 0 offen sc1")
        e("s_waitcnt vmcnt(0)"); e(f"v_readfirstlane_b32 {S(sD)}, {R(vINFO+2)}"); e(f"v_readfirstlane_b32 {S(sD+1)}, {R(vINFO+3)}"); e(f"v_readfirstlane_b32 {S(sTAG)}, {R(vINFO-1)}")
    def cond(lp):
        e(f"s_lshr_b32 {S(sT0)}, {S(sD+1)}, 24"); e(f"s_cmp_lt_u32 {S(sT0)}, 32"); e(f"s_cbranch_scc1 {lp}")
        e(f"s_cmp_eq_u32 {S(sTAG)}, 0"); e(f"s_cbranch_scc1 {lp}")
    spin(e,body,cond)
    e(f"s_getreg_b32 {S(sT0)}, hwreg(HW_REG_XCC_ID, 0, 3)"); e(f"s_mul_i32 {S(sT0)}, {S(sT0)}, 6")
    e(f"s_lshr_b64 {S(sD,2)}, {S(sD,2)}, {S(sT0)}"); e(f"s_and_b32 {S(sD)}, {S(sD)}, 63"); e(f"s_cmp_eq_u32 {S(sD)}, 32")
    e(f"s_cselect_b32 {S(sMODE)}, {0 if FORCE_SLOW else 1}, 0")
def prefetch(e,sr,ptr,total,nw,sw,va,dst,extra=None,off=0,only=None,nwg=32,sj=None):
    per=total//nwg//nw; lines=per//128; sj=sJ if sj is None else sj
    srd(e,sr,ptr,off,total if extra is None else 2*MB)
    e(f"s_mul_i32 {S(sT0)}, {S(sj)}, {total//nwg}"); e(f"s_mul_i32 {S(sT1)}, {S(sw)}, {per}"); e(f"s_add_u32 {S(sT0)}, {S(sT0)}, {S(sT1)}")
    if extra is not None: e(f"s_lshl_b32 {S(sT1)}, {S(sXCD)}, {extra}"); e(f"s_add_u32 {S(sT0)}, {S(sT0)}, {S(sT1)}")
    for i in range((lines+63)//64):
        if only is not None and i!=only: continue
        n=min(64,lines-64*i)
        e(f"v_min_u32 {R(va)}, {n-1}, {R(vL)}"); e(f"v_lshl_add_u32 {R(va)}, {R(va)}, 7, {S(sT0)}")
        if i: e(f"v_add_u32 {R(va)}, {8192*i}, {R(va)}")
        e.vmem(f"buffer_load_dword {R(dst)}, {R(va)}, {S(sr,4)}, 0 offen"+(' nt' if 'ntp' in DBG and NTS[sr] else ''),"pf")
def pfl(e,sr,ptr,total,terms,const,lines,va):
    srd(e,sr,ptr,0,total); e(f"s_mov_b32 {S(sT0)}, {const}")
    for sg,m in terms: e(f"s_mul_i32 {S(sT1)}, {S(sg)}, {m}"); e(f"s_add_u32 {S(sT0)}, {S(sT0)}, {S(sT1)}")
    for i in range((lines+63)//64):
        e(f"v_min_u32 {R(va)}, {min(64,lines-64*i)-1}, {R(vL)}"); e(f"v_lshl_add_u32 {R(va)}, {R(va)}, 7, {S(sT0)}")
        if i: e(f"v_add_u32 {R(va)}, {8192*i}, {R(va)}")
        e.vmem(f"buffer_load_dword v240, {R(va)}, {S(sr,4)}, 0 offen"+(' nt' if 'ntp' in DBG and NTS[sr] else ''),"pf")
def pf_w2(e,j,part):
    if part==0: pfl(e,srdR,pW2,1792*1024,[(j,448*1024),(sJ,5120)],0,40,7)
    else: pfl(e,srdR,pW2,1792*1024,[(j,448*1024),(sJ,9216)],160*1024,72,7)
def prologue(e,nwg):
    e(f"s_cmp_ge_u32 s2, {nwg}"); e("s_cbranch_scc1 "+e.endlab)
    stamp(e,0)
    e(f"s_load_dwordx16 s[36:51], s[0:1], 0"); e(f"s_load_dwordx2 s[52:53], s[0:1], 64")
    e("v_lshrrev_b32 v2, 6, v0"); e(f"v_and_b32 {R(vL)}, 63, v0")
    e(f"v_readfirstlane_b32 {S(sW)}, v2")
    e(f"s_and_b32 {S(sXCD)}, s2, 7"); e(f"s_lshr_b32 {S(sJ)}, s2, 3")
    e(f"s_mov_b32 {S(sONE)}, {ONES:#x}")
    e("s_waitcnt lgkmcnt(0)")
NTS={}
def srd(e,d,p,off,size):
    NTS[d]=(p in (pW1,pW2))
    if off: e(f"s_add_u32 {S(d)}, {S(p)}, {off:#x}"); e(f"s_addc_u32 {S(d+1)}, {S(p+1)}, 0")
    else: e(f"s_mov_b32 {S(d)}, {S(p)}"); e(f"s_mov_b32 {S(d+1)}, {S(p+1)}")
    e(f"s_mov_b32 {S(d+2)}, {size:#x}"); e(f"s_mov_b32 {S(d+3)}, 0x20000")
def dma(e,vaddr,srd_,soff,m0expr,tag,sc1=False):
    sg,c=m0expr
    if sg is None: e(f"s_mov_b32 m0, {c:#x}")
    else: e(f"s_add_u32 m0, {S(sg)}, {c:#x}")
    if soff: e(f"s_mov_b32 {S(sT3)}, {soff:#x}"); so=S(sT3)
    else: e("s_nop 0"); so="0"
    e.vmem(f"buffer_load_dwordx4 {R(vaddr)}, {S(srd_,4)}, {so} offen {'sc1 ' if sc1 else ''}{'nt ' if 'ntd' in DBG and NTS[srd_] else ''}lds",tag)
def ldfrag(e,dst,vaddr,srd_,t,tag,st):
    hi=t>>2
    if hi and (t&3==0 or st): e(f"s_mov_b32 {S(sT2)}, {hi*4096:#x}")
    so=S(sT2) if hi else "0"
    e.vmem(f"buffer_load_dwordx4 {R(dst,4)}, {R(vaddr)}, {S(srd_,4)}, {so} offen offset:{(t&3)*1024}"+' sc1'+(' nt' if 'nta' in DBG else ''),tag)
def tr_lane_base(e,dst,tmp,perm):
    a,b,c=tmp,tmp+1,tmp+2
    e(f"v_bfe_u32 {R(a)}, {R(vL)}, 2, 2")
    e(f"v_lshrrev_b32 {R(b)}, 5, {R(vL)}")
    e(f"v_lshl_add_u32 {R(dst)}, {R(b)}, 3, {R(a)}")
    e(f"v_lshlrev_b32 {R(dst)}, 7, {R(dst)}")
    e(f"v_lshrrev_b32 {R(a)}, 1, {R(a)}"); e(f"v_lshlrev_b32 {R(a)}, 2, {R(a)}")
    e(f"v_lshl_or_b32 {R(a)}, {R(b)}, 1, {R(a)}")
    if perm=="frag":
        e(f"v_bfe_u32 {R(b)}, {R(vL)}, 4, 1"); e(f"v_and_b32 {R(c)}, 1, {R(vL)}")
        e(f"v_lshl_or_b32 {R(b)}, {R(b)}, 1, {R(c)}"); e(f"v_bfe_u32 {R(c)}, {R(vL)}, 1, 1")
    else:
        e(f"v_and_b32 {R(b)}, 1, {R(vL)}"); e(f"v_bfe_u32 {R(c)}, {R(vL)}, 4, 1")
        e(f"v_lshl_or_b32 {R(b)}, {R(b)}, 1, {R(c)}"); e(f"v_bfe_u32 {R(c)}, {R(vL)}, 1, 1")
    e(f"v_xor_b32 {R(a)}, {R(a)}, {R(b)}")
    e(f"v_lshl_add_u32 {R(dst)}, {R(a)}, 4, {R(dst)}")
    e(f"v_lshl_add_u32 {R(dst)}, {R(c)}, 3, {R(dst)}")
def wdma_lane(e,dst,tmp,rowstride,odd):
    a,b=tmp,tmp+1
    e(f"v_lshrrev_b32 {R(a)}, 3, {R(vL)}")
    e(f"s_mov_b32 {S(sT0)}, {rowstride}"); e(f"v_mul_lo_u32 {R(dst)}, {R(a)}, {S(sT0)}")
    e(f"v_bfe_u32 {R(a)}, {R(vL)}, 4, 1"); e(f"v_lshlrev_b32 {R(a)}, 2, {R(a)}")
    if isinstance(odd,int):
        if odd: e(f"v_or_b32 {R(a)}, 2, {R(a)}")
    else: e(f"v_lshl_or_b32 {R(a)}, {odd}, 1, {R(a)}")
    e(f"v_and_b32 {R(b)}, 7, {R(vL)}"); e(f"v_xor_b32 {R(a)}, {R(a)}, {R(b)}")
    e(f"v_lshl_add_u32 {R(dst)}, {R(a)}, 4, {R(dst)}")
def mfma32(e,d,a,b,first): e(f"v_mfma_f32_32x32x16_bf16 {R(d,16)}, {R(a,4)}, {R(b,4)}, {'0' if first else R(d,16)}")
def mfma16(e,d,a,b,first): e(f"v_mfma_f32_16x16x32_bf16 {R(d,4)}, {R(a,4)}, {R(b,4)}, {'0' if first else R(d,4)}")
def trread(e,dst,va,off,tag):
    e.lds(f"ds_read_b64_tr_b16 {R(dst,2)}, {R(va)} offset:{off}",tag)
    e.lds(f"ds_read_b64_tr_b16 {R(dst+2,2)}, {R(va)} offset:{off+512}",tag)
def allsum_halves(e,a,t):
    e(f"v_mov_b32 {R(t)}, {R(a)}"); e.nop(2); e(f"v_permlane32_swap_b32 {R(t)}, {R(a)}"); e.nop(1); e(f"v_add_f32 {R(a)}, {R(a)}, {R(t)}")
def meanrstd(e,s_,q,t):
    e(f"v_mul_f32 {R(s_)}, 0x3b000000, {R(s_)}"); e(f"v_mul_f32 {R(q)}, 0x3b000000, {R(q)}")
    e(f"v_fma_f32 {R(q)}, -{R(s_)}, {R(s_)}, {R(q)}"); e(f"v_max_f32 {R(q)}, 0, {R(q)}")
    e(f"v_add_f32 {R(q)}, 0x3727c5ac, {R(q)}"); e(f"v_rsq_f32 {R(q)}, {R(q)}"); e.nop(1)

WO_LDS=96*1024
NPRE=int(os.environ.get('NPRE',14))
def ids64(e):
    e(f"s_lshr_b32 {S(sMB)}, {S(sJ)}, 3"); e(f"s_lshl_b32 {S(sT0)}, {S(sXCD)}, 2"); e(f"s_add_u32 {S(sMB)}, {S(sMB)}, {S(sT0)}")
    e(f"s_and_b32 {S(sNB)}, {S(sJ)}, 7"); e(f"s_and_b32 {S(sKQ)}, {S(sW)}, 3"); e(f"s_lshr_b32 {S(sMH)}, {S(sW)}, 2")
def bsrc(e,vB,tmp,KS,kq,mh,ldsbase,slab,sdst):
    wdma_lane(e,vB,tmp,1024,S(mh) if mh is not None else 0)
    e(f"s_mul_i32 {S(sT0)}, {S(kq)}, {KS*16*1024}"); e(f"s_and_b32 {S(sT1)}, {S(sJ)}, 7"); e(f"s_lshl_b32 {S(sT1)}, {S(sT1)}, 7"); e(f"s_add_u32 {S(sT0)}, {S(sT0)}, {S(sT1)}")
    e(f"s_mul_i32 {S(sdst)}, {S(kq)}, {slab}"); e(f"s_add_u32 {S(sdst)}, {S(sdst)}, {ldsbase}")
    if mh is not None:
        e(f"s_lshl_b32 {S(sT1)}, {S(mh)}, 13"); e(f"s_add_u32 {S(sT0)}, {S(sT0)}, {S(sT1)}")
        e(f"s_lshl_b32 {S(sT1)}, {S(mh)}, 10"); e(f"s_add_u32 {S(sdst)}, {S(sdst)}, {S(sT1)}")
    e(f"v_add_u32 {R(vB)}, {S(sT0)}, {R(vB)}")
def p4_preload(e,j,part):
    if part==0:
        srd(e,srdW,pW2,0,1792*1024); bsrc(e,14,9,28,j,None,0,40960,sLB)
        e("v_xor_b32 v15, 32, v14"); e("v_add_u32 v15, 0x2000, v15")
    for t in range(NPRE):
        for h in range(2): dma(e,14+h,srdW,t*16384,(sLB,t*2048+h*1024),"pre")
def phase_rs(e,L,which):
    P2=which==2
    K=512 if P2 else 1792; KS=K//64; RING=8 if P2 else 20; SLAB=RING*2048; LB=WO_LDS if P2 else 0; RB=0 if P2 else 112*1024; LA=8 if P2 else int(os.environ.get('LA',6))
    wo=L*LSTRIDE
    ids64(e)
    if P2:
        srd(e,srdA,pWS,wo+O_OFF,2*MB)
        srd(e,srdR,pX,0,2*MB)
        srd(e,srdO,pWS,wo+X1_OFF,2*MB); srd(e,srdS,pWS,wo+ST_OFF,128*1024)
    else:
        srd(e,srdA,pWS,wo+H_OFF,7*MB); srd(e,srdW,pW2,0,1792*1024); srd(e,srdR,pWS,X2H_OFF,128*1024)
        srdsel(e,srdO,pWS,X2_OFF,2*MB,pOUT,0,2*MB)
    vA,vB,vF,vRM,vT0,vT1,vRD,vRes,vAcc,vBf,vAf=12,13,4,5,6,7,8,vRES,16,48,80
    tmp=9; mt=sD+10; sb=sD+11
    e(f"s_lshl_b32 {S(mt)}, {S(sMB)}, 1"); e(f"s_add_u32 {S(mt)}, {S(mt)}, {S(sMH)}")
    e(f"s_mul_i32 {S(sT0)}, {S(mt)}, {K//16*1024}"); e(f"s_mul_i32 {S(sT1)}, {S(sKQ)}, {KS*1024}"); e(f"s_add_u32 {S(sT0)}, {S(sT0)}, {S(sT1)}")
    e(f"v_lshl_add_u32 {R(vA)}, {R(vL)}, 4, {S(sT0)}")
    if not P2: bsrc(e,vB,tmp,KS,sKQ,sMH,0,SLAB,sb)
    e(f"s_lshl_b32 {S(sT0)}, {S(mt)}, 5"); e(f"s_lshl_b32 {S(sT1)}, {S(sNB)}, 2"); e(f"s_add_u32 {S(sT1)}, {S(sT1)}, {S(sKQ)}")
    e(f"s_add_u32 {S(sT0)}, {S(sT0)}, {S(sT1)}"); e(f"s_lshl_b32 {S(sT0)}, {S(sT0)}, 10")
    e(f"v_lshl_add_u32 {R(vF)}, {R(vL)}, 4, {S(sT0)}")
    e(f"s_lshl_b32 {S(sT0)}, {S(mt)}, 15"); e(f"s_lshl_b32 {S(sT1)}, {S(sT1)}, 5"); e(f"s_add_u32 {S(sT0)}, {S(sT0)}, {S(sT1)}")
    e(f"v_and_b32 {R(tmp)}, 31, {R(vL)}"); e(f"v_lshlrev_b32 {R(tmp)}, 10, {R(tmp)}"); e(f"v_lshrrev_b32 {R(tmp+1)}, 5, {R(vL)}")
    e(f"v_lshl_add_u32 {R(tmp)}, {R(tmp+1)}, 4, {R(tmp)}"); e(f"v_add_u32 {R(vRM)}, {S(sT0)}, {R(tmp)}")
    tr_lane_base(e,vT0,tmp,"frag")
    e(f"s_mul_i32 {S(sT0)}, {S(sKQ)}, {SLAB}"); e(f"s_add_u32 {S(sT0)}, {S(sT0)}, {LB}")
    e(f"v_add_u32 {R(vT0)}, {S(sT0)}, {R(vT0)}"); e(f"v_xor_b32 {R(vT1)}, 64, {R(vT0)}")
    e(f"s_mul_i32 {S(sT0)}, {S(sMH)}, {12*2048}"); e(f"s_add_u32 {S(sT0)}, {S(sT0)}, {RB}"); e(f"v_lshl_add_u32 {R(vRD)}, {R(vL)}, 4, {S(sT0)}")
    def rd(t,nt): trread(e,vBf+(t&1)*8+nt*4,vT0+nt,(t%RING)*2048,("f",t,nt))
    if P2:
        with ifL(e,0): e(f"buffer_load_dwordx4 {R(vRes,4)}, {R(vRM)}, {S(srdR,4)}, 0 offen")
    if not P2:
        for u in range(NPRE,RING): dma(e,vB,srdW,u*16384,(sb,u*2048),"B1")
    if P2: e(f"s_and_b32 {S(sD+2)}, {S(sJ)}, 24"); waitflags(e,L*4,sD+2,8)
    else: e(f"s_lshr_b32 {S(sD+2)}, {S(sJ)}, 4"); e(f"s_mul_i32 {S(sD+2)}, {S(sD+2)}, 14"); waitflags(e,L*4+2,sD+2,14)
    stamp(e,9)
    for t in range(LA): ldfrag(e,vAf+4*t,vA,srdA,t,("A",t),False)
    if P2 and 'now1b' not in DBG and 'w1all' not in DBG: pfl(e,srdW,pW1,512*3584,[(sJ,24576),(sW,3072)],MB,24,tmp)
    rd(0,0); rd(0,1)
    for t in range(KS):
        if t+LA<KS: ldfrag(e,vAf+4*(t+LA),vA,srdA,t+LA,("A",t+LA),False)
        if not P2 and t==9:
            e.bar()
        if not P2 and 9<=t<17: u=RING+t-9; dma(e,vB,srdW,u*16384,(sb,(u%RING)*2048),"B")
        if t+1==RING and t+1<KS: e.wvm("B"); e.bar()
        e.wvm(("A",t))
        if t%4==0: stamp(e,1+t//4)
        for nt in range(2):
            if t+1<KS: rd(t+1,nt)
            e.wlg(("f",t,nt)); mfma32(e,vAcc+16*nt,vBf+(t&1)*8+nt*4,vAf+4*t,t==0)
        if not P2 and t==KS-LA:
            with ifL(e,0): (prefetch(e,srdS,pQKV,512*3072,8,sW,9,240) if 'qall' in DBG else pfl(e,srdS,pQKV,512*3072,[(sJ,18432),(sW,2304)],0,18,9)); p1_setup(e,1)
    if not P2: e.bar()
    stamp(e,10); e.nop(10)
    own=vBf
    done=e.newlab("rdone"); labs=[e.newlab("rv") for _ in range(4)]
    for q in range(1,4): e(f"s_cmp_eq_u32 {S(sKQ)}, {q}"); e(f"s_cbranch_scc1 {labs[q]}")
    for kq in range(4):
        e.lab(labs[kq])
        for q in range(4):
            if q==kq: continue
            for j in range(2): e(f"ds_write_b128 {R(vRD)}, {R(vAcc+8*q+4*j,4)} offset:{(q*3+((kq-q)&3)-1)*2048+j*1024}")
        for j in range(8): e(f"v_mov_b32 {R(own+j)}, {R(vAcc+8*kq+j)}")
        if kq<3: e(f"s_branch {done}")
    e.lab(done)
    e(f"s_mul_i32 {S(sT0)}, {S(sKQ)}, {3*2048}"); e(f"v_add_u32 {R(vRD)}, {S(sT0)}, {R(vRD)}")
    if not P2:
        with ifL(e,0):
            for s_ in range(3): p1_issue(e,1,s_,range(3),[])
    e.wlg0(); e.bar()
    for i in range(1,4):
        for j in range(2): e.lds(f"ds_read_b128 {R(own+8*i+4*j,4)}, {R(vRD)} offset:{(i-1)*2048+j*1024}",("p",i))
    e.wvm("res")
    rf=vAcc
    for j in range(4):
        e(f"v_lshlrev_b32 {R(rf+2*j)}, 16, {R(vRes+j)}"); e(f"v_and_b32 {R(rf+2*j+1)}, 0xffff0000, {R(vRes+j)}")
    for j in range(4): e(f"v_pk_add_f32 {R(own+2*j,2)}, {R(own+2*j,2)}, {R(rf+2*j,2)}")
    for i in range(1,4):
        e.wlg(("p",i))
        for j in range(4): e(f"v_pk_add_f32 {R(own+2*j,2)}, {R(own+2*j,2)}, {R(own+8*i+2*j,2)}")
    for j in range(4): e(f"v_cvt_pk_bf16_f32 {R(vRes+j)}, {R(own+2*j)}, {R(own+2*j+1)}")
    ins=f"buffer_store_dwordx4 {R(vRes,4)}, {R(vF if P2 else vRM)}, {S(srdO,4)}, 0 offen"
    gstore(e,ins,"st")
    if not P2:
        if PROF:
            with ifL(e,1): stamp_flush(e,3)
        e(f"s_cmp_lg_u32 {S(sL)}, 0"); e(f"s_cbranch_scc1 {e.endlab}")
        sk=e.newlab("nohalo"); e(f"s_and_b32 {S(sT0)}, {S(mt)}, 7"); e(f"s_cmp_lg_u32 {S(sT0)}, 7"); e(f"s_cbranch_scc1 {sk}")
        e(f"s_lshl_b32 {S(sT0)}, {S(mt)}, 15"); e(f"s_lshl_b32 {S(sT1)}, {S(sXCD)}, 14"); e(f"s_sub_u32 {S(sT0)}, {S(sT0)}, {S(sT1)}"); e(f"s_add_u32 {S(sT0)}, {S(sT0)}, 0x4000")
        e(f"v_subrev_u32 {R(tmp)}, {S(sT0)}, {R(vRM)}"); e("s_mov_b32 exec_lo, 0xffff0000"); e("s_mov_b32 exec_hi, 0xffff0000")
        e(f"buffer_store_dwordx4 {R(vRes,4)}, {R(tmp)}, {S(srdR,4)}, 0 offen sc1"); e("s_mov_b64 exec, -1"); e.lab(sk)
        def xflag():
            sk=e.newlab("noxf"); e(f"s_cmp_lt_u32 {S(sJ)}, 24"); e(f"s_cbranch_scc1 {sk}")
            e(f"s_mov_b32 {S(sT2)}, {7*1024}"); e(f"buffer_store_dword v3, v2, {S(srdF,4)}, {S(sT2)} offen sc1"); e.lab(sk)
        publish(e,3,xflag)
    if P2:
        a,b=rf,rf+1
        e(f"v_dot2_f32_bf16 {R(a)}, {R(vRes)}, {S(sONE)}, 0"); e(f"v_dot2_f32_bf16 {R(b)}, {R(vRes)}, {R(vRes)}, 0")
        for j in range(1,4):
            e(f"v_dot2_f32_bf16 {R(a)}, {R(vRes+j)}, {S(sONE)}, {R(a)}"); e(f"v_dot2_f32_bf16 {R(b)}, {R(vRes+j)}, {R(vRes+j)}, {R(b)}")
        e(f"s_lshl_b32 {S(sT0)}, {S(sW)}, 8"); e(f"s_add_u32 {S(sT0)}, {S(sT0)}, 0xc000")
        e(f"v_lshl_add_u32 {R(tmp)}, {R(vL)}, 2, {S(sT0)}"); e.nop(2)
        e(f"v_permlane32_swap_b32 {R(a)}, {R(b)}"); e.nop(1); e(f"v_add_f32 {R(a)}, {R(a)}, {R(b)}")
        e(f"ds_write_b32 {R(tmp)}, {R(a)}"); e.wlg0(); e.bar()
        sk=e.newlab("nost"); e(f"s_cmp_lg_u32 {S(sKQ)}, 0"); e(f"s_cbranch_scc1 {sk}")
        for i in range(1,4): e(f"ds_read_b32 {R(rf+1+i)}, {R(tmp)} offset:{i*256}")
        e(f"s_lshl_b32 {S(sT0)}, {S(mt)}, 3"); e(f"s_add_u32 {S(sT0)}, {S(sT0)}, {S(sNB)}"); e(f"s_lshl_b32 {S(sT0)}, {S(sT0)}, 8")
        e(f"v_lshl_add_u32 {R(tmp)}, {R(vL)}, 2, {S(sT0)}"); e.wlg0()
        e(f"v_add_f32 {R(a)}, {R(a)}, {R(rf+2)}"); e(f"v_add_f32 {R(rf+3)}, {R(rf+3)}, {R(rf+4)}"); e(f"v_add_f32 {R(a)}, {R(a)}, {R(rf+3)}")
        gstore(e,f"buffer_store_dword {R(a)}, {R(tmp)}, {S(srdS,4)}, 0 offen","st")
        e.lab(sk)
        publish(e,L*4+1)

def phase3(e,L):
    wo=L*LSTRIDE; LA=8
    e(f"s_cmp_ge_u32 {S(sJ)}, 14"); e(f"s_cselect_b32 {S(sT0)}, 1, 0"); e(f"s_cselect_b32 {S(sT1)}, 14, 0")
    e(f"s_sub_u32 {S(sNB)}, {S(sJ)}, {S(sT1)}"); e(f"s_lshl_b32 {S(sMB)}, {S(sXCD)}, 1"); e(f"s_add_u32 {S(sMB)}, {S(sMB)}, {S(sT0)}")
    srd(e,srdA,pWS,wo+X1_OFF,2*MB); srd(e,srdW,pW1,0,512*3584); srd(e,srdO,pWS,wo+H_OFF,7*MB); srd(e,srdS,pWS,wo+ST_OFF,128*1024)
    CS=131072
    ld=e.newlab("p3ld"); fin=e.newlab("p3fin"); skip=e.newlab("p3skip"); sk2=e.newlab("p3end")
    j=sD; e(f"s_sub_u32 {S(j)}, {S(sW)}, 4")
    e(f"s_cmp_ge_u32 {S(sJ)}, 28"); e(f"s_cbranch_scc1 {skip}")
    tmp=9
    e(f"s_cmp_ge_u32 {S(sW)}, 4"); e(f"s_cbranch_scc1 {ld}")
    if 'cprio' in DBG: e('s_setprio 1')
    vA,vT,vH,vM,vS,vSt,vAcc,vBf,vAf=12,4,13,14,2,16,24,88,120
    mt=sD
    e(f"s_lshl_b32 {S(mt)}, {S(sMB)}, 2"); e(f"s_add_u32 {S(mt)}, {S(mt)}, {S(sW)}")
    e(f"s_lshl_b32 {S(sT0)}, {S(mt)}, 15"); e(f"v_lshl_add_u32 {R(vA)}, {R(vL)}, 4, {S(sT0)}")
    e(f"s_lshl_b32 {S(sT0)}, {S(mt)}, 11"); e(f"v_lshl_add_u32 {R(vH)}, {R(vL)}, 2, {S(sT0)}")
    tr_lane_base(e,vT,tmp,"frag")
    e(f"v_xor_b32 {R(vT+1)}, 64, {R(vT)}"); e(f"v_add_u32 {R(vT+2)}, 0x10000, {R(vT)}"); e(f"v_add_u32 {R(vT+3)}, 0x10000, {R(vT+1)}")
    e(f"s_and_b32 {S(sD+2)}, {S(sMB)}, 1"); e(f"s_lshl_b32 {S(sD+2)}, {S(sD+2)}, 4"); waitflags(e,L*4+1,sD+2,16); stamp(e,9)
    for t in range(LA): ldfrag(e,vAf+4*t,vA,srdA,t,("A",t),False)
    def rd(t,nt): trread(e,vBf+(t&1)*16+nt*4,vT+nt,t*2048,("f",t,nt))
    e.bar()
    for nt in range(4): rd(0,nt)
    for t in range(32):
        for u in (LA+2*t,LA+2*t+1):
            if u<32: ldfrag(e,vAf+4*u,vA,srdA,u,("A",u),False)
        if t==12:
            for i in range(8): e.vmem(f"buffer_load_dword {R(vSt+i)}, {R(vH)}, {S(srdS,4)}, 0 offen offset:{i*256} sc1","st")
            e(f"s_mul_i32 {S(sT0)}, {S(mt)}, {112*1024}"); e(f"s_lshl_b32 {S(sT1)}, {S(sNB)}, 13"); e(f"s_add_u32 {S(sT0)}, {S(sT0)}, {S(sT1)}")
            e(f"v_lshl_add_u32 {R(vH)}, {R(vL)}, 4, {S(sT0)}")
        if (t+1)%4==0 and t+1<=16: e.bar()
        e.wvm(("A",t))
        if t%4==0: stamp(e,1+t//4)
        for nt in range(4):
            if t+1<32: rd(t+1,nt)
            e.wlg(("f",t,nt)); mfma32(e,vAcc+16*nt,vBf+(t&1)*16+nt*4,vAf+4*t,t==0)
        if t==30:
            e.wvm("st")
            for i in (4,2,1):
                for jj in range(i): e(f"v_add_f32 {R(vSt+jj)}, {R(vSt+jj)}, {R(vSt+jj+i)}")
            e(f"v_mov_b32 {R(vSt+1)}, {R(vSt)}"); e.nop(2); e(f"v_permlane32_swap_b32 {R(vSt)}, {R(vSt+1)}"); e.nop(1)
            meanrstd(e,vSt,vSt+1,tmp)
            e(f"v_mul_f32 {R(vM)}, 0xbfb8aa3b, {R(vSt+1)}"); e(f"v_mul_f32 {R(vM+1)}, {R(vM)}, {R(vSt)}"); e(f"v_sub_f32 {R(vM+1)}, 0, {R(vM+1)}")
            e(f"v_mov_b32 {R(vS)}, 0xbfb8aa3b")
    e(f"v_lshrrev_b32 {R(tmp)}, 5, {R(vL)}"); e(f"v_lshlrev_b32 {R(tmp)}, 4, {R(tmp)}"); e(f"v_add_u32 {R(tmp)}, {CS:#x}, {R(tmp)}")
    e.bar(); stamp(e,10)
    vC=vAf
    for nt in range(4):
        for g in range(4): e.lds(f"ds_read_b128 {R(vC+16*nt+4*g,4)}, {R(tmp)} offset:{nt*128+g*32}",("c",nt))
    for jj in range(32): e(f"v_pk_mul_f32 {R(vAcc+2*jj,2)}, {R(vAcc+2*jj,2)}, {R(vM,2)} op_sel_hi:[1,0]") if jj>=24 or True else None
    e.wlg0(); e.bar()
    U=vBf; PK=vAf+64
    for nt in range(4):
        for hh in range(2):
            b=vAcc+16*nt+8*hh; c=vC+16*nt+8*hh; o=PK+(nt*2+hh)*4
            for jj in range(4): e(f"v_pk_fma_f32 {R(b+2*jj,2)}, {R(c+2*jj,2)}, {R(vM,2)}, {R(b+2*jj,2)} op_sel:[0,1,0] op_sel_hi:[1,1,1]")
            for jj in range(8): e(f"v_exp_f32 {R(U+jj)}, {R(b+jj)}")
            e.nop(1)
            for jj in range(4): e(f"v_pk_fma_f32 {R(U+2*jj,2)}, {R(U+2*jj,2)}, {R(vS,2)}, {R(vS,2)} op_sel_hi:[1,0,0]")
            for jj in range(8): e(f"v_rcp_f32 {R(U+jj)}, {R(U+jj)}")
            e.nop(1)
            for jj in range(4): e(f"v_pk_mul_f32 {R(b+2*jj,2)}, {R(b+2*jj,2)}, {R(U+2*jj,2)}")
            for jj in range(4): e(f"v_cvt_pk_bf16_f32 {R(o+jj)}, {R(b+2*jj)}, {R(b+2*jj+1)}")
            t=nt*2+hh
            if t==4: e(f"s_movk_i32 {S(sT2)}, 0x1000")
            gstore(e,f"buffer_store_dwordx4 {R(o,4)}, {R(vH)}, {S(srdO,4)}, {S(sT2) if t>=4 else '0'} offen offset:{(t&3)*1024}","st")
    e(f"s_branch {fin}")
    e.lab(ld); e.reset(); e('s_setprio '+os.environ.get('PRIO','0'))
    vB,vT,vCs,vBf=2,4,5,16
    wdma_lane(e,vB,tmp,3584,0)
    e(f"s_and_b32 {S(sD+1)}, {S(j)}, 1"); e(f"s_lshr_b32 {S(sD+2)}, {S(j)}, 1")
    e(f"s_mul_i32 {S(sT0)}, {S(sD+2)}, {32*3584}"); e(f"s_lshl_b32 {S(sT1)}, {S(sD+1)}, 7"); e(f"s_add_u32 {S(sT0)}, {S(sT0)}, {S(sT1)}")
    e(f"s_lshl_b32 {S(sT1)}, {S(sNB)}, 8"); e(f"s_add_u32 {S(sT0)}, {S(sT0)}, {S(sT1)}")
    e(f"v_add_u32 {R(vB)}, {S(sT0)}, {R(vB)}"); e(f"v_xor_b32 {R(vB+1)}, 32, {R(vB)}")
    e(f"s_lshl_b32 {S(sLB)}, {S(sD+1)}, 16"); e(f"s_lshl_b32 {S(sT1)}, {S(sD+2)}, 12"); e(f"s_add_u32 {S(sLB)}, {S(sLB)}, {S(sT1)}")
    def wch(ch):
        for i in range(4): dma(e,vB+(i&1),srdW,(ch*64+8*i)*3584,(sLB,ch*8192+i*1024),("B",ch))
    for ch in range(3): wch(ch)
    tr_lane_base(e,vT,tmp,"frag")
    e(f"s_lshl_b32 {S(sT0)}, {S(sD+1)}, 6"); e(f"v_xor_b32 {R(vT)}, {S(sT0)}, {R(vT)}")
    e(f"s_lshl_b32 {S(sT0)}, {S(sD+2)}, 16"); e(f"v_add_u32 {R(vT)}, {S(sT0)}, {R(vT)}")
    e(f"v_mov_b32 {R(vCs)}, 0"); e(f"v_mov_b32 {R(vCs+1)}, 0")
    e.bar()
    for ch in range(8):
        if ch<=4: e.wvm(("B",ch if ch<4 else 7)); e.bar()
        if ch==0: stamp(e,9)
        if ch==4: stamp(e,1)
        for t in range(4): trread(e,vBf+4*t,vT,(ch*4+t)*2048,("f",t))
        for c2 in {0:(3,4),1:(5,6),2:(7,)}.get(ch,()): wch(c2)
        if ch==3:
            e(f"s_lshl_b32 {S(sT0)}, {S(sMB)}, 2"); e(f"s_add_u32 {S(sT0)}, {S(sT0)}, {S(j)}"); e(f"s_mul_i32 {S(sT0)}, {S(sT0)}, {112*1024}")
            e(f"s_lshl_b32 {S(sT1)}, {S(sNB)}, 13"); e(f"s_add_u32 {S(sT0)}, {S(sT0)}, {S(sT1)}"); e(f"v_lshl_add_u32 v7, {R(vL)}, 7, {S(sT0)}")
            e.vmem(f"buffer_load_dword v242, v7, {S(srdO,4)}, 0 offen sc1","pf")
        if ch==4:
            pf_w2(e,j,0); pf_w2(e,j,1)
            with ifL(e,0): x2touch(e,j,4,7)
        for t in range(4):
            e.wlg(("f",t))
            for i in range(4): e(f"v_dot2_f32_bf16 {R(vCs+(i&1))}, {R(vBf+4*t+i)}, {S(sONE)}, {R(vCs+(i&1))}")
    e(f"s_lshl_b32 {S(sT0)}, {S(j)}, 7"); e(f"s_add_u32 {S(sT0)}, {S(sT0)}, {CS:#x}")
    e(f"v_and_b32 {R(tmp)}, 31, {R(vL)}"); e(f"v_lshl_add_u32 {R(tmp)}, {R(tmp)}, 2, {S(sT0)}"); e.nop(2)
    e(f"v_add_f32 {R(vCs)}, {R(vCs)}, {R(vCs+1)}")
    allsum_halves(e,vCs,vCs+1)
    e(f"ds_write_b32 {R(tmp)}, {R(vCs)}")
    stamp(e,3)
    if 'w4' in DBG: e.wvm0()
    stamp(e,4); e.wlg0(); e('s_setprio 0'); e.bar(); e.bar(); stamp(e,5)
    p4_preload(e,j,0); e.bar(); e.wvm0()
    e(f"s_branch {sk2}")
    e.lab(fin); e('s_setprio 0'); publish(e,L*4+2); e(f"s_branch {sk2}")
    e.lab(skip)
    sk3=e.newlab("p3np"); e(f"s_cmp_lt_u32 {S(sW)}, 4"); e(f"s_cbranch_scc1 {sk3}"); pf_w2(e,j,0); pf_w2(e,j,1)
    with ifL(e,0): x2touch(e,j,4,7)
    p4_preload(e,j,0); e.lab(sk3)
    e.wvm0(); e.bar(); e.lab(sk2)

STG=34816; WOF=10240; CS1=4*STG; ST1=CS1+1024; QB,KB,VB=0,9216,20736
vW,vX,vb=200,206,209
dW,dX=sD,sD+6
def wslots(e,sw,k0):
    for a in range(3):
        e(f"s_mul_i32 {S(sT0)}, {S(sw)}, 3"); e(f"s_add_u32 {S(sT0)}, {S(sT0)}, {a}")
        e(f"s_lshl_b32 {S(dW+k0+a)}, {S(sT0)}, 10"); e(f"s_add_u32 {S(dW+k0+a)}, {S(dW+k0+a)}, {WOF}")
        e(f"s_and_b32 {S(sT1)}, {S(sT0)}, 1"); e(f"s_lshl_b32 {S(sT1)}, {S(sT1)}, 5"); e(f"v_xor_b32 {R(vW+k0+a)}, {S(sT1)}, {R(vb)}")
        e(f"s_and_b32 {S(sT1)}, {S(sT0)}, 7"); e(f"s_mul_i32 {S(sT1)}, {S(sT1)}, {8*3072}")
        e(f"s_lshr_b32 {S(sT0)}, {S(sT0)}, 3"); e(f"s_lshl_b32 {S(sT0)}, {S(sT0)}, 10"); e(f"s_add_u32 {S(sT0)}, {S(sT0)}, {S(sT1)}")
        e(f"v_add_u32 {R(vW+k0+a)}, {S(sT0)}, {R(vW+k0+a)}")
def p1_setup(e,L):
    tmp=9
    srd(e,srdW,pQKV,0,512*3072)
    wdma_lane(e,vb,tmp,3072,0)
    e(f"s_lshl_b32 {S(sT0)}, {S(sNB)}, 7"); e(f"v_add_u32 {R(vb)}, {S(sT0)}, {R(vb)}")
    e(f"v_lshrrev_b32 {R(tmp)}, 3, {R(vL)}"); e(f"v_lshrrev_b32 {R(tmp+1)}, 4, {R(vL)}"); e(f"v_and_b32 {R(tmp+2)}, 7, {R(vL)}")
    e(f"v_xor_b32 {R(tmp+1)}, {R(tmp+1)}, {R(tmp+2)}"); e(f"v_lshlrev_b32 {R(tmp+1)}, 4, {R(tmp+1)}")
    e(f"v_lshl_add_u32 {R(vb+1)}, {R(tmp)}, 10, {R(tmp+1)}")
    wslots(e,sW,0)
def p1_issue(e,L,s,ws,xs):
    b=(s%4)*STG
    for k in xs: dma(e,vX+k,srdA,s*128,(dX+k,b),("S",s),True)
    for k in ws: dma(e,vW+k,srdW,s*64*3072,(dW+k,b),("S",s))
def p1_trickle(e,L,s,j):
    wo=L*LSTRIDE; va=211
    if s==5 and "nopt" not in DBG:
        srd(e,srdS,pWS,wo,16*MB)
        e(f"s_lshl_b32 {S(sT0)}, {S(sMB)}, 16"); e(f"s_lshl_b32 {S(sT1)}, {S(sNB)}, 12"); e(f"s_add_u32 {S(sT0)}, {S(sT0)}, {S(sT1)}")
        e(f"s_and_b32 {S(sT1)}, {S(j)}, 1"); e(f"s_lshl_b32 {S(sT1)}, {S(sT1)}, 15"); e(f"s_add_u32 {S(sT0)}, {S(sT0)}, {S(sT1)}")
        e(f"s_lshr_b32 {S(sT1)}, {S(j)}, 1"); e(f"s_lshl_b32 {S(sT1)}, {S(sT1)}, 21"); e(f"s_add_u32 {S(sT0)}, {S(sT0)}, {S(sT1)}")
        e(f"v_and_b32 {R(va)}, 31, {R(vL)}"); e(f"v_lshl_add_u32 {R(va)}, {R(va)}, 7, {S(sT0)}")
        e.vmem(f"buffer_load_dword v242, {R(va)}, {S(srdS,4)}, 0 offen sc1","pf")
        e(f"s_lshl_b32 {S(sT0)}, {S(sMB)}, 12"); e(f"s_lshl_b32 {S(sT1)}, {S(sNB)}, 8"); e(f"s_add_u32 {S(sT0)}, {S(sT0)}, {S(sT1)}"); e(f"s_add_u32 {S(sT0)}, {S(sT0)}, {ST_OFF}")
        e(f"v_and_b32 {R(va)}, 1, {R(vL)}"); e(f"v_lshl_add_u32 {R(va)}, {R(va)}, 7, {S(sT0)}"); e(f"v_bfe_u32 {R(va+1)}, {R(vL)}, 1, 1"); e(f"v_lshl_add_u32 {R(va)}, {R(va+1)}, 11, {R(va)}")
        e.vmem(f"buffer_load_dword v242, {R(va)}, {S(srdS,4)}, 0 offen sc1","pf")
        if True:
            e(f"s_lshl_b32 {S(sT0)}, {S(sXCD)}, 7"); e(f"v_and_b32 {R(va)}, 7, {R(vL)}"); e(f"v_lshl_add_u32 {R(va)}, {R(va)}, 10, {S(sT0)}")
            e.vmem(f"buffer_load_dword v242, {R(va)}, {S(srdF,4)}, 0 offen sc1","pf")
    if s==5: prefetch(e,srdS,pWO,512*1024,4,j,va,240)
    if s==6:
        if 'w1all' in DBG: prefetch(e,srdS,pW1,512*3584,4,j,va,240)
        else: pfl(e,srdS,pW1,512*3584,[(sJ,32768),(j,8192)],0,64,va)
def x2touch(e,sw,nw,va):
    e(f"s_lshr_b32 {S(sT0)}, {S(sJ)}, 3"); e(f"s_lshl_b32 {S(sT1)}, {S(sXCD)}, 2"); e(f"s_add_u32 {S(sT0)}, {S(sT0)}, {S(sT1)}"); e(f"s_lshl_b32 {S(sT0)}, {S(sT0)}, 16")
    e(f"s_mul_i32 {S(sT1)}, {S(sw)}, {65536//nw}"); e(f"s_add_u32 {S(sT0)}, {S(sT0)}, {S(sT1)}")
    e(f"s_and_b32 {S(sT1)}, {S(sJ)}, 7"); e(f"s_lshl_b32 {S(sT1)}, {S(sT1)}, 7"); e(f"s_add_u32 {S(sT0)}, {S(sT0)}, {S(sT1)}")
    srd(e,srdR,pWS,X2_OFF,2*MB)
    e(f"v_and_b32 {R(va)}, {64//nw-1}, {R(vL)}"); e(f"v_lshl_add_u32 {R(va)}, {R(va)}, 10, {S(sT0)}")
    e.vmem(f"buffer_load_dword v242, {R(va)}, {S(srdR,4)}, 0 offen sc1","pf")
def phase1(e,L):
    wo=L*LSTRIDE
    ids64(e)
    srdsel(e,srdA,pX,0,2*MB,pWS,X2_OFF,4*MB)
    srd(e,srdO,pWS,wo+O_OFF,2*MB)
    tmp=9
    lab_h,lab_l,lab_att=e.newlab("p1h"),e.newlab("p1l"),e.newlab("p1att")
    issue=lambda s,ws,xs: p1_issue(e,L,s,ws,xs)
    def first3(xs):
        e.alt=[]
        for s in range(3):
            if s: w0(s)
            issue(s,[],xs)
    def w0(s):
        with ifL(e,0): e.only0=True; issue(s,range(3),[]); e.only0=False
    def xslot(si,k):
        e(f"s_lshl_b32 {S(dX+k)}, {S(si)}, 10")
        e(f"s_and_b32 {S(sT1)}, {S(si)}, 1"); e(f"s_lshl_b32 {S(sT1)}, {S(sT1)}, 6"); e(f"v_xor_b32 {R(vX+k)}, {S(sT1)}, {R(vb+1)}")
        e(f"s_lshl_b32 {S(sT0)}, {S(sMB)}, 16"); e(f"s_lshl_b32 {S(sT1)}, {S(si)}, 13"); e(f"s_add_u32 {S(sT0)}, {S(sT0)}, {S(sT1)}")
        e(f"s_sub_u32 {S(sT0)}, {S(sT0)}, 0x4000")
        if True:
            e(f"s_lshl_b32 {S(sT2)}, {S(sXCD)}, 14"); e(f"s_add_u32 {S(sT2)}, {S(sT2)}, {S(sT1)}"); e(f"s_add_u32 {S(sT2)}, {S(sT2)}, {X2H_OFF-X2_OFF-0x4000}")
            e(f"s_cmp_lt_u32 {S(si)}, 2"); e(f"s_cselect_b32 {S(sT1)}, {S(sD+9)}, 0"); e(f"s_cmp_lg_u32 {S(sT1)}, 0"); e(f"s_cselect_b32 {S(sT0)}, {S(sT2)}, {S(sT0)}")
        e(f"v_add_u32 {R(vX+k)}, {S(sT0)}, {R(vX+k)}")
    def bump(regs,s):
        d=STG if s%4!=3 else -3*STG
        for r in regs: e(f"v_add_u32 {R(r)}, {d&0xffffffff:#x}, {R(r)}")
    def xaddr(dst,n,step,rowbase,w16):
        if w16: e(f"v_and_b32 {R(tmp)}, 15, {R(vL)}"); e(f"v_lshrrev_b32 {R(tmp+1)}, 4, {R(vL)}")
        else: e(f"v_and_b32 {R(tmp)}, 31, {R(vL)}"); e(f"v_lshrrev_b32 {R(tmp+1)}, 5, {R(vL)}")
        if rowbase is not None: e(f"v_add_u32 {R(tmp)}, {rowbase}, {R(tmp)}")
        e(f"v_bfe_u32 {R(tmp+2)}, {R(tmp)}, 1, 3"); e(f"v_xor_b32 {R(tmp+1)}, {R(tmp+1)}, {R(tmp+2)}")
        e(f"v_lshlrev_b32 {R(tmp+1)}, 4, {R(tmp+1)}"); e(f"v_lshl_add_u32 {R(dst)}, {R(tmp)}, 7, {R(tmp+1)}")
        for i in range(1,n): e(f"v_xor_b32 {R(dst+i)}, {i*step}, {R(dst)}")
    if True:
        e(f"s_cmp_lt_u32 {S(sJ)}, 8"); e(f"s_cselect_b32 {S(sD+9)}, {S(sXCD)}, 0"); e(f"s_mul_i32 {S(sD+9)}, {S(sD+9)}, {S(sL)}")
        e(f"s_and_b32 {S(sD+12)}, {S(sJ)}, 24"); e(f"s_max_u32 {S(sT0)}, {S(sD+12)}, 8"); e(f"s_sub_u32 {S(sT0)}, {S(sT0)}, 8"); e(f"s_lshl_b32 {S(sT0)}, {S(sT0)}, 2")
        e(f"s_lshl_b32 {S(sT1)}, {S(sXCD)}, 7"); e(f"s_add_u32 {S(sT0)}, {S(sT0)}, {S(sT1)}"); e(f"s_add_u32 {S(sT0)}, {S(sT0)}, {3*1024}")
        e(f"s_add_u32 {S(sT1)}, {S(sT1)}, {7*1024-128+96}"); e(f"s_cmp_lg_u32 {S(sD+9)}, 0"); e(f"s_cselect_b32 {S(sD+13)}, {S(sT1)}, {S(sT0)}")
    xslot(sW,0)
    with ifL(e,1): waitflags(e,3,sD+12,8,sD+13)
    e(f"s_cmp_ge_u32 {S(sW)}, 4"); e(f"s_cbranch_scc1 {lab_l}")
    first3([0])
    q0=list(e.vm); q1=list(e.alt)
    e(f"s_cmp_eq_u32 {S(sW)}, 3"); e(f"s_cbranch_scc1 {lab_h}")
    if 'cprio' in DBG: e('s_setprio 1')
    vXa,vTa,vAcc,vF=2,6,32,96
    xaddr(vXa,4,32,16,False)
    tr_lane_base(e,vTa,tmp,"head")
    pA,nA,pB,nB=sD+10,sD+11,sD+12,sD+13
    e(f"s_min_u32 {S(pA)}, {S(sW)}, 1"); e(f"s_lshr_b32 {S(nA)}, {S(sW)}, 1"); e(f"s_lshl_b32 {S(pB)}, {S(pA)}, 1")
    e(f"s_and_b32 {S(nB)}, {S(sW)}, 1"); e(f"s_xor_b32 {S(nB)}, {S(nB)}, 1")
    for r,p,n in ((vTa+1,pB,nB),(vTa,pA,nA)):
        e(f"s_lshl_b32 {S(sT0)}, {S(n)}, 6"); e(f"v_xor_b32 {R(r)}, {S(sT0)}, {R(vTa)}")
        e(f"s_lshl_b32 {S(sT0)}, {S(p)}, 13"); e(f"s_add_u32 {S(sT0)}, {S(sT0)}, {WOF}"); e(f"v_add_u32 {R(r)}, {S(sT0)}, {R(r)}")
    def rd(t,p):
        b=vF+(t&1)*16; ks=t&3
        if p==0: trread(e,b+8,vTa,ks*2048,("a",t))
        if p==1: e.lds(f"ds_read_b128 {R(b,4)}, {R(vXa+ks)}",("a",t)); e.lds(f"ds_read_b128 {R(b+4,4)}, {R(vXa+ks)} offset:4096",("b",t))
        if p==2: trread(e,b+12,vTa+1,ks*2048,("c",t))
    e.wvm(("S",0)); e.bar(); stamp(e,1)
    for p in range(3): rd(0,p)
    for t in range(32):
        nx=t+1<32
        if nx and (t+1)%4==0:
            s=(t+1)//4
            e.wvm(("S",s)); (e.wlg0() if s<=4 else None); bump(range(vXa,vXa+6),s-1); (e.bar() if s<7 else None); stamp(e,1+s)
        b=vF+(t&1)*16
        if nx: rd(t+1,0)
        e.wlg(("a",t)); mfma32(e,vAcc,b+8,b,t==0)
        if nx: rd(t+1,1)
        e.wlg(("b",t)); mfma32(e,vAcc+16,b+8,b+4,t==0)
        if nx: rd(t+1,2)
        e.wlg(("c",t)); mfma32(e,vAcc+32,b+12,b,t==0); mfma32(e,vAcc+48,b+12,b+4,t==0)
    vC,vSt,vWA,vWB,vP=128,160,2,3,168
    e(f"v_lshrrev_b32 {R(tmp)}, 5, {R(vL)}"); e(f"v_and_b32 {R(tmp+1)}, 31, {R(vL)}")
    for r,p,n in ((4,pA,nA),(5,pB,nB)):
        e(f"s_lshl_b32 {S(sT0)}, {S(p)}, 8"); e(f"s_lshl_b32 {S(sT1)}, {S(n)}, 7"); e(f"s_add_u32 {S(sT0)}, {S(sT0)}, {S(sT1)}")
        e(f"s_add_u32 {S(sT0)}, {S(sT0)}, {CS1}"); e(f"v_lshl_add_u32 {R(r)}, {R(tmp)}, 6, {S(sT0)}")
    e(f"v_lshlrev_b32 {R(6)}, 3, {R(tmp+1)}"); e(f"v_add_u32 {R(6)}, {ST1+128:#x}, {R(6)}")
    e(f"v_mul_u32_u24 {R(vWA)}, 144, {R(tmp+1)}"); e(f"v_lshl_add_u32 {R(vWA)}, {R(tmp)}, 5, {R(vWA)}")
    e(f"v_mul_u32_u24 {R(vWB)}, 272, {R(tmp+1)}"); e(f"v_lshl_add_u32 {R(vWB)}, {R(tmp)}, 6, {R(vWB)}")
    e(f"s_mul_i32 {S(sT0)}, {S(pA)}, {KB+16*144}"); e(f"s_lshl_b32 {S(sT1)}, {S(nA)}, 6"); e(f"s_add_u32 {S(sT0)}, {S(sT0)}, {S(sT1)}")
    e(f"v_add_u32 {R(vWA)}, {S(sT0)}, {R(vWA)}")
    e(f"s_lshl_b32 {S(sT1)}, {S(nB)}, 7"); e(f"s_add_u32 {S(sT1)}, {S(sT1)}, {VB+16*272}"); e(f"v_add_u32 {R(vWB)}, {S(sT1)}, {R(vWB)}")
    e.bar(); stamp(e,9)
    for m in range(2): e.lds(f"ds_read_b64 {R(vSt+2*m,2)}, {R(6)} offset:{m*256}","st")
    for T in range(2):
        for g in range(4): e.lds(f"ds_read_b128 {R(vC+16*T+4*g,4)}, {R(4+T)} offset:{g*16}",("c",T))
    def corr(T,m):
        b=vAcc+32*T+16*m
        for j in range(8): e(f"v_pk_fma_f32 {R(b+2*j,2)}, {R(vC+16*T+2*j,2)}, {R(vSt+2*m,2)}, {R(b+2*j,2)} op_sel_hi:[1,0,1]")
        for j in range(8): e(f"v_pk_mul_f32 {R(b+2*j,2)}, {R(b+2*j,2)}, {R(vSt+2*m,2)} op_sel:[0,1] op_sel_hi:[1,1]")
    def wr16(T,m,off):
        b=vAcc+32*T+16*m; p=vP+8*(2*T+m)
        for j in range(8): e(f"v_cvt_pk_bf16_f32 {R(p+j)}, {R(b+2*j)}, {R(b+2*j+1)}")
        for j in range(2): e(f"ds_write_b128 {R(vWA)}, {R(p+4*j,4)} offset:{off+m*32*144+16*j}")
    e.wlg(("c",0))
    for m in range(2): corr(0,m); wr16(0,m,0)
    e.wlg0()
    for m in range(2): corr(1,m)
    lv=e.newlab("p1v"); e(f"s_cmp_lg_u32 {S(sW)}, 0"); e(f"s_cbranch_scc1 {lv}")
    for m in range(2): wr16(1,m,64)
    e(f"s_branch {lab_att}")
    e.lab(lv)
    for m in range(2):
        for j in range(4): e(f"ds_write_b128 {R(vWB)}, {R(vAcc+32+16*m+4*j,4)} offset:{m*32*272+16*j}")
    e(f"s_branch {lab_att}")
    e.lab(lab_h); e.reset(); e.vm=list(q0); e.alt=list(q1)
    vXa,vTh,vAcc,vXf,vWf=2,4,32,80,96
    xaddr(vXa,2,64,None,True)
    e(f"v_lshrrev_b32 {R(tmp)}, 4, {R(vL)}"); e(f"v_bfe_u32 {R(tmp+1)}, {R(vL)}, 2, 2")
    e(f"v_lshl_add_u32 {R(vTh)}, {R(tmp)}, 3, {R(tmp+1)}"); e(f"v_lshlrev_b32 {R(vTh)}, 7, {R(vTh)}")
    e(f"v_and_b32 {R(tmp)}, 1, {R(tmp)}"); e(f"v_lshlrev_b32 {R(tmp)}, 1, {R(tmp)}"); e(f"v_lshrrev_b32 {R(tmp+1)}, 1, {R(tmp+1)}")
    e(f"v_lshl_or_b32 {R(tmp)}, {R(tmp+1)}, 2, {R(tmp)}"); e(f"v_bfe_u32 {R(tmp+1)}, {R(vL)}, 1, 1"); e(f"v_or_b32 {R(tmp)}, {R(tmp)}, {R(tmp+1)}")
    e(f"v_lshl_add_u32 {R(vTh)}, {R(tmp)}, 4, {R(vTh)}"); e(f"v_and_b32 {R(tmp)}, 1, {R(vL)}"); e(f"v_lshl_add_u32 {R(vTh)}, {R(tmp)}, 3, {R(vTh)}")
    e(f"v_add_u32 {R(vTh)}, {WOF}, {R(vTh)}")
    for h in range(1,4): e(f"v_xor_b32 {R(vTh+h)}, {h*32}, {R(vTh)}")
    e(f"v_and_b32 {R(tmp)}, 15, {R(vL)}"); e(f"v_cmp_eq_u32 vcc, 0, {R(tmp)}"); e(f"v_mov_b32 {R(12)}, {S(sONE)}")
    def rdu(u,h):
        T,p=divmod(u,3); kk=T&1
        if p==0 and h==0: e.lds(f"ds_read_b128 {R(vXf+4*(T&1),4)}, {R(vXa+kk)}",("x",T))
        trread(e,vWf+(u&1)*16+4*h,vTh+h,p*8192+kk*4096,("w",u,h))
    e.wvm(("S",0)); e.bar()
    for h in range(4): rdu(0,h)
    for u in range(48):
        T,p=divmod(u,3)
        if u+1<48 and (u+1)%6==0:
            s=(u+1)//6
            e.wvm(("S",s)); (e.wlg0() if s<=4 else None); bump(range(vXa,vXa+6),s-1); (e.bar() if s<7 else None)
            if s==2:
                with ifL(e,0): hello(e)
        if p==0:
            e.wlg(("x",T))
            for i in range(4): e(f"v_cndmask_b32 {R(vXf+4*(T&1)+i)}, {R(vXf+4*(T&1)+i)}, {R(12)}, vcc")
            e.nop(2)
        for h in range(4):
            if u+1<48: rdu(u+1,h)
            e.wlg(("w",u,h)); mfma16(e,vAcc+16*p+4*h,vWf+(u&1)*16+4*h,vXf+4*(T&1),T==0)
    e(f"v_lshrrev_b32 {R(tmp)}, 4, {R(vL)}"); e(f"v_and_b32 {R(tmp+1)}, 15, {R(vL)}")
    e(f"v_lshlrev_b32 {R(2)}, 4, {R(tmp)}"); e(f"v_add_u32 {R(2)}, {CS1}, {R(2)}")
    e(f"v_lshlrev_b32 {R(3)}, 3, {R(tmp+1)}"); e(f"v_add_u32 {R(3)}, {ST1}, {R(3)}")
    e(f"v_mul_u32_u24 {R(4)}, 144, {R(tmp+1)}"); e(f"v_lshl_add_u32 {R(4)}, {R(tmp)}, 3, {R(4)}")
    e(f"v_mul_u32_u24 {R(5)}, 272, {R(tmp+1)}"); e(f"v_lshl_add_u32 {R(5)}, {R(tmp)}, 4, {R(5)}")
    e(f"s_and_saveexec_b64 {S(sD+14,2)}, vcc")
    for i in range(12): e(f"ds_write_b128 {R(2)}, {R(vAcc+4*i,4)} offset:{i*64}")
    e(f"s_mov_b64 exec, {S(sD+14,2)}")
    e.wlg0(); e.bar()
    vC,vSt=96,80
    e.lds(f"ds_read_b64 {R(vSt,2)}, {R(3)}","st")
    for i in range(8): e.lds(f"ds_read_b128 {R(vC+4*i,4)}, {R(2)} offset:{(4+i)*64}",("c",i))
    for i in range(8):
        e.wlg(("c",i)); b=vAcc+16+4*i
        for j in range(2): e(f"v_pk_fma_f32 {R(b+2*j,2)}, {R(vC+4*i+2*j,2)}, {R(vSt,2)}, {R(b+2*j,2)} op_sel_hi:[1,0,1]")
        for j in range(2): e(f"v_pk_mul_f32 {R(b+2*j,2)}, {R(b+2*j,2)}, {R(vSt,2)} op_sel:[0,1] op_sel_hi:[1,1]")
        if i<4:
            for j in range(2): e(f"v_cvt_pk_bf16_f32 {R(b+j)}, {R(b+2*j)}, {R(b+2*j+1)}")
            e.lds(f"ds_write_b64 {R(4)}, {R(b,2)} offset:{KB+i*32}")
        else: e.lds(f"ds_write_b128 {R(5)}, {R(b,4)} offset:{VB+(i-4)*64}")
    e(f"s_branch {lab_att}")
    e.lab(lab_l); e.reset(); e('s_setprio '+os.environ.get('PRIO','0'))
    j=sD+10; e(f"s_sub_u32 {S(j)}, {S(sW)}, 4")
    e(f"s_and_b32 {S(sD+11)}, {S(j)}, 1"); e(f"s_add_u32 {S(sD+11)}, {S(sD+11)}, 8"); xslot(sD+11,1)
    first3([0,1])
    wslots(e,j,3); xslot(j,2)
    vXa,vF,vS=2,32,12
    e(f"s_min_u32 {S(sT2)}, {S(j)}, 2"); e(f"s_lshl_b32 {S(sT2)}, {S(sT2)}, 5"); e(f"s_sub_u32 {S(sT2)}, {S(sT2)}, 16"); e(f"s_max_i32 {S(sT2)}, {S(sT2)}, 0")
    xaddr(vXa,4,32,S(sT2),False)
    e(f"v_lshlrev_b32 {R(6)}, 3, {R(tmp)}"); e(f"v_add_u32 {R(6)}, {ST1}, {R(6)}")
    for i in range(4): e(f"v_mov_b32 {R(vS+i)}, 0")
    for s in range(8):
        if s<7: e.wvm(("S",s if s<6 else 7)); e.bar()
        for ks in range(4): e.lds(f"ds_read_b128 {R(vF+4*ks,4)}, {R(vXa+ks)}",("x",ks))
        if s<=4: issue(s+3,range(6),[0,1,2])
        if s==int(os.environ.get('QS',0)): pfl(e,srdS,pQKV,512*3072,[(sJ,30720),(j,7680)],192*3072,60,7)
        p1_trickle(e,L,s,j)
        if s<7: bump(range(vXa,vXa+4),s)
        for ks in range(4):
            e.wlg(("x",ks))
            for i in range(4):
                e(f"v_dot2_f32_bf16 {R(vS+(i&1))}, {R(vF+4*ks+i)}, {S(sONE)}, {R(vS+(i&1))}")
                e(f"v_dot2_f32_bf16 {R(vS+2+(i&1))}, {R(vF+4*ks+i)}, {R(vF+4*ks+i)}, {R(vS+2+(i&1))}")
    e.nop(3); e(f"v_add_f32 {R(vS)}, {R(vS)}, {R(vS+1)}"); e(f"v_add_f32 {R(vS+1)}, {R(vS+2)}, {R(vS+3)}")
    allsum_halves(e,vS,vS+2); allsum_halves(e,vS+1,vS+2)
    meanrstd(e,vS,vS+1,tmp); e(f"v_sub_f32 {R(vS)}, 0, {R(vS)}")
    e(f"ds_write_b64 {R(6)}, {R(vS,2)}"); e.wlg0(); e.bar()
    e.lab(lab_att); e.reset(); e('s_setprio 0')
    vQ,vK,vV,vLg,vO=16,32,96,160,176
    mt,h=sD,sD+1
    e(f"s_lshr_b32 {S(mt)}, {S(sW)}, 2"); e(f"s_and_b32 {S(h)}, {S(sW)}, 3")
    e(f"v_and_b32 {R(tmp)}, 31, {R(vL)}"); e(f"s_lshl_b32 {S(sT0)}, {S(mt)}, 5"); e(f"v_add_u32 {R(tmp)}, {S(sT0)}, {R(tmp)}")
    e(f"v_lshrrev_b32 {R(tmp+1)}, 5, {R(vL)}")
    e(f"s_lshl_b32 {S(sT0)}, {S(h)}, 5"); e(f"v_mul_u32_u24 {R(2)}, 144, {R(tmp)}"); e(f"v_add_u32 {R(2)}, {S(sT0)}, {R(2)}"); e(f"v_lshl_add_u32 {R(2)}, {R(tmp+1)}, 4, {R(2)}")
    e(f"s_lshl_b32 {S(sT0)}, {S(h)}, 6"); e(f"v_mul_u32_u24 {R(3)}, 272, {R(tmp)}"); e(f"v_lshl_add_u32 {R(3)}, {R(tmp+1)}, 5, {R(3)}"); e(f"v_add_u32 {R(3)}, {S(sT0)}, {R(3)}")
    e(f"s_lshl_b32 {S(sT0)}, {S(sMB)}, 6"); e(f"v_add_u32 {R(4)}, {S(sT0)}, {R(tmp)}")
    e(f"s_lshl_b32 {S(sT0)}, {S(sMB)}, 1"); e(f"s_add_u32 {S(sT0)}, {S(sT0)}, {S(mt)}"); e(f"s_lshl_b32 {S(sT0)}, {S(sT0)}, 5")
    e(f"s_lshl_b32 {S(sT1)}, {S(sNB)}, 2"); e(f"s_add_u32 {S(sT0)}, {S(sT0)}, {S(sT1)}"); e(f"s_add_u32 {S(sT0)}, {S(sT0)}, {S(h)}"); e(f"s_lshl_b32 {S(sT0)}, {S(sT0)}, 10")
    e(f"v_lshl_add_u32 {R(5)}, {R(vL)}, 4, {S(sT0)}")
    srd(e,srdW,pWO,0,512*1024); bsrc(e,14,tmp,8,sKQ,sMH,WO_LDS,16384,sLB)
    e(f"v_mov_b32 {R(6)}, 0xce6e6b28"); e(f"v_mov_b32 {R(7)}, 0x3eb8aa3b")
    e.wlg0(); e.bar(); stamp(e,10)
    e.lds(f"ds_read_b128 {R(vQ,4)}, {R(2)} offset:{QB}","q")
    for jj in range(8): e.lds(f"ds_read_b128 {R(vK+4*jj,4)}, {R(2)} offset:{KB+288+(7-jj)*288}",("k",jj))
    for jj in range(8):
        for i in range(2): e.lds(f"ds_read_b128 {R(vV+8*jj+4*i,4)}, {R(3)} offset:{VB+544+(7-jj)*544+16*i}",("v",jj))
        if jj in (1,3,5,7):
            e.wlg(("k",jj))
            for i in range(4):
                for j2 in (jj-1,jj): e(f"v_dot2_f32_bf16 {R(vLg+j2)}, {R(vQ+i)}, {R(vK+4*j2+i)}, {R(vLg+j2) if i else '0'}")
        dma(e,14,srdW,jj*16384,(sLB,jj*2048),"pre")
    vT=vK
    for jj in range(8): e(f"v_mov_b32 {R(vT+jj)}, {R(vLg+jj)}")
    for jj in range(8): e(f"v_permlane32_swap_b32 {R(vT+jj)}, {R(vLg+jj)}")
    for jj in range(4): e(f"v_pk_add_f32 {R(vLg+2*jj,2)}, {R(vLg+2*jj,2)}, {R(vT+2*jj,2)}")
    for jj in range(1,8): e(f"v_cmp_le_u32 {S(sD+2*jj,2)}, {2*jj}, {R(4)}")
    for jj in range(1,8): e(f"v_cndmask_b32 {R(vLg+jj)}, {R(6)}, {R(vLg+jj)}, {S(sD+2*jj,2)}")
    m=8
    e(f"v_max3_f32 {R(m)}, {R(vLg)}, {R(vLg+1)}, {R(vLg+2)}"); e(f"v_max3_f32 {R(m)}, {R(m)}, {R(vLg+3)}, {R(vLg+4)}")
    e(f"v_max3_f32 {R(m)}, {R(m)}, {R(vLg+5)}, {R(vLg+6)}"); e(f"v_max_f32 {R(m)}, {R(m)}, {R(vLg+7)}")
    for jj in range(8): e(f"v_sub_f32 {R(vLg+jj)}, {R(vLg+jj)}, {R(m)}")
    for jj in range(8): e(f"v_mul_f32 {R(vLg+jj)}, {R(7)}, {R(vLg+jj)}")
    for jj in range(8): e(f"v_exp_f32 {R(vLg+jj)}, {R(vLg+jj)}")
    e.nop(1)
    e(f"v_pk_add_f32 {R(10,2)}, {R(vLg,2)}, {R(vLg+2,2)}"); e(f"v_pk_add_f32 {R(12,2)}, {R(vLg+4,2)}, {R(vLg+6,2)}")
    e(f"v_pk_add_f32 {R(10,2)}, {R(10,2)}, {R(12,2)}"); e(f"v_add_f32 {R(10)}, {R(10)}, {R(11)}"); e(f"v_rcp_f32 {R(10)}, {R(10)}")
    for jj in range(8):
        e.wlg(("v",jj)); pb=vLg+(jj&~1); o=jj&1
        for i in range(4):
            if jj==0: e(f"v_pk_mul_f32 {R(vO+2*i,2)}, {R(vV+2*i,2)}, {R(pb,2)} op_sel_hi:[1,0]")
            else: e(f"v_pk_fma_f32 {R(vO+2*i,2)}, {R(vV+8*jj+2*i,2)}, {R(pb,2)}, {R(vO+2*i,2)} op_sel:[0,{o},0] op_sel_hi:[1,{o},1]")
    for i in range(4): e(f"v_pk_mul_f32 {R(vO+2*i,2)}, {R(vO+2*i,2)}, {R(10,2)} op_sel_hi:[1,0]")
    for i in range(4): e(f"v_cvt_pk_bf16_f32 {R(vQ+i)}, {R(vO+2*i)}, {R(vO+2*i+1)}")
    with ifL(e,0): getmode(e)
    gstore(e,f"buffer_store_dwordx4 {R(vQ,4)}, {R(5)}, {S(srdO,4)}, 0 offen","st")
    publish(e,L*4)
    return ST1+1024

def desc(k):
    return f""".p2align 6
.amdhsa_kernel {k}
  .amdhsa_next_free_vgpr 256
  .amdhsa_next_free_sgpr 102
  .amdhsa_accum_offset 256
  .amdhsa_group_segment_fixed_size 0
  .amdhsa_kernarg_size 72
  .amdhsa_user_sgpr_count 2
  .amdhsa_user_sgpr_kernarg_segment_ptr 1
  .amdhsa_system_sgpr_workgroup_id_x 1
.end_amdhsa_kernel
"""
def build_multi():
    e=Em(); hdr=""; ks=[]
    for L in range(2):
        for p in (1,2,3,4):
            k=f"p{p}l{L}_kernel"; ks.append(k); nwg=224 if p==3 else 256
            e.L.append(f".globl {k}\n.p2align 8\n.type {k},@function\n{k}:"); e.endlab=f"end_{k}"; e.reset()
            prologue(e,nwg)
            lds=phase1(e,L) if p==1 else phase3(e,L) if p==3 else phase_rs(e,L,p)
            stamp_flush(e,L*4+p-1)
            e.lab(e.endlab); e("s_endpgm")
            hdr+=f"; @launch kernel={k} grid=({nwg},1,1) block=(512,1,1) lds={lds}\n"
    return hdr+'.amdgcn_target "amdgcn-amd-amdhsa--gfx950"\n.text\n'+e.text()+'.section .rodata,"a"\n'+"".join(desc(k) for k in ks)
def build_pers():
    e=Em(); k=NAME+"_kernel"
    e.L.append(f".globl {k}\n.p2align 8\n.type {k},@function\n{k}:"); e.endlab="end_all"
    prologue(e,256)
    e(f"s_mov_b32 {S(sL)}, 0"); e(f"s_mov_b32 {S(sFO)}, 0"); e("v_mov_b32 v15, 0")
    ids64(e); p1_setup(e,0)
    p1_issue(e,0,0,range(3),[])
    srd(e,srdD,50,0,256); srd(e,srdF,pWS,FL_OFF,16384)
    e.lab("layer")
    for p in (1,2,3,4):
        e.reset()
        if p>1: stamp(e,0)
        phase1(e,0) if p==1 else phase3(e,0) if p==3 else phase_rs(e,0,p)
        stamp_flush(e,p-1)
    e(f"s_mov_b32 {S(sL)}, 1"); e(f"s_mov_b32 {S(sFO)}, 4096"); stamp(e,0); e("s_branch layer")
    e.lab(e.endlab); e("s_endpgm")
    return f"; @launch grid=(256,1,1) block=(512,1,1) lds=163840\n"+'.amdgcn_target "amdgcn-amd-amdhsa--gfx950"\n.text\n'+e.text()+'.section .rodata,"a"\n'+desc(k)
if __name__=="__main__":
    if "slow" in sys.argv: FORCE_SLOW=True
    if "prof" in sys.argv: PROF=True
    out=sys.argv[1] if len(sys.argv)>1 else f"cdna_kernels/{NAME}.s"
    open(out,"w").write(build_pers())
```

```python
import sys,os
DBG=os.environ.get('DBG','')
from em import *
NAME="interleave_layers__sliding_local_dilated__dense_activation_silu__prompt"
MB=1<<20
O_OFF,X1_OFF,H_OFF,X2_OFF,ST_OFF=0,2*MB,4*MB,12*MB,14*MB
LSTRIDE=0 if 'fresh' not in DBG else 16*MB
sW,sXCD,sJ,sT0,sT1,sT2,sT3,sMB,sNB,sKQ,sMH,sLB=3,4,5,6,7,8,9,10,11,12,13,14
sONE=15
srdA,srdW,srdR,srdO,srdS=16,20,24,28,32
pX,pQKV,pWO,pW1,pW2,pOUT,pWS=36,38,40,44,46,48,52
sD=56
vL=1
sMODE,sTAG=54,55
sL,sFO=100,101
import contextlib
@contextlib.contextmanager
def ifL(e,v):
    sk=e.newlab('ifl'); e(f's_cmp_lg_u32 {S(sL)}, {v}'); e(f's_cbranch_scc1 {sk}'); q=list(e.vm)
    yield
    e.lab(sk); e.vm=q
def srdsel(e,d,p0,o0,z0,p1,o1,z1):
    srd(e,d,p1,o1,z1)
    with ifL(e,0): srd(e,d,p0,o0,z0)
srdF,srdD=96,24
FL_OFF,X2H_OFF=40*MB,15*MB
vRES=248
vINFO=244
FORCE_SLOW=False
ONES=0x3F803F80

PROF=False
def stamp(e,i):
    if PROF: e(f"s_memrealtime {S(72+2*i,2)}")
def stamp_flush(e,slot,n=12):
    if not PROF: return
    sk=e.newlab("nopf"); e(f"s_cmp_lg_u32 {S(sW)}, {4 if 'w4' in DBG else 0}"); e(f"s_cbranch_scc1 {sk}")
    e("s_waitcnt vmcnt(0)"); stamp(e,n-1); e("s_waitcnt lgkmcnt(0)")
    srd(e,srdS,pWS,200*MB,MB)
    e(f"s_lshl_b32 {S(sT0)}, s2, 7"); e(f"s_add_u32 {S(sT0)}, {S(sT0)}, {slot*32768}"); e(f"s_lshl_b32 {S(sT1)}, {S(sL)}, 17"); e(f"s_add_u32 {S(sT0)}, {S(sT0)}, {S(sT1)}"); e(f"v_mov_b32 v2, {S(sT0)}")
    for i in range(n):
        e(f"v_mov_b32 v4, {S(72+2*i)}"); e(f"v_mov_b32 v5, {S(73+2*i)}"); e(f"buffer_store_dwordx2 v[4:5], v2, {S(srdS,4)}, 0 offen offset:{i*8}"); e.nop(2)
    e.lab(sk)
def gstore(e,instr,tag):
    a,b=e.newlab("gs"),e.newlab("gd")
    e(f"s_cmp_eq_u32 {S(sMODE)}, 0"); e(f"s_cbranch_scc1 {a}"); e.vmem(instr+(' nt' if 'stnt' in DBG else ' sc0' if 'stsc0' in DBG else ''),tag); e(f"s_branch {b}")
    e.lab(a); e(instr+" sc1"); e.lab(b)
def spin(e,body,cond):
    lp,out=e.newlab("spin"),e.newlab("spun")
    e(f"s_mov_b32 {S(sT3)}, 0"); e.lab(lp); body()
    e(f"s_add_u32 {S(sT3)}, {S(sT3)}, 1"); e(f"s_cmp_gt_u32 {S(sT3)}, 0x40000"); e(f"s_cbranch_scc1 {out}")
    cond(lp); e.lab(out)
def publish(e,ph,pre=None):
    e.wvm0(); e.bar()
    sk=e.newlab("nopub"); e(f"s_cmp_lg_u32 {S(sW)}, 0"); e(f"s_cbranch_scc1 {sk}")
    e(f"s_lshl_b32 {S(sT0)}, {S(sXCD)}, 7"); e(f"s_lshl_b32 {S(sT1)}, {S(sJ)}, 2"); e(f"s_add_u32 {S(sT0)}, {S(sT0)}, {S(sT1)}")
    e(f"v_mov_b32 v2, {S(sT0)}"); e(f"v_mov_b32 v3, {S(sTAG)}"); e("s_mov_b64 exec, 1")
    e(f"s_add_u32 {S(sT2)}, {S(sFO)}, {ph*1024}")
    gstore(e,f"buffer_store_dword v3, v2, {S(srdF,4)}, {S(sT2)} offen","fl")
    if pre: pre()
    e("s_mov_b64 exec, -1"); e.lab(sk); e.reset()
def waitflags(e,ph,jbase,n,second=None):
    sk=e.newlab("nopoll"); e(f"s_cmp_lg_u32 {S(sW)}, 0"); e(f"s_cbranch_scc1 {sk}")
    e(f"s_lshl_b32 {S(sT0)}, {S(sXCD)}, 7"); e(f"s_lshl_b32 {S(sT1)}, {S(jbase)}, 2"); e(f"s_add_u32 {S(sT0)}, {S(sT0)}, {S(sT1)}")
    e(f"s_add_u32 {S(sT0)}, {S(sT0)}, {ph*1024}")
    if ph<3: e(f"s_add_u32 {S(sT0)}, {S(sT0)}, {S(sFO)}")
    e(f"v_min_u32 v2, {n-1}, {R(vL)}"); e(f"v_lshl_add_u32 v2, v2, 2, {S(sT0)}")
    if second is not None:
        e(f"v_and_b32 v3, 7, {R(vL)}"); e(f"v_lshl_add_u32 v3, v3, 2, {S(second)}"); e(f"v_cmp_gt_u32 vcc, 8, {R(vL)}"); e.nop(2); e("v_cndmask_b32 v2, v3, v2, vcc")
    def body(): e(f"buffer_load_dword v3, v2, {S(srdF,4)}, 0 offen sc1"); e("s_waitcnt vmcnt(0)"); e(f"v_cmp_ne_u32 vcc, {S(sTAG)}, v3")
    spin(e,body,lambda lp:e(f"s_cbranch_vccnz {lp}"))
    e(f"s_cmp_lg_u32 {S(sMODE)}, 0"); e(f"s_cbranch_scc1 {sk}"); e("buffer_inv sc1"); e("s_waitcnt vmcnt(0)")
    e.lab(sk); e.bar()
def hello(e):
    e(f"s_getreg_b32 {S(sT0)}, hwreg(HW_REG_XCC_ID, 0, 3)"); e(f"s_mul_i32 {S(sT0)}, {S(sT0)}, 6")
    e(f"s_lshl_b64 {S(sD+14,2)}, 1, {S(sT0)}"); e(f"s_add_u32 {S(sD+15)}, {S(sD+15)}, 0x1000000")
    e(f"s_lshl_b32 {S(sT1)}, {S(sXCD)}, 4"); e(f"v_mov_b32 v212, {S(sT1)}"); e(f"v_mov_b32 v214, {S(sD+14)}"); e(f"v_mov_b32 v215, {S(sD+15)}")
    e("s_mov_b64 exec, 1"); e.vmem(f"buffer_atomic_add_x2 v[214:215], v212, {S(srdD,4)}, 0 offen","hello")
    s2=e.newlab("notag"); e("s_cmp_lg_u32 s2, 0"); e(f"s_cbranch_scc1 {s2}")
    e("v_mov_b32 v212, 0x3000"); e(f"buffer_load_dword v213, v212, {S(srdF,4)}, 0 offen sc1"); e("s_waitcnt vmcnt(0)")
    e("v_add_u32 v213, 0x9e3779b9, v213"); e("v_max_u32 v213, 1, v213"); e(f"buffer_store_dword v213, v212, {S(srdF,4)}, 0 offen sc1")
    e("v_mov_b32 v212, 0x80"); e(f"buffer_store_dword v213, v212, {S(srdD,4)}, 0 offen sc1")
    e.lab(s2); e("s_mov_b64 exec, -1"); e.nop(4)
def getmode(e):
    e(f"s_lshl_b32 {S(sT0)}, {S(sXCD)}, 4"); e(f"v_mov_b32 {R(vINFO)}, {S(sT0)}"); e(f"v_mov_b32 {R(vINFO+1)}, 0x80")
    def body():
        e(f"buffer_load_dwordx2 {R(vINFO+2,2)}, {R(vINFO)}, {S(srdD,4)}, 0 offen sc1"); e(f"buffer_load_dword {R(vINFO-1)}, {R(vINFO+1)}, {S(srdD,4)}, 0 offen sc1")
        e("s_waitcnt vmcnt(0)"); e(f"v_readfirstlane_b32 {S(sD)}, {R(vINFO+2)}"); e(f"v_readfirstlane_b32 {S(sD+1)}, {R(vINFO+3)}"); e(f"v_readfirstlane_b32 {S(sTAG)}, {R(vINFO-1)}")
    def cond(lp):
        e(f"s_lshr_b32 {S(sT0)}, {S(sD+1)}, 24"); e(f"s_cmp_lt_u32 {S(sT0)}, 32"); e(f"s_cbranch_scc1 {lp}")
        e(f"s_cmp_eq_u32 {S(sTAG)}, 0"); e(f"s_cbranch_scc1 {lp}")
    spin(e,body,cond)
    e(f"s_getreg_b32 {S(sT0)}, hwreg(HW_REG_XCC_ID, 0, 3)"); e(f"s_mul_i32 {S(sT0)}, {S(sT0)}, 6")
    e(f"s_lshr_b64 {S(sD,2)}, {S(sD,2)}, {S(sT0)}"); e(f"s_and_b32 {S(sD)}, {S(sD)}, 63"); e(f"s_cmp_eq_u32 {S(sD)}, 32")
    e(f"s_cselect_b32 {S(sMODE)}, {0 if FORCE_SLOW else 1}, 0")
def prefetch(e,sr,ptr,total,nw,sw,va,dst,extra=None,off=0,only=None,nwg=32,sj=None):
    per=total//nwg//nw; lines=per//128; sj=sJ if sj is None else sj
    srd(e,sr,ptr,off,total if extra is None else 2*MB)
    e(f"s_mul_i32 {S(sT0)}, {S(sj)}, {total//nwg}"); e(f"s_mul_i32 {S(sT1)}, {S(sw)}, {per}"); e(f"s_add_u32 {S(sT0)}, {S(sT0)}, {S(sT1)}")
    if extra is not None: e(f"s_lshl_b32 {S(sT1)}, {S(sXCD)}, {extra}"); e(f"s_add_u32 {S(sT0)}, {S(sT0)}, {S(sT1)}")
    for i in range((lines+63)//64):
        if only is not None and i!=only: continue
        n=min(64,lines-64*i)
        e(f"v_min_u32 {R(va)}, {n-1}, {R(vL)}"); e(f"v_lshl_add_u32 {R(va)}, {R(va)}, 7, {S(sT0)}")
        if i: e(f"v_add_u32 {R(va)}, {8192*i}, {R(va)}")
        e.vmem(f"buffer_load_dword {R(dst)}, {R(va)}, {S(sr,4)}, 0 offen"+(' nt' if 'ntp' in DBG and NTS[sr] else ''),"pf")
def pfl(e,sr,ptr,total,terms,const,lines,va):
    srd(e,sr,ptr,0,total); e(f"s_mov_b32 {S(sT0)}, {const}")
    for sg,m in terms: e(f"s_mul_i32 {S(sT1)}, {S(sg)}, {m}"); e(f"s_add_u32 {S(sT0)}, {S(sT0)}, {S(sT1)}")
    for i in range((lines+63)//64):
        e(f"v_min_u32 {R(va)}, {min(64,lines-64*i)-1}, {R(vL)}"); e(f"v_lshl_add_u32 {R(va)}, {R(va)}, 7, {S(sT0)}")
        if i: e(f"v_add_u32 {R(va)}, {8192*i}, {R(va)}")
        e.vmem(f"buffer_load_dword v240, {R(va)}, {S(sr,4)}, 0 offen"+(' nt' if 'ntp' in DBG and NTS[sr] else ''),"pf")
def pf_w2(e,j,part):
    if part==0: pfl(e,srdR,pW2,1792*1024,[(j,448*1024),(sJ,5120)],0,40,7)
    else: pfl(e,srdR,pW2,1792*1024,[(j,448*1024),(sJ,9216)],160*1024,72,7)
def prologue(e,nwg):
    e(f"s_cmp_ge_u32 s2, {nwg}"); e("s_cbranch_scc1 "+e.endlab)
    stamp(e,0)
    e(f"s_load_dwordx16 s[36:51], s[0:1], 0"); e(f"s_load_dwordx2 s[52:53], s[0:1], 64")
    e("v_lshrrev_b32 v2, 6, v0"); e(f"v_and_b32 {R(vL)}, 63, v0")
    e(f"v_readfirstlane_b32 {S(sW)}, v2")
    e(f"s_and_b32 {S(sXCD)}, s2, 7"); e(f"s_lshr_b32 {S(sJ)}, s2, 3")
    e(f"s_mov_b32 {S(sONE)}, {ONES:#x}")
    e("s_waitcnt lgkmcnt(0)")
NTS={}
def srd(e,d,p,off,size):
    NTS[d]=(p in (pW1,pW2))
    if off: e(f"s_add_u32 {S(d)}, {S(p)}, {off:#x}"); e(f"s_addc_u32 {S(d+1)}, {S(p+1)}, 0")
    else: e(f"s_mov_b32 {S(d)}, {S(p)}"); e(f"s_mov_b32 {S(d+1)}, {S(p+1)}")
    e(f"s_mov_b32 {S(d+2)}, {size:#x}"); e(f"s_mov_b32 {S(d+3)}, 0x20000")
def dma(e,vaddr,srd_,soff,m0expr,tag,sc1=False):
    sg,c=m0expr
    if sg is None: e(f"s_mov_b32 m0, {c:#x}")
    else: e(f"s_add_u32 m0, {S(sg)}, {c:#x}")
    if soff: e(f"s_mov_b32 {S(sT3)}, {soff:#x}"); so=S(sT3)
    else: e("s_nop 0"); so="0"
    e.vmem(f"buffer_load_dwordx4 {R(vaddr)}, {S(srd_,4)}, {so} offen {'sc1 ' if sc1 else ''}{'nt ' if 'ntd' in DBG and NTS[srd_] else ''}lds",tag)
def ldfrag(e,dst,vaddr,srd_,t,tag,st):
    hi=t>>2
    if hi and (t&3==0 or st): e(f"s_mov_b32 {S(sT2)}, {hi*4096:#x}")
    so=S(sT2) if hi else "0"
    e.vmem(f"buffer_load_dwordx4 {R(dst,4)}, {R(vaddr)}, {S(srd_,4)}, {so} offen offset:{(t&3)*1024}"+' sc1'+(' nt' if 'nta' in DBG else ''),tag)
def tr_lane_base(e,dst,tmp,perm):
    a,b,c=tmp,tmp+1,tmp+2
    e(f"v_bfe_u32 {R(a)}, {R(vL)}, 2, 2")
    e(f"v_lshrrev_b32 {R(b)}, 5, {R(vL)}")
    e(f"v_lshl_add_u32 {R(dst)}, {R(b)}, 3, {R(a)}")
    e(f"v_lshlrev_b32 {R(dst)}, 7, {R(dst)}")
    e(f"v_lshrrev_b32 {R(a)}, 1, {R(a)}"); e(f"v_lshlrev_b32 {R(a)}, 2, {R(a)}")
    e(f"v_lshl_or_b32 {R(a)}, {R(b)}, 1, {R(a)}")
    if perm=="frag":
        e(f"v_bfe_u32 {R(b)}, {R(vL)}, 4, 1"); e(f"v_and_b32 {R(c)}, 1, {R(vL)}")
        e(f"v_lshl_or_b32 {R(b)}, {R(b)}, 1, {R(c)}"); e(f"v_bfe_u32 {R(c)}, {R(vL)}, 1, 1")
    else:
        e(f"v_and_b32 {R(b)}, 1, {R(vL)}"); e(f"v_bfe_u32 {R(c)}, {R(vL)}, 4, 1")
        e(f"v_lshl_or_b32 {R(b)}, {R(b)}, 1, {R(c)}"); e(f"v_bfe_u32 {R(c)}, {R(vL)}, 1, 1")
    e(f"v_xor_b32 {R(a)}, {R(a)}, {R(b)}")
    e(f"v_lshl_add_u32 {R(dst)}, {R(a)}, 4, {R(dst)}")
    e(f"v_lshl_add_u32 {R(dst)}, {R(c)}, 3, {R(dst)}")
def wdma_lane(e,dst,tmp,rowstride,odd):
    a,b=tmp,tmp+1
    e(f"v_lshrrev_b32 {R(a)}, 3, {R(vL)}")
    e(f"s_mov_b32 {S(sT0)}, {rowstride}"); e(f"v_mul_lo_u32 {R(dst)}, {R(a)}, {S(sT0)}")
    e(f"v_bfe_u32 {R(a)}, {R(vL)}, 4, 1"); e(f"v_lshlrev_b32 {R(a)}, 2, {R(a)}")
    if isinstance(odd,int):
        if odd: e(f"v_or_b32 {R(a)}, 2, {R(a)}")
    else: e(f"v_lshl_or_b32 {R(a)}, {odd}, 1, {R(a)}")
    e(f"v_and_b32 {R(b)}, 7, {R(vL)}"); e(f"v_xor_b32 {R(a)}, {R(a)}, {R(b)}")
    e(f"v_lshl_add_u32 {R(dst)}, {R(a)}, 4, {R(dst)}")
def mfma32(e,d,a,b,first): e(f"v_mfma_f32_32x32x16_bf16 {R(d,16)}, {R(a,4)}, {R(b,4)}, {'0' if first else R(d,16)}")
def mfma16(e,d,a,b,first): e(f"v_mfma_f32_16x16x32_bf16 {R(d,4)}, {R(a,4)}, {R(b,4)}, {'0' if first else R(d,4)}")
def trread(e,dst,va,off,tag):
    e.lds(f"ds_read_b64_tr_b16 {R(dst,2)}, {R(va)} offset:{off}",tag)
    e.lds(f"ds_read_b64_tr_b16 {R(dst+2,2)}, {R(va)} offset:{off+512}",tag)
def allsum_halves(e,a,t):
    e(f"v_mov_b32 {R(t)}, {R(a)}"); e.nop(2); e(f"v_permlane32_swap_b32 {R(t)}, {R(a)}"); e.nop(1); e(f"v_add_f32 {R(a)}, {R(a)}, {R(t)}")
def meanrstd(e,s_,q,t):
    e(f"v_mul_f32 {R(s_)}, 0x3b000000, {R(s_)}"); e(f"v_mul_f32 {R(q)}, 0x3b000000, {R(q)}")
    e(f"v_fma_f32 {R(q)}, -{R(s_)}, {R(s_)}, {R(q)}"); e(f"v_max_f32 {R(q)}, 0, {R(q)}")
    e(f"v_add_f32 {R(q)}, 0x3727c5ac, {R(q)}"); e(f"v_rsq_f32 {R(q)}, {R(q)}"); e.nop(1)

WO_LDS=96*1024
NPRE=int(os.environ.get('NPRE',18))
def ids64(e):
    e(f"s_lshr_b32 {S(sMB)}, {S(sJ)}, 3"); e(f"s_lshl_b32 {S(sT0)}, {S(sXCD)}, 2"); e(f"s_add_u32 {S(sMB)}, {S(sMB)}, {S(sT0)}")
    e(f"s_and_b32 {S(sNB)}, {S(sJ)}, 7"); e(f"s_and_b32 {S(sKQ)}, {S(sW)}, 3"); e(f"s_lshr_b32 {S(sMH)}, {S(sW)}, 2")
def bsrc(e,vB,tmp,KS,kq,mh,ldsbase,slab,sdst):
    wdma_lane(e,vB,tmp,1024,S(mh) if mh is not None else 0)
    e(f"s_mul_i32 {S(sT0)}, {S(kq)}, {KS*16*1024}"); e(f"s_and_b32 {S(sT1)}, {S(sJ)}, 7"); e(f"s_lshl_b32 {S(sT1)}, {S(sT1)}, 7"); e(f"s_add_u32 {S(sT0)}, {S(sT0)}, {S(sT1)}")
    e(f"s_mul_i32 {S(sdst)}, {S(kq)}, {slab}"); e(f"s_add_u32 {S(sdst)}, {S(sdst)}, {ldsbase}")
    if mh is not None:
        e(f"s_lshl_b32 {S(sT1)}, {S(mh)}, 13"); e(f"s_add_u32 {S(sT0)}, {S(sT0)}, {S(sT1)}")
        e(f"s_lshl_b32 {S(sT1)}, {S(mh)}, 10"); e(f"s_add_u32 {S(sdst)}, {S(sdst)}, {S(sT1)}")
    e(f"v_add_u32 {R(vB)}, {S(sT0)}, {R(vB)}")
def p4_preload(e,j,part):
    if part==0:
        srd(e,srdW,pW2,0,1792*1024); bsrc(e,14,9,28,j,None,0,40960,sLB)
        e("v_xor_b32 v15, 32, v14"); e("v_add_u32 v15, 0x2000, v15")
    for t in range(NPRE):
        for h in range(2): dma(e,14+h,srdW,t*16384,(sLB,t*2048+h*1024),"pre")
def phase_rs(e,L,which):
    P2=which==2
    K=512 if P2 else 1792; KS=K//64; RING=8 if P2 else 20; SLAB=RING*2048; LB=WO_LDS if P2 else 0; RB=0 if P2 else 112*1024; LA=8 if P2 else int(os.environ.get('LA',6))
    wo=L*LSTRIDE
    ids64(e)
    if P2:
        srd(e,srdA,pWS,wo+O_OFF,2*MB)
        srd(e,srdR,pX,0,2*MB)
        srd(e,srdO,pWS,wo+X1_OFF,2*MB); srd(e,srdS,pWS,wo+ST_OFF,128*1024)
    else:
        srd(e,srdA,pWS,wo+H_OFF,7*MB); srd(e,srdW,pW2,0,1792*1024); srd(e,srdR,pWS,X2H_OFF,128*1024)
        srdsel(e,srdO,pWS,X2_OFF,2*MB,pOUT,0,2*MB)
    vA,vB,vF,vRM,vT0,vT1,vRD,vRes,vAcc,vBf,vAf=12,13,4,5,6,7,8,vRES,16,48,80
    tmp=9; mt=sD+10; sb=sD+11
    e(f"s_lshl_b32 {S(mt)}, {S(sMB)}, 1"); e(f"s_add_u32 {S(mt)}, {S(mt)}, {S(sMH)}")
    e(f"s_mul_i32 {S(sT0)}, {S(mt)}, {K//16*1024}"); e(f"s_mul_i32 {S(sT1)}, {S(sKQ)}, {KS*1024}"); e(f"s_add_u32 {S(sT0)}, {S(sT0)}, {S(sT1)}")
    e(f"v_lshl_add_u32 {R(vA)}, {R(vL)}, 4, {S(sT0)}")
    if not P2: bsrc(e,vB,tmp,KS,sKQ,sMH,0,SLAB,sb)
    e(f"s_lshl_b32 {S(sT0)}, {S(mt)}, 5"); e(f"s_lshl_b32 {S(sT1)}, {S(sNB)}, 2"); e(f"s_add_u32 {S(sT1)}, {S(sT1)}, {S(sKQ)}")
    e(f"s_add_u32 {S(sT0)}, {S(sT0)}, {S(sT1)}"); e(f"s_lshl_b32 {S(sT0)}, {S(sT0)}, 10")
    e(f"v_lshl_add_u32 {R(vF)}, {R(vL)}, 4, {S(sT0)}")
    e(f"s_lshl_b32 {S(sT0)}, {S(mt)}, 15"); e(f"s_lshl_b32 {S(sT1)}, {S(sT1)}, 5"); e(f"s_add_u32 {S(sT0)}, {S(sT0)}, {S(sT1)}")
    e(f"v_and_b32 {R(tmp)}, 31, {R(vL)}"); e(f"v_lshlrev_b32 {R(tmp)}, 10, {R(tmp)}"); e(f"v_lshrrev_b32 {R(tmp+1)}, 5, {R(vL)}")
    e(f"v_lshl_add_u32 {R(tmp)}, {R(tmp+1)}, 4, {R(tmp)}"); e(f"v_add_u32 {R(vRM)}, {S(sT0)}, {R(tmp)}")
    tr_lane_base(e,vT0,tmp,"frag")
    e(f"s_mul_i32 {S(sT0)}, {S(sKQ)}, {SLAB}"); e(f"s_add_u32 {S(sT0)}, {S(sT0)}, {LB}")
    e(f"v_add_u32 {R(vT0)}, {S(sT0)}, {R(vT0)}"); e(f"v_xor_b32 {R(vT1)}, 64, {R(vT0)}")
    e(f"s_mul_i32 {S(sT0)}, {S(sMH)}, {12*2048}"); e(f"s_add_u32 {S(sT0)}, {S(sT0)}, {RB}"); e(f"v_lshl_add_u32 {R(vRD)}, {R(vL)}, 4, {S(sT0)}")
    def rd(t,nt): trread(e,vBf+(t&1)*8+nt*4,vT0+nt,(t%RING)*2048,("f",t,nt))
    if P2:
        with ifL(e,0): e(f"buffer_load_dwordx4 {R(vRes,4)}, {R(vRM)}, {S(srdR,4)}, 0 offen")
    if not P2:
        for u in range(NPRE,RING): dma(e,vB,srdW,u*16384,(sb,u*2048),"B1")
    if P2: e(f"s_and_b32 {S(sD+2)}, {S(sJ)}, 24"); waitflags(e,L*4,sD+2,8)
    else: e(f"s_lshr_b32 {S(sD+2)}, {S(sJ)}, 4"); e(f"s_mul_i32 {S(sD+2)}, {S(sD+2)}, 14"); waitflags(e,L*4+2,sD+2,14)
    stamp(e,9)
    for t in range(LA): ldfrag(e,vAf+4*t,vA,srdA,t,("A",t),False)
    if P2 and 'now1b' not in DBG and 'w1all' not in DBG: pfl(e,srdW,pW1,512*3584,[(sJ,24576),(sW,3072)],MB,24,tmp)
    rd(0,0); rd(0,1)
    for t in range(KS):
        if t+LA<KS: ldfrag(e,vAf+4*(t+LA),vA,srdA,t+LA,("A",t+LA),False)
        if not P2 and t==9:
            e.bar()
        if not P2 and 9<=t<17: u=RING+t-9; dma(e,vB,srdW,u*16384,(sb,(u%RING)*2048),"B")
        if t+1==RING and t+1<KS: e.wvm("B"); e.bar()
        e.wvm(("A",t))
        if t%4==0: stamp(e,1+t//4)
        for nt in range(2):
            if t+1<KS: rd(t+1,nt)
            e.wlg(("f",t,nt)); mfma32(e,vAcc+16*nt,vBf+(t&1)*8+nt*4,vAf+4*t,t==0)
        if not P2 and t==KS-LA:
            with ifL(e,0): (prefetch(e,srdS,pQKV,512*3072,8,sW,9,240) if 'qall' in DBG else pfl(e,srdS,pQKV,512*3072,[(sJ,18432),(sW,2304)],0,18,9)); p1_setup(e,1)
    if not P2: e.bar()
    stamp(e,10); e.nop(10)
    own=vBf
    done=e.newlab("rdone"); labs=[e.newlab("rv") for _ in range(4)]
    for q in range(1,4): e(f"s_cmp_eq_u32 {S(sKQ)}, {q}"); e(f"s_cbranch_scc1 {labs[q]}")
    for kq in range(4):
        e.lab(labs[kq])
        for q in range(4):
            if q==kq: continue
            for j in range(2): e(f"ds_write_b128 {R(vRD)}, {R(vAcc+8*q+4*j,4)} offset:{(q*3+((kq-q)&3)-1)*2048+j*1024}")
        for j in range(8): e(f"v_mov_b32 {R(own+j)}, {R(vAcc+8*kq+j)}")
        if kq<3: e(f"s_branch {done}")
    e.lab(done)
    e(f"s_mul_i32 {S(sT0)}, {S(sKQ)}, {3*2048}"); e(f"v_add_u32 {R(vRD)}, {S(sT0)}, {R(vRD)}")
    if not P2:
        with ifL(e,0):
            for s_ in range(3): p1_issue(e,1,s_,range(3),[])
    e.wlg0(); e.bar()
    for i in range(1,4):
        for j in range(2): e.lds(f"ds_read_b128 {R(own+8*i+4*j,4)}, {R(vRD)} offset:{(i-1)*2048+j*1024}",("p",i))
    e.wvm("res")
    rf=vAcc
    for j in range(4):
        e(f"v_lshlrev_b32 {R(rf+2*j)}, 16, {R(vRes+j)}"); e(f"v_and_b32 {R(rf+2*j+1)}, 0xffff0000, {R(vRes+j)}")
    for j in range(4): e(f"v_pk_add_f32 {R(own+2*j,2)}, {R(own+2*j,2)}, {R(rf+2*j,2)}")
    for i in range(1,4):
        e.wlg(("p",i))
        for j in range(4): e(f"v_pk_add_f32 {R(own+2*j,2)}, {R(own+2*j,2)}, {R(own+8*i+2*j,2)}")
    for j in range(4): e(f"v_cvt_pk_bf16_f32 {R(vRes+j)}, {R(own+2*j)}, {R(own+2*j+1)}")
    ins=f"buffer_store_dwordx4 {R(vRes,4)}, {R(vF if P2 else vRM)}, {S(srdO,4)}, 0 offen"
    gstore(e,ins,"st")
    if not P2:
        if PROF:
            with ifL(e,1): stamp_flush(e,3)
        e(f"s_cmp_lg_u32 {S(sL)}, 0"); e(f"s_cbranch_scc1 {e.endlab}")
        sk=e.newlab("nohalo"); e(f"s_and_b32 {S(sT0)}, {S(mt)}, 7"); e(f"s_cmp_lg_u32 {S(sT0)}, 7"); e(f"s_cbranch_scc1 {sk}")
        e(f"s_lshl_b32 {S(sT0)}, {S(mt)}, 15"); e(f"s_lshl_b32 {S(sT1)}, {S(sXCD)}, 14"); e(f"s_sub_u32 {S(sT0)}, {S(sT0)}, {S(sT1)}"); e(f"s_add_u32 {S(sT0)}, {S(sT0)}, 0x4000")
        e(f"v_subrev_u32 {R(tmp)}, {S(sT0)}, {R(vRM)}"); e("s_mov_b32 exec_lo, 0xffff0000"); e("s_mov_b32 exec_hi, 0xffff0000")
        e(f"buffer_store_dwordx4 {R(vRes,4)}, {R(tmp)}, {S(srdR,4)}, 0 offen sc1"); e("s_mov_b64 exec, -1"); e.lab(sk)
        def xflag():
            sk=e.newlab("noxf"); e(f"s_cmp_lt_u32 {S(sJ)}, 24"); e(f"s_cbranch_scc1 {sk}")
            e(f"s_mov_b32 {S(sT2)}, {7*1024}"); e(f"buffer_store_dword v3, v2, {S(srdF,4)}, {S(sT2)} offen sc1"); e.lab(sk)
        publish(e,3,xflag)
    if P2:
        a,b=rf,rf+1
        e(f"v_dot2_f32_bf16 {R(a)}, {R(vRes)}, {S(sONE)}, 0"); e(f"v_dot2_f32_bf16 {R(b)}, {R(vRes)}, {R(vRes)}, 0")
        for j in range(1,4):
            e(f"v_dot2_f32_bf16 {R(a)}, {R(vRes+j)}, {S(sONE)}, {R(a)}"); e(f"v_dot2_f32_bf16 {R(b)}, {R(vRes+j)}, {R(vRes+j)}, {R(b)}")
        e(f"s_lshl_b32 {S(sT0)}, {S(sW)}, 8"); e(f"s_add_u32 {S(sT0)}, {S(sT0)}, 0xc000")
        e(f"v_lshl_add_u32 {R(tmp)}, {R(vL)}, 2, {S(sT0)}"); e.nop(2)
        e(f"v_permlane32_swap_b32 {R(a)}, {R(b)}"); e.nop(1); e(f"v_add_f32 {R(a)}, {R(a)}, {R(b)}")
        e(f"ds_write_b32 {R(tmp)}, {R(a)}"); e.wlg0(); e.bar()
        sk=e.newlab("nost"); e(f"s_cmp_lg_u32 {S(sKQ)}, 0"); e(f"s_cbranch_scc1 {sk}")
        for i in range(1,4): e(f"ds_read_b32 {R(rf+1+i)}, {R(tmp)} offset:{i*256}")
        e(f"s_lshl_b32 {S(sT0)}, {S(mt)}, 3"); e(f"s_add_u32 {S(sT0)}, {S(sT0)}, {S(sNB)}"); e(f"s_lshl_b32 {S(sT0)}, {S(sT0)}, 8")
        e(f"v_lshl_add_u32 {R(tmp)}, {R(vL)}, 2, {S(sT0)}"); e.wlg0()
        e(f"v_add_f32 {R(a)}, {R(a)}, {R(rf+2)}"); e(f"v_add_f32 {R(rf+3)}, {R(rf+3)}, {R(rf+4)}"); e(f"v_add_f32 {R(a)}, {R(a)}, {R(rf+3)}")
        gstore(e,f"buffer_store_dword {R(a)}, {R(tmp)}, {S(srdS,4)}, 0 offen","st")
        e.lab(sk)
        publish(e,L*4+1)

def phase3(e,L):
    wo=L*LSTRIDE; LA=8
    e(f"s_cmp_ge_u32 {S(sJ)}, 14"); e(f"s_cselect_b32 {S(sT0)}, 1, 0"); e(f"s_cselect_b32 {S(sT1)}, 14, 0")
    e(f"s_sub_u32 {S(sNB)}, {S(sJ)}, {S(sT1)}"); e(f"s_lshl_b32 {S(sMB)}, {S(sXCD)}, 1"); e(f"s_add_u32 {S(sMB)}, {S(sMB)}, {S(sT0)}")
    srd(e,srdA,pWS,wo+X1_OFF,2*MB); srd(e,srdW,pW1,0,512*3584); srd(e,srdO,pWS,wo+H_OFF,7*MB); srd(e,srdS,pWS,wo+ST_OFF,128*1024)
    CS=131072
    ld=e.newlab("p3ld"); fin=e.newlab("p3fin"); skip=e.newlab("p3skip"); sk2=e.newlab("p3end")
    j=sD; e(f"s_sub_u32 {S(j)}, {S(sW)}, 4")
    e(f"s_cmp_ge_u32 {S(sJ)}, 28"); e(f"s_cbranch_scc1 {skip}")
    tmp=9
    e(f"s_cmp_ge_u32 {S(sW)}, 4"); e(f"s_cbranch_scc1 {ld}")
    e('s_setprio 1')
    vA,vT,vH,vM,vS,vSt,vAcc,vBf,vAf=12,4,13,14,2,16,24,88,120
    mt=sD
    e(f"s_lshl_b32 {S(mt)}, {S(sMB)}, 2"); e(f"s_add_u32 {S(mt)}, {S(mt)}, {S(sW)}")
    e(f"s_lshl_b32 {S(sT0)}, {S(mt)}, 15"); e(f"v_lshl_add_u32 {R(vA)}, {R(vL)}, 4, {S(sT0)}")
    e(f"s_lshl_b32 {S(sT0)}, {S(mt)}, 11"); e(f"v_lshl_add_u32 {R(vH)}, {R(vL)}, 2, {S(sT0)}")
    tr_lane_base(e,vT,tmp,"frag")
    e(f"v_xor_b32 {R(vT+1)}, 64, {R(vT)}"); e(f"v_add_u32 {R(vT+2)}, 0x10000, {R(vT)}"); e(f"v_add_u32 {R(vT+3)}, 0x10000, {R(vT+1)}")
    e(f"s_and_b32 {S(sD+2)}, {S(sMB)}, 1"); e(f"s_lshl_b32 {S(sD+2)}, {S(sD+2)}, 4"); waitflags(e,L*4+1,sD+2,16); stamp(e,9)
    for t in range(LA): ldfrag(e,vAf+4*t,vA,srdA,t,("A",t),False)
    def rd(t,nt): trread(e,vBf+(t&1)*16+nt*4,vT+nt,t*2048,("f",t,nt))
    e.bar()
    for nt in range(4): rd(0,nt)
    for t in range(32):
        for u in (LA+2*t,LA+2*t+1):
            if u<32: ldfrag(e,vAf+4*u,vA,srdA,u,("A",u),False)
        if t==12:
            for i in range(8): e.vmem(f"buffer_load_dword {R(vSt+i)}, {R(vH)}, {S(srdS,4)}, 0 offen offset:{i*256} sc1","st")
            e(f"s_mul_i32 {S(sT0)}, {S(mt)}, {112*1024}"); e(f"s_lshl_b32 {S(sT1)}, {S(sNB)}, 13"); e(f"s_add_u32 {S(sT0)}, {S(sT0)}, {S(sT1)}")
            e(f"v_lshl_add_u32 {R(vH)}, {R(vL)}, 4, {S(sT0)}")
        if (t+1)%4==0 and t+1<=16: e.bar()
        e.wvm(("A",t))
        if t%4==0: stamp(e,1+t//4)
        for nt in range(4):
            if t+1<32: rd(t+1,nt)
            e.wlg(("f",t,nt)); mfma32(e,vAcc+16*nt,vBf+(t&1)*16+nt*4,vAf+4*t,t==0)
        if t==30:
            e.wvm("st")
            for i in (4,2,1):
                for jj in range(i): e(f"v_add_f32 {R(vSt+jj)}, {R(vSt+jj)}, {R(vSt+jj+i)}")
            e(f"v_mov_b32 {R(vSt+1)}, {R(vSt)}"); e.nop(2); e(f"v_permlane32_swap_b32 {R(vSt)}, {R(vSt+1)}"); e.nop(1)
            meanrstd(e,vSt,vSt+1,tmp)
            e(f"v_mul_f32 {R(vM)}, 0xbfb8aa3b, {R(vSt+1)}"); e(f"v_mul_f32 {R(vM+1)}, {R(vM)}, {R(vSt)}"); e(f"v_sub_f32 {R(vM+1)}, 0, {R(vM+1)}")
            e(f"v_mov_b32 {R(vS)}, 0xbfb8aa3b")
    e(f"v_lshrrev_b32 {R(tmp)}, 5, {R(vL)}"); e(f"v_lshlrev_b32 {R(tmp)}, 4, {R(tmp)}"); e(f"v_add_u32 {R(tmp)}, {CS:#x}, {R(tmp)}")
    e.bar(); stamp(e,10)
    vC=vAf
    for nt in range(4):
        for g in range(4): e.lds(f"ds_read_b128 {R(vC+16*nt+4*g,4)}, {R(tmp)} offset:{nt*128+g*32}",("c",nt))
    for jj in range(32): e(f"v_pk_mul_f32 {R(vAcc+2*jj,2)}, {R(vAcc+2*jj,2)}, {R(vM,2)} op_sel_hi:[1,0]") if jj>=24 or True else None
    e.wlg0(); e.bar()
    U=vBf; PK=vAf+64
    for nt in range(4):
        for hh in range(2):
            b=vAcc+16*nt+8*hh; c=vC+16*nt+8*hh; o=PK+(nt*2+hh)*4
            for jj in range(4): e(f"v_pk_fma_f32 {R(b+2*jj,2)}, {R(c+2*jj,2)}, {R(vM,2)}, {R(b+2*jj,2)} op_sel:[0,1,0] op_sel_hi:[1,1,1]")
            for jj in range(8): e(f"v_exp_f32 {R(U+jj)}, {R(b+jj)}")
            e.nop(1)
            for jj in range(4): e(f"v_pk_fma_f32 {R(U+2*jj,2)}, {R(U+2*jj,2)}, {R(vS,2)}, {R(vS,2)} op_sel_hi:[1,0,0]")
            for jj in range(8): e(f"v_rcp_f32 {R(U+jj)}, {R(U+jj)}")
            e.nop(1)
            for jj in range(4): e(f"v_pk_mul_f32 {R(b+2*jj,2)}, {R(b+2*jj,2)}, {R(U+2*jj,2)}")
            for jj in range(4): e(f"v_cvt_pk_bf16_f32 {R(o+jj)}, {R(b+2*jj)}, {R(b+2*jj+1)}")
            t=nt*2+hh
            if t==4: e(f"s_movk_i32 {S(sT2)}, 0x1000")
            gstore(e,f"buffer_store_dwordx4 {R(o,4)}, {R(vH)}, {S(srdO,4)}, {S(sT2) if t>=4 else '0'} offen offset:{(t&3)*1024}","st")
    e(f"s_branch {fin}")
    e.lab(ld); e.reset(); e('s_setprio '+os.environ.get('PRIO','0'))
    vB,vT,vCs,vBf=2,4,5,16
    wdma_lane(e,vB,tmp,3584,0)
    e(f"s_and_b32 {S(sD+1)}, {S(j)}, 1"); e(f"s_lshr_b32 {S(sD+2)}, {S(j)}, 1")
    e(f"s_mul_i32 {S(sT0)}, {S(sD+2)}, {32*3584}"); e(f"s_lshl_b32 {S(sT1)}, {S(sD+1)}, 7"); e(f"s_add_u32 {S(sT0)}, {S(sT0)}, {S(sT1)}")
    e(f"s_lshl_b32 {S(sT1)}, {S(sNB)}, 8"); e(f"s_add_u32 {S(sT0)}, {S(sT0)}, {S(sT1)}")
    e(f"v_add_u32 {R(vB)}, {S(sT0)}, {R(vB)}"); e(f"v_xor_b32 {R(vB+1)}, 32, {R(vB)}")
    e(f"s_lshl_b32 {S(sLB)}, {S(sD+1)}, 16"); e(f"s_lshl_b32 {S(sT1)}, {S(sD+2)}, 12"); e(f"s_add_u32 {S(sLB)}, {S(sLB)}, {S(sT1)}")
    def wch(ch):
        for i in range(4): dma(e,vB+(i&1),srdW,(ch*64+8*i)*3584,(sLB,ch*8192+i*1024),("B",ch))
    for ch in range(3): wch(ch)
    tr_lane_base(e,vT,tmp,"frag")
    e(f"s_lshl_b32 {S(sT0)}, {S(sD+1)}, 6"); e(f"v_xor_b32 {R(vT)}, {S(sT0)}, {R(vT)}")
    e(f"s_lshl_b32 {S(sT0)}, {S(sD+2)}, 16"); e(f"v_add_u32 {R(vT)}, {S(sT0)}, {R(vT)}")
    e(f"v_mov_b32 {R(vCs)}, 0"); e(f"v_mov_b32 {R(vCs+1)}, 0")
    e.bar()
    for ch in range(8):
        if ch<=4: e.wvm(("B",ch if ch<4 else 7)); e.bar()
        if ch==0: stamp(e,9)
        if ch==4: stamp(e,1)
        for t in range(4): trread(e,vBf+4*t,vT,(ch*4+t)*2048,("f",t))
        for c2 in {0:(3,4),1:(5,6),2:(7,)}.get(ch,()): wch(c2)
        if ch==3:
            e(f"s_lshl_b32 {S(sT0)}, {S(sMB)}, 2"); e(f"s_add_u32 {S(sT0)}, {S(sT0)}, {S(j)}"); e(f"s_mul_i32 {S(sT0)}, {S(sT0)}, {112*1024}")
            e(f"s_lshl_b32 {S(sT1)}, {S(sNB)}, 13"); e(f"s_add_u32 {S(sT0)}, {S(sT0)}, {S(sT1)}"); e(f"v_lshl_add_u32 v7, {R(vL)}, 7, {S(sT0)}")
            e.vmem(f"buffer_load_dword v242, v7, {S(srdO,4)}, 0 offen sc1","pf")
        if ch==4:
            pf_w2(e,j,0); pf_w2(e,j,1)
            with ifL(e,0): x2touch(e,j,4,7)
        if ch==int(os.environ.get('S3',9)): e('s_setprio '+os.environ.get('LP','2'))
        for t in range(4):
            e.wlg(("f",t))
            for i in range(4): e(f"v_dot2_f32_bf16 {R(vCs+(i&1))}, {R(vBf+4*t+i)}, {S(sONE)}, {R(vCs+(i&1))}")
    e(f"s_lshl_b32 {S(sT0)}, {S(j)}, 7"); e(f"s_add_u32 {S(sT0)}, {S(sT0)}, {CS:#x}")
    e(f"v_and_b32 {R(tmp)}, 31, {R(vL)}"); e(f"v_lshl_add_u32 {R(tmp)}, {R(tmp)}, 2, {S(sT0)}"); e.nop(2)
    e(f"v_add_f32 {R(vCs)}, {R(vCs)}, {R(vCs+1)}")
    allsum_halves(e,vCs,vCs+1)
    e(f"ds_write_b32 {R(tmp)}, {R(vCs)}")
    stamp(e,3)
    if 'w4' in DBG: e.wvm0()
    stamp(e,4); e.wlg0(); e('s_setprio 0'); e.bar(); e.bar(); stamp(e,5)
    p4_preload(e,j,0); e.bar(); e.wvm0()
    e(f"s_branch {sk2}")
    e.lab(fin); e('s_setprio 0'); publish(e,L*4+2); e(f"s_branch {sk2}")
    e.lab(skip)
    sk3=e.newlab("p3np"); e(f"s_cmp_lt_u32 {S(sW)}, 4"); e(f"s_cbranch_scc1 {sk3}"); pf_w2(e,j,0); pf_w2(e,j,1)
    with ifL(e,0): x2touch(e,j,4,7)
    p4_preload(e,j,0); e.lab(sk3)
    e.wvm0(); e.bar(); e.lab(sk2)

STG=34816; WOF=10240; CS1=4*STG; ST1=CS1+1024; QB,KB,VB=0,9216,20736
vW,vX,vb=200,206,209
dW,dX=sD,sD+6
def wslots(e,sw,k0):
    for a in range(3):
        e(f"s_mul_i32 {S(sT0)}, {S(sw)}, 3"); e(f"s_add_u32 {S(sT0)}, {S(sT0)}, {a}")
        e(f"s_lshl_b32 {S(dW+k0+a)}, {S(sT0)}, 10"); e(f"s_add_u32 {S(dW+k0+a)}, {S(dW+k0+a)}, {WOF}")
        e(f"s_and_b32 {S(sT1)}, {S(sT0)}, 1"); e(f"s_lshl_b32 {S(sT1)}, {S(sT1)}, 5"); e(f"v_xor_b32 {R(vW+k0+a)}, {S(sT1)}, {R(vb)}")
        e(f"s_and_b32 {S(sT1)}, {S(sT0)}, 7"); e(f"s_mul_i32 {S(sT1)}, {S(sT1)}, {8*3072}")
        e(f"s_lshr_b32 {S(sT0)}, {S(sT0)}, 3"); e(f"s_lshl_b32 {S(sT0)}, {S(sT0)}, 10"); e(f"s_add_u32 {S(sT0)}, {S(sT0)}, {S(sT1)}")
        e(f"v_add_u32 {R(vW+k0+a)}, {S(sT0)}, {R(vW+k0+a)}")
def p1_setup(e,L):
    tmp=9
    srd(e,srdW,pQKV,0,512*3072)
    wdma_lane(e,vb,tmp,3072,0)
    e(f"s_lshl_b32 {S(sT0)}, {S(sNB)}, 7"); e(f"v_add_u32 {R(vb)}, {S(sT0)}, {R(vb)}")
    e(f"v_lshrrev_b32 {R(tmp)}, 3, {R(vL)}"); e(f"v_lshrrev_b32 {R(tmp+1)}, 4, {R(vL)}"); e(f"v_and_b32 {R(tmp+2)}, 7, {R(vL)}")
    e(f"v_xor_b32 {R(tmp+1)}, {R(tmp+1)}, {R(tmp+2)}"); e(f"v_lshlrev_b32 {R(tmp+1)}, 4, {R(tmp+1)}")
    e(f"v_lshl_add_u32 {R(vb+1)}, {R(tmp)}, 10, {R(tmp+1)}")
    wslots(e,sW,0)
def p1_issue(e,L,s,ws,xs):
    b=(s%4)*STG
    for k in xs: dma(e,vX+k,srdA,s*128,(dX+k,b),("S",s),True)
    for k in ws: dma(e,vW+k,srdW,s*64*3072,(dW+k,b),("S",s))
def p1_trickle(e,L,s,j):
    wo=L*LSTRIDE; va=211
    if s==5 and "nopt" not in DBG:
        srd(e,srdS,pWS,wo,16*MB)
        e(f"s_lshl_b32 {S(sT0)}, {S(sMB)}, 16"); e(f"s_lshl_b32 {S(sT1)}, {S(sNB)}, 12"); e(f"s_add_u32 {S(sT0)}, {S(sT0)}, {S(sT1)}")
        e(f"s_and_b32 {S(sT1)}, {S(j)}, 1"); e(f"s_lshl_b32 {S(sT1)}, {S(sT1)}, 15"); e(f"s_add_u32 {S(sT0)}, {S(sT0)}, {S(sT1)}")
        e(f"s_lshr_b32 {S(sT1)}, {S(j)}, 1"); e(f"s_lshl_b32 {S(sT1)}, {S(sT1)}, 21"); e(f"s_add_u32 {S(sT0)}, {S(sT0)}, {S(sT1)}")
        e(f"v_and_b32 {R(va)}, 31, {R(vL)}"); e(f"v_lshl_add_u32 {R(va)}, {R(va)}, 7, {S(sT0)}")
        e.vmem(f"buffer_load_dword v242, {R(va)}, {S(srdS,4)}, 0 offen sc1","pf")
        e(f"s_lshl_b32 {S(sT0)}, {S(sMB)}, 12"); e(f"s_lshl_b32 {S(sT1)}, {S(sNB)}, 8"); e(f"s_add_u32 {S(sT0)}, {S(sT0)}, {S(sT1)}"); e(f"s_add_u32 {S(sT0)}, {S(sT0)}, {ST_OFF}")
        e(f"v_and_b32 {R(va)}, 1, {R(vL)}"); e(f"v_lshl_add_u32 {R(va)}, {R(va)}, 7, {S(sT0)}"); e(f"v_bfe_u32 {R(va+1)}, {R(vL)}, 1, 1"); e(f"v_lshl_add_u32 {R(va)}, {R(va+1)}, 11, {R(va)}")
        e.vmem(f"buffer_load_dword v242, {R(va)}, {S(srdS,4)}, 0 offen sc1","pf")
        if True:
            e(f"s_lshl_b32 {S(sT0)}, {S(sXCD)}, 7"); e(f"v_and_b32 {R(va)}, 7, {R(vL)}"); e(f"v_lshl_add_u32 {R(va)}, {R(va)}, 10, {S(sT0)}")
            e.vmem(f"buffer_load_dword v242, {R(va)}, {S(srdF,4)}, 0 offen sc1","pf")
    if s==5: prefetch(e,srdS,pWO,512*1024,4,j,va,240)
    if s==6:
        if 'w1all' in DBG: prefetch(e,srdS,pW1,512*3584,4,j,va,240)
        else: pfl(e,srdS,pW1,512*3584,[(sJ,32768),(j,8192)],0,64,va)
def x2touch(e,sw,nw,va):
    e(f"s_lshr_b32 {S(sT0)}, {S(sJ)}, 3"); e(f"s_lshl_b32 {S(sT1)}, {S(sXCD)}, 2"); e(f"s_add_u32 {S(sT0)}, {S(sT0)}, {S(sT1)}"); e(f"s_lshl_b32 {S(sT0)}, {S(sT0)}, 16")
    e(f"s_mul_i32 {S(sT1)}, {S(sw)}, {65536//nw}"); e(f"s_add_u32 {S(sT0)}, {S(sT0)}, {S(sT1)}")
    e(f"s_and_b32 {S(sT1)}, {S(sJ)}, 7"); e(f"s_lshl_b32 {S(sT1)}, {S(sT1)}, 7"); e(f"s_add_u32 {S(sT0)}, {S(sT0)}, {S(sT1)}")
    srd(e,srdR,pWS,X2_OFF,2*MB)
    e(f"v_and_b32 {R(va)}, {64//nw-1}, {R(vL)}"); e(f"v_lshl_add_u32 {R(va)}, {R(va)}, 10, {S(sT0)}")
    e.vmem(f"buffer_load_dword v242, {R(va)}, {S(srdR,4)}, 0 offen sc1","pf")
def phase1(e,L):
    wo=L*LSTRIDE
    ids64(e)
    srdsel(e,srdA,pX,0,2*MB,pWS,X2_OFF,4*MB)
    srd(e,srdO,pWS,wo+O_OFF,2*MB)
    tmp=9
    lab_h,lab_l,lab_att=e.newlab("p1h"),e.newlab("p1l"),e.newlab("p1att")
    issue=lambda s,ws,xs: p1_issue(e,L,s,ws,xs)
    def first3(xs):
        e.alt=[]
        for s in range(3):
            if s: w0(s)
            issue(s,[],xs)
    def w0(s):
        with ifL(e,0): e.only0=True; issue(s,range(3),[]); e.only0=False
    def xslot(si,k):
        e(f"s_lshl_b32 {S(dX+k)}, {S(si)}, 10")
        e(f"s_and_b32 {S(sT1)}, {S(si)}, 1"); e(f"s_lshl_b32 {S(sT1)}, {S(sT1)}, 6"); e(f"v_xor_b32 {R(vX+k)}, {S(sT1)}, {R(vb+1)}")
        e(f"s_lshl_b32 {S(sT0)}, {S(sMB)}, 16"); e(f"s_lshl_b32 {S(sT1)}, {S(si)}, 13"); e(f"s_add_u32 {S(sT0)}, {S(sT0)}, {S(sT1)}")
        e(f"s_sub_u32 {S(sT0)}, {S(sT0)}, 0x4000")
        if True:
            e(f"s_lshl_b32 {S(sT2)}, {S(sXCD)}, 14"); e(f"s_add_u32 {S(sT2)}, {S(sT2)}, {S(sT1)}"); e(f"s_add_u32 {S(sT2)}, {S(sT2)}, {X2H_OFF-X2_OFF-0x4000}")
            e(f"s_cmp_lt_u32 {S(si)}, 2"); e(f"s_cselect_b32 {S(sT1)}, {S(sD+9)}, 0"); e(f"s_cmp_lg_u32 {S(sT1)}, 0"); e(f"s_cselect_b32 {S(sT0)}, {S(sT2)}, {S(sT0)}")
        e(f"v_add_u32 {R(vX+k)}, {S(sT0)}, {R(vX+k)}")
    def bump(regs,s):
        d=STG if s%4!=3 else -3*STG
        for r in regs: e(f"v_add_u32 {R(r)}, {d&0xffffffff:#x}, {R(r)}")
    def xaddr(dst,n,step,rowbase,w16):
        if w16: e(f"v_and_b32 {R(tmp)}, 15, {R(vL)}"); e(f"v_lshrrev_b32 {R(tmp+1)}, 4, {R(vL)}")
        else: e(f"v_and_b32 {R(tmp)}, 31, {R(vL)}"); e(f"v_lshrrev_b32 {R(tmp+1)}, 5, {R(vL)}")
        if rowbase is not None: e(f"v_add_u32 {R(tmp)}, {rowbase}, {R(tmp)}")
        e(f"v_bfe_u32 {R(tmp+2)}, {R(tmp)}, 1, 3"); e(f"v_xor_b32 {R(tmp+1)}, {R(tmp+1)}, {R(tmp+2)}")
        e(f"v_lshlrev_b32 {R(tmp+1)}, 4, {R(tmp+1)}"); e(f"v_lshl_add_u32 {R(dst)}, {R(tmp)}, 7, {R(tmp+1)}")
        for i in range(1,n): e(f"v_xor_b32 {R(dst+i)}, {i*step}, {R(dst)}")
    if True:
        e(f"s_cmp_lt_u32 {S(sJ)}, 8"); e(f"s_cselect_b32 {S(sD+9)}, {S(sXCD)}, 0"); e(f"s_mul_i32 {S(sD+9)}, {S(sD+9)}, {S(sL)}")
        e(f"s_and_b32 {S(sD+12)}, {S(sJ)}, 24"); e(f"s_max_u32 {S(sT0)}, {S(sD+12)}, 8"); e(f"s_sub_u32 {S(sT0)}, {S(sT0)}, 8"); e(f"s_lshl_b32 {S(sT0)}, {S(sT0)}, 2")
        e(f"s_lshl_b32 {S(sT1)}, {S(sXCD)}, 7"); e(f"s_add_u32 {S(sT0)}, {S(sT0)}, {S(sT1)}"); e(f"s_add_u32 {S(sT0)}, {S(sT0)}, {3*1024}")
        e(f"s_add_u32 {S(sT1)}, {S(sT1)}, {7*1024-128+96}"); e(f"s_cmp_lg_u32 {S(sD+9)}, 0"); e(f"s_cselect_b32 {S(sD+13)}, {S(sT1)}, {S(sT0)}")
    xslot(sW,0)
    with ifL(e,1): waitflags(e,3,sD+12,8,sD+13)
    e(f"s_cmp_ge_u32 {S(sW)}, 4"); e(f"s_cbranch_scc1 {lab_l}")
    first3([0])
    q0=list(e.vm); q1=list(e.alt)
    e(f"s_cmp_eq_u32 {S(sW)}, 3"); e(f"s_cbranch_scc1 {lab_h}")
    e('s_setprio 1')
    vXa,vTa,vAcc,vF=2,6,32,96
    xaddr(vXa,4,32,16,False)
    tr_lane_base(e,vTa,tmp,"head")
    pA,nA,pB,nB=sD+10,sD+11,sD+12,sD+13
    e(f"s_min_u32 {S(pA)}, {S(sW)}, 1"); e(f"s_lshr_b32 {S(nA)}, {S(sW)}, 1"); e(f"s_lshl_b32 {S(pB)}, {S(pA)}, 1")
    e(f"s_and_b32 {S(nB)}, {S(sW)}, 1"); e(f"s_xor_b32 {S(nB)}, {S(nB)}, 1")
    for r,p,n in ((vTa+1,pB,nB),(vTa,pA,nA)):
        e(f"s_lshl_b32 {S(sT0)}, {S(n)}, 6"); e(f"v_xor_b32 {R(r)}, {S(sT0)}, {R(vTa)}")
        e(f"s_lshl_b32 {S(sT0)}, {S(p)}, 13"); e(f"s_add_u32 {S(sT0)}, {S(sT0)}, {WOF}"); e(f"v_add_u32 {R(r)}, {S(sT0)}, {R(r)}")
    def rd(t,p):
        b=vF+(t&1)*16; ks=t&3
        if p==0: trread(e,b+8,vTa,ks*2048,("a",t))
        if p==1: e.lds(f"ds_read_b128 {R(b,4)}, {R(vXa+ks)}",("a",t)); e.lds(f"ds_read_b128 {R(b+4,4)}, {R(vXa+ks)} offset:4096",("b",t))
        if p==2: trread(e,b+12,vTa+1,ks*2048,("c",t))
    e.wvm(("S",0)); e.bar(); stamp(e,1)
    for p in range(3): rd(0,p)
    for t in range(32):
        nx=t+1<32
        if nx and (t+1)%4==0:
            s=(t+1)//4
            e.wvm(("S",s)); (e.wlg0() if s<=4 else None); bump(range(vXa,vXa+6),s-1); (e.bar() if s<7 else None); stamp(e,1+s)
        b=vF+(t&1)*16
        if nx: rd(t+1,0)
        e.wlg(("a",t)); mfma32(e,vAcc,b+8,b,t==0)
        if nx: rd(t+1,1)
        e.wlg(("b",t)); mfma32(e,vAcc+16,b+8,b+4,t==0)
        if nx: rd(t+1,2)
        e.wlg(("c",t)); mfma32(e,vAcc+32,b+12,b,t==0); mfma32(e,vAcc+48,b+12,b+4,t==0)
    vC,vSt,vWA,vWB,vP=128,160,2,3,168
    e(f"v_lshrrev_b32 {R(tmp)}, 5, {R(vL)}"); e(f"v_and_b32 {R(tmp+1)}, 31, {R(vL)}")
    for r,p,n in ((4,pA,nA),(5,pB,nB)):
        e(f"s_lshl_b32 {S(sT0)}, {S(p)}, 8"); e(f"s_lshl_b32 {S(sT1)}, {S(n)}, 7"); e(f"s_add_u32 {S(sT0)}, {S(sT0)}, {S(sT1)}")
        e(f"s_add_u32 {S(sT0)}, {S(sT0)}, {CS1}"); e(f"v_lshl_add_u32 {R(r)}, {R(tmp)}, 6, {S(sT0)}")
    e(f"v_lshlrev_b32 {R(6)}, 3, {R(tmp+1)}"); e(f"v_add_u32 {R(6)}, {ST1+128:#x}, {R(6)}")
    e(f"v_mul_u32_u24 {R(vWA)}, 144, {R(tmp+1)}"); e(f"v_lshl_add_u32 {R(vWA)}, {R(tmp)}, 5, {R(vWA)}")
    e(f"v_mul_u32_u24 {R(vWB)}, 272, {R(tmp+1)}"); e(f"v_lshl_add_u32 {R(vWB)}, {R(tmp)}, 6, {R(vWB)}")
    e(f"s_mul_i32 {S(sT0)}, {S(pA)}, {KB+16*144}"); e(f"s_lshl_b32 {S(sT1)}, {S(nA)}, 6"); e(f"s_add_u32 {S(sT0)}, {S(sT0)}, {S(sT1)}")
    e(f"v_add_u32 {R(vWA)}, {S(sT0)}, {R(vWA)}")
    e(f"s_lshl_b32 {S(sT1)}, {S(nB)}, 7"); e(f"s_add_u32 {S(sT1)}, {S(sT1)}, {VB+16*272}"); e(f"v_add_u32 {R(vWB)}, {S(sT1)}, {R(vWB)}")
    e.bar(); stamp(e,9)
    for m in range(2): e.lds(f"ds_read_b64 {R(vSt+2*m,2)}, {R(6)} offset:{m*256}","st")
    for T in range(2):
        for g in range(4): e.lds(f"ds_read_b128 {R(vC+16*T+4*g,4)}, {R(4+T)} offset:{g*16}",("c",T))
    def corr(T,m):
        b=vAcc+32*T+16*m
        for j in range(8): e(f"v_pk_fma_f32 {R(b+2*j,2)}, {R(vC+16*T+2*j,2)}, {R(vSt+2*m,2)}, {R(b+2*j,2)} op_sel_hi:[1,0,1]")
        for j in range(8): e(f"v_pk_mul_f32 {R(b+2*j,2)}, {R(b+2*j,2)}, {R(vSt+2*m,2)} op_sel:[0,1] op_sel_hi:[1,1]")
    def wr16(T,m,off):
        b=vAcc+32*T+16*m; p=vP+8*(2*T+m)
        for j in range(8): e(f"v_cvt_pk_bf16_f32 {R(p+j)}, {R(b+2*j)}, {R(b+2*j+1)}")
        for j in range(2): e(f"ds_write_b128 {R(vWA)}, {R(p+4*j,4)} offset:{off+m*32*144+16*j}")
    e.wlg(("c",0))
    for m in range(2): corr(0,m); wr16(0,m,0)
    e.wlg0()
    for m in range(2): corr(1,m)
    lv=e.newlab("p1v"); e(f"s_cmp_lg_u32 {S(sW)}, 0"); e(f"s_cbranch_scc1 {lv}")
    for m in range(2): wr16(1,m,64)
    e(f"s_branch {lab_att}")
    e.lab(lv)
    for m in range(2):
        for j in range(4): e(f"ds_write_b128 {R(vWB)}, {R(vAcc+32+16*m+4*j,4)} offset:{m*32*272+16*j}")
    e(f"s_branch {lab_att}")
    e.lab(lab_h); e.reset(); e.vm=list(q0); e.alt=list(q1); e('s_setprio 1')
    vXa,vTh,vAcc,vXf,vWf=2,4,32,80,96
    xaddr(vXa,2,64,None,True)
    e(f"v_lshrrev_b32 {R(tmp)}, 4, {R(vL)}"); e(f"v_bfe_u32 {R(tmp+1)}, {R(vL)}, 2, 2")
    e(f"v_lshl_add_u32 {R(vTh)}, {R(tmp)}, 3, {R(tmp+1)}"); e(f"v_lshlrev_b32 {R(vTh)}, 7, {R(vTh)}")
    e(f"v_and_b32 {R(tmp)}, 1, {R(tmp)}"); e(f"v_lshlrev_b32 {R(tmp)}, 1, {R(tmp)}"); e(f"v_lshrrev_b32 {R(tmp+1)}, 1, {R(tmp+1)}")
    e(f"v_lshl_or_b32 {R(tmp)}, {R(tmp+1)}, 2, {R(tmp)}"); e(f"v_bfe_u32 {R(tmp+1)}, {R(vL)}, 1, 1"); e(f"v_or_b32 {R(tmp)}, {R(tmp)}, {R(tmp+1)}")
    e(f"v_lshl_add_u32 {R(vTh)}, {R(tmp)}, 4, {R(vTh)}"); e(f"v_and_b32 {R(tmp)}, 1, {R(vL)}"); e(f"v_lshl_add_u32 {R(vTh)}, {R(tmp)}, 3, {R(vTh)}")
    e(f"v_add_u32 {R(vTh)}, {WOF}, {R(vTh)}")
    for h in range(1,4): e(f"v_xor_b32 {R(vTh+h)}, {h*32}, {R(vTh)}")
    e(f"v_and_b32 {R(tmp)}, 15, {R(vL)}"); e(f"v_cmp_eq_u32 vcc, 0, {R(tmp)}"); e(f"v_mov_b32 {R(12)}, {S(sONE)}")
    def rdu(u,h):
        T,p=divmod(u,3); kk=T&1
        if p==0 and h==0: e.lds(f"ds_read_b128 {R(vXf+4*(T&1),4)}, {R(vXa+kk)}",("x",T))
        trread(e,vWf+(u&1)*16+4*h,vTh+h,p*8192+kk*4096,("w",u,h))
    e.wvm(("S",0)); e.bar()
    for h in range(4): rdu(0,h)
    for u in range(48):
        T,p=divmod(u,3)
        if u+1<48 and (u+1)%6==0:
            s=(u+1)//6
            e.wvm(("S",s)); (e.wlg0() if s<=4 else None); bump(range(vXa,vXa+6),s-1); (e.bar() if s<7 else None)
            if s==2:
                with ifL(e,0): hello(e)
        if p==0:
            e.wlg(("x",T))
            for i in range(4): e(f"v_cndmask_b32 {R(vXf+4*(T&1)+i)}, {R(vXf+4*(T&1)+i)}, {R(12)}, vcc")
            e.nop(2)
        for h in range(4):
            if u+1<48: rdu(u+1,h)
            e.wlg(("w",u,h)); mfma16(e,vAcc+16*p+4*h,vWf+(u&1)*16+4*h,vXf+4*(T&1),T==0)
    e(f"v_lshrrev_b32 {R(tmp)}, 4, {R(vL)}"); e(f"v_and_b32 {R(tmp+1)}, 15, {R(vL)}")
    e(f"v_lshlrev_b32 {R(2)}, 4, {R(tmp)}"); e(f"v_add_u32 {R(2)}, {CS1}, {R(2)}")
    e(f"v_lshlrev_b32 {R(3)}, 3, {R(tmp+1)}"); e(f"v_add_u32 {R(3)}, {ST1}, {R(3)}")
    e(f"v_mul_u32_u24 {R(4)}, 144, {R(tmp+1)}"); e(f"v_lshl_add_u32 {R(4)}, {R(tmp)}, 3, {R(4)}")
    e(f"v_mul_u32_u24 {R(5)}, 272, {R(tmp+1)}"); e(f"v_lshl_add_u32 {R(5)}, {R(tmp)}, 4, {R(5)}")
    e(f"s_and_saveexec_b64 {S(sD+14,2)}, vcc")
    for i in range(12): e(f"ds_write_b128 {R(2)}, {R(vAcc+4*i,4)} offset:{i*64}")
    e(f"s_mov_b64 exec, {S(sD+14,2)}")
    e.wlg0(); e.bar()
    vC,vSt=96,80
    e.lds(f"ds_read_b64 {R(vSt,2)}, {R(3)}","st")
    for i in range(8): e.lds(f"ds_read_b128 {R(vC+4*i,4)}, {R(2)} offset:{(4+i)*64}",("c",i))
    for i in range(8):
        e.wlg(("c",i)); b=vAcc+16+4*i
        for j in range(2): e(f"v_pk_fma_f32 {R(b+2*j,2)}, {R(vC+4*i+2*j,2)}, {R(vSt,2)}, {R(b+2*j,2)} op_sel_hi:[1,0,1]")
        for j in range(2): e(f"v_pk_mul_f32 {R(b+2*j,2)}, {R(b+2*j,2)}, {R(vSt,2)} op_sel:[0,1] op_sel_hi:[1,1]")
        if i<4:
            for j in range(2): e(f"v_cvt_pk_bf16_f32 {R(b+j)}, {R(b+2*j)}, {R(b+2*j+1)}")
            e.lds(f"ds_write_b64 {R(4)}, {R(b,2)} offset:{KB+i*32}")
        else: e.lds(f"ds_write_b128 {R(5)}, {R(b,4)} offset:{VB+(i-4)*64}")
    e(f"s_branch {lab_att}")
    e.lab(lab_l); e.reset(); e('s_setprio '+os.environ.get('PRIO','0'))
    j=sD+10; e(f"s_sub_u32 {S(j)}, {S(sW)}, 4")
    e(f"s_and_b32 {S(sD+11)}, {S(j)}, 1"); e(f"s_add_u32 {S(sD+11)}, {S(sD+11)}, 8"); xslot(sD+11,1)
    first3([0,1])
    wslots(e,j,3); xslot(j,2)
    vXa,vF,vS=2,32,12
    e(f"s_min_u32 {S(sT2)}, {S(j)}, 2"); e(f"s_lshl_b32 {S(sT2)}, {S(sT2)}, 5"); e(f"s_sub_u32 {S(sT2)}, {S(sT2)}, 16"); e(f"s_max_i32 {S(sT2)}, {S(sT2)}, 0")
    xaddr(vXa,4,32,S(sT2),False)
    e(f"v_lshlrev_b32 {R(6)}, 3, {R(tmp)}"); e(f"v_add_u32 {R(6)}, {ST1}, {R(6)}")
    for i in range(4): e(f"v_mov_b32 {R(vS+i)}, 0")
    for s in range(8):
        if s<7: e.wvm(("S",s if s<6 else 7)); e.bar()
        if 'sk3' not in DBG:
            for ks in range(4): e.lds(f"ds_read_b128 {R(vF+4*ks,4)}, {R(vXa+ks)}",("x",ks))
        if s<=4: issue(s+3,range(6),[0,1,2])
        if s==int(os.environ.get('QS',0)): pfl(e,srdS,pQKV,512*3072,[(sJ,30720),(j,7680)],192*3072,60,7)
        if s<6 or 'late6' not in DBG: p1_trickle(e,L,s,j)
        if s==int(os.environ.get('S1',9)): e('s_setprio '+os.environ.get('LP','2'))
        sk=e.newlab("nost")
        if 'sk3' in DBG:
            e(f"s_cmp_eq_u32 {S(j)}, 3"); e(f"s_cbranch_scc1 {sk}")
            for ks in range(4): e.lds(f"ds_read_b128 {R(vF+4*ks,4)}, {R(vXa+ks)}",("x",ks))
        if s<7: bump(range(vXa,vXa+4),s)
        for ks in range(4):
            e.wlg(("x",ks))
            for i in range(4):
                e(f"v_dot2_f32_bf16 {R(vS+(i&1))}, {R(vF+4*ks+i)}, {S(sONE)}, {R(vS+(i&1))}")
                e(f"v_dot2_f32_bf16 {R(vS+2+(i&1))}, {R(vF+4*ks+i)}, {R(vF+4*ks+i)}, {R(vS+2+(i&1))}")
        e.lab(sk)
    e.nop(3); e(f"v_add_f32 {R(vS)}, {R(vS)}, {R(vS+1)}"); e(f"v_add_f32 {R(vS+1)}, {R(vS+2)}, {R(vS+3)}")
    allsum_halves(e,vS,vS+2); allsum_halves(e,vS+1,vS+2)
    meanrstd(e,vS,vS+1,tmp); e(f"v_sub_f32 {R(vS)}, 0, {R(vS)}")
    sk=e.newlab("nosw"); e(f"s_cmp_eq_u32 {S(j)}, 3"); e(f"s_cbranch_scc1 {sk}"); e(f"ds_write_b64 {R(6)}, {R(vS,2)}"); e.lab(sk)
    if 'late6' in DBG: p1_trickle(e,L,6,j)
    e.wlg0(); e.bar()
    e.lab(lab_att); e.reset(); e('s_setprio 0')
    vQ,vK,vV,vLg,vO=16,32,96,160,176
    mt,h=sD,sD+1
    e(f"s_lshr_b32 {S(mt)}, {S(sW)}, 2"); e(f"s_and_b32 {S(h)}, {S(sW)}, 3")
    e(f"v_and_b32 {R(tmp)}, 31, {R(vL)}"); e(f"s_lshl_b32 {S(sT0)}, {S(mt)}, 5"); e(f"v_add_u32 {R(tmp)}, {S(sT0)}, {R(tmp)}")
    e(f"v_lshrrev_b32 {R(tmp+1)}, 5, {R(vL)}")
    e(f"s_lshl_b32 {S(sT0)}, {S(h)}, 5"); e(f"v_mul_u32_u24 {R(2)}, 144, {R(tmp)}"); e(f"v_add_u32 {R(2)}, {S(sT0)}, {R(2)}"); e(f"v_lshl_add_u32 {R(2)}, {R(tmp+1)}, 4, {R(2)}")
    e(f"s_lshl_b32 {S(sT0)}, {S(h)}, 6"); e(f"v_mul_u32_u24 {R(3)}, 272, {R(tmp)}"); e(f"v_lshl_add_u32 {R(3)}, {R(tmp+1)}, 5, {R(3)}"); e(f"v_add_u32 {R(3)}, {S(sT0)}, {R(3)}")
    e(f"s_lshl_b32 {S(sT0)}, {S(sMB)}, 6"); e(f"v_add_u32 {R(4)}, {S(sT0)}, {R(tmp)}")
    e(f"s_lshl_b32 {S(sT0)}, {S(sMB)}, 1"); e(f"s_add_u32 {S(sT0)}, {S(sT0)}, {S(mt)}"); e(f"s_lshl_b32 {S(sT0)}, {S(sT0)}, 5")
    e(f"s_lshl_b32 {S(sT1)}, {S(sNB)}, 2"); e(f"s_add_u32 {S(sT0)}, {S(sT0)}, {S(sT1)}"); e(f"s_add_u32 {S(sT0)}, {S(sT0)}, {S(h)}"); e(f"s_lshl_b32 {S(sT0)}, {S(sT0)}, 10")
    e(f"v_lshl_add_u32 {R(5)}, {R(vL)}, 4, {S(sT0)}")
    srd(e,srdW,pWO,0,512*1024); bsrc(e,14,tmp,8,sKQ,sMH,WO_LDS,16384,sLB)
    e(f"v_mov_b32 {R(6)}, 0xce6e6b28"); e(f"v_mov_b32 {R(7)}, 0x3eb8aa3b")
    e.wlg0(); e.bar(); stamp(e,10)
    e.lds(f"ds_read_b128 {R(vQ,4)}, {R(2)} offset:{QB}","q")
    for jj in range(8): e.lds(f"ds_read_b128 {R(vK+4*jj,4)}, {R(2)} offset:{KB+288+(7-jj)*288}",("k",jj))
    for jj in range(8):
        for i in range(2): e.lds(f"ds_read_b128 {R(vV+8*jj+4*i,4)}, {R(3)} offset:{VB+544+(7-jj)*544+16*i}",("v",jj))
        if jj in (1,3,5,7):
            e.wlg(("k",jj))
            for i in range(4):
                for j2 in (jj-1,jj): e(f"v_dot2_f32_bf16 {R(vLg+j2)}, {R(vQ+i)}, {R(vK+4*j2+i)}, {R(vLg+j2) if i else '0'}")
        dma(e,14,srdW,jj*16384,(sLB,jj*2048),"pre")
    vT=vK
    for jj in range(8): e(f"v_mov_b32 {R(vT+jj)}, {R(vLg+jj)}")
    for jj in range(8): e(f"v_permlane32_swap_b32 {R(vT+jj)}, {R(vLg+jj)}")
    for jj in range(4): e(f"v_pk_add_f32 {R(vLg+2*jj,2)}, {R(vLg+2*jj,2)}, {R(vT+2*jj,2)}")
    for jj in range(1,8): e(f"v_cmp_le_u32 {S(sD+2*jj,2)}, {2*jj}, {R(4)}")
    for jj in range(1,8): e(f"v_cndmask_b32 {R(vLg+jj)}, {R(6)}, {R(vLg+jj)}, {S(sD+2*jj,2)}")
    m=8
    e(f"v_max3_f32 {R(m)}, {R(vLg)}, {R(vLg+1)}, {R(vLg+2)}"); e(f"v_max3_f32 {R(m)}, {R(m)}, {R(vLg+3)}, {R(vLg+4)}")
    e(f"v_max3_f32 {R(m)}, {R(m)}, {R(vLg+5)}, {R(vLg+6)}"); e(f"v_max_f32 {R(m)}, {R(m)}, {R(vLg+7)}")
    for jj in range(8): e(f"v_sub_f32 {R(vLg+jj)}, {R(vLg+jj)}, {R(m)}")
    for jj in range(8): e(f"v_mul_f32 {R(vLg+jj)}, {R(7)}, {R(vLg+jj)}")
    for jj in range(8): e(f"v_exp_f32 {R(vLg+jj)}, {R(vLg+jj)}")
    e.nop(1)
    e(f"v_pk_add_f32 {R(10,2)}, {R(vLg,2)}, {R(vLg+2,2)}"); e(f"v_pk_add_f32 {R(12,2)}, {R(vLg+4,2)}, {R(vLg+6,2)}")
    e(f"v_pk_add_f32 {R(10,2)}, {R(10,2)}, {R(12,2)}"); e(f"v_add_f32 {R(10)}, {R(10)}, {R(11)}"); e(f"v_rcp_f32 {R(10)}, {R(10)}")
    for jj in range(8):
        e.wlg(("v",jj)); pb=vLg+(jj&~1); o=jj&1
        for i in range(4):
            if jj==0: e(f"v_pk_mul_f32 {R(vO+2*i,2)}, {R(vV+2*i,2)}, {R(pb,2)} op_sel_hi:[1,0]")
            else: e(f"v_pk_fma_f32 {R(vO+2*i,2)}, {R(vV+8*jj+2*i,2)}, {R(pb,2)}, {R(vO+2*i,2)} op_sel:[0,{o},0] op_sel_hi:[1,{o},1]")
    for i in range(4): e(f"v_pk_mul_f32 {R(vO+2*i,2)}, {R(vO+2*i,2)}, {R(10,2)} op_sel_hi:[1,0]")
    for i in range(4): e(f"v_cvt_pk_bf16_f32 {R(vQ+i)}, {R(vO+2*i)}, {R(vO+2*i+1)}")
    with ifL(e,0): getmode(e)
    gstore(e,f"buffer_store_dwordx4 {R(vQ,4)}, {R(5)}, {S(srdO,4)}, 0 offen","st")
    publish(e,L*4)
    return ST1+1024

def desc(k):
    return f""".p2align 6
.amdhsa_kernel {k}
  .amdhsa_next_free_vgpr 256
  .amdhsa_next_free_sgpr 102
  .amdhsa_accum_offset 256
  .amdhsa_group_segment_fixed_size 0
  .amdhsa_kernarg_size 72
  .amdhsa_user_sgpr_count 2
  .amdhsa_user_sgpr_kernarg_segment_ptr 1
  .amdhsa_system_sgpr_workgroup_id_x 1
.end_amdhsa_kernel
"""
def build_multi():
    e=Em(); hdr=""; ks=[]
    for L in range(2):
        for p in (1,2,3,4):
            k=f"p{p}l{L}_kernel"; ks.append(k); nwg=224 if p==3 else 256
            e.L.append(f".globl {k}\n.p2align 8\n.type {k},@function\n{k}:"); e.endlab=f"end_{k}"; e.reset()
            prologue(e,nwg)
            lds=phase1(e,L) if p==1 else phase3(e,L) if p==3 else phase_rs(e,L,p)
            stamp_flush(e,L*4+p-1)
            e.lab(e.endlab); e("s_endpgm")
            hdr+=f"; @launch kernel={k} grid=({nwg},1,1) block=(512,1,1) lds={lds}\n"
    return hdr+'.amdgcn_target "amdgcn-amd-amdhsa--gfx950"\n.text\n'+e.text()+'.section .rodata,"a"\n'+"".join(desc(k) for k in ks)
def build_pers():
    e=Em(); k=NAME+"_kernel"
    e.L.append(f".globl {k}\n.p2align 8\n.type {k},@function\n{k}:"); e.endlab="end_all"
    prologue(e,256)
    e(f"s_mov_b32 {S(sL)}, 0"); e(f"s_mov_b32 {S(sFO)}, 0"); e("v_mov_b32 v15, 0")
    ids64(e); p1_setup(e,0)
    p1_issue(e,0,0,range(3),[])
    srd(e,srdD,50,0,256); srd(e,srdF,pWS,FL_OFF,16384)
    e.lab("layer")
    for p in (1,2,3,4):
        e.reset()
        if p>1: stamp(e,0)
        phase1(e,0) if p==1 else phase3(e,0) if p==3 else phase_rs(e,0,p)
        stamp_flush(e,p-1)
    e(f"s_mov_b32 {S(sL)}, 1"); e(f"s_mov_b32 {S(sFO)}, 4096"); stamp(e,0); e("s_branch layer")
    e.lab(e.endlab); e("s_endpgm")
    return f"; @launch grid=(256,1,1) block=(512,1,1) lds=163840\n"+'.amdgcn_target "amdgcn-amd-amdhsa--gfx950"\n.text\n'+e.text()+'.section .rodata,"a"\n'+desc(k)
if __name__=="__main__":
    if "slow" in sys.argv: FORCE_SLOW=True
    if "prof" in sys.argv: PROF=True
    out=sys.argv[1] if len(sys.argv)>1 else f"cdna_kernels/{NAME}.s"
    open(out,"w").write(build_pers())
```

```python
import sys,os
DBG=os.environ.get('DBG','')+',sk3,late6'
from em import *
NAME="interleave_layers__sliding_local_dilated__dense_activation_silu__prompt"
MB=1<<20
O_OFF,X1_OFF,H_OFF,X2_OFF,ST_OFF=0,2*MB,4*MB,12*MB,14*MB
LSTRIDE=0 if 'fresh' not in DBG else 16*MB
sW,sXCD,sJ,sT0,sT1,sT2,sT3,sMB,sNB,sKQ,sMH,sLB=3,4,5,6,7,8,9,10,11,12,13,14
sONE=15
srdA,srdW,srdR,srdO,srdS=16,20,24,28,32
pX,pQKV,pWO,pW1,pW2,pOUT,pWS=36,38,40,44,46,48,52
sD=56
vL=1
sMODE,sTAG=54,55
sL,sFO=100,101
import contextlib
@contextlib.contextmanager
def ifL(e,v):
    sk=e.newlab('ifl'); e(f's_cmp_lg_u32 {S(sL)}, {v}'); e(f's_cbranch_scc1 {sk}'); q=list(e.vm)
    yield
    e.lab(sk); e.vm=q
def srdsel(e,d,p0,o0,z0,p1,o1,z1):
    srd(e,d,p1,o1,z1)
    with ifL(e,0): srd(e,d,p0,o0,z0)
srdF,srdD=96,24
FL_OFF,X2H_OFF=40*MB,15*MB
vRES=248
vINFO=244
FORCE_SLOW=False
ONES=0x3F803F80

PROF=False
def stamp(e,i):
    if PROF: e(f"s_memrealtime {S(72+2*i,2)}")
def stamp_flush(e,slot,n=12):
    if not PROF: return
    sk=e.newlab("nopf"); e(f"s_cmp_lg_u32 {S(sW)}, {4 if 'w4' in DBG else 0}"); e(f"s_cbranch_scc1 {sk}")
    e("s_waitcnt vmcnt(0)"); stamp(e,n-1); e("s_waitcnt lgkmcnt(0)")
    srd(e,srdS,pWS,200*MB,MB)
    e(f"s_lshl_b32 {S(sT0)}, s2, 7"); e(f"s_add_u32 {S(sT0)}, {S(sT0)}, {slot*32768}"); e(f"s_lshl_b32 {S(sT1)}, {S(sL)}, 17"); e(f"s_add_u32 {S(sT0)}, {S(sT0)}, {S(sT1)}"); e(f"v_mov_b32 v2, {S(sT0)}")
    for i in range(n):
        e(f"v_mov_b32 v4, {S(72+2*i)}"); e(f"v_mov_b32 v5, {S(73+2*i)}"); e(f"buffer_store_dwordx2 v[4:5], v2, {S(srdS,4)}, 0 offen offset:{i*8}"); e.nop(2)
    e.lab(sk)
def gstore(e,instr,tag):
    a,b=e.newlab("gs"),e.newlab("gd")
    e(f"s_cmp_eq_u32 {S(sMODE)}, 0"); e(f"s_cbranch_scc1 {a}"); e.vmem(instr+(' nt' if 'stnt' in DBG else ' sc0' if 'stsc0' in DBG else ''),tag); e(f"s_branch {b}")
    e.lab(a); e(instr+" sc1"); e.lab(b)
def spin(e,body,cond):
    lp,out=e.newlab("spin"),e.newlab("spun")
    e(f"s_mov_b32 {S(sT3)}, 0"); e.lab(lp); body()
    e(f"s_add_u32 {S(sT3)}, {S(sT3)}, 1"); e(f"s_cmp_gt_u32 {S(sT3)}, 0x40000"); e(f"s_cbranch_scc1 {out}")
    cond(lp); e.lab(out)
def publish(e,ph,pre=None):
    e.wvm0(); e.bar()
    sk=e.newlab("nopub"); e(f"s_cmp_lg_u32 {S(sW)}, 0"); e(f"s_cbranch_scc1 {sk}")
    e(f"s_lshl_b32 {S(sT0)}, {S(sXCD)}, 7"); e(f"s_lshl_b32 {S(sT1)}, {S(sJ)}, 2"); e(f"s_add_u32 {S(sT0)}, {S(sT0)}, {S(sT1)}")
    e(f"v_mov_b32 v2, {S(sT0)}"); e(f"v_mov_b32 v3, {S(sTAG)}"); e("s_mov_b64 exec, 1")
    e(f"s_add_u32 {S(sT2)}, {S(sFO)}, {ph*1024}")
    gstore(e,f"buffer_store_dword v3, v2, {S(srdF,4)}, {S(sT2)} offen","fl")
    if pre: pre()
    e("s_mov_b64 exec, -1"); e.lab(sk); e.reset()
def waitflags(e,ph,jbase,n,second=None):
    sk=e.newlab("nopoll"); e(f"s_cmp_lg_u32 {S(sW)}, 0"); e(f"s_cbranch_scc1 {sk}")
    e(f"s_lshl_b32 {S(sT0)}, {S(sXCD)}, 7"); e(f"s_lshl_b32 {S(sT1)}, {S(jbase)}, 2"); e(f"s_add_u32 {S(sT0)}, {S(sT0)}, {S(sT1)}")
    e(f"s_add_u32 {S(sT0)}, {S(sT0)}, {ph*1024}")
    if ph<3: e(f"s_add_u32 {S(sT0)}, {S(sT0)}, {S(sFO)}")
    e(f"v_min_u32 v2, {n-1}, {R(vL)}"); e(f"v_lshl_add_u32 v2, v2, 2, {S(sT0)}")
    if second is not None:
        e(f"s_cmp_lg_u32 {S(sD+9)}, 0"); e(f"s_cselect_b32 {S(sT1)}, 31, 7"); e(f"v_and_b32 v3, {S(sT1)}, {R(vL)}"); e(f"v_lshl_add_u32 v3, v3, 2, {S(second)}"); e(f"v_cmp_gt_u32 vcc, 32, {R(vL)}"); e.nop(2); e("v_cndmask_b32 v2, v3, v2, vcc")
    def body(): e(f"buffer_load_dword v3, v2, {S(srdF,4)}, 0 offen sc1"); e("s_waitcnt vmcnt(0)"); e(f"v_cmp_ne_u32 vcc, {S(sTAG)}, v3")
    spin(e,body,lambda lp:e(f"s_cbranch_vccnz {lp}"))
    e(f"s_cmp_lg_u32 {S(sMODE)}, 0"); e(f"s_cbranch_scc1 {sk}"); e("buffer_inv sc1"); e("s_waitcnt vmcnt(0)")
    e.lab(sk); e.bar()
def hello(e):
    e(f"s_getreg_b32 {S(sT0)}, hwreg(HW_REG_XCC_ID, 0, 3)"); e(f"s_mul_i32 {S(sT0)}, {S(sT0)}, 6")
    e(f"s_lshl_b64 {S(sD+14,2)}, 1, {S(sT0)}"); e(f"s_add_u32 {S(sD+15)}, {S(sD+15)}, 0x1000000")
    e(f"s_lshl_b32 {S(sT1)}, {S(sXCD)}, 4"); e(f"v_mov_b32 v212, {S(sT1)}"); e(f"v_mov_b32 v214, {S(sD+14)}"); e(f"v_mov_b32 v215, {S(sD+15)}")
    e("s_mov_b64 exec, 1"); e.vmem(f"buffer_atomic_add_x2 v[214:215], v212, {S(srdD,4)}, 0 offen","hello")
    s2=e.newlab("notag"); e("s_cmp_lg_u32 s2, 0"); e(f"s_cbranch_scc1 {s2}")
    e("v_mov_b32 v212, 0x3000"); e(f"buffer_load_dword v213, v212, {S(srdF,4)}, 0 offen sc1"); e("s_waitcnt vmcnt(0)")
    e("v_add_u32 v213, 0x9e3779b9, v213"); e("v_max_u32 v213, 1, v213"); e(f"buffer_store_dword v213, v212, {S(srdF,4)}, 0 offen sc1")
    e("v_mov_b32 v212, 0x80"); e(f"buffer_store_dword v213, v212, {S(srdD,4)}, 0 offen sc1")
    e.lab(s2); e("s_mov_b64 exec, -1"); e.nop(4)
def getmode(e):
    e(f"s_lshl_b32 {S(sT0)}, {S(sXCD)}, 4"); e(f"v_mov_b32 {R(vINFO)}, {S(sT0)}"); e(f"v_mov_b32 {R(vINFO+1)}, 0x80")
    def body():
        e(f"buffer_load_dwordx2 {R(vINFO+2,2)}, {R(vINFO)}, {S(srdD,4)}, 0 offen sc1"); e(f"buffer_load_dword {R(vINFO-1)}, {R(vINFO+1)}, {S(srdD,4)}, 0 offen sc1")
        e("s_waitcnt vmcnt(0)"); e(f"v_readfirstlane_b32 {S(sD)}, {R(vINFO+2)}"); e(f"v_readfirstlane_b32 {S(sD+1)}, {R(vINFO+3)}"); e(f"v_readfirstlane_b32 {S(sTAG)}, {R(vINFO-1)}")
    def cond(lp):
        e(f"s_lshr_b32 {S(sT0)}, {S(sD+1)}, 24"); e(f"s_cmp_lt_u32 {S(sT0)}, 32"); e(f"s_cbranch_scc1 {lp}")
        e(f"s_cmp_eq_u32 {S(sTAG)}, 0"); e(f"s_cbranch_scc1 {lp}")
    spin(e,body,cond)
    e(f"s_getreg_b32 {S(sT0)}, hwreg(HW_REG_XCC_ID, 0, 3)"); e(f"s_mul_i32 {S(sT0)}, {S(sT0)}, 6")
    e(f"s_lshr_b64 {S(sD,2)}, {S(sD,2)}, {S(sT0)}"); e(f"s_and_b32 {S(sD)}, {S(sD)}, 63"); e(f"s_cmp_eq_u32 {S(sD)}, 32")
    e(f"s_cselect_b32 {S(sMODE)}, {0 if FORCE_SLOW else 1}, 0")
def prefetch(e,sr,ptr,total,nw,sw,va,dst,extra=None,off=0,only=None,nwg=32,sj=None):
    per=total//nwg//nw; lines=per//128; sj=sJ if sj is None else sj
    srd(e,sr,ptr,off,total if extra is None else 2*MB)
    e(f"s_mul_i32 {S(sT0)}, {S(sj)}, {total//nwg}"); e(f"s_mul_i32 {S(sT1)}, {S(sw)}, {per}"); e(f"s_add_u32 {S(sT0)}, {S(sT0)}, {S(sT1)}")
    if extra is not None: e(f"s_lshl_b32 {S(sT1)}, {S(sXCD)}, {extra}"); e(f"s_add_u32 {S(sT0)}, {S(sT0)}, {S(sT1)}")
    for i in range((lines+63)//64):
        if only is not None and i!=only: continue
        n=min(64,lines-64*i)
        e(f"v_min_u32 {R(va)}, {n-1}, {R(vL)}"); e(f"v_lshl_add_u32 {R(va)}, {R(va)}, 7, {S(sT0)}")
        if i: e(f"v_add_u32 {R(va)}, {8192*i}, {R(va)}")
        e.vmem(f"buffer_load_dword {R(dst)}, {R(va)}, {S(sr,4)}, 0 offen"+(' nt' if 'ntp' in DBG and NTS[sr] else ''),"pf")
def pfl(e,sr,ptr,total,terms,const,lines,va):
    srd(e,sr,ptr,0,total); e(f"s_mov_b32 {S(sT0)}, {const}")
    for sg,m in terms: e(f"s_mul_i32 {S(sT1)}, {S(sg)}, {m}"); e(f"s_add_u32 {S(sT0)}, {S(sT0)}, {S(sT1)}")
    for i in range((lines+63)//64):
        e(f"v_min_u32 {R(va)}, {min(64,lines-64*i)-1}, {R(vL)}"); e(f"v_lshl_add_u32 {R(va)}, {R(va)}, 7, {S(sT0)}")
        if i: e(f"v_add_u32 {R(va)}, {8192*i}, {R(va)}")
        e.vmem(f"buffer_load_dword v240, {R(va)}, {S(sr,4)}, 0 offen"+(' nt' if 'ntp' in DBG and NTS[sr] else ''),"pf")
def pf_w2(e,j,part):
    if part==0: pfl(e,srdR,pW2,1792*1024,[(j,448*1024),(sJ,5120)],0,40,7)
    else: pfl(e,srdR,pW2,1792*1024,[(j,448*1024),(sJ,9216)],160*1024,72,7)
def prologue(e,nwg):
    e(f"s_cmp_ge_u32 s2, {nwg}"); e("s_cbranch_scc1 "+e.endlab)
    stamp(e,0)
    e(f"s_load_dwordx16 s[36:51], s[0:1], 0"); e(f"s_load_dwordx2 s[52:53], s[0:1], 64")
    e("v_lshrrev_b32 v2, 6, v0"); e(f"v_and_b32 {R(vL)}, 63, v0")
    e(f"v_readfirstlane_b32 {S(sW)}, v2")
    e(f"s_and_b32 {S(sXCD)}, s2, 7"); e(f"s_lshr_b32 {S(sJ)}, s2, 3")
    e(f"s_mov_b32 {S(sONE)}, {ONES:#x}")
    e("s_waitcnt lgkmcnt(0)")
NTS={}
def srd(e,d,p,off,size):
    NTS[d]=(p in (pW1,pW2))
    if off: e(f"s_add_u32 {S(d)}, {S(p)}, {off:#x}"); e(f"s_addc_u32 {S(d+1)}, {S(p+1)}, 0")
    else: e(f"s_mov_b32 {S(d)}, {S(p)}"); e(f"s_mov_b32 {S(d+1)}, {S(p+1)}")
    e(f"s_mov_b32 {S(d+2)}, {size:#x}"); e(f"s_mov_b32 {S(d+3)}, 0x20000")
def dma(e,vaddr,srd_,soff,m0expr,tag,sc1=False):
    sg,c=m0expr
    if sg is None: e(f"s_mov_b32 m0, {c:#x}")
    else: e(f"s_add_u32 m0, {S(sg)}, {c:#x}")
    if soff: e(f"s_mov_b32 {S(sT3)}, {soff:#x}"); so=S(sT3)
    else: e("s_nop 0"); so="0"
    e.vmem(f"buffer_load_dwordx4 {R(vaddr)}, {S(srd_,4)}, {so} offen {'sc1 ' if sc1 else ''}{'nt ' if 'ntd' in DBG and NTS[srd_] else ''}lds",tag)
def ldfrag(e,dst,vaddr,srd_,t,tag,st):
    hi=t>>2
    if hi and (t&3==0 or st): e(f"s_mov_b32 {S(sT2)}, {hi*4096:#x}")
    so=S(sT2) if hi else "0"
    e.vmem(f"buffer_load_dwordx4 {R(dst,4)}, {R(vaddr)}, {S(srd_,4)}, {so} offen offset:{(t&3)*1024}"+' sc1'+(' nt' if 'nta' in DBG else ''),tag)
def tr_lane_base(e,dst,tmp,perm):
    a,b,c=tmp,tmp+1,tmp+2
    e(f"v_bfe_u32 {R(a)}, {R(vL)}, 2, 2")
    e(f"v_lshrrev_b32 {R(b)}, 5, {R(vL)}")
    e(f"v_lshl_add_u32 {R(dst)}, {R(b)}, 3, {R(a)}")
    e(f"v_lshlrev_b32 {R(dst)}, 7, {R(dst)}")
    e(f"v_lshrrev_b32 {R(a)}, 1, {R(a)}"); e(f"v_lshlrev_b32 {R(a)}, 2, {R(a)}")
    e(f"v_lshl_or_b32 {R(a)}, {R(b)}, 1, {R(a)}")
    if perm=="frag":
        e(f"v_bfe_u32 {R(b)}, {R(vL)}, 4, 1"); e(f"v_and_b32 {R(c)}, 1, {R(vL)}")
        e(f"v_lshl_or_b32 {R(b)}, {R(b)}, 1, {R(c)}"); e(f"v_bfe_u32 {R(c)}, {R(vL)}, 1, 1")
    else:
        e(f"v_and_b32 {R(b)}, 1, {R(vL)}"); e(f"v_bfe_u32 {R(c)}, {R(vL)}, 4, 1")
        e(f"v_lshl_or_b32 {R(b)}, {R(b)}, 1, {R(c)}"); e(f"v_bfe_u32 {R(c)}, {R(vL)}, 1, 1")
    e(f"v_xor_b32 {R(a)}, {R(a)}, {R(b)}")
    e(f"v_lshl_add_u32 {R(dst)}, {R(a)}, 4, {R(dst)}")
    e(f"v_lshl_add_u32 {R(dst)}, {R(c)}, 3, {R(dst)}")
def wdma_lane(e,dst,tmp,rowstride,odd):
    a,b=tmp,tmp+1
    e(f"v_lshrrev_b32 {R(a)}, 3, {R(vL)}")
    e(f"s_mov_b32 {S(sT0)}, {rowstride}"); e(f"v_mul_lo_u32 {R(dst)}, {R(a)}, {S(sT0)}")
    e(f"v_bfe_u32 {R(a)}, {R(vL)}, 4, 1"); e(f"v_lshlrev_b32 {R(a)}, 2, {R(a)}")
    if isinstance(odd,int):
        if odd: e(f"v_or_b32 {R(a)}, 2, {R(a)}")
    else: e(f"v_lshl_or_b32 {R(a)}, {odd}, 1, {R(a)}")
    e(f"v_and_b32 {R(b)}, 7, {R(vL)}"); e(f"v_xor_b32 {R(a)}, {R(a)}, {R(b)}")
    e(f"v_lshl_add_u32 {R(dst)}, {R(a)}, 4, {R(dst)}")
def mfma32(e,d,a,b,first): e(f"v_mfma_f32_32x32x16_bf16 {R(d,16)}, {R(a,4)}, {R(b,4)}, {'0' if first else R(d,16)}")
def mfma16(e,d,a,b,first): e(f"v_mfma_f32_16x16x32_bf16 {R(d,4)}, {R(a,4)}, {R(b,4)}, {'0' if first else R(d,4)}")
def trread(e,dst,va,off,tag):
    e.lds(f"ds_read_b64_tr_b16 {R(dst,2)}, {R(va)} offset:{off}",tag)
    e.lds(f"ds_read_b64_tr_b16 {R(dst+2,2)}, {R(va)} offset:{off+512}",tag)
def allsum_halves(e,a,t):
    e(f"v_mov_b32 {R(t)}, {R(a)}"); e.nop(2); e(f"v_permlane32_swap_b32 {R(t)}, {R(a)}"); e.nop(1); e(f"v_add_f32 {R(a)}, {R(a)}, {R(t)}")
def meanrstd(e,s_,q,t):
    e(f"v_mul_f32 {R(s_)}, 0x3b000000, {R(s_)}"); e(f"v_mul_f32 {R(q)}, 0x3b000000, {R(q)}")
    e(f"v_fma_f32 {R(q)}, -{R(s_)}, {R(s_)}, {R(q)}"); e(f"v_max_f32 {R(q)}, 0, {R(q)}")
    e(f"v_add_f32 {R(q)}, 0x3727c5ac, {R(q)}"); e(f"v_rsq_f32 {R(q)}, {R(q)}"); e.nop(1)

WO_LDS=96*1024
NPRE=int(os.environ.get('NPRE',18))
def ids64(e):
    e(f"s_lshr_b32 {S(sMB)}, {S(sJ)}, 3"); e(f"s_lshl_b32 {S(sT0)}, {S(sXCD)}, 2"); e(f"s_add_u32 {S(sMB)}, {S(sMB)}, {S(sT0)}")
    e(f"s_and_b32 {S(sNB)}, {S(sJ)}, 7"); e(f"s_and_b32 {S(sKQ)}, {S(sW)}, 3"); e(f"s_lshr_b32 {S(sMH)}, {S(sW)}, 2")
def bsrc(e,vB,tmp,KS,kq,mh,ldsbase,slab,sdst):
    wdma_lane(e,vB,tmp,1024,S(mh) if mh is not None else 0)
    e(f"s_mul_i32 {S(sT0)}, {S(kq)}, {KS*16*1024}"); e(f"s_and_b32 {S(sT1)}, {S(sJ)}, 7"); e(f"s_lshl_b32 {S(sT1)}, {S(sT1)}, 7"); e(f"s_add_u32 {S(sT0)}, {S(sT0)}, {S(sT1)}")
    e(f"s_mul_i32 {S(sdst)}, {S(kq)}, {slab}"); e(f"s_add_u32 {S(sdst)}, {S(sdst)}, {ldsbase}")
    if mh is not None:
        e(f"s_lshl_b32 {S(sT1)}, {S(mh)}, 13"); e(f"s_add_u32 {S(sT0)}, {S(sT0)}, {S(sT1)}")
        e(f"s_lshl_b32 {S(sT1)}, {S(mh)}, 10"); e(f"s_add_u32 {S(sdst)}, {S(sdst)}, {S(sT1)}")
    e(f"v_add_u32 {R(vB)}, {S(sT0)}, {R(vB)}")
def p4_preload(e,j,part):
    if part==0:
        srd(e,srdW,pW2,0,1792*1024); bsrc(e,14,9,28,j,None,0,40960,sLB)
        e("v_xor_b32 v15, 32, v14"); e("v_add_u32 v15, 0x2000, v15")
    for t in range(NPRE):
        for h in range(2): dma(e,14+h,srdW,t*16384,(sLB,t*2048+h*1024),"pre")
def phase_rs(e,L,which):
    P2=which==2
    K=512 if P2 else 1792; KS=K//64; RING=8 if P2 else 20; SLAB=RING*2048; LB=WO_LDS if P2 else 0; RB=0 if P2 else 112*1024; LA=8 if P2 else int(os.environ.get('LA',6))
    wo=L*LSTRIDE
    ids64(e)
    if P2:
        srd(e,srdA,pWS,wo+O_OFF,2*MB)
        srd(e,srdR,pX,0,2*MB)
        srd(e,srdO,pWS,wo+X1_OFF,2*MB); srd(e,srdS,pWS,wo+ST_OFF,128*1024)
    else:
        srd(e,srdA,pWS,wo+H_OFF,7*MB); srd(e,srdW,pW2,0,1792*1024); srd(e,srdR,pWS,X2H_OFF,128*1024)
        srdsel(e,srdO,pWS,X2_OFF,2*MB,pOUT,0,2*MB)
    vA,vB,vF,vRM,vT0,vT1,vRD,vRes,vAcc,vBf,vAf=12,13,4,5,6,7,8,vRES,16,48,80
    tmp=9; mt=sD+10; sb=sD+11
    e(f"s_lshl_b32 {S(mt)}, {S(sMB)}, 1"); e(f"s_add_u32 {S(mt)}, {S(mt)}, {S(sMH)}")
    e(f"s_mul_i32 {S(sT0)}, {S(mt)}, {K//16*1024}"); e(f"s_mul_i32 {S(sT1)}, {S(sKQ)}, {KS*1024}"); e(f"s_add_u32 {S(sT0)}, {S(sT0)}, {S(sT1)}")
    e(f"v_lshl_add_u32 {R(vA)}, {R(vL)}, 4, {S(sT0)}")
    if not P2: bsrc(e,vB,tmp,KS,sKQ,sMH,0,SLAB,sb)
    e(f"s_lshl_b32 {S(sT0)}, {S(mt)}, 5"); e(f"s_lshl_b32 {S(sT1)}, {S(sNB)}, 2"); e(f"s_add_u32 {S(sT1)}, {S(sT1)}, {S(sKQ)}")
    e(f"s_add_u32 {S(sT0)}, {S(sT0)}, {S(sT1)}"); e(f"s_lshl_b32 {S(sT0)}, {S(sT0)}, 10")
    e(f"v_lshl_add_u32 {R(vF)}, {R(vL)}, 4, {S(sT0)}")
    e(f"s_lshl_b32 {S(sT0)}, {S(mt)}, 15"); e(f"s_lshl_b32 {S(sT1)}, {S(sT1)}, 5"); e(f"s_add_u32 {S(sT0)}, {S(sT0)}, {S(sT1)}")
    e(f"v_and_b32 {R(tmp)}, 31, {R(vL)}"); e(f"v_lshlrev_b32 {R(tmp)}, 10, {R(tmp)}"); e(f"v_lshrrev_b32 {R(tmp+1)}, 5, {R(vL)}")
    e(f"v_lshl_add_u32 {R(tmp)}, {R(tmp+1)}, 4, {R(tmp)}"); e(f"v_add_u32 {R(vRM)}, {S(sT0)}, {R(tmp)}")
    tr_lane_base(e,vT0,tmp,"frag")
    e(f"s_mul_i32 {S(sT0)}, {S(sKQ)}, {SLAB}"); e(f"s_add_u32 {S(sT0)}, {S(sT0)}, {LB}")
    e(f"v_add_u32 {R(vT0)}, {S(sT0)}, {R(vT0)}"); e(f"v_xor_b32 {R(vT1)}, 64, {R(vT0)}")
    e(f"s_mul_i32 {S(sT0)}, {S(sMH)}, {12*2048}"); e(f"s_add_u32 {S(sT0)}, {S(sT0)}, {RB}"); e(f"v_lshl_add_u32 {R(vRD)}, {R(vL)}, 4, {S(sT0)}")
    def rd(t,nt): trread(e,vBf+(t&1)*8+nt*4,vT0+nt,(t%RING)*2048,("f",t,nt))
    if P2:
        with ifL(e,0): e(f"buffer_load_dwordx4 {R(vRes,4)}, {R(vRM)}, {S(srdR,4)}, 0 offen")
    if not P2:
        for u in range(NPRE,RING): dma(e,vB,srdW,u*16384,(sb,u*2048),"B1")
    if P2: e(f"s_and_b32 {S(sD+2)}, {S(sJ)}, 24"); waitflags(e,L*4,sD+2,8)
    else: e(f"s_lshr_b32 {S(sD+2)}, {S(sJ)}, 4"); e(f"s_mul_i32 {S(sD+2)}, {S(sD+2)}, 14"); waitflags(e,L*4+2,sD+2,14)
    stamp(e,9)
    for t in range(LA): ldfrag(e,vAf+4*t,vA,srdA,t,("A",t),False)
    if P2 and 'now1b' not in DBG and 'w1all' not in DBG: pfl(e,srdW,pW1,512*3584,[(sJ,24576),(sW,3072)],MB,24,tmp)
    rd(0,0); rd(0,1)
    for t in range(KS):
        if t+LA<KS: ldfrag(e,vAf+4*(t+LA),vA,srdA,t+LA,("A",t+LA),False)
        if not P2 and t==9:
            e.bar()
        if not P2 and 9<=t<17: u=RING+t-9; dma(e,vB,srdW,u*16384,(sb,(u%RING)*2048),"B")
        if t+1==RING and t+1<KS: e.wvm("B"); e.bar()
        e.wvm(("A",t))
        if t%4==0: stamp(e,1+t//4)
        for nt in range(2):
            if t+1<KS: rd(t+1,nt)
            e.wlg(("f",t,nt)); mfma32(e,vAcc+16*nt,vBf+(t&1)*8+nt*4,vAf+4*t,t==0)
        if not P2 and t==KS-LA:
            with ifL(e,0): (prefetch(e,srdS,pQKV,512*3072,8,sW,9,240) if 'qall' in DBG else pfl(e,srdS,pQKV,512*3072,[(sJ,18432),(sW,2304)],0,18,9)); p1_setup(e,1)
    if not P2: e.bar()
    stamp(e,10); e.nop(10)
    own=vBf
    done=e.newlab("rdone"); labs=[e.newlab("rv") for _ in range(4)]
    for q in range(1,4): e(f"s_cmp_eq_u32 {S(sKQ)}, {q}"); e(f"s_cbranch_scc1 {labs[q]}")
    for kq in range(4):
        e.lab(labs[kq])
        for q in range(4):
            if q==kq: continue
            for j in range(2): e(f"ds_write_b128 {R(vRD)}, {R(vAcc+8*q+4*j,4)} offset:{(q*3+((kq-q)&3)-1)*2048+j*1024}")
        for j in range(8): e(f"v_mov_b32 {R(own+j)}, {R(vAcc+8*kq+j)}")
        if kq<3: e(f"s_branch {done}")
    e.lab(done)
    e(f"s_mul_i32 {S(sT0)}, {S(sKQ)}, {3*2048}"); e(f"v_add_u32 {R(vRD)}, {S(sT0)}, {R(vRD)}")
    if not P2:
        with ifL(e,0):
            for s_ in range(3): p1_issue(e,1,s_,range(3),[])
    e.wlg0(); e.bar()
    for i in range(1,4):
        for j in range(2): e.lds(f"ds_read_b128 {R(own+8*i+4*j,4)}, {R(vRD)} offset:{(i-1)*2048+j*1024}",("p",i))
    e.wvm("res")
    rf=vAcc
    for j in range(4):
        e(f"v_lshlrev_b32 {R(rf+2*j)}, 16, {R(vRes+j)}"); e(f"v_and_b32 {R(rf+2*j+1)}, 0xffff0000, {R(vRes+j)}")
    for j in range(4): e(f"v_pk_add_f32 {R(own+2*j,2)}, {R(own+2*j,2)}, {R(rf+2*j,2)}")
    for i in range(1,4):
        e.wlg(("p",i))
        for j in range(4): e(f"v_pk_add_f32 {R(own+2*j,2)}, {R(own+2*j,2)}, {R(own+8*i+2*j,2)}")
    for j in range(4): e(f"v_cvt_pk_bf16_f32 {R(vRes+j)}, {R(own+2*j)}, {R(own+2*j+1)}")
    ins=f"buffer_store_dwordx4 {R(vRes,4)}, {R(vF if P2 else vRM)}, {S(srdO,4)}, 0 offen"
    gstore(e,ins,"st")
    if not P2:
        if PROF:
            with ifL(e,1): stamp_flush(e,3)
        e(f"s_cmp_lg_u32 {S(sL)}, 0"); e(f"s_cbranch_scc1 {e.endlab}")
        publish(e,3)
        sk=e.newlab("nohalo"); e(f"s_and_b32 {S(sT0)}, {S(mt)}, 7"); e(f"s_cmp_lg_u32 {S(sT0)}, 7"); e(f"s_cbranch_scc1 {sk}")
        e(f"s_lshl_b32 {S(sT0)}, {S(mt)}, 15"); e(f"s_lshl_b32 {S(sT1)}, {S(sXCD)}, 14"); e(f"s_sub_u32 {S(sT0)}, {S(sT0)}, {S(sT1)}"); e(f"s_add_u32 {S(sT0)}, {S(sT0)}, 0x4000")
        e(f"v_subrev_u32 {R(tmp)}, {S(sT0)}, {R(vRM)}"); e("s_mov_b32 exec_lo, 0xffff0000"); e("s_mov_b32 exec_hi, 0xffff0000")
        e(f"buffer_store_dwordx4 {R(vRes,4)}, {R(tmp)}, {S(srdR,4)}, 0 offen sc1"); e("s_mov_b64 exec, -1")
        e(f"s_lshl_b32 {S(sT0)}, {S(sXCD)}, 5"); e(f"s_lshl_b32 {S(sT1)}, {S(sNB)}, 2"); e(f"s_add_u32 {S(sT0)}, {S(sT0)}, {S(sT1)}"); e(f"s_add_u32 {S(sT0)}, {S(sT0)}, {S(sKQ)}")
        e(f"s_lshl_b32 {S(sT0)}, {S(sT0)}, 2"); e(f"s_add_u32 {S(sT0)}, {S(sT0)}, {7*1024}"); e(f"v_mov_b32 v2, {S(sT0)}"); e(f"v_mov_b32 v3, {S(sTAG)}")
        e("s_waitcnt vmcnt(0)"); e("s_mov_b64 exec, 1"); e(f"buffer_store_dword v3, v2, {S(srdF,4)}, 0 offen sc1"); e("s_mov_b64 exec, -1"); e.lab(sk)
    if P2:
        a,b=rf,rf+1
        e(f"v_dot2_f32_bf16 {R(a)}, {R(vRes)}, {S(sONE)}, 0"); e(f"v_dot2_f32_bf16 {R(b)}, {R(vRes)}, {R(vRes)}, 0")
        for j in range(1,4):
            e(f"v_dot2_f32_bf16 {R(a)}, {R(vRes+j)}, {S(sONE)}, {R(a)}"); e(f"v_dot2_f32_bf16 {R(b)}, {R(vRes+j)}, {R(vRes+j)}, {R(b)}")
        e(f"s_lshl_b32 {S(sT0)}, {S(sW)}, 8"); e(f"s_add_u32 {S(sT0)}, {S(sT0)}, 0xc000")
        e(f"v_lshl_add_u32 {R(tmp)}, {R(vL)}, 2, {S(sT0)}"); e.nop(2)
        e(f"v_permlane32_swap_b32 {R(a)}, {R(b)}"); e.nop(1); e(f"v_add_f32 {R(a)}, {R(a)}, {R(b)}")
        e(f"ds_write_b32 {R(tmp)}, {R(a)}"); e.wlg0(); e.bar()
        sk=e.newlab("nost"); e(f"s_cmp_lg_u32 {S(sKQ)}, 0"); e(f"s_cbranch_scc1 {sk}")
        for i in range(1,4): e(f"ds_read_b32 {R(rf+1+i)}, {R(tmp)} offset:{i*256}")
        e(f"s_lshl_b32 {S(sT0)}, {S(mt)}, 3"); e(f"s_add_u32 {S(sT0)}, {S(sT0)}, {S(sNB)}"); e(f"s_lshl_b32 {S(sT0)}, {S(sT0)}, 8")
        e(f"v_lshl_add_u32 {R(tmp)}, {R(vL)}, 2, {S(sT0)}"); e.wlg0()
        e(f"v_add_f32 {R(a)}, {R(a)}, {R(rf+2)}"); e(f"v_add_f32 {R(rf+3)}, {R(rf+3)}, {R(rf+4)}"); e(f"v_add_f32 {R(a)}, {R(a)}, {R(rf+3)}")
        gstore(e,f"buffer_store_dword {R(a)}, {R(tmp)}, {S(srdS,4)}, 0 offen","st")
        e.lab(sk)
        publish(e,L*4+1)

def phase3(e,L):
    wo=L*LSTRIDE; LA=8
    e(f"s_cmp_ge_u32 {S(sJ)}, 14"); e(f"s_cselect_b32 {S(sT0)}, 1, 0"); e(f"s_cselect_b32 {S(sT1)}, 14, 0")
    e(f"s_sub_u32 {S(sNB)}, {S(sJ)}, {S(sT1)}"); e(f"s_lshl_b32 {S(sMB)}, {S(sXCD)}, 1"); e(f"s_add_u32 {S(sMB)}, {S(sMB)}, {S(sT0)}")
    srd(e,srdA,pWS,wo+X1_OFF,2*MB); srd(e,srdW,pW1,0,512*3584); srd(e,srdO,pWS,wo+H_OFF,7*MB); srd(e,srdS,pWS,wo+ST_OFF,128*1024)
    CS=131072
    ld=e.newlab("p3ld"); fin=e.newlab("p3fin"); skip=e.newlab("p3skip"); sk2=e.newlab("p3end")
    j=sD; e(f"s_sub_u32 {S(j)}, {S(sW)}, 4")
    e(f"s_cmp_ge_u32 {S(sJ)}, 28"); e(f"s_cbranch_scc1 {skip}")
    tmp=9
    e(f"s_cmp_ge_u32 {S(sW)}, 4"); e(f"s_cbranch_scc1 {ld}")
    e('s_setprio 1')
    vA,vT,vH,vM,vS,vSt,vAcc,vBf,vAf=12,4,13,14,2,16,24,88,120
    mt=sD
    e(f"s_lshl_b32 {S(mt)}, {S(sMB)}, 2"); e(f"s_add_u32 {S(mt)}, {S(mt)}, {S(sW)}")
    e(f"s_lshl_b32 {S(sT0)}, {S(mt)}, 15"); e(f"v_lshl_add_u32 {R(vA)}, {R(vL)}, 4, {S(sT0)}")
    e(f"s_lshl_b32 {S(sT0)}, {S(mt)}, 11"); e(f"v_lshl_add_u32 {R(vH)}, {R(vL)}, 2, {S(sT0)}")
    tr_lane_base(e,vT,tmp,"frag")
    e(f"v_xor_b32 {R(vT+1)}, 64, {R(vT)}"); e(f"v_add_u32 {R(vT+2)}, 0x10000, {R(vT)}"); e(f"v_add_u32 {R(vT+3)}, 0x10000, {R(vT+1)}")
    e(f"s_and_b32 {S(sD+2)}, {S(sMB)}, 1"); e(f"s_lshl_b32 {S(sD+2)}, {S(sD+2)}, 4"); waitflags(e,L*4+1,sD+2,16); stamp(e,9)
    for t in range(LA): ldfrag(e,vAf+4*t,vA,srdA,t,("A",t),False)
    def rd(t,nt): trread(e,vBf+(t&1)*16+nt*4,vT+nt,t*2048,("f",t,nt))
    e.bar()
    for nt in range(4): rd(0,nt)
    for t in range(32):
        for u in (LA+2*t,LA+2*t+1):
            if u<32: ldfrag(e,vAf+4*u,vA,srdA,u,("A",u),False)
        if t==12:
            for i in range(8): e.vmem(f"buffer_load_dword {R(vSt+i)}, {R(vH)}, {S(srdS,4)}, 0 offen offset:{i*256} sc1","st")
            e(f"s_mul_i32 {S(sT0)}, {S(mt)}, {112*1024}"); e(f"s_lshl_b32 {S(sT1)}, {S(sNB)}, 13"); e(f"s_add_u32 {S(sT0)}, {S(sT0)}, {S(sT1)}")
            e(f"v_lshl_add_u32 {R(vH)}, {R(vL)}, 4, {S(sT0)}")
        if (t+1)%4==0 and t+1<=16: e.bar()
        e.wvm(("A",t))
        if t%4==0: stamp(e,1+t//4)
        for nt in range(4):
            if t+1<32: rd(t+1,nt)
            e.wlg(("f",t,nt)); mfma32(e,vAcc+16*nt,vBf+(t&1)*16+nt*4,vAf+4*t,t==0)
        if t==30:
            e.wvm("st")
            for i in (4,2,1):
                for jj in range(i): e(f"v_add_f32 {R(vSt+jj)}, {R(vSt+jj)}, {R(vSt+jj+i)}")
            e(f"v_mov_b32 {R(vSt+1)}, {R(vSt)}"); e.nop(2); e(f"v_permlane32_swap_b32 {R(vSt)}, {R(vSt+1)}"); e.nop(1)
            meanrstd(e,vSt,vSt+1,tmp)
            e(f"v_mul_f32 {R(vM)}, 0xbfb8aa3b, {R(vSt+1)}"); e(f"v_mul_f32 {R(vM+1)}, {R(vM)}, {R(vSt)}"); e(f"v_sub_f32 {R(vM+1)}, 0, {R(vM+1)}")
            e(f"v_mov_b32 {R(vS)}, 0xbfb8aa3b")
    e(f"v_lshrrev_b32 {R(tmp)}, 5, {R(vL)}"); e(f"v_lshlrev_b32 {R(tmp)}, 4, {R(tmp)}"); e(f"v_add_u32 {R(tmp)}, {CS:#x}, {R(tmp)}")
    e.bar(); stamp(e,10)
    vC=vAf
    for nt in range(4):
        for g in range(4): e.lds(f"ds_read_b128 {R(vC+16*nt+4*g,4)}, {R(tmp)} offset:{nt*128+g*32}",("c",nt))
    for jj in range(32): e(f"v_pk_mul_f32 {R(vAcc+2*jj,2)}, {R(vAcc+2*jj,2)}, {R(vM,2)} op_sel_hi:[1,0]") if jj>=24 or True else None
    e.wlg0(); e.bar()
    U=vBf; PK=vAf+64
    for nt in range(4):
        for hh in range(2):
            b=vAcc+16*nt+8*hh; c=vC+16*nt+8*hh; o=PK+(nt*2+hh)*4
            for jj in range(4): e(f"v_pk_fma_f32 {R(b+2*jj,2)}, {R(c+2*jj,2)}, {R(vM,2)}, {R(b+2*jj,2)} op_sel:[0,1,0] op_sel_hi:[1,1,1]")
            for jj in range(8): e(f"v_exp_f32 {R(U+jj)}, {R(b+jj)}")
            e.nop(1)
            for jj in range(4): e(f"v_pk_fma_f32 {R(U+2*jj,2)}, {R(U+2*jj,2)}, {R(vS,2)}, {R(vS,2)} op_sel_hi:[1,0,0]")
            for jj in range(8): e(f"v_rcp_f32 {R(U+jj)}, {R(U+jj)}")
            e.nop(1)
            for jj in range(4): e(f"v_pk_mul_f32 {R(b+2*jj,2)}, {R(b+2*jj,2)}, {R(U+2*jj,2)}")
            for jj in range(4): e(f"v_cvt_pk_bf16_f32 {R(o+jj)}, {R(b+2*jj)}, {R(b+2*jj+1)}")
            t=nt*2+hh
            if t==4: e(f"s_movk_i32 {S(sT2)}, 0x1000")
            gstore(e,f"buffer_store_dwordx4 {R(o,4)}, {R(vH)}, {S(srdO,4)}, {S(sT2) if t>=4 else '0'} offen offset:{(t&3)*1024}","st")
    e(f"s_branch {fin}")
    e.lab(ld); e.reset(); e('s_setprio '+os.environ.get('PRIO','0'))
    vB,vT,vCs,vBf=2,4,5,16
    wdma_lane(e,vB,tmp,3584,0)
    e(f"s_and_b32 {S(sD+1)}, {S(j)}, 1"); e(f"s_lshr_b32 {S(sD+2)}, {S(j)}, 1")
    e(f"s_mul_i32 {S(sT0)}, {S(sD+2)}, {32*3584}"); e(f"s_lshl_b32 {S(sT1)}, {S(sD+1)}, 7"); e(f"s_add_u32 {S(sT0)}, {S(sT0)}, {S(sT1)}")
    e(f"s_lshl_b32 {S(sT1)}, {S(sNB)}, 8"); e(f"s_add_u32 {S(sT0)}, {S(sT0)}, {S(sT1)}")
    e(f"v_add_u32 {R(vB)}, {S(sT0)}, {R(vB)}"); e(f"v_xor_b32 {R(vB+1)}, 32, {R(vB)}")
    e(f"s_lshl_b32 {S(sLB)}, {S(sD+1)}, 16"); e(f"s_lshl_b32 {S(sT1)}, {S(sD+2)}, 12"); e(f"s_add_u32 {S(sLB)}, {S(sLB)}, {S(sT1)}")
    def wch(ch):
        for i in range(4): dma(e,vB+(i&1),srdW,(ch*64+8*i)*3584,(sLB,ch*8192+i*1024),("B",ch))
    for ch in range(3): wch(ch)
    tr_lane_base(e,vT,tmp,"frag")
    e(f"s_lshl_b32 {S(sT0)}, {S(sD+1)}, 6"); e(f"v_xor_b32 {R(vT)}, {S(sT0)}, {R(vT)}")
    e(f"s_lshl_b32 {S(sT0)}, {S(sD+2)}, 16"); e(f"v_add_u32 {R(vT)}, {S(sT0)}, {R(vT)}")
    e(f"v_mov_b32 {R(vCs)}, 0"); e(f"v_mov_b32 {R(vCs+1)}, 0")
    e.bar()
    for ch in range(8):
        if ch<=4: e.wvm(("B",ch if ch<4 else 7)); e.bar()
        if ch==0: stamp(e,9)
        if ch==4: stamp(e,1)
        for c2 in {0:(3,4),1:(5,6),2:(7,)}.get(ch,()): wch(c2)
        if ch==3:
            e(f"s_lshl_b32 {S(sT0)}, {S(sMB)}, 2"); e(f"s_add_u32 {S(sT0)}, {S(sT0)}, {S(j)}"); e(f"s_mul_i32 {S(sT0)}, {S(sT0)}, {112*1024}")
            e(f"s_lshl_b32 {S(sT1)}, {S(sNB)}, 13"); e(f"s_add_u32 {S(sT0)}, {S(sT0)}, {S(sT1)}"); e(f"v_lshl_add_u32 v7, {R(vL)}, 7, {S(sT0)}")
            e.vmem(f"buffer_load_dword v242, v7, {S(srdO,4)}, 0 offen sc1","pf")
        if ch==4:
            pf_w2(e,j,0); pf_w2(e,j,1)
            with ifL(e,0): x2touch(e,j,4,7)
        if ch==int(os.environ.get('S3',6)): e('s_setprio '+os.environ.get('LP','2'))
        with ifL(e,0):
            for t in range(4): trread(e,vBf+4*t,vT,(ch*4+t)*2048,("f",t))
            for t in range(4):
                e.wlg(("f",t))
                for i in range(4): e(f"v_dot2_f32_bf16 {R(vCs+(i&1))}, {R(vBf+4*t+i)}, {S(sONE)}, {R(vCs+(i&1))}")
    e(f"s_lshl_b32 {S(sT0)}, {S(j)}, 7"); e(f"s_add_u32 {S(sT0)}, {S(sT0)}, {CS:#x}")
    e(f"v_and_b32 {R(tmp)}, 31, {R(vL)}"); e(f"v_lshl_add_u32 {R(tmp)}, {R(tmp)}, 2, {S(sT0)}"); e.nop(2)
    with ifL(e,0):
        e(f"v_add_f32 {R(vCs)}, {R(vCs)}, {R(vCs+1)}")
        allsum_halves(e,vCs,vCs+1); e(f"v_mov_b32 v252, {R(vCs)}")
    e(f"ds_write_b32 {R(tmp)}, v252")
    stamp(e,3)
    if 'w4' in DBG: e.wvm0()
    stamp(e,4); e.wlg0(); e('s_setprio 0'); e.bar(); e.bar(); stamp(e,5)
    p4_preload(e,j,0); e.bar(); e.wvm0()
    e(f"s_branch {sk2}")
    e.lab(fin); e('s_setprio 0'); publish(e,L*4+2); e(f"s_branch {sk2}")
    e.lab(skip)
    sk3=e.newlab("p3np"); e(f"s_cmp_lt_u32 {S(sW)}, 4"); e(f"s_cbranch_scc1 {sk3}"); pf_w2(e,j,0); pf_w2(e,j,1)
    with ifL(e,0): x2touch(e,j,4,7)
    p4_preload(e,j,0); e.lab(sk3)
    e.wvm0(); e.bar(); e.lab(sk2)

STG=34816; WOF=10240; CS1=4*STG; ST1=CS1+1024; QB,KB,VB=0,9216,20736
vW,vX,vb=200,206,209
dW,dX=sD,sD+6
def wslots(e,sw,k0):
    for a in range(3):
        e(f"s_mul_i32 {S(sT0)}, {S(sw)}, 3"); e(f"s_add_u32 {S(sT0)}, {S(sT0)}, {a}")
        e(f"s_lshl_b32 {S(dW+k0+a)}, {S(sT0)}, 10"); e(f"s_add_u32 {S(dW+k0+a)}, {S(dW+k0+a)}, {WOF}")
        e(f"s_and_b32 {S(sT1)}, {S(sT0)}, 1"); e(f"s_lshl_b32 {S(sT1)}, {S(sT1)}, 5"); e(f"v_xor_b32 {R(vW+k0+a)}, {S(sT1)}, {R(vb)}")
        e(f"s_and_b32 {S(sT1)}, {S(sT0)}, 7"); e(f"s_mul_i32 {S(sT1)}, {S(sT1)}, {8*3072}")
        e(f"s_lshr_b32 {S(sT0)}, {S(sT0)}, 3"); e(f"s_lshl_b32 {S(sT0)}, {S(sT0)}, 10"); e(f"s_add_u32 {S(sT0)}, {S(sT0)}, {S(sT1)}")
        e(f"v_add_u32 {R(vW+k0+a)}, {S(sT0)}, {R(vW+k0+a)}")
def p1_setup(e,L):
    tmp=9
    srd(e,srdW,pQKV,0,512*3072)
    wdma_lane(e,vb,tmp,3072,0)
    e(f"s_lshl_b32 {S(sT0)}, {S(sNB)}, 7"); e(f"v_add_u32 {R(vb)}, {S(sT0)}, {R(vb)}")
    e(f"v_lshrrev_b32 {R(tmp)}, 3, {R(vL)}"); e(f"v_lshrrev_b32 {R(tmp+1)}, 4, {R(vL)}"); e(f"v_and_b32 {R(tmp+2)}, 7, {R(vL)}")
    e(f"v_xor_b32 {R(tmp+1)}, {R(tmp+1)}, {R(tmp+2)}"); e(f"v_lshlrev_b32 {R(tmp+1)}, 4, {R(tmp+1)}")
    e(f"v_lshl_add_u32 {R(vb+1)}, {R(tmp)}, 10, {R(tmp+1)}")
    wslots(e,sW,0)
def p1_issue(e,L,s,ws,xs):
    b=(s%4)*STG
    for k in xs: dma(e,vX+k,srdA,s*128,(dX+k,b),("S",s),True)
    for k in ws: dma(e,vW+k,srdW,s*64*3072,(dW+k,b),("S",s))
def p1_trickle(e,L,s,j):
    wo=L*LSTRIDE; va=211
    if s==5 and "nopt" not in DBG:
        srd(e,srdS,pWS,wo,16*MB)
        e(f"s_lshl_b32 {S(sT0)}, {S(sMB)}, 16"); e(f"s_lshl_b32 {S(sT1)}, {S(sNB)}, 12"); e(f"s_add_u32 {S(sT0)}, {S(sT0)}, {S(sT1)}")
        e(f"s_and_b32 {S(sT1)}, {S(j)}, 1"); e(f"s_lshl_b32 {S(sT1)}, {S(sT1)}, 15"); e(f"s_add_u32 {S(sT0)}, {S(sT0)}, {S(sT1)}")
        e(f"s_lshr_b32 {S(sT1)}, {S(j)}, 1"); e(f"s_lshl_b32 {S(sT1)}, {S(sT1)}, 21"); e(f"s_add_u32 {S(sT0)}, {S(sT0)}, {S(sT1)}")
        e(f"v_and_b32 {R(va)}, 31, {R(vL)}"); e(f"v_lshl_add_u32 {R(va)}, {R(va)}, 7, {S(sT0)}")
        e.vmem(f"buffer_load_dword v242, {R(va)}, {S(srdS,4)}, 0 offen sc1","pf")
        e(f"s_lshl_b32 {S(sT0)}, {S(sMB)}, 12"); e(f"s_lshl_b32 {S(sT1)}, {S(sNB)}, 8"); e(f"s_add_u32 {S(sT0)}, {S(sT0)}, {S(sT1)}"); e(f"s_add_u32 {S(sT0)}, {S(sT0)}, {ST_OFF}")
        e(f"v_and_b32 {R(va)}, 1, {R(vL)}"); e(f"v_lshl_add_u32 {R(va)}, {R(va)}, 7, {S(sT0)}"); e(f"v_bfe_u32 {R(va+1)}, {R(vL)}, 1, 1"); e(f"v_lshl_add_u32 {R(va)}, {R(va+1)}, 11, {R(va)}")
        e.vmem(f"buffer_load_dword v242, {R(va)}, {S(srdS,4)}, 0 offen sc1","pf")
        if True:
            e(f"s_lshl_b32 {S(sT0)}, {S(sXCD)}, 7"); e(f"v_and_b32 {R(va)}, 7, {R(vL)}"); e(f"v_lshl_add_u32 {R(va)}, {R(va)}, 10, {S(sT0)}")
            e.vmem(f"buffer_load_dword v242, {R(va)}, {S(srdF,4)}, 0 offen sc1","pf")
    if s==5: prefetch(e,srdS,pWO,512*1024,4,j,va,240)
    if s==6:
        if 'w1all' in DBG: prefetch(e,srdS,pW1,512*3584,4,j,va,240)
        else: pfl(e,srdS,pW1,512*3584,[(sJ,32768),(j,8192)],0,64,va)
def x2touch(e,sw,nw,va):
    e(f"s_lshr_b32 {S(sT0)}, {S(sJ)}, 3"); e(f"s_lshl_b32 {S(sT1)}, {S(sXCD)}, 2"); e(f"s_add_u32 {S(sT0)}, {S(sT0)}, {S(sT1)}"); e(f"s_lshl_b32 {S(sT0)}, {S(sT0)}, 16")
    e(f"s_mul_i32 {S(sT1)}, {S(sw)}, {65536//nw}"); e(f"s_add_u32 {S(sT0)}, {S(sT0)}, {S(sT1)}")
    e(f"s_and_b32 {S(sT1)}, {S(sJ)}, 7"); e(f"s_lshl_b32 {S(sT1)}, {S(sT1)}, 7"); e(f"s_add_u32 {S(sT0)}, {S(sT0)}, {S(sT1)}")
    srd(e,srdR,pWS,X2_OFF,2*MB)
    e(f"v_and_b32 {R(va)}, {64//nw-1}, {R(vL)}"); e(f"v_lshl_add_u32 {R(va)}, {R(va)}, 10, {S(sT0)}")
    e.vmem(f"buffer_load_dword v242, {R(va)}, {S(srdR,4)}, 0 offen sc1","pf")
def phase1(e,L):
    wo=L*LSTRIDE
    ids64(e)
    srdsel(e,srdA,pX,0,2*MB,pWS,X2_OFF,4*MB)
    srd(e,srdO,pWS,wo+O_OFF,2*MB)
    tmp=9
    lab_h,lab_l,lab_att=e.newlab("p1h"),e.newlab("p1l"),e.newlab("p1att")
    issue=lambda s,ws,xs: p1_issue(e,L,s,ws,xs)
    def first3(xs):
        e.alt=[]
        for s in range(3):
            if s: w0(s)
            issue(s,[],xs)
    def w0(s):
        with ifL(e,0): e.only0=True; issue(s,range(3),[]); e.only0=False
    def xslot(si,k):
        e(f"s_lshl_b32 {S(dX+k)}, {S(si)}, 10")
        e(f"s_and_b32 {S(sT1)}, {S(si)}, 1"); e(f"s_lshl_b32 {S(sT1)}, {S(sT1)}, 6"); e(f"v_xor_b32 {R(vX+k)}, {S(sT1)}, {R(vb+1)}")
        e(f"s_lshl_b32 {S(sT0)}, {S(sMB)}, 16"); e(f"s_lshl_b32 {S(sT1)}, {S(si)}, 13"); e(f"s_add_u32 {S(sT0)}, {S(sT0)}, {S(sT1)}")
        e(f"s_sub_u32 {S(sT0)}, {S(sT0)}, 0x4000")
        if True:
            e(f"s_lshl_b32 {S(sT2)}, {S(sXCD)}, 14"); e(f"s_add_u32 {S(sT2)}, {S(sT2)}, {S(sT1)}"); e(f"s_add_u32 {S(sT2)}, {S(sT2)}, {X2H_OFF-X2_OFF-0x4000}")
            e(f"s_cmp_lt_u32 {S(si)}, 2"); e(f"s_cselect_b32 {S(sT1)}, {S(sD+9)}, 0"); e(f"s_cmp_lg_u32 {S(sT1)}, 0"); e(f"s_cselect_b32 {S(sT0)}, {S(sT2)}, {S(sT0)}")
        e(f"v_add_u32 {R(vX+k)}, {S(sT0)}, {R(vX+k)}")
    def bump(regs,s):
        d=STG if s%4!=3 else -3*STG
        for r in regs: e(f"v_add_u32 {R(r)}, {d&0xffffffff:#x}, {R(r)}")
    def xaddr(dst,n,step,rowbase,w16):
        if w16: e(f"v_and_b32 {R(tmp)}, 15, {R(vL)}"); e(f"v_lshrrev_b32 {R(tmp+1)}, 4, {R(vL)}")
        else: e(f"v_and_b32 {R(tmp)}, 31, {R(vL)}"); e(f"v_lshrrev_b32 {R(tmp+1)}, 5, {R(vL)}")
        if rowbase is not None: e(f"v_add_u32 {R(tmp)}, {rowbase}, {R(tmp)}")
        e(f"v_bfe_u32 {R(tmp+2)}, {R(tmp)}, 1, 3"); e(f"v_xor_b32 {R(tmp+1)}, {R(tmp+1)}, {R(tmp+2)}")
        e(f"v_lshlrev_b32 {R(tmp+1)}, 4, {R(tmp+1)}"); e(f"v_lshl_add_u32 {R(dst)}, {R(tmp)}, 7, {R(tmp+1)}")
        for i in range(1,n): e(f"v_xor_b32 {R(dst+i)}, {i*step}, {R(dst)}")
    if True:
        e(f"s_cmp_lt_u32 {S(sJ)}, 8"); e(f"s_cselect_b32 {S(sD+9)}, {S(sXCD)}, 0"); e(f"s_mul_i32 {S(sD+9)}, {S(sD+9)}, {S(sL)}")
        e(f"s_and_b32 {S(sD+12)}, {S(sJ)}, 24"); e(f"s_max_u32 {S(sT0)}, {S(sD+12)}, 8"); e(f"s_sub_u32 {S(sT0)}, {S(sT0)}, 8"); e(f"s_lshl_b32 {S(sT0)}, {S(sT0)}, 2")
        e(f"s_lshl_b32 {S(sT1)}, {S(sXCD)}, 7"); e(f"s_add_u32 {S(sT0)}, {S(sT0)}, {S(sT1)}"); e(f"s_add_u32 {S(sT0)}, {S(sT0)}, {3*1024}")
        e(f"s_add_u32 {S(sT1)}, {S(sT1)}, {7*1024-128}"); e(f"s_cmp_lg_u32 {S(sD+9)}, 0"); e(f"s_cselect_b32 {S(sD+13)}, {S(sT1)}, {S(sT0)}")
    xslot(sW,0)
    with ifL(e,1): waitflags(e,3,sD+12,8,sD+13)
    e(f"s_cmp_ge_u32 {S(sW)}, 4"); e(f"s_cbranch_scc1 {lab_l}")
    first3([0])
    q0=list(e.vm); q1=list(e.alt)
    e(f"s_cmp_eq_u32 {S(sW)}, 3"); e(f"s_cbranch_scc1 {lab_h}")
    e('s_setprio 1')
    vXa,vTa,vAcc,vF=2,6,32,96
    xaddr(vXa,4,32,16,False)
    tr_lane_base(e,vTa,tmp,"head")
    pA,nA,pB,nB=sD+10,sD+11,sD+12,sD+13
    e(f"s_min_u32 {S(pA)}, {S(sW)}, 1"); e(f"s_lshr_b32 {S(nA)}, {S(sW)}, 1"); e(f"s_lshl_b32 {S(pB)}, {S(pA)}, 1")
    e(f"s_and_b32 {S(nB)}, {S(sW)}, 1"); e(f"s_xor_b32 {S(nB)}, {S(nB)}, 1")
    for r,p,n in ((vTa+1,pB,nB),(vTa,pA,nA)):
        e(f"s_lshl_b32 {S(sT0)}, {S(n)}, 6"); e(f"v_xor_b32 {R(r)}, {S(sT0)}, {R(vTa)}")
        e(f"s_lshl_b32 {S(sT0)}, {S(p)}, 13"); e(f"s_add_u32 {S(sT0)}, {S(sT0)}, {WOF}"); e(f"v_add_u32 {R(r)}, {S(sT0)}, {R(r)}")
    def rd(t,p):
        b=vF+(t&1)*16; ks=t&3
        if p==0: trread(e,b+8,vTa,ks*2048,("a",t))
        if p==1: e.lds(f"ds_read_b128 {R(b,4)}, {R(vXa+ks)}",("a",t)); e.lds(f"ds_read_b128 {R(b+4,4)}, {R(vXa+ks)} offset:4096",("b",t))
        if p==2: trread(e,b+12,vTa+1,ks*2048,("c",t))
    e.wvm(("S",0)); e.bar(); stamp(e,1)
    for p in range(3): rd(0,p)
    for t in range(32):
        nx=t+1<32
        if nx and (t+1)%4==0:
            s=(t+1)//4
            e.wvm(("S",s)); (e.wlg0() if s<=4 else None); bump(range(vXa,vXa+6),s-1); (e.bar() if s<7 else None); stamp(e,1+s)
        b=vF+(t&1)*16
        if nx: rd(t+1,0)
        e.wlg(("a",t)); mfma32(e,vAcc,b+8,b,t==0)
        if nx: rd(t+1,1)
        e.wlg(("b",t)); mfma32(e,vAcc+16,b+8,b+4,t==0)
        if nx: rd(t+1,2)
        e.wlg(("c",t)); mfma32(e,vAcc+32,b+12,b,t==0); mfma32(e,vAcc+48,b+12,b+4,t==0)
    vC,vSt,vWA,vWB,vP=128,160,2,3,168
    e(f"v_lshrrev_b32 {R(tmp)}, 5, {R(vL)}"); e(f"v_and_b32 {R(tmp+1)}, 31, {R(vL)}")
    for r,p,n in ((4,pA,nA),(5,pB,nB)):
        e(f"s_lshl_b32 {S(sT0)}, {S(p)}, 8"); e(f"s_lshl_b32 {S(sT1)}, {S(n)}, 7"); e(f"s_add_u32 {S(sT0)}, {S(sT0)}, {S(sT1)}")
        e(f"s_add_u32 {S(sT0)}, {S(sT0)}, {CS1}"); e(f"v_lshl_add_u32 {R(r)}, {R(tmp)}, 6, {S(sT0)}")
    e(f"v_lshlrev_b32 {R(6)}, 3, {R(tmp+1)}"); e(f"v_add_u32 {R(6)}, {ST1+128:#x}, {R(6)}")
    e(f"v_mul_u32_u24 {R(vWA)}, 144, {R(tmp+1)}"); e(f"v_lshl_add_u32 {R(vWA)}, {R(tmp)}, 5, {R(vWA)}")
    e(f"v_mul_u32_u24 {R(vWB)}, 272, {R(tmp+1)}"); e(f"v_lshl_add_u32 {R(vWB)}, {R(tmp)}, 6, {R(vWB)}")
    e(f"s_mul_i32 {S(sT0)}, {S(pA)}, {KB+16*144}"); e(f"s_lshl_b32 {S(sT1)}, {S(nA)}, 6"); e(f"s_add_u32 {S(sT0)}, {S(sT0)}, {S(sT1)}")
    e(f"v_add_u32 {R(vWA)}, {S(sT0)}, {R(vWA)}")
    e(f"s_lshl_b32 {S(sT1)}, {S(nB)}, 7"); e(f"s_add_u32 {S(sT1)}, {S(sT1)}, {VB+16*272}"); e(f"v_add_u32 {R(vWB)}, {S(sT1)}, {R(vWB)}")
    e.bar(); stamp(e,9)
    for m in range(2): e.lds(f"ds_read_b64 {R(vSt+2*m,2)}, {R(6)} offset:{m*256}","st")
    for T in range(2):
        for g in range(4): e.lds(f"ds_read_b128 {R(vC+16*T+4*g,4)}, {R(4+T)} offset:{g*16}",("c",T))
    def corr(T,m):
        b=vAcc+32*T+16*m
        for j in range(8): e(f"v_pk_fma_f32 {R(b+2*j,2)}, {R(vC+16*T+2*j,2)}, {R(vSt+2*m,2)}, {R(b+2*j,2)} op_sel_hi:[1,0,1]")
        for j in range(8): e(f"v_pk_mul_f32 {R(b+2*j,2)}, {R(b+2*j,2)}, {R(vSt+2*m,2)} op_sel:[0,1] op_sel_hi:[1,1]")
    def wr16(T,m,off):
        b=vAcc+32*T+16*m; p=vP+8*(2*T+m)
        for j in range(8): e(f"v_cvt_pk_bf16_f32 {R(p+j)}, {R(b+2*j)}, {R(b+2*j+1)}")
        for j in range(2): e(f"ds_write_b128 {R(vWA)}, {R(p+4*j,4)} offset:{off+m*32*144+16*j}")
    e.wlg(("c",0))
    for m in range(2): corr(0,m); wr16(0,m,0)
    e.wlg0()
    for m in range(2): corr(1,m)
    lv=e.newlab("p1v"); e(f"s_cmp_lg_u32 {S(sW)}, 0"); e(f"s_cbranch_scc1 {lv}")
    for m in range(2): wr16(1,m,64)
    e(f"s_branch {lab_att}")
    e.lab(lv)
    for m in range(2):
        for j in range(4): e(f"ds_write_b128 {R(vWB)}, {R(vAcc+32+16*m+4*j,4)} offset:{m*32*272+16*j}")
    e(f"s_branch {lab_att}")
    e.lab(lab_h); e.reset(); e.vm=list(q0); e.alt=list(q1); e('s_setprio 1')
    vXa,vTh,vAcc,vXf,vWf=2,4,32,80,96
    xaddr(vXa,2,64,None,True)
    e(f"v_lshrrev_b32 {R(tmp)}, 4, {R(vL)}"); e(f"v_bfe_u32 {R(tmp+1)}, {R(vL)}, 2, 2")
    e(f"v_lshl_add_u32 {R(vTh)}, {R(tmp)}, 3, {R(tmp+1)}"); e(f"v_lshlrev_b32 {R(vTh)}, 7, {R(vTh)}")
    e(f"v_and_b32 {R(tmp)}, 1, {R(tmp)}"); e(f"v_lshlrev_b32 {R(tmp)}, 1, {R(tmp)}"); e(f"v_lshrrev_b32 {R(tmp+1)}, 1, {R(tmp+1)}")
    e(f"v_lshl_or_b32 {R(tmp)}, {R(tmp+1)}, 2, {R(tmp)}"); e(f"v_bfe_u32 {R(tmp+1)}, {R(vL)}, 1, 1"); e(f"v_or_b32 {R(tmp)}, {R(tmp)}, {R(tmp+1)}")
    e(f"v_lshl_add_u32 {R(vTh)}, {R(tmp)}, 4, {R(vTh)}"); e(f"v_and_b32 {R(tmp)}, 1, {R(vL)}"); e(f"v_lshl_add_u32 {R(vTh)}, {R(tmp)}, 3, {R(vTh)}")
    e(f"v_add_u32 {R(vTh)}, {WOF}, {R(vTh)}")
    for h in range(1,4): e(f"v_xor_b32 {R(vTh+h)}, {h*32}, {R(vTh)}")
    e(f"v_and_b32 {R(tmp)}, 15, {R(vL)}"); e(f"v_cmp_eq_u32 vcc, 0, {R(tmp)}"); e(f"v_mov_b32 {R(12)}, {S(sONE)}")
    def rdu(u,h):
        T,p=divmod(u,3); kk=T&1
        if p==0 and h==0: e.lds(f"ds_read_b128 {R(vXf+4*(T&1),4)}, {R(vXa+kk)}",("x",T))
        trread(e,vWf+(u&1)*16+4*h,vTh+h,p*8192+kk*4096,("w",u,h))
    e.wvm(("S",0)); e.bar()
    for h in range(4): rdu(0,h)
    for u in range(48):
        T,p=divmod(u,3)
        if u+1<48 and (u+1)%6==0:
            s=(u+1)//6
            e.wvm(("S",s)); (e.wlg0() if s<=4 else None); bump(range(vXa,vXa+6),s-1); (e.bar() if s<7 else None)
            if s==2:
                with ifL(e,0): hello(e)
        if p==0:
            e.wlg(("x",T))
            for i in range(4): e(f"v_cndmask_b32 {R(vXf+4*(T&1)+i)}, {R(vXf+4*(T&1)+i)}, {R(12)}, vcc")
            e.nop(2)
        for h in range(4):
            if u+1<48: rdu(u+1,h)
            e.wlg(("w",u,h)); mfma16(e,vAcc+16*p+4*h,vWf+(u&1)*16+4*h,vXf+4*(T&1),T==0)
    e(f"v_lshrrev_b32 {R(tmp)}, 4, {R(vL)}"); e(f"v_and_b32 {R(tmp+1)}, 15, {R(vL)}")
    e(f"v_lshlrev_b32 {R(2)}, 4, {R(tmp)}"); e(f"v_add_u32 {R(2)}, {CS1}, {R(2)}")
    e(f"v_lshlrev_b32 {R(3)}, 3, {R(tmp+1)}"); e(f"v_add_u32 {R(3)}, {ST1}, {R(3)}")
    e(f"v_mul_u32_u24 {R(4)}, 144, {R(tmp+1)}"); e(f"v_lshl_add_u32 {R(4)}, {R(tmp)}, 3, {R(4)}")
    e(f"v_mul_u32_u24 {R(5)}, 272, {R(tmp+1)}"); e(f"v_lshl_add_u32 {R(5)}, {R(tmp)}, 4, {R(5)}")
    e(f"s_and_saveexec_b64 {S(sD+14,2)}, vcc")
    for i in range(12): e(f"ds_write_b128 {R(2)}, {R(vAcc+4*i,4)} offset:{i*64}")
    e(f"s_mov_b64 exec, {S(sD+14,2)}")
    e.wlg0(); e.bar()
    vC,vSt=96,80
    e.lds(f"ds_read_b64 {R(vSt,2)}, {R(3)}","st")
    for i in range(8): e.lds(f"ds_read_b128 {R(vC+4*i,4)}, {R(2)} offset:{(4+i)*64}",("c",i))
    for i in range(8):
        e.wlg(("c",i)); b=vAcc+16+4*i
        for j in range(2): e(f"v_pk_fma_f32 {R(b+2*j,2)}, {R(vC+4*i+2*j,2)}, {R(vSt,2)}, {R(b+2*j,2)} op_sel_hi:[1,0,1]")
        for j in range(2): e(f"v_pk_mul_f32 {R(b+2*j,2)}, {R(b+2*j,2)}, {R(vSt,2)} op_sel:[0,1] op_sel_hi:[1,1]")
        if i<4:
            for j in range(2): e(f"v_cvt_pk_bf16_f32 {R(b+j)}, {R(b+2*j)}, {R(b+2*j+1)}")
            e.lds(f"ds_write_b64 {R(4)}, {R(b,2)} offset:{KB+i*32}")
        else: e.lds(f"ds_write_b128 {R(5)}, {R(b,4)} offset:{VB+(i-4)*64}")
    e(f"s_branch {lab_att}")
    e.lab(lab_l); e.reset(); e('s_setprio '+os.environ.get('PRIO','0'))
    j=sD+10; e(f"s_sub_u32 {S(j)}, {S(sW)}, 4")
    e(f"s_and_b32 {S(sD+11)}, {S(j)}, 1"); e(f"s_add_u32 {S(sD+11)}, {S(sD+11)}, 8"); xslot(sD+11,1)
    first3([0,1])
    wslots(e,j,3); xslot(j,2)
    vXa,vF,vS=2,32,12
    e(f"s_min_u32 {S(sT2)}, {S(j)}, 2"); e(f"s_lshl_b32 {S(sT2)}, {S(sT2)}, 5"); e(f"s_sub_u32 {S(sT2)}, {S(sT2)}, 16"); e(f"s_max_i32 {S(sT2)}, {S(sT2)}, 0")
    xaddr(vXa,4,32,S(sT2),False)
    e(f"v_lshlrev_b32 {R(6)}, 3, {R(tmp)}"); e(f"v_add_u32 {R(6)}, {ST1}, {R(6)}")
    for i in range(4): e(f"v_mov_b32 {R(vS+i)}, 0")
    for s in range(8):
        if s<7: e.wvm(("S",s if s<6 else 7)); e.bar()
        if 'sk3' not in DBG:
            for ks in range(4): e.lds(f"ds_read_b128 {R(vF+4*ks,4)}, {R(vXa+ks)}",("x",ks))
        if s<=4: issue(s+3,range(6),[0,1,2])
        if s==int(os.environ.get('QS',0)): pfl(e,srdS,pQKV,512*3072,[(sJ,30720),(j,7680)],192*3072,60,7)
        if s==int(os.environ.get('MS',0)) and 'mall' in DBG:
            with ifL(e,0):
                e.only0=True
                pfl(e,srdS,pW1,512*3584,[(2,7168),(j,1792)],0,14,7); pfl(e,srdS,pW2,1792*1024,[(2,7168),(j,1792)],0,14,7)
                pfl(e,srdS,pWO,512*1024,[(2,2048),(j,512)],0,4,7)
                e.only0=False
        if s<6 or 'late6' not in DBG: p1_trickle(e,L,s,j)
        if s==int(os.environ.get('S1',6)): e('s_setprio '+os.environ.get('LP','2'))
        sk=e.newlab("nost")
        if 'sk3' in DBG:
            e(f"s_cmp_eq_u32 {S(j)}, 3"); e(f"s_cbranch_scc1 {sk}")
            for ks in range(4): e.lds(f"ds_read_b128 {R(vF+4*ks,4)}, {R(vXa+ks)}",("x",ks))
        if s<7: bump(range(vXa,vXa+4),s)
        for ks in range(4):
            e.wlg(("x",ks))
            for i in range(4):
                e(f"v_dot2_f32_bf16 {R(vS+(i&1))}, {R(vF+4*ks+i)}, {S(sONE)}, {R(vS+(i&1))}")
                e(f"v_dot2_f32_bf16 {R(vS+2+(i&1))}, {R(vF+4*ks+i)}, {R(vF+4*ks+i)}, {R(vS+2+(i&1))}")
        e.lab(sk)
    e.nop(3); e(f"v_add_f32 {R(vS)}, {R(vS)}, {R(vS+1)}"); e(f"v_add_f32 {R(vS+1)}, {R(vS+2)}, {R(vS+3)}")
    allsum_halves(e,vS,vS+2); allsum_halves(e,vS+1,vS+2)
    meanrstd(e,vS,vS+1,tmp); e(f"v_sub_f32 {R(vS)}, 0, {R(vS)}")
    sk=e.newlab("nosw"); e(f"s_cmp_eq_u32 {S(j)}, 3"); e(f"s_cbranch_scc1 {sk}"); e(f"ds_write_b64 {R(6)}, {R(vS,2)}"); e.lab(sk)
    if 'late6' in DBG: p1_trickle(e,L,6,j)
    e.wlg0(); e.bar()
    e.lab(lab_att); e.reset(); e('s_setprio 0')
    vQ,vK,vV,vLg,vO=16,32,96,160,176
    mt,h=sD,sD+1
    e(f"s_lshr_b32 {S(mt)}, {S(sW)}, 2"); e(f"s_and_b32 {S(h)}, {S(sW)}, 3")
    e(f"v_and_b32 {R(tmp)}, 31, {R(vL)}"); e(f"s_lshl_b32 {S(sT0)}, {S(mt)}, 5"); e(f"v_add_u32 {R(tmp)}, {S(sT0)}, {R(tmp)}")
    e(f"v_lshrrev_b32 {R(tmp+1)}, 5, {R(vL)}")
    e(f"s_lshl_b32 {S(sT0)}, {S(h)}, 5"); e(f"v_mul_u32_u24 {R(2)}, 144, {R(tmp)}"); e(f"v_add_u32 {R(2)}, {S(sT0)}, {R(2)}"); e(f"v_lshl_add_u32 {R(2)}, {R(tmp+1)}, 4, {R(2)}")
    e(f"s_lshl_b32 {S(sT0)}, {S(h)}, 6"); e(f"v_mul_u32_u24 {R(3)}, 272, {R(tmp)}"); e(f"v_lshl_add_u32 {R(3)}, {R(tmp+1)}, 5, {R(3)}"); e(f"v_add_u32 {R(3)}, {S(sT0)}, {R(3)}")
    e(f"s_lshl_b32 {S(sT0)}, {S(sMB)}, 6"); e(f"v_add_u32 {R(4)}, {S(sT0)}, {R(tmp)}")
    e(f"s_lshl_b32 {S(sT0)}, {S(sMB)}, 1"); e(f"s_add_u32 {S(sT0)}, {S(sT0)}, {S(mt)}"); e(f"s_lshl_b32 {S(sT0)}, {S(sT0)}, 5")
    e(f"s_lshl_b32 {S(sT1)}, {S(sNB)}, 2"); e(f"s_add_u32 {S(sT0)}, {S(sT0)}, {S(sT1)}"); e(f"s_add_u32 {S(sT0)}, {S(sT0)}, {S(h)}"); e(f"s_lshl_b32 {S(sT0)}, {S(sT0)}, 10")
    e(f"v_lshl_add_u32 {R(5)}, {R(vL)}, 4, {S(sT0)}")
    srd(e,srdW,pWO,0,512*1024); bsrc(e,14,tmp,8,sKQ,sMH,WO_LDS,16384,sLB)
    e(f"v_mov_b32 {R(6)}, 0xce6e6b28"); e(f"v_mov_b32 {R(7)}, 0x3eb8aa3b")
    e.wlg0(); e.bar(); stamp(e,10)
    e.lds(f"ds_read_b128 {R(vQ,4)}, {R(2)} offset:{QB}","q")
    for jj in range(8): e.lds(f"ds_read_b128 {R(vK+4*jj,4)}, {R(2)} offset:{KB+288+(7-jj)*288}",("k",jj))
    for jj in range(8):
        for i in range(2): e.lds(f"ds_read_b128 {R(vV+8*jj+4*i,4)}, {R(3)} offset:{VB+544+(7-jj)*544+16*i}",("v",jj))
        if jj in (1,3,5,7):
            e.wlg(("k",jj))
            for i in range(4):
                for j2 in (jj-1,jj): e(f"v_dot2_f32_bf16 {R(vLg+j2)}, {R(vQ+i)}, {R(vK+4*j2+i)}, {R(vLg+j2) if i else '0'}")
        dma(e,14,srdW,jj*16384,(sLB,jj*2048),"pre")
    vT=vK
    for jj in range(8): e(f"v_mov_b32 {R(vT+jj)}, {R(vLg+jj)}")
    for jj in range(8): e(f"v_permlane32_swap_b32 {R(vT+jj)}, {R(vLg+jj)}")
    for jj in range(4): e(f"v_pk_add_f32 {R(vLg+2*jj,2)}, {R(vLg+2*jj,2)}, {R(vT+2*jj,2)}")
    for jj in range(1,8): e(f"v_cmp_le_u32 {S(sD+2*jj,2)}, {2*jj}, {R(4)}")
    for jj in range(1,8): e(f"v_cndmask_b32 {R(vLg+jj)}, {R(6)}, {R(vLg+jj)}, {S(sD+2*jj,2)}")
    m=8
    e(f"v_max3_f32 {R(m)}, {R(vLg)}, {R(vLg+1)}, {R(vLg+2)}"); e(f"v_max3_f32 {R(m)}, {R(m)}, {R(vLg+3)}, {R(vLg+4)}")
    e(f"v_max3_f32 {R(m)}, {R(m)}, {R(vLg+5)}, {R(vLg+6)}"); e(f"v_max_f32 {R(m)}, {R(m)}, {R(vLg+7)}")
    for jj in range(8): e(f"v_sub_f32 {R(vLg+jj)}, {R(vLg+jj)}, {R(m)}")
    for jj in range(8): e(f"v_mul_f32 {R(vLg+jj)}, {R(7)}, {R(vLg+jj)}")
    for jj in range(8): e(f"v_exp_f32 {R(vLg+jj)}, {R(vLg+jj)}")
    e.nop(1)
    e(f"v_pk_add_f32 {R(10,2)}, {R(vLg,2)}, {R(vLg+2,2)}"); e(f"v_pk_add_f32 {R(12,2)}, {R(vLg+4,2)}, {R(vLg+6,2)}")
    e(f"v_pk_add_f32 {R(10,2)}, {R(10,2)}, {R(12,2)}"); e(f"v_add_f32 {R(10)}, {R(10)}, {R(11)}"); e(f"v_rcp_f32 {R(10)}, {R(10)}")
    for jj in range(8):
        e.wlg(("v",jj)); pb=vLg+(jj&~1); o=jj&1
        for i in range(4):
            if jj==0: e(f"v_pk_mul_f32 {R(vO+2*i,2)}, {R(vV+2*i,2)}, {R(pb,2)} op_sel_hi:[1,0]")
            else: e(f"v_pk_fma_f32 {R(vO+2*i,2)}, {R(vV+8*jj+2*i,2)}, {R(pb,2)}, {R(vO+2*i,2)} op_sel:[0,{o},0] op_sel_hi:[1,{o},1]")
    for i in range(4): e(f"v_pk_mul_f32 {R(vO+2*i,2)}, {R(vO+2*i,2)}, {R(10,2)} op_sel_hi:[1,0]")
    for i in range(4): e(f"v_cvt_pk_bf16_f32 {R(vQ+i)}, {R(vO+2*i)}, {R(vO+2*i+1)}")
    with ifL(e,0): getmode(e)
    gstore(e,f"buffer_store_dwordx4 {R(vQ,4)}, {R(5)}, {S(srdO,4)}, 0 offen","st")
    publish(e,L*4)
    return ST1+1024

def desc(k):
    return f""".p2align 6
.amdhsa_kernel {k}
  .amdhsa_next_free_vgpr 256
  .amdhsa_next_free_sgpr 102
  .amdhsa_accum_offset 256
  .amdhsa_group_segment_fixed_size 0
  .amdhsa_kernarg_size 72
  .amdhsa_user_sgpr_count 2
  .amdhsa_user_sgpr_kernarg_segment_ptr 1
  .amdhsa_system_sgpr_workgroup_id_x 1
.end_amdhsa_kernel
"""
def build_multi():
    e=Em(); hdr=""; ks=[]
    for L in range(2):
        for p in (1,2,3,4):
            k=f"p{p}l{L}_kernel"; ks.append(k); nwg=224 if p==3 else 256
            e.L.append(f".globl {k}\n.p2align 8\n.type {k},@function\n{k}:"); e.endlab=f"end_{k}"; e.reset()
            prologue(e,nwg)
            lds=phase1(e,L) if p==1 else phase3(e,L) if p==3 else phase_rs(e,L,p)
            stamp_flush(e,L*4+p-1)
            e.lab(e.endlab); e("s_endpgm")
            hdr+=f"; @launch kernel={k} grid=({nwg},1,1) block=(512,1,1) lds={lds}\n"
    return hdr+'.amdgcn_target "amdgcn-amd-amdhsa--gfx950"\n.text\n'+e.text()+'.section .rodata,"a"\n'+"".join(desc(k) for k in ks)
def build_pers():
    e=Em(); k=NAME+"_kernel"
    e.L.append(f".globl {k}\n.p2align 8\n.type {k},@function\n{k}:"); e.endlab="end_all"
    prologue(e,256)
    e(f"s_mov_b32 {S(sL)}, 0"); e(f"s_mov_b32 {S(sFO)}, 0"); e("v_mov_b32 v15, 0")
    ids64(e); p1_setup(e,0)
    p1_issue(e,0,0,range(3),[])
    srd(e,srdD,50,0,256); srd(e,srdF,pWS,FL_OFF,16384)
    e.lab("layer")
    for p in (1,2,3,4):
        e.reset()
        if p>1: stamp(e,0)
        phase1(e,0) if p==1 else phase3(e,0) if p==3 else phase_rs(e,0,p)
        stamp_flush(e,p-1)
    e(f"s_mov_b32 {S(sL)}, 1"); e(f"s_mov_b32 {S(sFO)}, 4096"); stamp(e,0); e("s_branch layer")
    e.lab(e.endlab); e("s_endpgm")
    return f"; @launch grid=(256,1,1) block=(512,1,1) lds=163840\n"+'.amdgcn_target "amdgcn-amd-amdhsa--gfx950"\n.text\n'+e.text()+'.section .rodata,"a"\n'+desc(k)
if __name__=="__main__":
    if "slow" in sys.argv: FORCE_SLOW=True
    if "prof" in sys.argv: PROF=True
    out=sys.argv[1] if len(sys.argv)>1 else f"cdna_kernels/{NAME}.s"
    open(out,"w").write(build_pers())
```

```python
import sys,os
DBG=os.environ.get('DBG','')+',sk3,late6'
from em import *
NAME="interleave_layers__sliding_local_dilated__dense_activation_silu__prompt"
MB=1<<20
O_OFF,X1_OFF,H_OFF,X2_OFF,ST_OFF=0,2*MB,4*MB,12*MB,14*MB
LSTRIDE=0 if 'fresh' not in DBG else 16*MB
sW,sXCD,sJ,sT0,sT1,sT2,sT3,sMB,sNB,sKQ,sMH,sLB=3,4,5,6,7,8,9,10,11,12,13,14
sONE=15
srdA,srdW,srdR,srdO,srdS=16,20,24,28,32
pX,pQKV,pWO,pW1,pW2,pOUT,pWS=36,38,40,44,46,48,52
sD=56
vL=1
sMODE,sTAG=54,55
sL,sFO=100,101
import contextlib
@contextlib.contextmanager
def ifL(e,v):
    sk=e.newlab('ifl'); e(f's_cmp_lg_u32 {S(sL)}, {v}'); e(f's_cbranch_scc1 {sk}'); q=list(e.vm)
    yield
    e.lab(sk); e.vm=q
def srdsel(e,d,p0,o0,z0,p1,o1,z1):
    srd(e,d,p1,o1,z1)
    with ifL(e,0): srd(e,d,p0,o0,z0)
srdF,srdD=96,24
FL_OFF,X2H_OFF=40*MB,15*MB
vRES=248
vINFO=244
FORCE_SLOW=False
ONES=0x3F803F80

PROF=False
def stamp(e,i):
    if PROF: e(f"s_memrealtime {S(72+2*i,2)}")
def stamp_flush(e,slot,n=12):
    if not PROF: return
    sk=e.newlab("nopf"); e(f"s_cmp_lg_u32 {S(sW)}, {4 if 'w4' in DBG else 0}"); e(f"s_cbranch_scc1 {sk}")
    e("s_waitcnt vmcnt(0)"); stamp(e,n-1); e("s_waitcnt lgkmcnt(0)")
    srd(e,srdS,pWS,200*MB,MB)
    e(f"s_lshl_b32 {S(sT0)}, s2, 7"); e(f"s_add_u32 {S(sT0)}, {S(sT0)}, {slot*32768}"); e(f"s_lshl_b32 {S(sT1)}, {S(sL)}, 17"); e(f"s_add_u32 {S(sT0)}, {S(sT0)}, {S(sT1)}"); e(f"v_mov_b32 v2, {S(sT0)}")
    for i in range(n):
        e(f"v_mov_b32 v4, {S(72+2*i)}"); e(f"v_mov_b32 v5, {S(73+2*i)}"); e(f"buffer_store_dwordx2 v[4:5], v2, {S(srdS,4)}, 0 offen offset:{i*8}"); e.nop(2)
    e.lab(sk)
def gstore(e,instr,tag):
    a,b=e.newlab("gs"),e.newlab("gd")
    e(f"s_cmp_eq_u32 {S(sMODE)}, 0"); e(f"s_cbranch_scc1 {a}"); e.vmem(instr+(' nt' if 'stnt' in DBG else ' sc0' if 'stsc0' in DBG else ''),tag); e(f"s_branch {b}")
    e.lab(a); e(instr+" sc1"); e.lab(b)
def spin(e,body,cond):
    lp,out=e.newlab("spin"),e.newlab("spun")
    e(f"s_mov_b32 {S(sT3)}, 0"); e.lab(lp); body()
    e(f"s_add_u32 {S(sT3)}, {S(sT3)}, 1"); e(f"s_cmp_gt_u32 {S(sT3)}, 0x40000"); e(f"s_cbranch_scc1 {out}")
    cond(lp); e.lab(out)
def publish(e,ph,pre=None):
    e.wvm0(); e.bar()
    sk=e.newlab("nopub"); e(f"s_cmp_lg_u32 {S(sW)}, 0"); e(f"s_cbranch_scc1 {sk}")
    e(f"s_lshl_b32 {S(sT0)}, {S(sXCD)}, 7"); e(f"s_lshl_b32 {S(sT1)}, {S(sJ)}, 2"); e(f"s_add_u32 {S(sT0)}, {S(sT0)}, {S(sT1)}")
    e(f"v_mov_b32 v2, {S(sT0)}"); e(f"v_mov_b32 v3, {S(sTAG)}"); e("s_mov_b64 exec, 1")
    e(f"s_add_u32 {S(sT2)}, {S(sFO)}, {ph*1024}")
    gstore(e,f"buffer_store_dword v3, v2, {S(srdF,4)}, {S(sT2)} offen","fl")
    if pre: pre()
    e("s_mov_b64 exec, -1"); e.lab(sk); e.reset()
def waitflags(e,ph,jbase,n,second=None):
    sk=e.newlab("nopoll"); e(f"s_cmp_lg_u32 {S(sW)}, 0"); e(f"s_cbranch_scc1 {sk}")
    e(f"s_lshl_b32 {S(sT0)}, {S(sXCD)}, 7"); e(f"s_lshl_b32 {S(sT1)}, {S(jbase)}, 2"); e(f"s_add_u32 {S(sT0)}, {S(sT0)}, {S(sT1)}")
    e(f"s_add_u32 {S(sT0)}, {S(sT0)}, {ph*1024}")
    if ph<3: e(f"s_add_u32 {S(sT0)}, {S(sT0)}, {S(sFO)}")
    e(f"v_min_u32 v2, {n-1}, {R(vL)}"); e(f"v_lshl_add_u32 v2, v2, 2, {S(sT0)}")
    if second is not None:
        e(f"s_cmp_lg_u32 {S(sD+9)}, 0"); e(f"s_cselect_b32 {S(sT1)}, 31, 7"); e(f"v_and_b32 v3, {S(sT1)}, {R(vL)}"); e(f"v_lshl_add_u32 v3, v3, 2, {S(second)}"); e(f"v_cmp_gt_u32 vcc, 32, {R(vL)}"); e.nop(2); e("v_cndmask_b32 v2, v3, v2, vcc")
    def body(): e(f"buffer_load_dword v3, v2, {S(srdF,4)}, 0 offen sc1"); e("s_waitcnt vmcnt(0)"); e(f"v_cmp_ne_u32 vcc, {S(sTAG)}, v3")
    spin(e,body,lambda lp:e(f"s_cbranch_vccnz {lp}"))
    e(f"s_cmp_lg_u32 {S(sMODE)}, 0"); e(f"s_cbranch_scc1 {sk}"); e("buffer_inv sc1"); e("s_waitcnt vmcnt(0)")
    e.lab(sk); e.bar()
def hello(e):
    e(f"s_getreg_b32 {S(sT0)}, hwreg(HW_REG_XCC_ID, 0, 3)"); e(f"s_mul_i32 {S(sT0)}, {S(sT0)}, 6")
    e(f"s_lshl_b64 {S(sD+14,2)}, 1, {S(sT0)}"); e(f"s_add_u32 {S(sD+15)}, {S(sD+15)}, 0x1000000")
    e(f"s_lshl_b32 {S(sT1)}, {S(sXCD)}, 4"); e(f"v_mov_b32 v212, {S(sT1)}"); e(f"v_mov_b32 v214, {S(sD+14)}"); e(f"v_mov_b32 v215, {S(sD+15)}")
    e("s_mov_b64 exec, 1"); e.vmem(f"buffer_atomic_add_x2 v[214:215], v212, {S(srdD,4)}, 0 offen","hello")
    s2=e.newlab("notag"); e("s_cmp_lg_u32 s2, 0"); e(f"s_cbranch_scc1 {s2}")
    e("v_mov_b32 v212, 0x3000"); e(f"buffer_load_dword v213, v212, {S(srdF,4)}, 0 offen sc1"); e("s_waitcnt vmcnt(0)")
    e("v_add_u32 v213, 0x9e3779b9, v213"); e("v_max_u32 v213, 1, v213"); e(f"buffer_store_dword v213, v212, {S(srdF,4)}, 0 offen sc1")
    e("v_mov_b32 v212, 0x80"); e(f"buffer_store_dword v213, v212, {S(srdD,4)}, 0 offen sc1")
    e.lab(s2); e("s_mov_b64 exec, -1"); e.nop(4)
def getmode(e):
    e(f"s_lshl_b32 {S(sT0)}, {S(sXCD)}, 4"); e(f"v_mov_b32 {R(vINFO)}, {S(sT0)}"); e(f"v_mov_b32 {R(vINFO+1)}, 0x80")
    def body():
        e(f"buffer_load_dwordx2 {R(vINFO+2,2)}, {R(vINFO)}, {S(srdD,4)}, 0 offen sc1"); e(f"buffer_load_dword {R(vINFO-1)}, {R(vINFO+1)}, {S(srdD,4)}, 0 offen sc1")
        e("s_waitcnt vmcnt(0)"); e(f"v_readfirstlane_b32 {S(sD)}, {R(vINFO+2)}"); e(f"v_readfirstlane_b32 {S(sD+1)}, {R(vINFO+3)}"); e(f"v_readfirstlane_b32 {S(sTAG)}, {R(vINFO-1)}")
    def cond(lp):
        e(f"s_lshr_b32 {S(sT0)}, {S(sD+1)}, 24"); e(f"s_cmp_lt_u32 {S(sT0)}, 32"); e(f"s_cbranch_scc1 {lp}")
        e(f"s_cmp_eq_u32 {S(sTAG)}, 0"); e(f"s_cbranch_scc1 {lp}")
    spin(e,body,cond)
    e(f"s_getreg_b32 {S(sT0)}, hwreg(HW_REG_XCC_ID, 0, 3)"); e(f"s_mul_i32 {S(sT0)}, {S(sT0)}, 6")
    e(f"s_lshr_b64 {S(sD,2)}, {S(sD,2)}, {S(sT0)}"); e(f"s_and_b32 {S(sD)}, {S(sD)}, 63"); e(f"s_cmp_eq_u32 {S(sD)}, 32")
    e(f"s_cselect_b32 {S(sMODE)}, {0 if FORCE_SLOW else 1}, 0")
def prefetch(e,sr,ptr,total,nw,sw,va,dst,extra=None,off=0,only=None,nwg=32,sj=None):
    per=total//nwg//nw; lines=per//128; sj=sJ if sj is None else sj
    srd(e,sr,ptr,off,total if extra is None else 2*MB)
    e(f"s_mul_i32 {S(sT0)}, {S(sj)}, {total//nwg}"); e(f"s_mul_i32 {S(sT1)}, {S(sw)}, {per}"); e(f"s_add_u32 {S(sT0)}, {S(sT0)}, {S(sT1)}")
    if extra is not None: e(f"s_lshl_b32 {S(sT1)}, {S(sXCD)}, {extra}"); e(f"s_add_u32 {S(sT0)}, {S(sT0)}, {S(sT1)}")
    for i in range((lines+63)//64):
        if only is not None and i!=only: continue
        n=min(64,lines-64*i)
        e(f"v_min_u32 {R(va)}, {n-1}, {R(vL)}"); e(f"v_lshl_add_u32 {R(va)}, {R(va)}, 7, {S(sT0)}")
        if i: e(f"v_add_u32 {R(va)}, {8192*i}, {R(va)}")
        e.vmem(f"buffer_load_dword {R(dst)}, {R(va)}, {S(sr,4)}, 0 offen"+(' nt' if 'ntp' in DBG and NTS[sr] else ''),"pf")
def pfl(e,sr,ptr,total,terms,const,lines,va):
    srd(e,sr,ptr,0,total); e(f"s_mov_b32 {S(sT0)}, {const}")
    for sg,m in terms: e(f"s_mul_i32 {S(sT1)}, {S(sg)}, {m}"); e(f"s_add_u32 {S(sT0)}, {S(sT0)}, {S(sT1)}")
    for i in range((lines+63)//64):
        e(f"v_min_u32 {R(va)}, {min(64,lines-64*i)-1}, {R(vL)}"); e(f"v_lshl_add_u32 {R(va)}, {R(va)}, 7, {S(sT0)}")
        if i: e(f"v_add_u32 {R(va)}, {8192*i}, {R(va)}")
        e.vmem(f"buffer_load_dword v240, {R(va)}, {S(sr,4)}, 0 offen"+(' nt' if 'ntp' in DBG and NTS[sr] else ''),"pf")
def pf_w2(e,j,part):
    if part==0: pfl(e,srdR,pW2,1792*1024,[(j,448*1024),(sJ,5120)],0,40,7)
    else: pfl(e,srdR,pW2,1792*1024,[(j,448*1024),(sJ,9216)],160*1024,72,7)
def prologue(e,nwg):
    e(f"s_cmp_ge_u32 s2, {nwg}"); e("s_cbranch_scc1 "+e.endlab)
    stamp(e,0)
    e(f"s_load_dwordx16 s[36:51], s[0:1], 0"); e(f"s_load_dwordx2 s[52:53], s[0:1], 64")
    e("v_lshrrev_b32 v2, 6, v0"); e(f"v_and_b32 {R(vL)}, 63, v0")
    e(f"v_readfirstlane_b32 {S(sW)}, v2")
    e(f"s_and_b32 {S(sXCD)}, s2, 7"); e(f"s_lshr_b32 {S(sJ)}, s2, 3")
    e(f"s_mov_b32 {S(sONE)}, {ONES:#x}")
    e("s_waitcnt lgkmcnt(0)")
NTS={}
def srd(e,d,p,off,size):
    NTS[d]=(p in (pW1,pW2))
    if off: e(f"s_add_u32 {S(d)}, {S(p)}, {off:#x}"); e(f"s_addc_u32 {S(d+1)}, {S(p+1)}, 0")
    else: e(f"s_mov_b32 {S(d)}, {S(p)}"); e(f"s_mov_b32 {S(d+1)}, {S(p+1)}")
    e(f"s_mov_b32 {S(d+2)}, {size:#x}"); e(f"s_mov_b32 {S(d+3)}, 0x20000")
def dma(e,vaddr,srd_,soff,m0expr,tag,sc1=False):
    sg,c=m0expr
    if sg is None: e(f"s_mov_b32 m0, {c:#x}")
    else: e(f"s_add_u32 m0, {S(sg)}, {c:#x}")
    if soff: e(f"s_mov_b32 {S(sT3)}, {soff:#x}"); so=S(sT3)
    else: e("s_nop 0"); so="0"
    e.vmem(f"buffer_load_dwordx4 {R(vaddr)}, {S(srd_,4)}, {so} offen {'sc1 ' if sc1 else ''}{'nt ' if 'ntd' in DBG and NTS[srd_] else ''}lds",tag)
def ldfrag(e,dst,vaddr,srd_,t,tag,st):
    hi=t>>2
    if hi and (t&3==0 or st): e(f"s_mov_b32 {S(sT2)}, {hi*4096:#x}")
    so=S(sT2) if hi else "0"
    e.vmem(f"buffer_load_dwordx4 {R(dst,4)}, {R(vaddr)}, {S(srd_,4)}, {so} offen offset:{(t&3)*1024}"+' sc1'+(' nt' if 'nta' in DBG else ''),tag)
def tr_lane_base(e,dst,tmp,perm):
    a,b,c=tmp,tmp+1,tmp+2
    e(f"v_bfe_u32 {R(a)}, {R(vL)}, 2, 2")
    e(f"v_lshrrev_b32 {R(b)}, 5, {R(vL)}")
    e(f"v_lshl_add_u32 {R(dst)}, {R(b)}, 3, {R(a)}")
    e(f"v_lshlrev_b32 {R(dst)}, 7, {R(dst)}")
    e(f"v_lshrrev_b32 {R(a)}, 1, {R(a)}"); e(f"v_lshlrev_b32 {R(a)}, 2, {R(a)}")
    e(f"v_lshl_or_b32 {R(a)}, {R(b)}, 1, {R(a)}")
    if perm=="frag":
        e(f"v_bfe_u32 {R(b)}, {R(vL)}, 4, 1"); e(f"v_and_b32 {R(c)}, 1, {R(vL)}")
        e(f"v_lshl_or_b32 {R(b)}, {R(b)}, 1, {R(c)}"); e(f"v_bfe_u32 {R(c)}, {R(vL)}, 1, 1")
    else:
        e(f"v_and_b32 {R(b)}, 1, {R(vL)}"); e(f"v_bfe_u32 {R(c)}, {R(vL)}, 4, 1")
        e(f"v_lshl_or_b32 {R(b)}, {R(b)}, 1, {R(c)}"); e(f"v_bfe_u32 {R(c)}, {R(vL)}, 1, 1")
    e(f"v_xor_b32 {R(a)}, {R(a)}, {R(b)}")
    e(f"v_lshl_add_u32 {R(dst)}, {R(a)}, 4, {R(dst)}")
    e(f"v_lshl_add_u32 {R(dst)}, {R(c)}, 3, {R(dst)}")
def wdma_lane(e,dst,tmp,rowstride,odd):
    a,b=tmp,tmp+1
    e(f"v_lshrrev_b32 {R(a)}, 3, {R(vL)}")
    e(f"s_mov_b32 {S(sT0)}, {rowstride}"); e(f"v_mul_lo_u32 {R(dst)}, {R(a)}, {S(sT0)}")
    e(f"v_bfe_u32 {R(a)}, {R(vL)}, 4, 1"); e(f"v_lshlrev_b32 {R(a)}, 2, {R(a)}")
    if isinstance(odd,int):
        if odd: e(f"v_or_b32 {R(a)}, 2, {R(a)}")
    else: e(f"v_lshl_or_b32 {R(a)}, {odd}, 1, {R(a)}")
    e(f"v_and_b32 {R(b)}, 7, {R(vL)}"); e(f"v_xor_b32 {R(a)}, {R(a)}, {R(b)}")
    e(f"v_lshl_add_u32 {R(dst)}, {R(a)}, 4, {R(dst)}")
def mfma32(e,d,a,b,first): e(f"v_mfma_f32_32x32x16_bf16 {R(d,16)}, {R(a,4)}, {R(b,4)}, {'0' if first else R(d,16)}")
def mfma16(e,d,a,b,first): e(f"v_mfma_f32_16x16x32_bf16 {R(d,4)}, {R(a,4)}, {R(b,4)}, {'0' if first else R(d,4)}")
def trread(e,dst,va,off,tag):
    e.lds(f"ds_read_b64_tr_b16 {R(dst,2)}, {R(va)} offset:{off}",tag)
    e.lds(f"ds_read_b64_tr_b16 {R(dst+2,2)}, {R(va)} offset:{off+512}",tag)
def allsum_halves(e,a,t):
    e(f"v_mov_b32 {R(t)}, {R(a)}"); e.nop(2); e(f"v_permlane32_swap_b32 {R(t)}, {R(a)}"); e.nop(1); e(f"v_add_f32 {R(a)}, {R(a)}, {R(t)}")
def meanrstd(e,s_,q,t):
    e(f"v_mul_f32 {R(s_)}, 0x3b000000, {R(s_)}"); e(f"v_mul_f32 {R(q)}, 0x3b000000, {R(q)}")
    e(f"v_fma_f32 {R(q)}, -{R(s_)}, {R(s_)}, {R(q)}"); e(f"v_max_f32 {R(q)}, 0, {R(q)}")
    e(f"v_add_f32 {R(q)}, 0x3727c5ac, {R(q)}"); e(f"v_rsq_f32 {R(q)}, {R(q)}"); e.nop(1)

WO_LDS=96*1024
NPRE=int(os.environ.get('NPRE',18))
def ids64(e):
    e(f"s_lshr_b32 {S(sMB)}, {S(sJ)}, 3"); e(f"s_lshl_b32 {S(sT0)}, {S(sXCD)}, 2"); e(f"s_add_u32 {S(sMB)}, {S(sMB)}, {S(sT0)}")
    e(f"s_and_b32 {S(sNB)}, {S(sJ)}, 7"); e(f"s_and_b32 {S(sKQ)}, {S(sW)}, 3"); e(f"s_lshr_b32 {S(sMH)}, {S(sW)}, 2")
def bsrc(e,vB,tmp,KS,kq,mh,ldsbase,slab,sdst):
    wdma_lane(e,vB,tmp,1024,S(mh) if mh is not None else 0)
    e(f"s_mul_i32 {S(sT0)}, {S(kq)}, {KS*16*1024}"); e(f"s_and_b32 {S(sT1)}, {S(sJ)}, 7"); e(f"s_lshl_b32 {S(sT1)}, {S(sT1)}, 7"); e(f"s_add_u32 {S(sT0)}, {S(sT0)}, {S(sT1)}")
    e(f"s_mul_i32 {S(sdst)}, {S(kq)}, {slab}"); e(f"s_add_u32 {S(sdst)}, {S(sdst)}, {ldsbase}")
    if mh is not None:
        e(f"s_lshl_b32 {S(sT1)}, {S(mh)}, 13"); e(f"s_add_u32 {S(sT0)}, {S(sT0)}, {S(sT1)}")
        e(f"s_lshl_b32 {S(sT1)}, {S(mh)}, 10"); e(f"s_add_u32 {S(sdst)}, {S(sdst)}, {S(sT1)}")
    e(f"v_add_u32 {R(vB)}, {S(sT0)}, {R(vB)}")
def p4_preload(e,j,part):
    if part==0:
        srd(e,srdW,pW2,0,1792*1024); bsrc(e,14,9,28,j,None,0,40960,sLB)
        e("v_xor_b32 v15, 32, v14"); e("v_add_u32 v15, 0x2000, v15")
    for t in range(NPRE):
        for h in range(2): dma(e,14+h,srdW,t*16384,(sLB,t*2048+h*1024),"pre")
def phase_rs(e,L,which):
    P2=which==2
    K=512 if P2 else 1792; KS=K//64; RING=8 if P2 else 20; SLAB=RING*2048; LB=WO_LDS if P2 else 0; RB=0 if P2 else 112*1024; LA=8 if P2 else int(os.environ.get('LA',6))
    wo=L*LSTRIDE
    ids64(e)
    if P2:
        srd(e,srdA,pWS,wo+O_OFF,2*MB)
        srd(e,srdR,pX,0,2*MB)
        srd(e,srdO,pWS,wo+X1_OFF,2*MB); srd(e,srdS,pWS,wo+ST_OFF,128*1024)
    else:
        srd(e,srdA,pWS,wo+H_OFF,7*MB); srd(e,srdW,pW2,0,1792*1024); srd(e,srdR,pWS,X2H_OFF,128*1024)
        srdsel(e,srdO,pWS,X2_OFF,2*MB,pOUT,0,2*MB)
    vA,vB,vF,vRM,vT0,vT1,vRD,vRes,vAcc,vBf,vAf=12,13,4,5,6,7,8,vRES,16,48,80
    tmp=9; mt=sD+10; sb=sD+11
    e(f"s_lshl_b32 {S(mt)}, {S(sMB)}, 1"); e(f"s_add_u32 {S(mt)}, {S(mt)}, {S(sMH)}")
    e(f"s_mul_i32 {S(sT0)}, {S(mt)}, {K//16*1024}"); e(f"s_mul_i32 {S(sT1)}, {S(sKQ)}, {KS*1024}"); e(f"s_add_u32 {S(sT0)}, {S(sT0)}, {S(sT1)}")
    e(f"v_lshl_add_u32 {R(vA)}, {R(vL)}, 4, {S(sT0)}")
    if not P2: bsrc(e,vB,tmp,KS,sKQ,sMH,0,SLAB,sb)
    e(f"s_lshl_b32 {S(sT0)}, {S(mt)}, 5"); e(f"s_lshl_b32 {S(sT1)}, {S(sNB)}, 2"); e(f"s_add_u32 {S(sT1)}, {S(sT1)}, {S(sKQ)}")
    e(f"s_add_u32 {S(sT0)}, {S(sT0)}, {S(sT1)}"); e(f"s_lshl_b32 {S(sT0)}, {S(sT0)}, 10")
    e(f"v_lshl_add_u32 {R(vF)}, {R(vL)}, 4, {S(sT0)}")
    e(f"s_lshl_b32 {S(sT0)}, {S(mt)}, 15"); e(f"s_lshl_b32 {S(sT1)}, {S(sT1)}, 5"); e(f"s_add_u32 {S(sT0)}, {S(sT0)}, {S(sT1)}")
    e(f"v_and_b32 {R(tmp)}, 31, {R(vL)}"); e(f"v_lshlrev_b32 {R(tmp)}, 10, {R(tmp)}"); e(f"v_lshrrev_b32 {R(tmp+1)}, 5, {R(vL)}")
    e(f"v_lshl_add_u32 {R(tmp)}, {R(tmp+1)}, 4, {R(tmp)}"); e(f"v_add_u32 {R(vRM)}, {S(sT0)}, {R(tmp)}")
    tr_lane_base(e,vT0,tmp,"frag")
    e(f"s_mul_i32 {S(sT0)}, {S(sKQ)}, {SLAB}"); e(f"s_add_u32 {S(sT0)}, {S(sT0)}, {LB}")
    e(f"v_add_u32 {R(vT0)}, {S(sT0)}, {R(vT0)}"); e(f"v_xor_b32 {R(vT1)}, 64, {R(vT0)}")
    e(f"s_mul_i32 {S(sT0)}, {S(sMH)}, {12*2048}"); e(f"s_add_u32 {S(sT0)}, {S(sT0)}, {RB}"); e(f"v_lshl_add_u32 {R(vRD)}, {R(vL)}, 4, {S(sT0)}")
    def rd(t,nt): trread(e,vBf+(t&1)*8+nt*4,vT0+nt,(t%RING)*2048,("f",t,nt))
    if P2:
        with ifL(e,0): e(f"buffer_load_dwordx4 {R(vRes,4)}, {R(vRM)}, {S(srdR,4)}, 0 offen")
    if not P2:
        for u in range(NPRE,RING): dma(e,vB,srdW,u*16384,(sb,u*2048),"B1")
    if P2: e(f"s_and_b32 {S(sD+2)}, {S(sJ)}, 24"); waitflags(e,L*4,sD+2,8)
    else: e(f"s_lshr_b32 {S(sD+2)}, {S(sJ)}, 4"); e(f"s_mul_i32 {S(sD+2)}, {S(sD+2)}, 14"); waitflags(e,L*4+2,sD+2,14)
    stamp(e,9)
    for t in range(LA): ldfrag(e,vAf+4*t,vA,srdA,t,("A",t),False)
    if P2 and 'now1b' not in DBG and 'w1all' not in DBG: pfl(e,srdW,pW1,512*3584,[(sJ,24576),(sW,3072)],MB,24,tmp)
    rd(0,0); rd(0,1)
    for t in range(KS):
        if t+LA<KS: ldfrag(e,vAf+4*(t+LA),vA,srdA,t+LA,("A",t+LA),False)
        if not P2 and t==9:
            e.bar()
        if not P2 and 9<=t<17: u=RING+t-9; dma(e,vB,srdW,u*16384,(sb,(u%RING)*2048),"B")
        if t+1==RING and t+1<KS: e.wvm("B"); e.bar()
        e.wvm(("A",t))
        if t%4==0: stamp(e,1+t//4)
        for nt in range(2):
            if t+1<KS: rd(t+1,nt)
            e.wlg(("f",t,nt)); mfma32(e,vAcc+16*nt,vBf+(t&1)*8+nt*4,vAf+4*t,t==0)
        if not P2 and t==KS-LA:
            with ifL(e,0): (prefetch(e,srdS,pQKV,512*3072,8,sW,9,240) if 'qall' in DBG else pfl(e,srdS,pQKV,512*3072,[(sJ,18432),(sW,2304)],0,18,9)); p1_setup(e,1)
    if not P2: e.bar()
    stamp(e,10); e.nop(10)
    own=vBf
    done=e.newlab("rdone"); labs=[e.newlab("rv") for _ in range(4)]
    for q in range(1,4): e(f"s_cmp_eq_u32 {S(sKQ)}, {q}"); e(f"s_cbranch_scc1 {labs[q]}")
    for kq in range(4):
        e.lab(labs[kq])
        for q in range(4):
            if q==kq: continue
            for j in range(2): e(f"ds_write_b128 {R(vRD)}, {R(vAcc+8*q+4*j,4)} offset:{(q*3+((kq-q)&3)-1)*2048+j*1024}")
        for j in range(8): e(f"v_mov_b32 {R(own+j)}, {R(vAcc+8*kq+j)}")
        if kq<3: e(f"s_branch {done}")
    e.lab(done)
    e(f"s_mul_i32 {S(sT0)}, {S(sKQ)}, {3*2048}"); e(f"v_add_u32 {R(vRD)}, {S(sT0)}, {R(vRD)}")
    if not P2:
        with ifL(e,0):
            for s_ in range(3): p1_issue(e,1,s_,range(3),[])
    e.wlg0(); e.bar()
    for i in range(1,4):
        for j in range(2): e.lds(f"ds_read_b128 {R(own+8*i+4*j,4)}, {R(vRD)} offset:{(i-1)*2048+j*1024}",("p",i))
    e.wvm("res")
    rf=vAcc
    for j in range(4):
        e(f"v_lshlrev_b32 {R(rf+2*j)}, 16, {R(vRes+j)}"); e(f"v_and_b32 {R(rf+2*j+1)}, 0xffff0000, {R(vRes+j)}")
    for j in range(4): e(f"v_pk_add_f32 {R(own+2*j,2)}, {R(own+2*j,2)}, {R(rf+2*j,2)}")
    for i in range(1,4):
        e.wlg(("p",i))
        for j in range(4): e(f"v_pk_add_f32 {R(own+2*j,2)}, {R(own+2*j,2)}, {R(own+8*i+2*j,2)}")
    for j in range(4): e(f"v_cvt_pk_bf16_f32 {R(vRes+j)}, {R(own+2*j)}, {R(own+2*j+1)}")
    ins=f"buffer_store_dwordx4 {R(vRes,4)}, {R(vF if P2 else vRM)}, {S(srdO,4)}, 0 offen"
    gstore(e,ins,"st")
    if not P2:
        if PROF:
            with ifL(e,1): stamp_flush(e,3)
        e(f"s_cmp_lg_u32 {S(sL)}, 0"); e(f"s_cbranch_scc1 {e.endlab}")
        publish(e,3)
        sk=e.newlab("nohalo"); e(f"s_and_b32 {S(sT0)}, {S(mt)}, 7"); e(f"s_cmp_lg_u32 {S(sT0)}, 7"); e(f"s_cbranch_scc1 {sk}")
        e(f"s_lshl_b32 {S(sT0)}, {S(mt)}, 15"); e(f"s_lshl_b32 {S(sT1)}, {S(sXCD)}, 14"); e(f"s_sub_u32 {S(sT0)}, {S(sT0)}, {S(sT1)}"); e(f"s_add_u32 {S(sT0)}, {S(sT0)}, 0x4000")
        e(f"v_subrev_u32 {R(tmp)}, {S(sT0)}, {R(vRM)}"); e("s_mov_b32 exec_lo, 0xffff0000"); e("s_mov_b32 exec_hi, 0xffff0000")
        e(f"buffer_store_dwordx4 {R(vRes,4)}, {R(tmp)}, {S(srdR,4)}, 0 offen sc1"); e("s_mov_b64 exec, -1")
        e(f"s_lshl_b32 {S(sT0)}, {S(sXCD)}, 5"); e(f"s_lshl_b32 {S(sT1)}, {S(sNB)}, 2"); e(f"s_add_u32 {S(sT0)}, {S(sT0)}, {S(sT1)}"); e(f"s_add_u32 {S(sT0)}, {S(sT0)}, {S(sKQ)}")
        e(f"s_lshl_b32 {S(sT0)}, {S(sT0)}, 2"); e(f"s_add_u32 {S(sT0)}, {S(sT0)}, {7*1024}"); e(f"v_mov_b32 v2, {S(sT0)}"); e(f"v_mov_b32 v3, {S(sTAG)}")
        e("s_waitcnt vmcnt(0)"); e("s_mov_b64 exec, 1"); e(f"buffer_store_dword v3, v2, {S(srdF,4)}, 0 offen sc1"); e("s_mov_b64 exec, -1"); e.lab(sk)
    if P2:
        a,b=rf,rf+1
        e(f"v_dot2_f32_bf16 {R(a)}, {R(vRes)}, {S(sONE)}, 0"); e(f"v_dot2_f32_bf16 {R(b)}, {R(vRes)}, {R(vRes)}, 0")
        for j in range(1,4):
            e(f"v_dot2_f32_bf16 {R(a)}, {R(vRes+j)}, {S(sONE)}, {R(a)}"); e(f"v_dot2_f32_bf16 {R(b)}, {R(vRes+j)}, {R(vRes+j)}, {R(b)}")
        e(f"s_lshl_b32 {S(sT0)}, {S(sW)}, 8"); e(f"s_add_u32 {S(sT0)}, {S(sT0)}, 0xc000")
        e(f"v_lshl_add_u32 {R(tmp)}, {R(vL)}, 2, {S(sT0)}"); e.nop(2)
        e(f"v_permlane32_swap_b32 {R(a)}, {R(b)}"); e.nop(1); e(f"v_add_f32 {R(a)}, {R(a)}, {R(b)}")
        e(f"ds_write_b32 {R(tmp)}, {R(a)}"); e.wlg0(); e.bar()
        sk=e.newlab("nost"); e(f"s_cmp_lg_u32 {S(sKQ)}, 0"); e(f"s_cbranch_scc1 {sk}")
        for i in range(1,4): e(f"ds_read_b32 {R(rf+1+i)}, {R(tmp)} offset:{i*256}")
        e(f"s_lshl_b32 {S(sT0)}, {S(mt)}, 3"); e(f"s_add_u32 {S(sT0)}, {S(sT0)}, {S(sNB)}"); e(f"s_lshl_b32 {S(sT0)}, {S(sT0)}, 8")
        e(f"v_lshl_add_u32 {R(tmp)}, {R(vL)}, 2, {S(sT0)}"); e.wlg0()
        e(f"v_add_f32 {R(a)}, {R(a)}, {R(rf+2)}"); e(f"v_add_f32 {R(rf+3)}, {R(rf+3)}, {R(rf+4)}"); e(f"v_add_f32 {R(a)}, {R(a)}, {R(rf+3)}")
        gstore(e,f"buffer_store_dword {R(a)}, {R(tmp)}, {S(srdS,4)}, 0 offen","st")
        e.lab(sk)
        publish(e,L*4+1)

def phase3(e,L):
    wo=L*LSTRIDE; LA=8
    e(f"s_cmp_ge_u32 {S(sJ)}, 14"); e(f"s_cselect_b32 {S(sT0)}, 1, 0"); e(f"s_cselect_b32 {S(sT1)}, 14, 0")
    e(f"s_sub_u32 {S(sNB)}, {S(sJ)}, {S(sT1)}"); e(f"s_lshl_b32 {S(sMB)}, {S(sXCD)}, 1"); e(f"s_add_u32 {S(sMB)}, {S(sMB)}, {S(sT0)}")
    srd(e,srdA,pWS,wo+X1_OFF,2*MB); srd(e,srdW,pW1,0,512*3584); srd(e,srdO,pWS,wo+H_OFF,7*MB); srd(e,srdS,pWS,wo+ST_OFF,128*1024)
    CS=131072
    ld=e.newlab("p3ld"); fin=e.newlab("p3fin"); skip=e.newlab("p3skip"); sk2=e.newlab("p3end")
    j=sD; e(f"s_sub_u32 {S(j)}, {S(sW)}, 4")
    e(f"s_cmp_ge_u32 {S(sJ)}, 28"); e(f"s_cbranch_scc1 {skip}")
    tmp=9
    e(f"s_cmp_ge_u32 {S(sW)}, 4"); e(f"s_cbranch_scc1 {ld}")
    e('s_setprio 1')
    vA,vT,vH,vM,vS,vSt,vAcc,vBf,vAf=12,4,13,14,2,16,24,88,120
    mt=sD
    e(f"s_lshl_b32 {S(mt)}, {S(sMB)}, 2"); e(f"s_add_u32 {S(mt)}, {S(mt)}, {S(sW)}")
    e(f"s_lshl_b32 {S(sT0)}, {S(mt)}, 15"); e(f"v_lshl_add_u32 {R(vA)}, {R(vL)}, 4, {S(sT0)}")
    e(f"s_lshl_b32 {S(sT0)}, {S(mt)}, 11"); e(f"v_lshl_add_u32 {R(vH)}, {R(vL)}, 2, {S(sT0)}")
    tr_lane_base(e,vT,tmp,"frag")
    e(f"v_xor_b32 {R(vT+1)}, 64, {R(vT)}"); e(f"v_add_u32 {R(vT+2)}, 0x10000, {R(vT)}"); e(f"v_add_u32 {R(vT+3)}, 0x10000, {R(vT+1)}")
    e(f"s_and_b32 {S(sD+2)}, {S(sMB)}, 1"); e(f"s_lshl_b32 {S(sD+2)}, {S(sD+2)}, 4"); waitflags(e,L*4+1,sD+2,16); stamp(e,9)
    for t in range(LA): ldfrag(e,vAf+4*t,vA,srdA,t,("A",t),False)
    def rd(t,nt): trread(e,vBf+(t&1)*16+nt*4,vT+nt,t*2048,("f",t,nt))
    e.bar()
    for nt in range(4): rd(0,nt)
    for t in range(32):
        for u in (LA+2*t,LA+2*t+1):
            if u<32: ldfrag(e,vAf+4*u,vA,srdA,u,("A",u),False)
        if t==12:
            for i in range(8): e.vmem(f"buffer_load_dword {R(vSt+i)}, {R(vH)}, {S(srdS,4)}, 0 offen offset:{i*256} sc1","st")
            e(f"s_mul_i32 {S(sT0)}, {S(mt)}, {112*1024}"); e(f"s_lshl_b32 {S(sT1)}, {S(sNB)}, 13"); e(f"s_add_u32 {S(sT0)}, {S(sT0)}, {S(sT1)}")
            e(f"v_lshl_add_u32 {R(vH)}, {R(vL)}, 4, {S(sT0)}")
        if (t+1)%4==0 and t+1<=16: e.bar()
        e.wvm(("A",t))
        if t%4==0: stamp(e,1+t//4)
        for nt in range(4):
            if t+1<32: rd(t+1,nt)
            e.wlg(("f",t,nt)); mfma32(e,vAcc+16*nt,vBf+(t&1)*16+nt*4,vAf+4*t,t==0)
        if t==30:
            e.wvm("st")
            for i in (4,2,1):
                for jj in range(i): e(f"v_add_f32 {R(vSt+jj)}, {R(vSt+jj)}, {R(vSt+jj+i)}")
            e(f"v_mov_b32 {R(vSt+1)}, {R(vSt)}"); e.nop(2); e(f"v_permlane32_swap_b32 {R(vSt)}, {R(vSt+1)}"); e.nop(1)
            meanrstd(e,vSt,vSt+1,tmp)
            e(f"v_mul_f32 {R(vM)}, 0xbfb8aa3b, {R(vSt+1)}"); e(f"v_mul_f32 {R(vM+1)}, {R(vM)}, {R(vSt)}"); e(f"v_sub_f32 {R(vM+1)}, 0, {R(vM+1)}")
            e(f"v_mov_b32 {R(vS)}, 0xbfb8aa3b")
    e(f"v_lshrrev_b32 {R(tmp)}, 5, {R(vL)}"); e(f"v_lshlrev_b32 {R(tmp)}, 4, {R(tmp)}"); e(f"v_add_u32 {R(tmp)}, {CS:#x}, {R(tmp)}")
    e.bar(); stamp(e,10)
    vC=vAf
    for nt in range(4):
        for g in range(4): e.lds(f"ds_read_b128 {R(vC+16*nt+4*g,4)}, {R(tmp)} offset:{nt*128+g*32}",("c",nt))
    for jj in range(32): e(f"v_pk_mul_f32 {R(vAcc+2*jj,2)}, {R(vAcc+2*jj,2)}, {R(vM,2)} op_sel_hi:[1,0]") if jj>=24 or True else None
    e.wlg0(); e.bar()
    U=vBf; PK=vAf+64
    for nt in range(4):
        for hh in range(2):
            b=vAcc+16*nt+8*hh; c=vC+16*nt+8*hh; o=PK+(nt*2+hh)*4
            for jj in range(4): e(f"v_pk_fma_f32 {R(b+2*jj,2)}, {R(c+2*jj,2)}, {R(vM,2)}, {R(b+2*jj,2)} op_sel:[0,1,0] op_sel_hi:[1,1,1]")
            for jj in range(8): e(f"v_exp_f32 {R(U+jj)}, {R(b+jj)}")
            e.nop(1)
            for jj in range(4): e(f"v_pk_fma_f32 {R(U+2*jj,2)}, {R(U+2*jj,2)}, {R(vS,2)}, {R(vS,2)} op_sel_hi:[1,0,0]")
            for jj in range(8): e(f"v_rcp_f32 {R(U+jj)}, {R(U+jj)}")
            e.nop(1)
            for jj in range(4): e(f"v_pk_mul_f32 {R(b+2*jj,2)}, {R(b+2*jj,2)}, {R(U+2*jj,2)}")
            for jj in range(4): e(f"v_cvt_pk_bf16_f32 {R(o+jj)}, {R(b+2*jj)}, {R(b+2*jj+1)}")
            t=nt*2+hh
            if t==4: e(f"s_movk_i32 {S(sT2)}, 0x1000")
            gstore(e,f"buffer_store_dwordx4 {R(o,4)}, {R(vH)}, {S(srdO,4)}, {S(sT2) if t>=4 else '0'} offen offset:{(t&3)*1024}","st")
    e(f"s_branch {fin}")
    e.lab(ld); e.reset(); e('s_setprio '+os.environ.get('PRIO','0'))
    vB,vT,vCs,vBf=2,4,5,16
    wdma_lane(e,vB,tmp,3584,0)
    e(f"s_and_b32 {S(sD+1)}, {S(j)}, 1"); e(f"s_lshr_b32 {S(sD+2)}, {S(j)}, 1")
    e(f"s_mul_i32 {S(sT0)}, {S(sD+2)}, {32*3584}"); e(f"s_lshl_b32 {S(sT1)}, {S(sD+1)}, 7"); e(f"s_add_u32 {S(sT0)}, {S(sT0)}, {S(sT1)}")
    e(f"s_lshl_b32 {S(sT1)}, {S(sNB)}, 8"); e(f"s_add_u32 {S(sT0)}, {S(sT0)}, {S(sT1)}")
    e(f"v_add_u32 {R(vB)}, {S(sT0)}, {R(vB)}"); e(f"v_xor_b32 {R(vB+1)}, 32, {R(vB)}")
    e(f"s_lshl_b32 {S(sLB)}, {S(sD+1)}, 16"); e(f"s_lshl_b32 {S(sT1)}, {S(sD+2)}, 12"); e(f"s_add_u32 {S(sLB)}, {S(sLB)}, {S(sT1)}")
    def wch(ch):
        for i in range(4): dma(e,vB+(i&1),srdW,(ch*64+8*i)*3584,(sLB,ch*8192+i*1024),("B",ch))
    for ch in range(3): wch(ch)
    tr_lane_base(e,vT,tmp,"frag")
    e(f"s_lshl_b32 {S(sT0)}, {S(sD+1)}, 6"); e(f"v_xor_b32 {R(vT)}, {S(sT0)}, {R(vT)}")
    e(f"s_lshl_b32 {S(sT0)}, {S(sD+2)}, 16"); e(f"v_add_u32 {R(vT)}, {S(sT0)}, {R(vT)}")
    e(f"v_mov_b32 {R(vCs)}, 0"); e(f"v_mov_b32 {R(vCs+1)}, 0")
    e.bar()
    for ch in range(8):
        if ch<=4: e.wvm(("B",ch if ch<4 else 7)); e.bar()
        if ch==0: stamp(e,9)
        if ch==4: stamp(e,1)
        for c2 in {0:(3,4),1:(5,6),2:(7,)}.get(ch,()): wch(c2)
        if ch==3:
            e(f"s_lshl_b32 {S(sT0)}, {S(sMB)}, 2"); e(f"s_add_u32 {S(sT0)}, {S(sT0)}, {S(j)}"); e(f"s_mul_i32 {S(sT0)}, {S(sT0)}, {112*1024}")
            e(f"s_lshl_b32 {S(sT1)}, {S(sNB)}, 13"); e(f"s_add_u32 {S(sT0)}, {S(sT0)}, {S(sT1)}"); e(f"v_lshl_add_u32 v7, {R(vL)}, 7, {S(sT0)}")
            e.vmem(f"buffer_load_dword v242, v7, {S(srdO,4)}, 0 offen sc1","pf")
        if ch==4:
            pf_w2(e,j,0); pf_w2(e,j,1)
            with ifL(e,0): x2touch(e,j,4,7)
        if ch==int(os.environ.get('S3',6)): e('s_setprio '+os.environ.get('LP','2'))
        with ifL(e,0):
            for t in range(4): trread(e,vBf+4*t,vT,(ch*4+t)*2048,("f",t))
            for t in range(4):
                e.wlg(("f",t))
                for i in range(4): e(f"v_dot2_f32_bf16 {R(vCs+(i&1))}, {R(vBf+4*t+i)}, {S(sONE)}, {R(vCs+(i&1))}")
    e(f"s_lshl_b32 {S(sT0)}, {S(j)}, 7"); e(f"s_add_u32 {S(sT0)}, {S(sT0)}, {CS:#x}")
    e(f"v_and_b32 {R(tmp)}, 31, {R(vL)}"); e(f"v_lshl_add_u32 {R(tmp)}, {R(tmp)}, 2, {S(sT0)}"); e.nop(2)
    with ifL(e,0):
        e(f"v_add_f32 {R(vCs)}, {R(vCs)}, {R(vCs+1)}")
        allsum_halves(e,vCs,vCs+1); e(f"v_mov_b32 v252, {R(vCs)}")
    e(f"ds_write_b32 {R(tmp)}, v252")
    stamp(e,3)
    if 'w4' in DBG: e.wvm0()
    stamp(e,4); e.wlg0(); e('s_setprio 0'); e.bar(); e.bar(); stamp(e,5)
    p4_preload(e,j,0); e.bar(); e.wvm0()
    e(f"s_branch {sk2}")
    e.lab(fin); e('s_setprio 0'); publish(e,L*4+2); e(f"s_branch {sk2}")
    e.lab(skip)
    sk3=e.newlab("p3np"); e(f"s_cmp_lt_u32 {S(sW)}, 4"); e(f"s_cbranch_scc1 {sk3}"); pf_w2(e,j,0); pf_w2(e,j,1)
    with ifL(e,0): x2touch(e,j,4,7)
    p4_preload(e,j,0); e.lab(sk3)
    e.wvm0(); e.bar(); e.lab(sk2)

STG=34816; WOF=10240; CS1=4*STG; ST1=CS1+1024; QB,KB,VB=0,9216,20736
vW,vX,vb=200,206,209
dW,dX=sD,sD+6
def wslots(e,sw,k0):
    for a in range(3):
        e(f"s_mul_i32 {S(sT0)}, {S(sw)}, 3"); e(f"s_add_u32 {S(sT0)}, {S(sT0)}, {a}")
        e(f"s_lshl_b32 {S(dW+k0+a)}, {S(sT0)}, 10"); e(f"s_add_u32 {S(dW+k0+a)}, {S(dW+k0+a)}, {WOF}")
        e(f"s_and_b32 {S(sT1)}, {S(sT0)}, 1"); e(f"s_lshl_b32 {S(sT1)}, {S(sT1)}, 5"); e(f"v_xor_b32 {R(vW+k0+a)}, {S(sT1)}, {R(vb)}")
        e(f"s_and_b32 {S(sT1)}, {S(sT0)}, 7"); e(f"s_mul_i32 {S(sT1)}, {S(sT1)}, {8*3072}")
        e(f"s_lshr_b32 {S(sT0)}, {S(sT0)}, 3"); e(f"s_lshl_b32 {S(sT0)}, {S(sT0)}, 10"); e(f"s_add_u32 {S(sT0)}, {S(sT0)}, {S(sT1)}")
        e(f"v_add_u32 {R(vW+k0+a)}, {S(sT0)}, {R(vW+k0+a)}")
def p1_setup(e,L):
    tmp=9
    srd(e,srdW,pQKV,0,512*3072)
    wdma_lane(e,vb,tmp,3072,0)
    e(f"s_lshl_b32 {S(sT0)}, {S(sNB)}, 7"); e(f"v_add_u32 {R(vb)}, {S(sT0)}, {R(vb)}")
    e(f"v_lshrrev_b32 {R(tmp)}, 3, {R(vL)}"); e(f"v_lshrrev_b32 {R(tmp+1)}, 4, {R(vL)}"); e(f"v_and_b32 {R(tmp+2)}, 7, {R(vL)}")
    e(f"v_xor_b32 {R(tmp+1)}, {R(tmp+1)}, {R(tmp+2)}"); e(f"v_lshlrev_b32 {R(tmp+1)}, 4, {R(tmp+1)}")
    e(f"v_lshl_add_u32 {R(vb+1)}, {R(tmp)}, 10, {R(tmp+1)}")
    wslots(e,sW,0)
def p1_issue(e,L,s,ws,xs):
    b=(s%4)*STG
    for k in xs: dma(e,vX+k,srdA,s*128,(dX+k,b),("S",s),True)
    for k in ws: dma(e,vW+k,srdW,s*64*3072,(dW+k,b),("S",s))
def p1_trickle(e,L,s,j):
    wo=L*LSTRIDE; va=211
    if s==5 and "nopt" not in DBG:
        srd(e,srdS,pWS,wo,16*MB)
        e(f"s_lshl_b32 {S(sT0)}, {S(sMB)}, 16"); e(f"s_lshl_b32 {S(sT1)}, {S(sNB)}, 12"); e(f"s_add_u32 {S(sT0)}, {S(sT0)}, {S(sT1)}")
        e(f"s_and_b32 {S(sT1)}, {S(j)}, 1"); e(f"s_lshl_b32 {S(sT1)}, {S(sT1)}, 15"); e(f"s_add_u32 {S(sT0)}, {S(sT0)}, {S(sT1)}")
        e(f"s_lshr_b32 {S(sT1)}, {S(j)}, 1"); e(f"s_lshl_b32 {S(sT1)}, {S(sT1)}, 21"); e(f"s_add_u32 {S(sT0)}, {S(sT0)}, {S(sT1)}")
        e(f"v_and_b32 {R(va)}, 31, {R(vL)}"); e(f"v_lshl_add_u32 {R(va)}, {R(va)}, 7, {S(sT0)}")
        e.vmem(f"buffer_load_dword v242, {R(va)}, {S(srdS,4)}, 0 offen sc1","pf")
        e(f"s_lshl_b32 {S(sT0)}, {S(sMB)}, 12"); e(f"s_lshl_b32 {S(sT1)}, {S(sNB)}, 8"); e(f"s_add_u32 {S(sT0)}, {S(sT0)}, {S(sT1)}"); e(f"s_add_u32 {S(sT0)}, {S(sT0)}, {ST_OFF}")
        e(f"v_and_b32 {R(va)}, 1, {R(vL)}"); e(f"v_lshl_add_u32 {R(va)}, {R(va)}, 7, {S(sT0)}"); e(f"v_bfe_u32 {R(va+1)}, {R(vL)}, 1, 1"); e(f"v_lshl_add_u32 {R(va)}, {R(va+1)}, 11, {R(va)}")
        e.vmem(f"buffer_load_dword v242, {R(va)}, {S(srdS,4)}, 0 offen sc1","pf")
        if True:
            e(f"s_lshl_b32 {S(sT0)}, {S(sXCD)}, 7"); e(f"v_and_b32 {R(va)}, 7, {R(vL)}"); e(f"v_lshl_add_u32 {R(va)}, {R(va)}, 10, {S(sT0)}")
            e.vmem(f"buffer_load_dword v242, {R(va)}, {S(srdF,4)}, 0 offen sc1","pf")
    if s==5: prefetch(e,srdS,pWO,512*1024,4,j,va,240)
    if s==6:
        if 'w1all' in DBG: prefetch(e,srdS,pW1,512*3584,4,j,va,240)
        else: pfl(e,srdS,pW1,512*3584,[(sJ,32768),(j,8192)],0,64,va)
def x2touch(e,sw,nw,va):
    e(f"s_lshr_b32 {S(sT0)}, {S(sJ)}, 3"); e(f"s_lshl_b32 {S(sT1)}, {S(sXCD)}, 2"); e(f"s_add_u32 {S(sT0)}, {S(sT0)}, {S(sT1)}"); e(f"s_lshl_b32 {S(sT0)}, {S(sT0)}, 16")
    e(f"s_mul_i32 {S(sT1)}, {S(sw)}, {65536//nw}"); e(f"s_add_u32 {S(sT0)}, {S(sT0)}, {S(sT1)}")
    e(f"s_and_b32 {S(sT1)}, {S(sJ)}, 7"); e(f"s_lshl_b32 {S(sT1)}, {S(sT1)}, 7"); e(f"s_add_u32 {S(sT0)}, {S(sT0)}, {S(sT1)}")
    srd(e,srdR,pWS,X2_OFF,2*MB)
    e(f"v_and_b32 {R(va)}, {64//nw-1}, {R(vL)}"); e(f"v_lshl_add_u32 {R(va)}, {R(va)}, 10, {S(sT0)}")
    e.vmem(f"buffer_load_dword v242, {R(va)}, {S(srdR,4)}, 0 offen sc1","pf")
def phase1(e,L):
    wo=L*LSTRIDE
    ids64(e)
    srdsel(e,srdA,pX,0,2*MB,pWS,X2_OFF,4*MB)
    srd(e,srdO,pWS,wo+O_OFF,2*MB)
    tmp=9
    lab_h,lab_l,lab_att=e.newlab("p1h"),e.newlab("p1l"),e.newlab("p1att")
    issue=lambda s,ws,xs: p1_issue(e,L,s,ws,xs)
    def first3(xs):
        e.alt=[]
        for s in range(3):
            if s: w0(s)
            issue(s,[],xs)
    def w0(s):
        with ifL(e,0): e.only0=True; issue(s,range(3),[]); e.only0=False
    def xslot(si,k):
        e(f"s_lshl_b32 {S(dX+k)}, {S(si)}, 10")
        e(f"s_and_b32 {S(sT1)}, {S(si)}, 1"); e(f"s_lshl_b32 {S(sT1)}, {S(sT1)}, 6"); e(f"v_xor_b32 {R(vX+k)}, {S(sT1)}, {R(vb+1)}")
        e(f"s_lshl_b32 {S(sT0)}, {S(sMB)}, 16"); e(f"s_lshl_b32 {S(sT1)}, {S(si)}, 13"); e(f"s_add_u32 {S(sT0)}, {S(sT0)}, {S(sT1)}")
        e(f"s_sub_u32 {S(sT0)}, {S(sT0)}, 0x4000")
        if True:
            e(f"s_lshl_b32 {S(sT2)}, {S(sXCD)}, 14"); e(f"s_add_u32 {S(sT2)}, {S(sT2)}, {S(sT1)}"); e(f"s_add_u32 {S(sT2)}, {S(sT2)}, {X2H_OFF-X2_OFF-0x4000}")
            e(f"s_cmp_lt_u32 {S(si)}, 2"); e(f"s_cselect_b32 {S(sT1)}, {S(sD+9)}, 0"); e(f"s_cmp_lg_u32 {S(sT1)}, 0"); e(f"s_cselect_b32 {S(sT0)}, {S(sT2)}, {S(sT0)}")
        e(f"v_add_u32 {R(vX+k)}, {S(sT0)}, {R(vX+k)}")
    def bump(regs,s):
        d=STG if s%4!=3 else -3*STG
        for r in regs: e(f"v_add_u32 {R(r)}, {d&0xffffffff:#x}, {R(r)}")
    def xaddr(dst,n,step,rowbase,w16):
        if w16: e(f"v_and_b32 {R(tmp)}, 15, {R(vL)}"); e(f"v_lshrrev_b32 {R(tmp+1)}, 4, {R(vL)}")
        else: e(f"v_and_b32 {R(tmp)}, 31, {R(vL)}"); e(f"v_lshrrev_b32 {R(tmp+1)}, 5, {R(vL)}")
        if rowbase is not None: e(f"v_add_u32 {R(tmp)}, {rowbase}, {R(tmp)}")
        e(f"v_bfe_u32 {R(tmp+2)}, {R(tmp)}, 1, 3"); e(f"v_xor_b32 {R(tmp+1)}, {R(tmp+1)}, {R(tmp+2)}")
        e(f"v_lshlrev_b32 {R(tmp+1)}, 4, {R(tmp+1)}"); e(f"v_lshl_add_u32 {R(dst)}, {R(tmp)}, 7, {R(tmp+1)}")
        for i in range(1,n): e(f"v_xor_b32 {R(dst+i)}, {i*step}, {R(dst)}")
    if True:
        e(f"s_cmp_lt_u32 {S(sJ)}, 8"); e(f"s_cselect_b32 {S(sD+9)}, {S(sXCD)}, 0"); e(f"s_mul_i32 {S(sD+9)}, {S(sD+9)}, {S(sL)}")
        e(f"s_and_b32 {S(sD+12)}, {S(sJ)}, 24"); e(f"s_max_u32 {S(sT0)}, {S(sD+12)}, 8"); e(f"s_sub_u32 {S(sT0)}, {S(sT0)}, 8"); e(f"s_lshl_b32 {S(sT0)}, {S(sT0)}, 2")
        e(f"s_lshl_b32 {S(sT1)}, {S(sXCD)}, 7"); e(f"s_add_u32 {S(sT0)}, {S(sT0)}, {S(sT1)}"); e(f"s_add_u32 {S(sT0)}, {S(sT0)}, {3*1024}")
        e(f"s_add_u32 {S(sT1)}, {S(sT1)}, {7*1024-128}"); e(f"s_cmp_lg_u32 {S(sD+9)}, 0"); e(f"s_cselect_b32 {S(sD+13)}, {S(sT1)}, {S(sT0)}")
    xslot(sW,0)
    with ifL(e,1): waitflags(e,3,sD+12,8,sD+13)
    e(f"s_cmp_ge_u32 {S(sW)}, 4"); e(f"s_cbranch_scc1 {lab_l}")
    first3([0])
    q0=list(e.vm); q1=list(e.alt)
    e(f"s_cmp_eq_u32 {S(sW)}, 3"); e(f"s_cbranch_scc1 {lab_h}")
    e('s_setprio 1')
    vXa,vTa,vAcc,vF=2,6,32,96
    xaddr(vXa,4,32,16,False)
    tr_lane_base(e,vTa,tmp,"head")
    pA,nA,pB,nB=sD+10,sD+11,sD+12,sD+13
    e(f"s_min_u32 {S(pA)}, {S(sW)}, 1"); e(f"s_lshr_b32 {S(nA)}, {S(sW)}, 1"); e(f"s_lshl_b32 {S(pB)}, {S(pA)}, 1")
    e(f"s_and_b32 {S(nB)}, {S(sW)}, 1"); e(f"s_xor_b32 {S(nB)}, {S(nB)}, 1")
    for r,p,n in ((vTa+1,pB,nB),(vTa,pA,nA)):
        e(f"s_lshl_b32 {S(sT0)}, {S(n)}, 6"); e(f"v_xor_b32 {R(r)}, {S(sT0)}, {R(vTa)}")
        e(f"s_lshl_b32 {S(sT0)}, {S(p)}, 13"); e(f"s_add_u32 {S(sT0)}, {S(sT0)}, {WOF}"); e(f"v_add_u32 {R(r)}, {S(sT0)}, {R(r)}")
    def rd(t,p):
        b=vF+(t&1)*16; ks=t&3
        if p==0: trread(e,b+8,vTa,ks*2048,("a",t))
        if p==1: e.lds(f"ds_read_b128 {R(b,4)}, {R(vXa+ks)}",("a",t)); e.lds(f"ds_read_b128 {R(b+4,4)}, {R(vXa+ks)} offset:4096",("b",t))
        if p==2: trread(e,b+12,vTa+1,ks*2048,("c",t))
    e.wvm(("S",0)); e.bar(); stamp(e,1)
    for p in range(3): rd(0,p)
    for t in range(32):
        nx=t+1<32
        if nx and (t+1)%4==0:
            s=(t+1)//4
            e.wvm(("S",s)); (e.wlg0() if s<=4 else None); bump(range(vXa,vXa+6),s-1); (e.bar() if s<7 else None); stamp(e,1+s)
        b=vF+(t&1)*16
        if nx: rd(t+1,0)
        e.wlg(("a",t)); mfma32(e,vAcc,b+8,b,t==0)
        if nx: rd(t+1,1)
        e.wlg(("b",t)); mfma32(e,vAcc+16,b+8,b+4,t==0)
        if nx: rd(t+1,2)
        e.wlg(("c",t)); mfma32(e,vAcc+32,b+12,b,t==0); mfma32(e,vAcc+48,b+12,b+4,t==0)
    vC,vSt,vWA,vWB,vP=128,160,2,3,168
    e(f"v_lshrrev_b32 {R(tmp)}, 5, {R(vL)}"); e(f"v_and_b32 {R(tmp+1)}, 31, {R(vL)}")
    for r,p,n in ((4,pA,nA),(5,pB,nB)):
        e(f"s_lshl_b32 {S(sT0)}, {S(p)}, 8"); e(f"s_lshl_b32 {S(sT1)}, {S(n)}, 7"); e(f"s_add_u32 {S(sT0)}, {S(sT0)}, {S(sT1)}")
        e(f"s_add_u32 {S(sT0)}, {S(sT0)}, {CS1}"); e(f"v_lshl_add_u32 {R(r)}, {R(tmp)}, 6, {S(sT0)}")
    e(f"v_lshlrev_b32 {R(6)}, 3, {R(tmp+1)}"); e(f"v_add_u32 {R(6)}, {ST1+128:#x}, {R(6)}")
    e(f"v_mul_u32_u24 {R(vWA)}, 144, {R(tmp+1)}"); e(f"v_lshl_add_u32 {R(vWA)}, {R(tmp)}, 5, {R(vWA)}")
    e(f"v_mul_u32_u24 {R(vWB)}, 272, {R(tmp+1)}"); e(f"v_lshl_add_u32 {R(vWB)}, {R(tmp)}, 6, {R(vWB)}")
    e(f"s_mul_i32 {S(sT0)}, {S(pA)}, {KB+16*144}"); e(f"s_lshl_b32 {S(sT1)}, {S(nA)}, 6"); e(f"s_add_u32 {S(sT0)}, {S(sT0)}, {S(sT1)}")
    e(f"v_add_u32 {R(vWA)}, {S(sT0)}, {R(vWA)}")
    e(f"s_lshl_b32 {S(sT1)}, {S(nB)}, 7"); e(f"s_add_u32 {S(sT1)}, {S(sT1)}, {VB+16*272}"); e(f"v_add_u32 {R(vWB)}, {S(sT1)}, {R(vWB)}")
    e.bar(); stamp(e,9)
    for m in range(2): e.lds(f"ds_read_b64 {R(vSt+2*m,2)}, {R(6)} offset:{m*256}","st")
    for T in range(2):
        for g in range(4): e.lds(f"ds_read_b128 {R(vC+16*T+4*g,4)}, {R(4+T)} offset:{g*16}",("c",T))
    def corr(T,m):
        b=vAcc+32*T+16*m
        for j in range(8): e(f"v_pk_fma_f32 {R(b+2*j,2)}, {R(vC+16*T+2*j,2)}, {R(vSt+2*m,2)}, {R(b+2*j,2)} op_sel_hi:[1,0,1]")
        for j in range(8): e(f"v_pk_mul_f32 {R(b+2*j,2)}, {R(b+2*j,2)}, {R(vSt+2*m,2)} op_sel:[0,1] op_sel_hi:[1,1]")
    def wr16(T,m,off):
        b=vAcc+32*T+16*m; p=vP+8*(2*T+m)
        for j in range(8): e(f"v_cvt_pk_bf16_f32 {R(p+j)}, {R(b+2*j)}, {R(b+2*j+1)}")
        for j in range(2): e(f"ds_write_b128 {R(vWA)}, {R(p+4*j,4)} offset:{off+m*32*144+16*j}")
    e.wlg(("c",0))
    for m in range(2): corr(0,m); wr16(0,m,0)
    e.wlg0()
    for m in range(2): corr(1,m)
    lv=e.newlab("p1v"); e(f"s_cmp_lg_u32 {S(sW)}, 0"); e(f"s_cbranch_scc1 {lv}")
    for m in range(2): wr16(1,m,64)
    e(f"s_branch {lab_att}")
    e.lab(lv)
    for m in range(2):
        for j in range(4): e(f"ds_write_b128 {R(vWB)}, {R(vAcc+32+16*m+4*j,4)} offset:{m*32*272+16*j}")
    e(f"s_branch {lab_att}")
    e.lab(lab_h); e.reset(); e.vm=list(q0); e.alt=list(q1); e('s_setprio 1')
    vXa,vTh,vAcc,vXf,vWf=2,4,32,80,96
    xaddr(vXa,2,64,None,True)
    e(f"v_lshrrev_b32 {R(tmp)}, 4, {R(vL)}"); e(f"v_bfe_u32 {R(tmp+1)}, {R(vL)}, 2, 2")
    e(f"v_lshl_add_u32 {R(vTh)}, {R(tmp)}, 3, {R(tmp+1)}"); e(f"v_lshlrev_b32 {R(vTh)}, 7, {R(vTh)}")
    e(f"v_and_b32 {R(tmp)}, 1, {R(tmp)}"); e(f"v_lshlrev_b32 {R(tmp)}, 1, {R(tmp)}"); e(f"v_lshrrev_b32 {R(tmp+1)}, 1, {R(tmp+1)}")
    e(f"v_lshl_or_b32 {R(tmp)}, {R(tmp+1)}, 2, {R(tmp)}"); e(f"v_bfe_u32 {R(tmp+1)}, {R(vL)}, 1, 1"); e(f"v_or_b32 {R(tmp)}, {R(tmp)}, {R(tmp+1)}")
    e(f"v_lshl_add_u32 {R(vTh)}, {R(tmp)}, 4, {R(vTh)}"); e(f"v_and_b32 {R(tmp)}, 1, {R(vL)}"); e(f"v_lshl_add_u32 {R(vTh)}, {R(tmp)}, 3, {R(vTh)}")
    e(f"v_add_u32 {R(vTh)}, {WOF}, {R(vTh)}")
    for h in range(1,4): e(f"v_xor_b32 {R(vTh+h)}, {h*32}, {R(vTh)}")
    e(f"v_and_b32 {R(tmp)}, 15, {R(vL)}"); e(f"v_cmp_eq_u32 vcc, 0, {R(tmp)}"); e(f"v_mov_b32 {R(12)}, {S(sONE)}")
    def rdu(u,h):
        T,p=divmod(u,3); kk=T&1
        if p==0 and h==0: e.lds(f"ds_read_b128 {R(vXf+4*(T&1),4)}, {R(vXa+kk)}",("x",T))
        trread(e,vWf+(u&1)*16+4*h,vTh+h,p*8192+kk*4096,("w",u,h))
    e.wvm(("S",0)); e.bar()
    for h in range(4): rdu(0,h)
    for u in range(48):
        T,p=divmod(u,3)
        if u+1<48 and (u+1)%6==0:
            s=(u+1)//6
            e.wvm(("S",s)); (e.wlg0() if s<=4 else None); bump(range(vXa,vXa+6),s-1); (e.bar() if s<7 else None)
            if s==2:
                with ifL(e,0): hello(e)
        if p==0:
            e.wlg(("x",T))
            for i in range(4): e(f"v_cndmask_b32 {R(vXf+4*(T&1)+i)}, {R(vXf+4*(T&1)+i)}, {R(12)}, vcc")
            e.nop(2)
        for h in range(4):
            if u+1<48: rdu(u+1,h)
            e.wlg(("w",u,h)); mfma16(e,vAcc+16*p+4*h,vWf+(u&1)*16+4*h,vXf+4*(T&1),T==0)
    e(f"v_lshrrev_b32 {R(tmp)}, 4, {R(vL)}"); e(f"v_and_b32 {R(tmp+1)}, 15, {R(vL)}")
    e(f"v_lshlrev_b32 {R(2)}, 4, {R(tmp)}"); e(f"v_add_u32 {R(2)}, {CS1}, {R(2)}")
    e(f"v_lshlrev_b32 {R(3)}, 3, {R(tmp+1)}"); e(f"v_add_u32 {R(3)}, {ST1}, {R(3)}")
    e(f"v_mul_u32_u24 {R(4)}, 144, {R(tmp+1)}"); e(f"v_lshl_add_u32 {R(4)}, {R(tmp)}, 3, {R(4)}")
    e(f"v_mul_u32_u24 {R(5)}, 272, {R(tmp+1)}"); e(f"v_lshl_add_u32 {R(5)}, {R(tmp)}, 4, {R(5)}")
    e(f"s_and_saveexec_b64 {S(sD+14,2)}, vcc")
    for i in range(12): e(f"ds_write_b128 {R(2)}, {R(vAcc+4*i,4)} offset:{i*64}")
    e(f"s_mov_b64 exec, {S(sD+14,2)}")
    e.wlg0(); e.bar()
    vC,vSt=96,80
    e.lds(f"ds_read_b64 {R(vSt,2)}, {R(3)}","st")
    for i in range(8): e.lds(f"ds_read_b128 {R(vC+4*i,4)}, {R(2)} offset:{(4+i)*64}",("c",i))
    for i in range(8):
        e.wlg(("c",i)); b=vAcc+16+4*i
        for j in range(2): e(f"v_pk_fma_f32 {R(b+2*j,2)}, {R(vC+4*i+2*j,2)}, {R(vSt,2)}, {R(b+2*j,2)} op_sel_hi:[1,0,1]")
        for j in range(2): e(f"v_pk_mul_f32 {R(b+2*j,2)}, {R(b+2*j,2)}, {R(vSt,2)} op_sel:[0,1] op_sel_hi:[1,1]")
        if i<4:
            for j in range(2): e(f"v_cvt_pk_bf16_f32 {R(b+j)}, {R(b+2*j)}, {R(b+2*j+1)}")
            e.lds(f"ds_write_b64 {R(4)}, {R(b,2)} offset:{KB+i*32}")
        else: e.lds(f"ds_write_b128 {R(5)}, {R(b,4)} offset:{VB+(i-4)*64}")
    e(f"s_branch {lab_att}")
    e.lab(lab_l); e.reset(); e('s_setprio '+os.environ.get('PRIO','0'))
    j=sD+10; e(f"s_sub_u32 {S(j)}, {S(sW)}, 4")
    e(f"s_and_b32 {S(sD+11)}, {S(j)}, 1"); e(f"s_add_u32 {S(sD+11)}, {S(sD+11)}, 8"); xslot(sD+11,1)
    first3([0,1])
    wslots(e,j,3); xslot(j,2)
    vXa,vF,vS=2,32,12
    e(f"s_min_u32 {S(sT2)}, {S(j)}, 2"); e(f"s_lshl_b32 {S(sT2)}, {S(sT2)}, 5"); e(f"s_sub_u32 {S(sT2)}, {S(sT2)}, 16"); e(f"s_max_i32 {S(sT2)}, {S(sT2)}, 0")
    xaddr(vXa,4,32,S(sT2),False)
    e(f"v_lshlrev_b32 {R(6)}, 3, {R(tmp)}"); e(f"v_add_u32 {R(6)}, {ST1}, {R(6)}")
    for i in range(4): e(f"v_mov_b32 {R(vS+i)}, 0")
    for s in range(8):
        if s<7: e.wvm(("S",s if s<6 else 7)); e.bar()
        if 'sk3' not in DBG:
            for ks in range(4): e.lds(f"ds_read_b128 {R(vF+4*ks,4)}, {R(vXa+ks)}",("x",ks))
        if s<=4: issue(s+3,range(6),[0,1,2])
        if s==int(os.environ.get('QS',0)): pfl(e,srdS,pQKV,512*3072,[(sJ,30720),(j,7680)],192*3072,60,7)
        if s<6 or 'late6' not in DBG: p1_trickle(e,L,s,j)
        if s==int(os.environ.get('S1',6)): e('s_setprio '+os.environ.get('LP','2'))
        sk=e.newlab("nost")
        if 'sk3' in DBG:
            e(f"s_cmp_eq_u32 {S(j)}, 3"); e(f"s_cbranch_scc1 {sk}")
            for ks in range(4): e.lds(f"ds_read_b128 {R(vF+4*ks,4)}, {R(vXa+ks)}",("x",ks))
        if s<7: bump(range(vXa,vXa+4),s)
        for ks in range(4):
            e.wlg(("x",ks))
            for i in range(4):
                e(f"v_dot2_f32_bf16 {R(vS+(i&1))}, {R(vF+4*ks+i)}, {S(sONE)}, {R(vS+(i&1))}")
                e(f"v_dot2_f32_bf16 {R(vS+2+(i&1))}, {R(vF+4*ks+i)}, {R(vF+4*ks+i)}, {R(vS+2+(i&1))}")
        e.lab(sk)
    e.nop(3); e(f"v_add_f32 {R(vS)}, {R(vS)}, {R(vS+1)}"); e(f"v_add_f32 {R(vS+1)}, {R(vS+2)}, {R(vS+3)}")
    allsum_halves(e,vS,vS+2); allsum_halves(e,vS+1,vS+2)
    meanrstd(e,vS,vS+1,tmp); e(f"v_sub_f32 {R(vS)}, 0, {R(vS)}")
    sk=e.newlab("nosw"); e(f"s_cmp_eq_u32 {S(j)}, 3"); e(f"s_cbranch_scc1 {sk}"); e(f"ds_write_b64 {R(6)}, {R(vS,2)}"); e.lab(sk)
    if 'late6' in DBG: p1_trickle(e,L,6,j)
    e.wlg0(); e.bar()
    e.lab(lab_att); e.reset(); e('s_setprio 0')
    vQ,vK,vV,vLg,vO=16,32,96,160,176
    mt,h=sD,sD+1
    e(f"s_lshr_b32 {S(mt)}, {S(sW)}, 2"); e(f"s_and_b32 {S(h)}, {S(sW)}, 3")
    e(f"v_and_b32 {R(tmp)}, 31, {R(vL)}"); e(f"s_lshl_b32 {S(sT0)}, {S(mt)}, 5"); e(f"v_add_u32 {R(tmp)}, {S(sT0)}, {R(tmp)}")
    e(f"v_lshrrev_b32 {R(tmp+1)}, 5, {R(vL)}")
    e(f"s_lshl_b32 {S(sT0)}, {S(h)}, 5"); e(f"v_mul_u32_u24 {R(2)}, 144, {R(tmp)}"); e(f"v_add_u32 {R(2)}, {S(sT0)}, {R(2)}"); e(f"v_lshl_add_u32 {R(2)}, {R(tmp+1)}, 4, {R(2)}")
    e(f"s_lshl_b32 {S(sT0)}, {S(h)}, 6"); e(f"v_mul_u32_u24 {R(3)}, 272, {R(tmp)}"); e(f"v_lshl_add_u32 {R(3)}, {R(tmp+1)}, 5, {R(3)}"); e(f"v_add_u32 {R(3)}, {S(sT0)}, {R(3)}")
    e(f"s_lshl_b32 {S(sT0)}, {S(sMB)}, 6"); e(f"v_add_u32 {R(4)}, {S(sT0)}, {R(tmp)}")
    e(f"s_lshl_b32 {S(sT0)}, {S(sMB)}, 1"); e(f"s_add_u32 {S(sT0)}, {S(sT0)}, {S(mt)}"); e(f"s_lshl_b32 {S(sT0)}, {S(sT0)}, 5")
    e(f"s_lshl_b32 {S(sT1)}, {S(sNB)}, 2"); e(f"s_add_u32 {S(sT0)}, {S(sT0)}, {S(sT1)}"); e(f"s_add_u32 {S(sT0)}, {S(sT0)}, {S(h)}"); e(f"s_lshl_b32 {S(sT0)}, {S(sT0)}, 10")
    e(f"v_lshl_add_u32 {R(5)}, {R(vL)}, 4, {S(sT0)}")
    srd(e,srdW,pWO,0,512*1024); bsrc(e,14,tmp,8,sKQ,sMH,WO_LDS,16384,sLB)
    e(f"v_mov_b32 {R(6)}, 0xce6e6b28"); e(f"v_mov_b32 {R(7)}, 0x3eb8aa3b")
    e.wlg0(); e.bar(); stamp(e,10)
    e.lds(f"ds_read_b128 {R(vQ,4)}, {R(2)} offset:{QB}","q")
    for jj in range(8): e.lds(f"ds_read_b128 {R(vK+4*jj,4)}, {R(2)} offset:{KB+288+(7-jj)*288}",("k",jj))
    for jj in range(8):
        for i in range(2): e.lds(f"ds_read_b128 {R(vV+8*jj+4*i,4)}, {R(3)} offset:{VB+544+(7-jj)*544+16*i}",("v",jj))
        if jj in (1,3,5,7):
            e.wlg(("k",jj))
            for i in range(4):
                for j2 in (jj-1,jj): e(f"v_dot2_f32_bf16 {R(vLg+j2)}, {R(vQ+i)}, {R(vK+4*j2+i)}, {R(vLg+j2) if i else '0'}")
        dma(e,14,srdW,jj*16384,(sLB,jj*2048),"pre")
    vT=vK
    for jj in range(8): e(f"v_mov_b32 {R(vT+jj)}, {R(vLg+jj)}")
    for jj in range(8): e(f"v_permlane32_swap_b32 {R(vT+jj)}, {R(vLg+jj)}")
    for jj in range(4): e(f"v_pk_add_f32 {R(vLg+2*jj,2)}, {R(vLg+2*jj,2)}, {R(vT+2*jj,2)}")
    for jj in range(1,8): e(f"v_cmp_le_u32 {S(sD+2*jj,2)}, {2*jj}, {R(4)}")
    for jj in range(1,8): e(f"v_cndmask_b32 {R(vLg+jj)}, {R(6)}, {R(vLg+jj)}, {S(sD+2*jj,2)}")
    m=8
    e(f"v_max3_f32 {R(m)}, {R(vLg)}, {R(vLg+1)}, {R(vLg+2)}"); e(f"v_max3_f32 {R(m)}, {R(m)}, {R(vLg+3)}, {R(vLg+4)}")
    e(f"v_max3_f32 {R(m)}, {R(m)}, {R(vLg+5)}, {R(vLg+6)}"); e(f"v_max_f32 {R(m)}, {R(m)}, {R(vLg+7)}")
    for jj in range(8): e(f"v_sub_f32 {R(vLg+jj)}, {R(vLg+jj)}, {R(m)}")
    for jj in range(8): e(f"v_mul_f32 {R(vLg+jj)}, {R(7)}, {R(vLg+jj)}")
    for jj in range(8): e(f"v_exp_f32 {R(vLg+jj)}, {R(vLg+jj)}")
    e.nop(1)
    e(f"v_pk_add_f32 {R(10,2)}, {R(vLg,2)}, {R(vLg+2,2)}"); e(f"v_pk_add_f32 {R(12,2)}, {R(vLg+4,2)}, {R(vLg+6,2)}")
    e(f"v_pk_add_f32 {R(10,2)}, {R(10,2)}, {R(12,2)}"); e(f"v_add_f32 {R(10)}, {R(10)}, {R(11)}"); e(f"v_rcp_f32 {R(10)}, {R(10)}")
    for jj in range(8):
        e.wlg(("v",jj)); pb=vLg+(jj&~1); o=jj&1
        for i in range(4):
            if jj==0: e(f"v_pk_mul_f32 {R(vO+2*i,2)}, {R(vV+2*i,2)}, {R(pb,2)} op_sel_hi:[1,0]")
            else: e(f"v_pk_fma_f32 {R(vO+2*i,2)}, {R(vV+8*jj+2*i,2)}, {R(pb,2)}, {R(vO+2*i,2)} op_sel:[0,{o},0] op_sel_hi:[1,{o},1]")
    for i in range(4): e(f"v_pk_mul_f32 {R(vO+2*i,2)}, {R(vO+2*i,2)}, {R(10,2)} op_sel_hi:[1,0]")
    for i in range(4): e(f"v_cvt_pk_bf16_f32 {R(vQ+i)}, {R(vO+2*i)}, {R(vO+2*i+1)}")
    with ifL(e,0): getmode(e)
    gstore(e,f"buffer_store_dwordx4 {R(vQ,4)}, {R(5)}, {S(srdO,4)}, 0 offen","st")
    publish(e,L*4)
    return ST1+1024

def desc(k):
    return f""".p2align 6
.amdhsa_kernel {k}
  .amdhsa_next_free_vgpr 256
  .amdhsa_next_free_sgpr 102
  .amdhsa_accum_offset 256
  .amdhsa_group_segment_fixed_size 0
  .amdhsa_kernarg_size 72
  .amdhsa_user_sgpr_count 2
  .amdhsa_user_sgpr_kernarg_segment_ptr 1
  .amdhsa_system_sgpr_workgroup_id_x 1
.end_amdhsa_kernel
"""
def build_multi():
    e=Em(); hdr=""; ks=[]
    for L in range(2):
        for p in (1,2,3,4):
            k=f"p{p}l{L}_kernel"; ks.append(k); nwg=224 if p==3 else 256
            e.L.append(f".globl {k}\n.p2align 8\n.type {k},@function\n{k}:"); e.endlab=f"end_{k}"; e.reset()
            prologue(e,nwg)
            lds=phase1(e,L) if p==1 else phase3(e,L) if p==3 else phase_rs(e,L,p)
            stamp_flush(e,L*4+p-1)
            e.lab(e.endlab); e("s_endpgm")
            hdr+=f"; @launch kernel={k} grid=({nwg},1,1) block=(512,1,1) lds={lds}\n"
    return hdr+'.amdgcn_target "amdgcn-amd-amdhsa--gfx950"\n.text\n'+e.text()+'.section .rodata,"a"\n'+"".join(desc(k) for k in ks)
def build_pers():
    e=Em(); k=NAME+"_kernel"
    e.L.append(f".globl {k}\n.p2align 8\n.type {k},@function\n{k}:"); e.endlab="end_all"
    prologue(e,256)
    e(f"s_mov_b32 {S(sL)}, 0"); e(f"s_mov_b32 {S(sFO)}, 0"); e("v_mov_b32 v15, 0")
    ids64(e); p1_setup(e,0)
    p1_issue(e,0,0,range(3),[])
    srd(e,srdD,50,0,256); srd(e,srdF,pWS,FL_OFF,16384)
    e.lab("layer")
    for p in (1,2,3,4):
        e.reset()
        if p>1: stamp(e,0)
        phase1(e,0) if p==1 else phase3(e,0) if p==3 else phase_rs(e,0,p)
        stamp_flush(e,p-1)
    e(f"s_mov_b32 {S(sL)}, 1"); e(f"s_mov_b32 {S(sFO)}, 4096"); stamp(e,0); e("s_branch layer")
    e.lab(e.endlab); e("s_endpgm")
    return f"; @launch grid=(256,1,1) block=(512,1,1) lds=163840\n"+'.amdgcn_target "amdgcn-amd-amdhsa--gfx950"\n.text\n'+e.text()+'.section .rodata,"a"\n'+desc(k)
if __name__=="__main__":
    if "slow" in sys.argv: FORCE_SLOW=True
    if "prof" in sys.argv: PROF=True
    out=sys.argv[1] if len(sys.argv)>1 else f"cdna_kernels/{NAME}.s"
    open(out,"w").write(build_pers())
```

```python
import sys,os
DBG=os.environ.get('DBG','')+',sk3,late6'
from em import *
NAME="interleave_layers__sliding_local_dilated__dense_activation_silu__prompt"
MB=1<<20
O_OFF,X1_OFF,H_OFF,X2_OFF,ST_OFF=0,2*MB,4*MB,12*MB,14*MB
LSTRIDE=0 if 'fresh' not in DBG else 16*MB
sW,sXCD,sJ,sT0,sT1,sT2,sT3,sMB,sNB,sKQ,sMH,sLB=3,4,5,6,7,8,9,10,11,12,13,14
sONE=15
srdA,srdW,srdR,srdO,srdS=16,20,24,28,32
pX,pQKV,pWO,pW1,pW2,pOUT,pWS=36,38,40,44,46,48,52
sD=56
vL=1
sMODE,sTAG=54,55
sL,sFO=100,101
import contextlib
@contextlib.contextmanager
def ifL(e,v):
    sk=e.newlab('ifl'); e(f's_cmp_lg_u32 {S(sL)}, {v}'); e(f's_cbranch_scc1 {sk}'); q=list(e.vm)
    yield
    e.lab(sk); e.vm=q
def srdsel(e,d,p0,o0,z0,p1,o1,z1):
    srd(e,d,p1,o1,z1)
    with ifL(e,0): srd(e,d,p0,o0,z0)
srdF,srdD=96,24
FL_OFF,X2H_OFF=40*MB,15*MB
vRES=248
vINFO=244
FORCE_SLOW=False
ONES=0x3F803F80

PROF=False
def stamp(e,i):
    if PROF: e(f"s_memrealtime {S(72+2*i,2)}")
def stamp_flush(e,slot,n=12):
    if not PROF: return
    sk=e.newlab("nopf"); e(f"s_cmp_lg_u32 {S(sW)}, {4 if 'w4' in DBG else 0}"); e(f"s_cbranch_scc1 {sk}")
    e("s_waitcnt vmcnt(0)"); stamp(e,n-1); e("s_waitcnt lgkmcnt(0)")
    srd(e,srdS,pWS,200*MB,MB)
    e(f"s_lshl_b32 {S(sT0)}, s2, 7"); e(f"s_add_u32 {S(sT0)}, {S(sT0)}, {slot*32768}"); e(f"s_lshl_b32 {S(sT1)}, {S(sL)}, 17"); e(f"s_add_u32 {S(sT0)}, {S(sT0)}, {S(sT1)}"); e(f"v_mov_b32 v2, {S(sT0)}")
    for i in range(n):
        e(f"v_mov_b32 v4, {S(72+2*i)}"); e(f"v_mov_b32 v5, {S(73+2*i)}"); e(f"buffer_store_dwordx2 v[4:5], v2, {S(srdS,4)}, 0 offen offset:{i*8}"); e.nop(2)
    e.lab(sk)
def gstore(e,instr,tag):
    a,b=e.newlab("gs"),e.newlab("gd")
    e(f"s_cmp_eq_u32 {S(sMODE)}, 0"); e(f"s_cbranch_scc1 {a}"); e.vmem(instr+(' nt' if 'stnt' in DBG else ' sc0' if 'stsc0' in DBG else ''),tag); e(f"s_branch {b}")
    e.lab(a); e(instr+" sc1"); e.lab(b)
def spin(e,body,cond):
    lp,out=e.newlab("spin"),e.newlab("spun")
    e(f"s_mov_b32 {S(sT3)}, 0"); e.lab(lp); body()
    e(f"s_add_u32 {S(sT3)}, {S(sT3)}, 1"); e(f"s_cmp_gt_u32 {S(sT3)}, 0x40000"); e(f"s_cbranch_scc1 {out}")
    cond(lp); e.lab(out)
def publish(e,ph,pre=None):
    e.wvm0(); e.bar()
    sk=e.newlab("nopub"); e(f"s_cmp_lg_u32 {S(sW)}, 0"); e(f"s_cbranch_scc1 {sk}")
    e(f"s_lshl_b32 {S(sT0)}, {S(sXCD)}, 7"); e(f"s_lshl_b32 {S(sT1)}, {S(sJ)}, 2"); e(f"s_add_u32 {S(sT0)}, {S(sT0)}, {S(sT1)}")
    e(f"v_mov_b32 v2, {S(sT0)}"); e(f"v_mov_b32 v3, {S(sTAG)}"); e("s_mov_b64 exec, 1")
    e(f"s_add_u32 {S(sT2)}, {S(sFO)}, {ph*1024}")
    gstore(e,f"buffer_store_dword v3, v2, {S(srdF,4)}, {S(sT2)} offen","fl")
    if pre: pre()
    e("s_mov_b64 exec, -1"); e.lab(sk); e.reset()
def waitflags(e,ph,jbase,n,second=None):
    sk=e.newlab("nopoll"); e(f"s_cmp_lg_u32 {S(sW)}, 0"); e(f"s_cbranch_scc1 {sk}")
    e(f"s_lshl_b32 {S(sT0)}, {S(sXCD)}, 7"); e(f"s_lshl_b32 {S(sT1)}, {S(jbase)}, 2"); e(f"s_add_u32 {S(sT0)}, {S(sT0)}, {S(sT1)}")
    e(f"s_add_u32 {S(sT0)}, {S(sT0)}, {ph*1024}")
    if ph<3: e(f"s_add_u32 {S(sT0)}, {S(sT0)}, {S(sFO)}")
    e(f"v_min_u32 v2, {n-1}, {R(vL)}"); e(f"v_lshl_add_u32 v2, v2, 2, {S(sT0)}")
    if second is not None:
        e(f"s_cmp_lg_u32 {S(sD+9)}, 0"); e(f"s_cselect_b32 {S(sT1)}, 31, 7"); e(f"v_and_b32 v3, {S(sT1)}, {R(vL)}"); e(f"v_lshl_add_u32 v3, v3, 2, {S(second)}"); e(f"v_cmp_gt_u32 vcc, 32, {R(vL)}"); e.nop(2); e("v_cndmask_b32 v2, v3, v2, vcc")
    def body(): e(f"buffer_load_dword v3, v2, {S(srdF,4)}, 0 offen sc1"); e("s_waitcnt vmcnt(0)"); e(f"v_cmp_ne_u32 vcc, {S(sTAG)}, v3")
    spin(e,body,lambda lp:e(f"s_cbranch_vccnz {lp}"))
    e(f"s_cmp_lg_u32 {S(sMODE)}, 0"); e(f"s_cbranch_scc1 {sk}"); e("buffer_inv sc1"); e("s_waitcnt vmcnt(0)")
    e.lab(sk); e.bar()
def hello(e):
    e(f"s_getreg_b32 {S(sT0)}, hwreg(HW_REG_XCC_ID, 0, 3)"); e(f"s_mul_i32 {S(sT0)}, {S(sT0)}, 6")
    e(f"s_lshl_b64 {S(sD+14,2)}, 1, {S(sT0)}"); e(f"s_add_u32 {S(sD+15)}, {S(sD+15)}, 0x1000000")
    e(f"s_lshl_b32 {S(sT1)}, {S(sXCD)}, 4"); e(f"v_mov_b32 v212, {S(sT1)}"); e(f"v_mov_b32 v214, {S(sD+14)}"); e(f"v_mov_b32 v215, {S(sD+15)}")
    e("s_mov_b64 exec, 1"); e.vmem(f"buffer_atomic_add_x2 v[214:215], v212, {S(srdD,4)}, 0 offen","hello")
    s2=e.newlab("notag"); e("s_cmp_lg_u32 s2, 0"); e(f"s_cbranch_scc1 {s2}")
    e("v_mov_b32 v212, 0x3000"); e(f"buffer_load_dword v213, v212, {S(srdF,4)}, 0 offen sc1"); e("s_waitcnt vmcnt(0)")
    e("v_add_u32 v213, 0x9e3779b9, v213"); e("v_max_u32 v213, 1, v213"); e(f"buffer_store_dword v213, v212, {S(srdF,4)}, 0 offen sc1")
    e("v_mov_b32 v212, 0x80"); e(f"buffer_store_dword v213, v212, {S(srdD,4)}, 0 offen sc1")
    e.lab(s2); e("s_mov_b64 exec, -1"); e.nop(4)
def getmode(e):
    e(f"s_lshl_b32 {S(sT0)}, {S(sXCD)}, 4"); e(f"v_mov_b32 {R(vINFO)}, {S(sT0)}"); e(f"v_mov_b32 {R(vINFO+1)}, 0x80")
    def body():
        e(f"buffer_load_dwordx2 {R(vINFO+2,2)}, {R(vINFO)}, {S(srdD,4)}, 0 offen sc1"); e(f"buffer_load_dword {R(vINFO-1)}, {R(vINFO+1)}, {S(srdD,4)}, 0 offen sc1")
        e("s_waitcnt vmcnt(0)"); e(f"v_readfirstlane_b32 {S(sD)}, {R(vINFO+2)}"); e(f"v_readfirstlane_b32 {S(sD+1)}, {R(vINFO+3)}"); e(f"v_readfirstlane_b32 {S(sTAG)}, {R(vINFO-1)}")
    def cond(lp):
        e(f"s_lshr_b32 {S(sT0)}, {S(sD+1)}, 24"); e(f"s_cmp_lt_u32 {S(sT0)}, 32"); e(f"s_cbranch_scc1 {lp}")
        e(f"s_cmp_eq_u32 {S(sTAG)}, 0"); e(f"s_cbranch_scc1 {lp}")
    spin(e,body,cond)
    e(f"s_getreg_b32 {S(sT0)}, hwreg(HW_REG_XCC_ID, 0, 3)"); e(f"s_mul_i32 {S(sT0)}, {S(sT0)}, 6")
    e(f"s_lshr_b64 {S(sD,2)}, {S(sD,2)}, {S(sT0)}"); e(f"s_and_b32 {S(sD)}, {S(sD)}, 63"); e(f"s_cmp_eq_u32 {S(sD)}, 32")
    e(f"s_cselect_b32 {S(sMODE)}, {0 if FORCE_SLOW else 1}, 0")
def prefetch(e,sr,ptr,total,nw,sw,va,dst,extra=None,off=0,only=None,nwg=32,sj=None):
    per=total//nwg//nw; lines=per//128; sj=sJ if sj is None else sj
    srd(e,sr,ptr,off,total if extra is None else 2*MB)
    e(f"s_mul_i32 {S(sT0)}, {S(sj)}, {total//nwg}"); e(f"s_mul_i32 {S(sT1)}, {S(sw)}, {per}"); e(f"s_add_u32 {S(sT0)}, {S(sT0)}, {S(sT1)}")
    if extra is not None: e(f"s_lshl_b32 {S(sT1)}, {S(sXCD)}, {extra}"); e(f"s_add_u32 {S(sT0)}, {S(sT0)}, {S(sT1)}")
    for i in range((lines+63)//64):
        if only is not None and i!=only: continue
        n=min(64,lines-64*i)
        e(f"v_min_u32 {R(va)}, {n-1}, {R(vL)}"); e(f"v_lshl_add_u32 {R(va)}, {R(va)}, 7, {S(sT0)}")
        if i: e(f"v_add_u32 {R(va)}, {8192*i}, {R(va)}")
        e.vmem(f"buffer_load_dword {R(dst)}, {R(va)}, {S(sr,4)}, 0 offen"+(' nt' if 'ntp' in DBG and NTS[sr] else ''),"pf")
def pfl(e,sr,ptr,total,terms,const,lines,va):
    srd(e,sr,ptr,0,total); e(f"s_mov_b32 {S(sT0)}, {const}")
    for sg,m in terms: e(f"s_mul_i32 {S(sT1)}, {S(sg)}, {m}"); e(f"s_add_u32 {S(sT0)}, {S(sT0)}, {S(sT1)}")
    for i in range((lines+63)//64):
        e(f"v_min_u32 {R(va)}, {min(64,lines-64*i)-1}, {R(vL)}"); e(f"v_lshl_add_u32 {R(va)}, {R(va)}, 7, {S(sT0)}")
        if i: e(f"v_add_u32 {R(va)}, {8192*i}, {R(va)}")
        e.vmem(f"buffer_load_dword v240, {R(va)}, {S(sr,4)}, 0 offen"+(' nt' if 'ntp' in DBG and NTS[sr] else ''),"pf")
def pf_w2(e,j,part):
    if part==0: pfl(e,srdR,pW2,1792*1024,[(j,448*1024),(sJ,5120)],0,40,7)
    else: pfl(e,srdR,pW2,1792*1024,[(j,448*1024),(sJ,9216)],160*1024,72,7)
def prologue(e,nwg):
    e(f"s_cmp_ge_u32 s2, {nwg}"); e("s_cbranch_scc1 "+e.endlab)
    stamp(e,0)
    e(f"s_load_dwordx16 s[36:51], s[0:1], 0"); e(f"s_load_dwordx2 s[52:53], s[0:1], 64")
    e("v_lshrrev_b32 v2, 6, v0"); e(f"v_and_b32 {R(vL)}, 63, v0")
    e(f"v_readfirstlane_b32 {S(sW)}, v2")
    e(f"s_and_b32 {S(sXCD)}, s2, 7"); e(f"s_lshr_b32 {S(sJ)}, s2, 3")
    e(f"s_mov_b32 {S(sONE)}, {ONES:#x}")
    e("s_waitcnt lgkmcnt(0)")
NTS={}
def srd(e,d,p,off,size):
    NTS[d]=(p in (pW1,pW2))
    if off: e(f"s_add_u32 {S(d)}, {S(p)}, {off:#x}"); e(f"s_addc_u32 {S(d+1)}, {S(p+1)}, 0")
    else: e(f"s_mov_b32 {S(d)}, {S(p)}"); e(f"s_mov_b32 {S(d+1)}, {S(p+1)}")
    e(f"s_mov_b32 {S(d+2)}, {size:#x}"); e(f"s_mov_b32 {S(d+3)}, 0x20000")
def dma(e,vaddr,srd_,soff,m0expr,tag,sc1=False):
    sg,c=m0expr
    if sg is None: e(f"s_mov_b32 m0, {c:#x}")
    else: e(f"s_add_u32 m0, {S(sg)}, {c:#x}")
    if soff: e(f"s_mov_b32 {S(sT3)}, {soff:#x}"); so=S(sT3)
    else: e("s_nop 0"); so="0"
    e.vmem(f"buffer_load_dwordx4 {R(vaddr)}, {S(srd_,4)}, {so} offen {'sc1 ' if sc1 else ''}{'nt ' if 'ntd' in DBG and NTS[srd_] else ''}lds",tag)
def ldfrag(e,dst,vaddr,srd_,t,tag,st):
    hi=t>>2
    if hi and (t&3==0 or st): e(f"s_mov_b32 {S(sT2)}, {hi*4096:#x}")
    so=S(sT2) if hi else "0"
    e.vmem(f"buffer_load_dwordx4 {R(dst,4)}, {R(vaddr)}, {S(srd_,4)}, {so} offen offset:{(t&3)*1024}"+' sc1'+(' nt' if 'nta' in DBG else ''),tag)
def tr_lane_base(e,dst,tmp,perm):
    a,b,c=tmp,tmp+1,tmp+2
    e(f"v_bfe_u32 {R(a)}, {R(vL)}, 2, 2")
    e(f"v_lshrrev_b32 {R(b)}, 5, {R(vL)}")
    e(f"v_lshl_add_u32 {R(dst)}, {R(b)}, 3, {R(a)}")
    e(f"v_lshlrev_b32 {R(dst)}, 7, {R(dst)}")
    e(f"v_lshrrev_b32 {R(a)}, 1, {R(a)}"); e(f"v_lshlrev_b32 {R(a)}, 2, {R(a)}")
    e(f"v_lshl_or_b32 {R(a)}, {R(b)}, 1, {R(a)}")
    if perm=="frag":
        e(f"v_bfe_u32 {R(b)}, {R(vL)}, 4, 1"); e(f"v_and_b32 {R(c)}, 1, {R(vL)}")
        e(f"v_lshl_or_b32 {R(b)}, {R(b)}, 1, {R(c)}"); e(f"v_bfe_u32 {R(c)}, {R(vL)}, 1, 1")
    else:
        e(f"v_and_b32 {R(b)}, 1, {R(vL)}"); e(f"v_bfe_u32 {R(c)}, {R(vL)}, 4, 1")
        e(f"v_lshl_or_b32 {R(b)}, {R(b)}, 1, {R(c)}"); e(f"v_bfe_u32 {R(c)}, {R(vL)}, 1, 1")
    e(f"v_xor_b32 {R(a)}, {R(a)}, {R(b)}")
    e(f"v_lshl_add_u32 {R(dst)}, {R(a)}, 4, {R(dst)}")
    e(f"v_lshl_add_u32 {R(dst)}, {R(c)}, 3, {R(dst)}")
def wdma_lane(e,dst,tmp,rowstride,odd):
    a,b=tmp,tmp+1
    e(f"v_lshrrev_b32 {R(a)}, 3, {R(vL)}")
    e(f"s_mov_b32 {S(sT0)}, {rowstride}"); e(f"v_mul_lo_u32 {R(dst)}, {R(a)}, {S(sT0)}")
    e(f"v_bfe_u32 {R(a)}, {R(vL)}, 4, 1"); e(f"v_lshlrev_b32 {R(a)}, 2, {R(a)}")
    if isinstance(odd,int):
        if odd: e(f"v_or_b32 {R(a)}, 2, {R(a)}")
    else: e(f"v_lshl_or_b32 {R(a)}, {odd}, 1, {R(a)}")
    e(f"v_and_b32 {R(b)}, 7, {R(vL)}"); e(f"v_xor_b32 {R(a)}, {R(a)}, {R(b)}")
    e(f"v_lshl_add_u32 {R(dst)}, {R(a)}, 4, {R(dst)}")
def mfma32(e,d,a,b,first): e(f"v_mfma_f32_32x32x16_bf16 {R(d,16)}, {R(a,4)}, {R(b,4)}, {'0' if first else R(d,16)}")
def mfma16(e,d,a,b,first): e(f"v_mfma_f32_16x16x32_bf16 {R(d,4)}, {R(a,4)}, {R(b,4)}, {'0' if first else R(d,4)}")
def trread(e,dst,va,off,tag):
    e.lds(f"ds_read_b64_tr_b16 {R(dst,2)}, {R(va)} offset:{off}",tag)
    e.lds(f"ds_read_b64_tr_b16 {R(dst+2,2)}, {R(va)} offset:{off+512}",tag)
def allsum_halves(e,a,t):
    e(f"v_mov_b32 {R(t)}, {R(a)}"); e.nop(2); e(f"v_permlane32_swap_b32 {R(t)}, {R(a)}"); e.nop(1); e(f"v_add_f32 {R(a)}, {R(a)}, {R(t)}")
def meanrstd(e,s_,q,t):
    e(f"v_mul_f32 {R(s_)}, 0x3b000000, {R(s_)}"); e(f"v_mul_f32 {R(q)}, 0x3b000000, {R(q)}")
    e(f"v_fma_f32 {R(q)}, -{R(s_)}, {R(s_)}, {R(q)}"); e(f"v_max_f32 {R(q)}, 0, {R(q)}")
    e(f"v_add_f32 {R(q)}, 0x3727c5ac, {R(q)}"); e(f"v_rsq_f32 {R(q)}, {R(q)}"); e.nop(1)

WO_LDS=96*1024
NPRE=int(os.environ.get('NPRE',18))
def ids64(e):
    e(f"s_lshr_b32 {S(sMB)}, {S(sJ)}, 3"); e(f"s_lshl_b32 {S(sT0)}, {S(sXCD)}, 2"); e(f"s_add_u32 {S(sMB)}, {S(sMB)}, {S(sT0)}")
    e(f"s_and_b32 {S(sNB)}, {S(sJ)}, 7"); e(f"s_and_b32 {S(sKQ)}, {S(sW)}, 3"); e(f"s_lshr_b32 {S(sMH)}, {S(sW)}, 2")
def bsrc(e,vB,tmp,KS,kq,mh,ldsbase,slab,sdst):
    wdma_lane(e,vB,tmp,1024,S(mh) if mh is not None else 0)
    e(f"s_mul_i32 {S(sT0)}, {S(kq)}, {KS*16*1024}"); e(f"s_and_b32 {S(sT1)}, {S(sJ)}, 7"); e(f"s_lshl_b32 {S(sT1)}, {S(sT1)}, 7"); e(f"s_add_u32 {S(sT0)}, {S(sT0)}, {S(sT1)}")
    e(f"s_mul_i32 {S(sdst)}, {S(kq)}, {slab}"); e(f"s_add_u32 {S(sdst)}, {S(sdst)}, {ldsbase}")
    if mh is not None:
        e(f"s_lshl_b32 {S(sT1)}, {S(mh)}, 13"); e(f"s_add_u32 {S(sT0)}, {S(sT0)}, {S(sT1)}")
        e(f"s_lshl_b32 {S(sT1)}, {S(mh)}, 10"); e(f"s_add_u32 {S(sdst)}, {S(sdst)}, {S(sT1)}")
    e(f"v_add_u32 {R(vB)}, {S(sT0)}, {R(vB)}")
def p4_preload(e,j,part):
    if part==0:
        srd(e,srdW,pW2,0,1792*1024); bsrc(e,14,9,28,j,None,0,40960,sLB)
        e("v_xor_b32 v15, 32, v14"); e("v_add_u32 v15, 0x2000, v15")
    for t in range(NPRE):
        for h in range(2): dma(e,14+h,srdW,t*16384,(sLB,t*2048+h*1024),"pre")
def phase_rs(e,L,which):
    P2=which==2
    K=512 if P2 else 1792; KS=K//64; RING=8 if P2 else 20; SLAB=RING*2048; LB=WO_LDS if P2 else 0; RB=0 if P2 else 112*1024; LA=8 if P2 else int(os.environ.get('LA',6))
    wo=L*LSTRIDE
    ids64(e)
    if P2:
        srd(e,srdA,pWS,wo+O_OFF,2*MB)
        srd(e,srdR,pX,0,2*MB)
        srd(e,srdO,pWS,wo+X1_OFF,2*MB); srd(e,srdS,pWS,wo+ST_OFF,128*1024)
    else:
        srd(e,srdA,pWS,wo+H_OFF,7*MB); srd(e,srdW,pW2,0,1792*1024); srd(e,srdR,pWS,X2H_OFF,128*1024)
        srdsel(e,srdO,pWS,X2_OFF,2*MB,pOUT,0,2*MB)
    vA,vB,vF,vRM,vT0,vT1,vRD,vRes,vAcc,vBf,vAf=12,13,4,5,6,7,8,vRES,16,48,80
    tmp=9; mt=sD+10; sb=sD+11
    e(f"s_lshl_b32 {S(mt)}, {S(sMB)}, 1"); e(f"s_add_u32 {S(mt)}, {S(mt)}, {S(sMH)}")
    e(f"s_mul_i32 {S(sT0)}, {S(mt)}, {K//16*1024}"); e(f"s_mul_i32 {S(sT1)}, {S(sKQ)}, {KS*1024}"); e(f"s_add_u32 {S(sT0)}, {S(sT0)}, {S(sT1)}")
    e(f"v_lshl_add_u32 {R(vA)}, {R(vL)}, 4, {S(sT0)}")
    if not P2: bsrc(e,vB,tmp,KS,sKQ,sMH,0,SLAB,sb)
    e(f"s_lshl_b32 {S(sT0)}, {S(mt)}, 5"); e(f"s_lshl_b32 {S(sT1)}, {S(sNB)}, 2"); e(f"s_add_u32 {S(sT1)}, {S(sT1)}, {S(sKQ)}")
    e(f"s_add_u32 {S(sT0)}, {S(sT0)}, {S(sT1)}"); e(f"s_lshl_b32 {S(sT0)}, {S(sT0)}, 10")
    e(f"v_lshl_add_u32 {R(vF)}, {R(vL)}, 4, {S(sT0)}")
    e(f"s_lshl_b32 {S(sT0)}, {S(mt)}, 15"); e(f"s_lshl_b32 {S(sT1)}, {S(sT1)}, 5"); e(f"s_add_u32 {S(sT0)}, {S(sT0)}, {S(sT1)}")
    e(f"v_and_b32 {R(tmp)}, 31, {R(vL)}"); e(f"v_lshlrev_b32 {R(tmp)}, 10, {R(tmp)}"); e(f"v_lshrrev_b32 {R(tmp+1)}, 5, {R(vL)}")
    e(f"v_lshl_add_u32 {R(tmp)}, {R(tmp+1)}, 4, {R(tmp)}"); e(f"v_add_u32 {R(vRM)}, {S(sT0)}, {R(tmp)}")
    tr_lane_base(e,vT0,tmp,"frag")
    e(f"s_mul_i32 {S(sT0)}, {S(sKQ)}, {SLAB}"); e(f"s_add_u32 {S(sT0)}, {S(sT0)}, {LB}")
    e(f"v_add_u32 {R(vT0)}, {S(sT0)}, {R(vT0)}"); e(f"v_xor_b32 {R(vT1)}, 64, {R(vT0)}")
    e(f"s_mul_i32 {S(sT0)}, {S(sMH)}, {12*2048}"); e(f"s_add_u32 {S(sT0)}, {S(sT0)}, {RB}"); e(f"v_lshl_add_u32 {R(vRD)}, {R(vL)}, 4, {S(sT0)}")
    def rd(t,nt): trread(e,vBf+(t&1)*8+nt*4,vT0+nt,(t%RING)*2048,("f",t,nt))
    if P2:
        with ifL(e,0): e(f"buffer_load_dwordx4 {R(vRes,4)}, {R(vRM)}, {S(srdR,4)}, 0 offen")
    if not P2:
        for u in range(NPRE,RING): dma(e,vB,srdW,u*16384,(sb,u*2048),"B1")
    if P2: e(f"s_and_b32 {S(sD+2)}, {S(sJ)}, 24"); waitflags(e,L*4,sD+2,8)
    else: e(f"s_lshr_b32 {S(sD+2)}, {S(sJ)}, 4"); e(f"s_mul_i32 {S(sD+2)}, {S(sD+2)}, 14"); waitflags(e,L*4+2,sD+2,14)
    stamp(e,9)
    for t in range(LA): ldfrag(e,vAf+4*t,vA,srdA,t,("A",t),False)
    if P2 and 'now1b' not in DBG and 'w1all' not in DBG: pfl(e,srdW,pW1,512*3584,[(sJ,24576),(sW,3072)],MB,24,tmp)
    rd(0,0); rd(0,1)
    for t in range(KS):
        if t+LA<KS: ldfrag(e,vAf+4*(t+LA),vA,srdA,t+LA,("A",t+LA),False)
        if not P2 and t==9:
            e.bar()
        if not P2 and 9<=t<17: u=RING+t-9; dma(e,vB,srdW,u*16384,(sb,(u%RING)*2048),"B")
        if t+1==RING and t+1<KS: e.wvm("B"); e.bar()
        e.wvm(("A",t))
        if t%4==0: stamp(e,1+t//4)
        for nt in range(2):
            if t+1<KS: rd(t+1,nt)
            e.wlg(("f",t,nt)); mfma32(e,vAcc+16*nt,vBf+(t&1)*8+nt*4,vAf+4*t,t==0)
        if not P2 and t==KS-LA:
            with ifL(e,0): (prefetch(e,srdS,pQKV,512*3072,8,sW,9,240) if 'qall' in DBG else pfl(e,srdS,pQKV,512*3072,[(sJ,18432),(sW,2304)],0,18,9)); p1_setup(e,1)
    if not P2: e.bar()
    stamp(e,10); e.nop(10)
    own=vBf
    done=e.newlab("rdone"); labs=[e.newlab("rv") for _ in range(4)]
    for q in range(1,4): e(f"s_cmp_eq_u32 {S(sKQ)}, {q}"); e(f"s_cbranch_scc1 {labs[q]}")
    for kq in range(4):
        e.lab(labs[kq])
        for q in range(4):
            if q==kq: continue
            for j in range(2): e(f"ds_write_b128 {R(vRD)}, {R(vAcc+8*q+4*j,4)} offset:{(q*3+((kq-q)&3)-1)*2048+j*1024}")
        for j in range(8): e(f"v_mov_b32 {R(own+j)}, {R(vAcc+8*kq+j)}")
        if kq<3: e(f"s_branch {done}")
    e.lab(done)
    e(f"s_mul_i32 {S(sT0)}, {S(sKQ)}, {3*2048}"); e(f"v_add_u32 {R(vRD)}, {S(sT0)}, {R(vRD)}")
    if not P2:
        with ifL(e,0):
            for s_ in range(3): p1_issue(e,1,s_,range(3),[])
    e.wlg0(); e.bar()
    for i in range(1,4):
        for j in range(2): e.lds(f"ds_read_b128 {R(own+8*i+4*j,4)}, {R(vRD)} offset:{(i-1)*2048+j*1024}",("p",i))
    e.wvm("res")
    rf=vAcc
    for j in range(4):
        e(f"v_lshlrev_b32 {R(rf+2*j)}, 16, {R(vRes+j)}"); e(f"v_and_b32 {R(rf+2*j+1)}, 0xffff0000, {R(vRes+j)}")
    for j in range(4): e(f"v_pk_add_f32 {R(own+2*j,2)}, {R(own+2*j,2)}, {R(rf+2*j,2)}")
    for i in range(1,4):
        e.wlg(("p",i))
        for j in range(4): e(f"v_pk_add_f32 {R(own+2*j,2)}, {R(own+2*j,2)}, {R(own+8*i+2*j,2)}")
    for j in range(4): e(f"v_cvt_pk_bf16_f32 {R(vRes+j)}, {R(own+2*j)}, {R(own+2*j+1)}")
    ins=f"buffer_store_dwordx4 {R(vRes,4)}, {R(vF if P2 else vRM)}, {S(srdO,4)}, 0 offen"
    gstore(e,ins,"st")
    if not P2:
        if PROF:
            with ifL(e,1): stamp_flush(e,3)
        e(f"s_cmp_lg_u32 {S(sL)}, 0"); e(f"s_cbranch_scc1 {e.endlab}")
        publish(e,3)
        sk=e.newlab("nohalo"); e(f"s_and_b32 {S(sT0)}, {S(mt)}, 7"); e(f"s_cmp_lg_u32 {S(sT0)}, 7"); e(f"s_cbranch_scc1 {sk}")
        e(f"s_lshl_b32 {S(sT0)}, {S(mt)}, 15"); e(f"s_lshl_b32 {S(sT1)}, {S(sXCD)}, 14"); e(f"s_sub_u32 {S(sT0)}, {S(sT0)}, {S(sT1)}"); e(f"s_add_u32 {S(sT0)}, {S(sT0)}, 0x4000")
        e(f"v_subrev_u32 {R(tmp)}, {S(sT0)}, {R(vRM)}"); e("s_mov_b32 exec_lo, 0xffff0000"); e("s_mov_b32 exec_hi, 0xffff0000")
        e(f"buffer_store_dwordx4 {R(vRes,4)}, {R(tmp)}, {S(srdR,4)}, 0 offen sc1"); e("s_mov_b64 exec, -1")
        e(f"s_lshl_b32 {S(sT0)}, {S(sXCD)}, 5"); e(f"s_lshl_b32 {S(sT1)}, {S(sNB)}, 2"); e(f"s_add_u32 {S(sT0)}, {S(sT0)}, {S(sT1)}"); e(f"s_add_u32 {S(sT0)}, {S(sT0)}, {S(sKQ)}")
        e(f"s_lshl_b32 {S(sT0)}, {S(sT0)}, 2"); e(f"s_add_u32 {S(sT0)}, {S(sT0)}, {7*1024}"); e(f"v_mov_b32 v2, {S(sT0)}"); e(f"v_mov_b32 v3, {S(sTAG)}")
        e("s_waitcnt vmcnt(0)"); e("s_mov_b64 exec, 1"); e(f"buffer_store_dword v3, v2, {S(srdF,4)}, 0 offen sc1"); e("s_mov_b64 exec, -1"); e.lab(sk)
    if P2:
        a,b=rf,rf+1
        e(f"v_dot2_f32_bf16 {R(a)}, {R(vRes)}, {S(sONE)}, 0"); e(f"v_dot2_f32_bf16 {R(b)}, {R(vRes)}, {R(vRes)}, 0")
        for j in range(1,4):
            e(f"v_dot2_f32_bf16 {R(a)}, {R(vRes+j)}, {S(sONE)}, {R(a)}"); e(f"v_dot2_f32_bf16 {R(b)}, {R(vRes+j)}, {R(vRes+j)}, {R(b)}")
        e(f"s_lshl_b32 {S(sT0)}, {S(sW)}, 8"); e(f"s_add_u32 {S(sT0)}, {S(sT0)}, 0xc000")
        e(f"v_lshl_add_u32 {R(tmp)}, {R(vL)}, 2, {S(sT0)}"); e.nop(2)
        e(f"v_permlane32_swap_b32 {R(a)}, {R(b)}"); e.nop(1); e(f"v_add_f32 {R(a)}, {R(a)}, {R(b)}")
        e(f"ds_write_b32 {R(tmp)}, {R(a)}"); e.wlg0(); e.bar()
        sk=e.newlab("nost"); e(f"s_cmp_lg_u32 {S(sKQ)}, 0"); e(f"s_cbranch_scc1 {sk}")
        for i in range(1,4): e(f"ds_read_b32 {R(rf+1+i)}, {R(tmp)} offset:{i*256}")
        e(f"s_lshl_b32 {S(sT0)}, {S(mt)}, 3"); e(f"s_add_u32 {S(sT0)}, {S(sT0)}, {S(sNB)}"); e(f"s_lshl_b32 {S(sT0)}, {S(sT0)}, 8")
        e(f"v_lshl_add_u32 {R(tmp)}, {R(vL)}, 2, {S(sT0)}"); e.wlg0()
        e(f"v_add_f32 {R(a)}, {R(a)}, {R(rf+2)}"); e(f"v_add_f32 {R(rf+3)}, {R(rf+3)}, {R(rf+4)}"); e(f"v_add_f32 {R(a)}, {R(a)}, {R(rf+3)}")
        gstore(e,f"buffer_store_dword {R(a)}, {R(tmp)}, {S(srdS,4)}, 0 offen","st")
        e.lab(sk)
        publish(e,L*4+1)

def phase3(e,L):
    wo=L*LSTRIDE; LA=8
    e(f"s_cmp_ge_u32 {S(sJ)}, 14"); e(f"s_cselect_b32 {S(sT0)}, 1, 0"); e(f"s_cselect_b32 {S(sT1)}, 14, 0")
    e(f"s_sub_u32 {S(sNB)}, {S(sJ)}, {S(sT1)}"); e(f"s_lshl_b32 {S(sMB)}, {S(sXCD)}, 1"); e(f"s_add_u32 {S(sMB)}, {S(sMB)}, {S(sT0)}")
    srd(e,srdA,pWS,wo+X1_OFF,2*MB); srd(e,srdW,pW1,0,512*3584); srd(e,srdO,pWS,wo+H_OFF,7*MB); srd(e,srdS,pWS,wo+ST_OFF,128*1024)
    CS=131072
    ld=e.newlab("p3ld"); fin=e.newlab("p3fin"); skip=e.newlab("p3skip"); sk2=e.newlab("p3end")
    j=sD; e(f"s_sub_u32 {S(j)}, {S(sW)}, 4")
    e(f"s_cmp_ge_u32 {S(sJ)}, 28"); e(f"s_cbranch_scc1 {skip}")
    tmp=9
    e(f"s_cmp_ge_u32 {S(sW)}, 4"); e(f"s_cbranch_scc1 {ld}")
    e('s_setprio 1')
    vA,vT,vH,vM,vS,vSt,vAcc,vBf,vAf=12,4,13,14,2,16,24,88,120
    mt=sD
    e(f"s_lshl_b32 {S(mt)}, {S(sMB)}, 2"); e(f"s_add_u32 {S(mt)}, {S(mt)}, {S(sW)}")
    e(f"s_lshl_b32 {S(sT0)}, {S(mt)}, 15"); e(f"v_lshl_add_u32 {R(vA)}, {R(vL)}, 4, {S(sT0)}")
    e(f"s_lshl_b32 {S(sT0)}, {S(mt)}, 11"); e(f"v_lshl_add_u32 {R(vH)}, {R(vL)}, 2, {S(sT0)}")
    tr_lane_base(e,vT,tmp,"frag")
    e(f"v_xor_b32 {R(vT+1)}, 64, {R(vT)}"); e(f"v_add_u32 {R(vT+2)}, 0x10000, {R(vT)}"); e(f"v_add_u32 {R(vT+3)}, 0x10000, {R(vT+1)}")
    e(f"s_and_b32 {S(sD+2)}, {S(sMB)}, 1"); e(f"s_lshl_b32 {S(sD+2)}, {S(sD+2)}, 4"); waitflags(e,L*4+1,sD+2,16); stamp(e,9)
    for t in range(LA): ldfrag(e,vAf+4*t,vA,srdA,t,("A",t),False)
    def rd(t,nt): trread(e,vBf+(t&1)*16+nt*4,vT+nt,t*2048,("f",t,nt))
    e.bar()
    for nt in range(4): rd(0,nt)
    for t in range(32):
        for u in (LA+2*t,LA+2*t+1):
            if u<32: ldfrag(e,vAf+4*u,vA,srdA,u,("A",u),False)
        if t==12:
            for i in range(8): e.vmem(f"buffer_load_dword {R(vSt+i)}, {R(vH)}, {S(srdS,4)}, 0 offen offset:{i*256} sc1","st")
            e(f"s_mul_i32 {S(sT0)}, {S(mt)}, {112*1024}"); e(f"s_lshl_b32 {S(sT1)}, {S(sNB)}, 13"); e(f"s_add_u32 {S(sT0)}, {S(sT0)}, {S(sT1)}")
            e(f"v_lshl_add_u32 {R(vH)}, {R(vL)}, 4, {S(sT0)}")
        if (t+1)%4==0 and t+1<=16: e.bar()
        e.wvm(("A",t))
        if t%4==0: stamp(e,1+t//4)
        for nt in range(4):
            if t+1<32: rd(t+1,nt)
            e.wlg(("f",t,nt)); mfma32(e,vAcc+16*nt,vBf+(t&1)*16+nt*4,vAf+4*t,t==0)
        if t==30:
            e.wvm("st")
            for i in (4,2,1):
                for jj in range(i): e(f"v_add_f32 {R(vSt+jj)}, {R(vSt+jj)}, {R(vSt+jj+i)}")
            e(f"v_mov_b32 {R(vSt+1)}, {R(vSt)}"); e.nop(2); e(f"v_permlane32_swap_b32 {R(vSt)}, {R(vSt+1)}"); e.nop(1)
            meanrstd(e,vSt,vSt+1,tmp)
            e(f"v_mul_f32 {R(vM)}, 0xbfb8aa3b, {R(vSt+1)}"); e(f"v_mul_f32 {R(vM+1)}, {R(vM)}, {R(vSt)}"); e(f"v_sub_f32 {R(vM+1)}, 0, {R(vM+1)}")
            e(f"v_mov_b32 {R(vS)}, 0xbfb8aa3b")
    e(f"v_lshrrev_b32 {R(tmp)}, 5, {R(vL)}"); e(f"v_lshlrev_b32 {R(tmp)}, 4, {R(tmp)}"); e(f"v_add_u32 {R(tmp)}, {CS:#x}, {R(tmp)}")
    e.bar(); stamp(e,10)
    vC=vAf
    for nt in range(4):
        for g in range(4): e.lds(f"ds_read_b128 {R(vC+16*nt+4*g,4)}, {R(tmp)} offset:{nt*128+g*32}",("c",nt))
    for jj in range(32): e(f"v_pk_mul_f32 {R(vAcc+2*jj,2)}, {R(vAcc+2*jj,2)}, {R(vM,2)} op_sel_hi:[1,0]") if jj>=24 or True else None
    e.wlg0(); e.bar()
    U=vBf; PK=vAf+64
    for nt in range(4):
        for hh in range(2):
            b=vAcc+16*nt+8*hh; c=vC+16*nt+8*hh; o=PK+(nt*2+hh)*4
            for jj in range(4): e(f"v_pk_fma_f32 {R(b+2*jj,2)}, {R(c+2*jj,2)}, {R(vM,2)}, {R(b+2*jj,2)} op_sel:[0,1,0] op_sel_hi:[1,1,1]")
            for jj in range(8): e(f"v_exp_f32 {R(U+jj)}, {R(b+jj)}")
            e.nop(1)
            for jj in range(4): e(f"v_pk_fma_f32 {R(U+2*jj,2)}, {R(U+2*jj,2)}, {R(vS,2)}, {R(vS,2)} op_sel_hi:[1,0,0]")
            for jj in range(8): e(f"v_rcp_f32 {R(U+jj)}, {R(U+jj)}")
            e.nop(1)
            for jj in range(4): e(f"v_pk_mul_f32 {R(b+2*jj,2)}, {R(b+2*jj,2)}, {R(U+2*jj,2)}")
            for jj in range(4): e(f"v_cvt_pk_bf16_f32 {R(o+jj)}, {R(b+2*jj)}, {R(b+2*jj+1)}")
            t=nt*2+hh
            if t==4: e(f"s_movk_i32 {S(sT2)}, 0x1000")
            gstore(e,f"buffer_store_dwordx4 {R(o,4)}, {R(vH)}, {S(srdO,4)}, {S(sT2) if t>=4 else '0'} offen offset:{(t&3)*1024}","st")
    e(f"s_branch {fin}")
    e.lab(ld); e.reset(); e('s_setprio '+os.environ.get('PRIO','0'))
    vB,vT,vCs,vBf=2,4,5,16
    wdma_lane(e,vB,tmp,3584,0)
    e(f"s_and_b32 {S(sD+1)}, {S(j)}, 1"); e(f"s_lshr_b32 {S(sD+2)}, {S(j)}, 1")
    e(f"s_mul_i32 {S(sT0)}, {S(sD+2)}, {32*3584}"); e(f"s_lshl_b32 {S(sT1)}, {S(sD+1)}, 7"); e(f"s_add_u32 {S(sT0)}, {S(sT0)}, {S(sT1)}")
    e(f"s_lshl_b32 {S(sT1)}, {S(sNB)}, 8"); e(f"s_add_u32 {S(sT0)}, {S(sT0)}, {S(sT1)}")
    e(f"v_add_u32 {R(vB)}, {S(sT0)}, {R(vB)}"); e(f"v_xor_b32 {R(vB+1)}, 32, {R(vB)}")
    e(f"s_lshl_b32 {S(sLB)}, {S(sD+1)}, 16"); e(f"s_lshl_b32 {S(sT1)}, {S(sD+2)}, 12"); e(f"s_add_u32 {S(sLB)}, {S(sLB)}, {S(sT1)}")
    def wch(ch):
        for i in range(4): dma(e,vB+(i&1),srdW,(ch*64+8*i)*3584,(sLB,ch*8192+i*1024),("B",ch))
    for ch in range(3): wch(ch)
    tr_lane_base(e,vT,tmp,"frag")
    e(f"s_lshl_b32 {S(sT0)}, {S(sD+1)}, 6"); e(f"v_xor_b32 {R(vT)}, {S(sT0)}, {R(vT)}")
    e(f"s_lshl_b32 {S(sT0)}, {S(sD+2)}, 16"); e(f"v_add_u32 {R(vT)}, {S(sT0)}, {R(vT)}")
    e(f"v_mov_b32 {R(vCs)}, 0"); e(f"v_mov_b32 {R(vCs+1)}, 0")
    e.bar()
    for ch in range(8):
        if ch<=4: e.wvm(("B",ch if ch<4 else 7)); e.bar()
        if ch==0: stamp(e,9)
        if ch==4: stamp(e,1)
        for c2 in {0:(3,4),1:(5,6),2:(7,)}.get(ch,()): wch(c2)
        if ch==3:
            e(f"s_lshl_b32 {S(sT0)}, {S(sMB)}, 2"); e(f"s_add_u32 {S(sT0)}, {S(sT0)}, {S(j)}"); e(f"s_mul_i32 {S(sT0)}, {S(sT0)}, {112*1024}")
            e(f"s_lshl_b32 {S(sT1)}, {S(sNB)}, 13"); e(f"s_add_u32 {S(sT0)}, {S(sT0)}, {S(sT1)}"); e(f"v_lshl_add_u32 v7, {R(vL)}, 7, {S(sT0)}")
            e.vmem(f"buffer_load_dword v242, v7, {S(srdO,4)}, 0 offen sc1","pf")
        if ch==4:
            pf_w2(e,j,0); pf_w2(e,j,1)
            with ifL(e,0): x2touch(e,j,4,7)
        if ch==int(os.environ.get('S3',6)): e('s_setprio '+os.environ.get('LP','2'))
        with ifL(e,0):
            for t in range(4): trread(e,vBf+4*t,vT,(ch*4+t)*2048,("f",t))
            for t in range(4):
                e.wlg(("f",t))
                for i in range(4): e(f"v_dot2_f32_bf16 {R(vCs+(i&1))}, {R(vBf+4*t+i)}, {S(sONE)}, {R(vCs+(i&1))}")
    e(f"s_lshl_b32 {S(sT0)}, {S(j)}, 7"); e(f"s_add_u32 {S(sT0)}, {S(sT0)}, {CS:#x}")
    e(f"v_and_b32 {R(tmp)}, 31, {R(vL)}"); e(f"v_lshl_add_u32 {R(tmp)}, {R(tmp)}, 2, {S(sT0)}"); e.nop(2)
    with ifL(e,0):
        e(f"v_add_f32 {R(vCs)}, {R(vCs)}, {R(vCs+1)}")
        allsum_halves(e,vCs,vCs+1); e(f"v_mov_b32 v252, {R(vCs)}")
    e(f"ds_write_b32 {R(tmp)}, v252")
    stamp(e,3)
    if 'w4' in DBG: e.wvm0()
    stamp(e,4); e.wlg0(); e('s_setprio 0'); e.bar(); e.bar(); stamp(e,5)
    p4_preload(e,j,0); e.bar(); e.wvm0()
    e(f"s_branch {sk2}")
    e.lab(fin); e('s_setprio 0'); publish(e,L*4+2); e(f"s_branch {sk2}")
    e.lab(skip)
    sk3=e.newlab("p3np"); e(f"s_cmp_lt_u32 {S(sW)}, 4"); e(f"s_cbranch_scc1 {sk3}"); pf_w2(e,j,0); pf_w2(e,j,1)
    with ifL(e,0): x2touch(e,j,4,7)
    p4_preload(e,j,0); e.lab(sk3)
    e.wvm0(); e.bar(); e.lab(sk2)

STG=34816; WOF=10240; CS1=4*STG; ST1=CS1+1024; QB,KB,VB=0,9216,20736
vW,vX,vb=200,206,209
dW,dX=sD,sD+6
def wslots(e,sw,k0):
    for a in range(3):
        e(f"s_mul_i32 {S(sT0)}, {S(sw)}, 3"); e(f"s_add_u32 {S(sT0)}, {S(sT0)}, {a}")
        e(f"s_lshl_b32 {S(dW+k0+a)}, {S(sT0)}, 10"); e(f"s_add_u32 {S(dW+k0+a)}, {S(dW+k0+a)}, {WOF}")
        e(f"s_and_b32 {S(sT1)}, {S(sT0)}, 1"); e(f"s_lshl_b32 {S(sT1)}, {S(sT1)}, 5"); e(f"v_xor_b32 {R(vW+k0+a)}, {S(sT1)}, {R(vb)}")
        e(f"s_and_b32 {S(sT1)}, {S(sT0)}, 7"); e(f"s_mul_i32 {S(sT1)}, {S(sT1)}, {8*3072}")
        e(f"s_lshr_b32 {S(sT0)}, {S(sT0)}, 3"); e(f"s_lshl_b32 {S(sT0)}, {S(sT0)}, 10"); e(f"s_add_u32 {S(sT0)}, {S(sT0)}, {S(sT1)}")
        e(f"v_add_u32 {R(vW+k0+a)}, {S(sT0)}, {R(vW+k0+a)}")
def p1_setup(e,L):
    tmp=9
    srd(e,srdW,pQKV,0,512*3072)
    wdma_lane(e,vb,tmp,3072,0)
    e(f"s_lshl_b32 {S(sT0)}, {S(sNB)}, 7"); e(f"v_add_u32 {R(vb)}, {S(sT0)}, {R(vb)}")
    e(f"v_lshrrev_b32 {R(tmp)}, 3, {R(vL)}"); e(f"v_lshrrev_b32 {R(tmp+1)}, 4, {R(vL)}"); e(f"v_and_b32 {R(tmp+2)}, 7, {R(vL)}")
    e(f"v_xor_b32 {R(tmp+1)}, {R(tmp+1)}, {R(tmp+2)}"); e(f"v_lshlrev_b32 {R(tmp+1)}, 4, {R(tmp+1)}")
    e(f"v_lshl_add_u32 {R(vb+1)}, {R(tmp)}, 10, {R(tmp+1)}")
    wslots(e,sW,0)
def p1_issue(e,L,s,ws,xs):
    b=(s%4)*STG
    for k in xs: dma(e,vX+k,srdA,s*128,(dX+k,b),("S",s),True)
    for k in ws: dma(e,vW+k,srdW,s*64*3072,(dW+k,b),("S",s))
def p1_trickle(e,L,s,j):
    wo=L*LSTRIDE; va=211
    if s==5 and "nopt" not in DBG:
        srd(e,srdS,pWS,wo,16*MB)
        e(f"s_lshl_b32 {S(sT0)}, {S(sMB)}, 16"); e(f"s_lshl_b32 {S(sT1)}, {S(sNB)}, 12"); e(f"s_add_u32 {S(sT0)}, {S(sT0)}, {S(sT1)}")
        e(f"s_and_b32 {S(sT1)}, {S(j)}, 1"); e(f"s_lshl_b32 {S(sT1)}, {S(sT1)}, 15"); e(f"s_add_u32 {S(sT0)}, {S(sT0)}, {S(sT1)}")
        e(f"s_lshr_b32 {S(sT1)}, {S(j)}, 1"); e(f"s_lshl_b32 {S(sT1)}, {S(sT1)}, 21"); e(f"s_add_u32 {S(sT0)}, {S(sT0)}, {S(sT1)}")
        e(f"v_and_b32 {R(va)}, 31, {R(vL)}"); e(f"v_lshl_add_u32 {R(va)}, {R(va)}, 7, {S(sT0)}")
        e.vmem(f"buffer_load_dword v242, {R(va)}, {S(srdS,4)}, 0 offen sc1","pf")
        e(f"s_lshl_b32 {S(sT0)}, {S(sMB)}, 12"); e(f"s_lshl_b32 {S(sT1)}, {S(sNB)}, 8"); e(f"s_add_u32 {S(sT0)}, {S(sT0)}, {S(sT1)}"); e(f"s_add_u32 {S(sT0)}, {S(sT0)}, {ST_OFF}")
        e(f"v_and_b32 {R(va)}, 1, {R(vL)}"); e(f"v_lshl_add_u32 {R(va)}, {R(va)}, 7, {S(sT0)}"); e(f"v_bfe_u32 {R(va+1)}, {R(vL)}, 1, 1"); e(f"v_lshl_add_u32 {R(va)}, {R(va+1)}, 11, {R(va)}")
        e.vmem(f"buffer_load_dword v242, {R(va)}, {S(srdS,4)}, 0 offen sc1","pf")
        if True:
            e(f"s_lshl_b32 {S(sT0)}, {S(sXCD)}, 7"); e(f"v_and_b32 {R(va)}, 7, {R(vL)}"); e(f"v_lshl_add_u32 {R(va)}, {R(va)}, 10, {S(sT0)}")
            e.vmem(f"buffer_load_dword v242, {R(va)}, {S(srdF,4)}, 0 offen sc1","pf")
    if s==5: prefetch(e,srdS,pWO,512*1024,4,j,va,240)
    if s==6:
        if 'w1all' in DBG: prefetch(e,srdS,pW1,512*3584,4,j,va,240)
        else: pfl(e,srdS,pW1,512*3584,[(sJ,32768),(j,8192)],0,64,va)
def x2touch(e,sw,nw,va):
    e(f"s_lshr_b32 {S(sT0)}, {S(sJ)}, 3"); e(f"s_lshl_b32 {S(sT1)}, {S(sXCD)}, 2"); e(f"s_add_u32 {S(sT0)}, {S(sT0)}, {S(sT1)}"); e(f"s_lshl_b32 {S(sT0)}, {S(sT0)}, 16")
    e(f"s_mul_i32 {S(sT1)}, {S(sw)}, {65536//nw}"); e(f"s_add_u32 {S(sT0)}, {S(sT0)}, {S(sT1)}")
    e(f"s_and_b32 {S(sT1)}, {S(sJ)}, 7"); e(f"s_lshl_b32 {S(sT1)}, {S(sT1)}, 7"); e(f"s_add_u32 {S(sT0)}, {S(sT0)}, {S(sT1)}")
    srd(e,srdR,pWS,X2_OFF,2*MB)
    e(f"v_and_b32 {R(va)}, {64//nw-1}, {R(vL)}"); e(f"v_lshl_add_u32 {R(va)}, {R(va)}, 10, {S(sT0)}")
    e.vmem(f"buffer_load_dword v242, {R(va)}, {S(srdR,4)}, 0 offen sc1","pf")
def phase1(e,L):
    wo=L*LSTRIDE
    ids64(e)
    srdsel(e,srdA,pX,0,2*MB,pWS,X2_OFF,4*MB)
    srd(e,srdO,pWS,wo+O_OFF,2*MB)
    tmp=9
    lab_h,lab_l,lab_att=e.newlab("p1h"),e.newlab("p1l"),e.newlab("p1att")
    issue=lambda s,ws,xs: p1_issue(e,L,s,ws,xs)
    def first3(xs):
        e.alt=[]
        for s in range(3):
            if s: w0(s)
            issue(s,[],xs)
    def w0(s):
        with ifL(e,0): e.only0=True; issue(s,range(3),[]); e.only0=False
    def xslot(si,k):
        e(f"s_lshl_b32 {S(dX+k)}, {S(si)}, 10")
        e(f"s_and_b32 {S(sT1)}, {S(si)}, 1"); e(f"s_lshl_b32 {S(sT1)}, {S(sT1)}, 6"); e(f"v_xor_b32 {R(vX+k)}, {S(sT1)}, {R(vb+1)}")
        e(f"s_lshl_b32 {S(sT0)}, {S(sMB)}, 16"); e(f"s_lshl_b32 {S(sT1)}, {S(si)}, 13"); e(f"s_add_u32 {S(sT0)}, {S(sT0)}, {S(sT1)}")
        e(f"s_sub_u32 {S(sT0)}, {S(sT0)}, 0x4000")
        if True:
            e(f"s_lshl_b32 {S(sT2)}, {S(sXCD)}, 14"); e(f"s_add_u32 {S(sT2)}, {S(sT2)}, {S(sT1)}"); e(f"s_add_u32 {S(sT2)}, {S(sT2)}, {X2H_OFF-X2_OFF-0x4000}")
            e(f"s_cmp_lt_u32 {S(si)}, 2"); e(f"s_cselect_b32 {S(sT1)}, {S(sD+9)}, 0"); e(f"s_cmp_lg_u32 {S(sT1)}, 0"); e(f"s_cselect_b32 {S(sT0)}, {S(sT2)}, {S(sT0)}")
        e(f"v_add_u32 {R(vX+k)}, {S(sT0)}, {R(vX+k)}")
    def bump(regs,s):
        d=STG if s%4!=3 else -3*STG
        for r in regs: e(f"v_add_u32 {R(r)}, {d&0xffffffff:#x}, {R(r)}")
    def xaddr(dst,n,step,rowbase,w16):
        if w16: e(f"v_and_b32 {R(tmp)}, 15, {R(vL)}"); e(f"v_lshrrev_b32 {R(tmp+1)}, 4, {R(vL)}")
        else: e(f"v_and_b32 {R(tmp)}, 31, {R(vL)}"); e(f"v_lshrrev_b32 {R(tmp+1)}, 5, {R(vL)}")
        if rowbase is not None: e(f"v_add_u32 {R(tmp)}, {rowbase}, {R(tmp)}")
        e(f"v_bfe_u32 {R(tmp+2)}, {R(tmp)}, 1, 3"); e(f"v_xor_b32 {R(tmp+1)}, {R(tmp+1)}, {R(tmp+2)}")
        e(f"v_lshlrev_b32 {R(tmp+1)}, 4, {R(tmp+1)}"); e(f"v_lshl_add_u32 {R(dst)}, {R(tmp)}, 7, {R(tmp+1)}")
        for i in range(1,n): e(f"v_xor_b32 {R(dst+i)}, {i*step}, {R(dst)}")
    if True:
        e(f"s_cmp_lt_u32 {S(sJ)}, 8"); e(f"s_cselect_b32 {S(sD+9)}, {S(sXCD)}, 0"); e(f"s_mul_i32 {S(sD+9)}, {S(sD+9)}, {S(sL)}")
        e(f"s_and_b32 {S(sD+12)}, {S(sJ)}, 24"); e(f"s_max_u32 {S(sT0)}, {S(sD+12)}, 8"); e(f"s_sub_u32 {S(sT0)}, {S(sT0)}, 8"); e(f"s_lshl_b32 {S(sT0)}, {S(sT0)}, 2")
        e(f"s_lshl_b32 {S(sT1)}, {S(sXCD)}, 7"); e(f"s_add_u32 {S(sT0)}, {S(sT0)}, {S(sT1)}"); e(f"s_add_u32 {S(sT0)}, {S(sT0)}, {3*1024}")
        e(f"s_add_u32 {S(sT1)}, {S(sT1)}, {7*1024-128}"); e(f"s_cmp_lg_u32 {S(sD+9)}, 0"); e(f"s_cselect_b32 {S(sD+13)}, {S(sT1)}, {S(sT0)}")
    xslot(sW,0)
    with ifL(e,1): waitflags(e,3,sD+12,8,sD+13)
    e(f"s_cmp_ge_u32 {S(sW)}, 4"); e(f"s_cbranch_scc1 {lab_l}")
    first3([0])
    q0=list(e.vm); q1=list(e.alt)
    e(f"s_cmp_eq_u32 {S(sW)}, 3"); e(f"s_cbranch_scc1 {lab_h}")
    e('s_setprio 1')
    vXa,vTa,vAcc,vF=2,6,32,96
    xaddr(vXa,4,32,16,False)
    tr_lane_base(e,vTa,tmp,"head")
    pA,nA,pB,nB=sD+10,sD+11,sD+12,sD+13
    e(f"s_min_u32 {S(pA)}, {S(sW)}, 1"); e(f"s_lshr_b32 {S(nA)}, {S(sW)}, 1"); e(f"s_lshl_b32 {S(pB)}, {S(pA)}, 1")
    e(f"s_and_b32 {S(nB)}, {S(sW)}, 1"); e(f"s_xor_b32 {S(nB)}, {S(nB)}, 1")
    for r,p,n in ((vTa+1,pB,nB),(vTa,pA,nA)):
        e(f"s_lshl_b32 {S(sT0)}, {S(n)}, 6"); e(f"v_xor_b32 {R(r)}, {S(sT0)}, {R(vTa)}")
        e(f"s_lshl_b32 {S(sT0)}, {S(p)}, 13"); e(f"s_add_u32 {S(sT0)}, {S(sT0)}, {WOF}"); e(f"v_add_u32 {R(r)}, {S(sT0)}, {R(r)}")
    def rd(t,p):
        b=vF+(t&1)*16; ks=t&3
        if p==0: trread(e,b+8,vTa,ks*2048,("a",t))
        if p==1: e.lds(f"ds_read_b128 {R(b,4)}, {R(vXa+ks)}",("a",t)); e.lds(f"ds_read_b128 {R(b+4,4)}, {R(vXa+ks)} offset:4096",("b",t))
        if p==2: trread(e,b+12,vTa+1,ks*2048,("c",t))
    e.wvm(("S",0)); e.bar(); stamp(e,1)
    for p in range(3): rd(0,p)
    for t in range(32):
        nx=t+1<32
        if nx and (t+1)%4==0:
            s=(t+1)//4
            e.wvm(("S",s)); (e.wlg0() if s<=4 else None); bump(range(vXa,vXa+6),s-1); (e.bar() if s<7 else None); stamp(e,1+s)
        b=vF+(t&1)*16
        if nx: rd(t+1,0)
        e.wlg(("a",t)); mfma32(e,vAcc,b+8,b,t==0)
        if nx: rd(t+1,1)
        e.wlg(("b",t)); mfma32(e,vAcc+16,b+8,b+4,t==0)
        if nx: rd(t+1,2)
        e.wlg(("c",t)); mfma32(e,vAcc+32,b+12,b,t==0); mfma32(e,vAcc+48,b+12,b+4,t==0)
    vC,vSt,vWA,vWB,vP=128,160,2,3,168
    e(f"v_lshrrev_b32 {R(tmp)}, 5, {R(vL)}"); e(f"v_and_b32 {R(tmp+1)}, 31, {R(vL)}")
    for r,p,n in ((4,pA,nA),(5,pB,nB)):
        e(f"s_lshl_b32 {S(sT0)}, {S(p)}, 8"); e(f"s_lshl_b32 {S(sT1)}, {S(n)}, 7"); e(f"s_add_u32 {S(sT0)}, {S(sT0)}, {S(sT1)}")
        e(f"s_add_u32 {S(sT0)}, {S(sT0)}, {CS1}"); e(f"v_lshl_add_u32 {R(r)}, {R(tmp)}, 6, {S(sT0)}")
    e(f"v_lshlrev_b32 {R(6)}, 3, {R(tmp+1)}"); e(f"v_add_u32 {R(6)}, {ST1+128:#x}, {R(6)}")
    e(f"v_mul_u32_u24 {R(vWA)}, 144, {R(tmp+1)}"); e(f"v_lshl_add_u32 {R(vWA)}, {R(tmp)}, 5, {R(vWA)}")
    e(f"v_mul_u32_u24 {R(vWB)}, 272, {R(tmp+1)}"); e(f"v_lshl_add_u32 {R(vWB)}, {R(tmp)}, 6, {R(vWB)}")
    e(f"s_mul_i32 {S(sT0)}, {S(pA)}, {KB+16*144}"); e(f"s_lshl_b32 {S(sT1)}, {S(nA)}, 6"); e(f"s_add_u32 {S(sT0)}, {S(sT0)}, {S(sT1)}")
    e(f"v_add_u32 {R(vWA)}, {S(sT0)}, {R(vWA)}")
    e(f"s_lshl_b32 {S(sT1)}, {S(nB)}, 7"); e(f"s_add_u32 {S(sT1)}, {S(sT1)}, {VB+16*272}"); e(f"v_add_u32 {R(vWB)}, {S(sT1)}, {R(vWB)}")
    e.bar(); stamp(e,9)
    for m in range(2): e.lds(f"ds_read_b64 {R(vSt+2*m,2)}, {R(6)} offset:{m*256}","st")
    for T in range(2):
        for g in range(4): e.lds(f"ds_read_b128 {R(vC+16*T+4*g,4)}, {R(4+T)} offset:{g*16}",("c",T))
    def corr(T,m):
        b=vAcc+32*T+16*m
        for j in range(8): e(f"v_pk_fma_f32 {R(b+2*j,2)}, {R(vC+16*T+2*j,2)}, {R(vSt+2*m,2)}, {R(b+2*j,2)} op_sel_hi:[1,0,1]")
        for j in range(8): e(f"v_pk_mul_f32 {R(b+2*j,2)}, {R(b+2*j,2)}, {R(vSt+2*m,2)} op_sel:[0,1] op_sel_hi:[1,1]")
    def wr16(T,m,off):
        b=vAcc+32*T+16*m; p=vP+8*(2*T+m)
        for j in range(8): e(f"v_cvt_pk_bf16_f32 {R(p+j)}, {R(b+2*j)}, {R(b+2*j+1)}")
        for j in range(2): e(f"ds_write_b128 {R(vWA)}, {R(p+4*j,4)} offset:{off+m*32*144+16*j}")
    e.wlg(("c",0))
    for m in range(2): corr(0,m); wr16(0,m,0)
    e.wlg0()
    for m in range(2): corr(1,m)
    lv=e.newlab("p1v"); e(f"s_cmp_lg_u32 {S(sW)}, 0"); e(f"s_cbranch_scc1 {lv}")
    for m in range(2): wr16(1,m,64)
    e(f"s_branch {lab_att}")
    e.lab(lv)
    for m in range(2):
        for j in range(4): e(f"ds_write_b128 {R(vWB)}, {R(vAcc+32+16*m+4*j,4)} offset:{m*32*272+16*j}")
    e(f"s_branch {lab_att}")
    e.lab(lab_h); e.reset(); e.vm=list(q0); e.alt=list(q1); e('s_setprio 1')
    vXa,vTh,vAcc,vXf,vWf=2,4,32,80,96
    xaddr(vXa,2,64,None,True)
    e(f"v_lshrrev_b32 {R(tmp)}, 4, {R(vL)}"); e(f"v_bfe_u32 {R(tmp+1)}, {R(vL)}, 2, 2")
    e(f"v_lshl_add_u32 {R(vTh)}, {R(tmp)}, 3, {R(tmp+1)}"); e(f"v_lshlrev_b32 {R(vTh)}, 7, {R(vTh)}")
    e(f"v_and_b32 {R(tmp)}, 1, {R(tmp)}"); e(f"v_lshlrev_b32 {R(tmp)}, 1, {R(tmp)}"); e(f"v_lshrrev_b32 {R(tmp+1)}, 1, {R(tmp+1)}")
    e(f"v_lshl_or_b32 {R(tmp)}, {R(tmp+1)}, 2, {R(tmp)}"); e(f"v_bfe_u32 {R(tmp+1)}, {R(vL)}, 1, 1"); e(f"v_or_b32 {R(tmp)}, {R(tmp)}, {R(tmp+1)}")
    e(f"v_lshl_add_u32 {R(vTh)}, {R(tmp)}, 4, {R(vTh)}"); e(f"v_and_b32 {R(tmp)}, 1, {R(vL)}"); e(f"v_lshl_add_u32 {R(vTh)}, {R(tmp)}, 3, {R(vTh)}")
    e(f"v_add_u32 {R(vTh)}, {WOF}, {R(vTh)}")
    for h in range(1,4): e(f"v_xor_b32 {R(vTh+h)}, {h*32}, {R(vTh)}")
    e(f"v_and_b32 {R(tmp)}, 15, {R(vL)}"); e(f"v_cmp_eq_u32 vcc, 0, {R(tmp)}"); e(f"v_mov_b32 {R(12)}, {S(sONE)}")
    def rdu(u,h):
        T,p=divmod(u,3); kk=T&1
        if p==0 and h==0: e.lds(f"ds_read_b128 {R(vXf+4*(T&1),4)}, {R(vXa+kk)}",("x",T))
        trread(e,vWf+(u&1)*16+4*h,vTh+h,p*8192+kk*4096,("w",u,h))
    e.wvm(("S",0)); e.bar()
    for h in range(4): rdu(0,h)
    for u in range(48):
        T,p=divmod(u,3)
        if u+1<48 and (u+1)%6==0:
            s=(u+1)//6
            e.wvm(("S",s)); (e.wlg0() if s<=4 else None); bump(range(vXa,vXa+6),s-1); (e.bar() if s<7 else None)
            if s==2:
                with ifL(e,0): hello(e)
        if p==0:
            e.wlg(("x",T))
            for i in range(4): e(f"v_cndmask_b32 {R(vXf+4*(T&1)+i)}, {R(vXf+4*(T&1)+i)}, {R(12)}, vcc")
            e.nop(2)
        for h in range(4):
            if u+1<48: rdu(u+1,h)
            e.wlg(("w",u,h)); mfma16(e,vAcc+16*p+4*h,vWf+(u&1)*16+4*h,vXf+4*(T&1),T==0)
    e(f"v_lshrrev_b32 {R(tmp)}, 4, {R(vL)}"); e(f"v_and_b32 {R(tmp+1)}, 15, {R(vL)}")
    e(f"v_lshlrev_b32 {R(2)}, 4, {R(tmp)}"); e(f"v_add_u32 {R(2)}, {CS1}, {R(2)}")
    e(f"v_lshlrev_b32 {R(3)}, 3, {R(tmp+1)}"); e(f"v_add_u32 {R(3)}, {ST1}, {R(3)}")
    e(f"v_mul_u32_u24 {R(4)}, 144, {R(tmp+1)}"); e(f"v_lshl_add_u32 {R(4)}, {R(tmp)}, 3, {R(4)}")
    e(f"v_mul_u32_u24 {R(5)}, 272, {R(tmp+1)}"); e(f"v_lshl_add_u32 {R(5)}, {R(tmp)}, 4, {R(5)}")
    e(f"s_and_saveexec_b64 {S(sD+14,2)}, vcc")
    for i in range(12): e(f"ds_write_b128 {R(2)}, {R(vAcc+4*i,4)} offset:{i*64}")
    e(f"s_mov_b64 exec, {S(sD+14,2)}")
    e.wlg0(); e.bar()
    vC,vSt=96,80
    e.lds(f"ds_read_b64 {R(vSt,2)}, {R(3)}","st")
    for i in range(8): e.lds(f"ds_read_b128 {R(vC+4*i,4)}, {R(2)} offset:{(4+i)*64}",("c",i))
    for i in range(8):
        e.wlg(("c",i)); b=vAcc+16+4*i
        for j in range(2): e(f"v_pk_fma_f32 {R(b+2*j,2)}, {R(vC+4*i+2*j,2)}, {R(vSt,2)}, {R(b+2*j,2)} op_sel_hi:[1,0,1]")
        for j in range(2): e(f"v_pk_mul_f32 {R(b+2*j,2)}, {R(b+2*j,2)}, {R(vSt,2)} op_sel:[0,1] op_sel_hi:[1,1]")
        if i<4:
            for j in range(2): e(f"v_cvt_pk_bf16_f32 {R(b+j)}, {R(b+2*j)}, {R(b+2*j+1)}")
            e.lds(f"ds_write_b64 {R(4)}, {R(b,2)} offset:{KB+i*32}")
        else: e.lds(f"ds_write_b128 {R(5)}, {R(b,4)} offset:{VB+(i-4)*64}")
    e(f"s_branch {lab_att}")
    e.lab(lab_l); e.reset(); e('s_setprio '+os.environ.get('PRIO','0'))
    j=sD+10; e(f"s_sub_u32 {S(j)}, {S(sW)}, 4")
    e(f"s_and_b32 {S(sD+11)}, {S(j)}, 1"); e(f"s_add_u32 {S(sD+11)}, {S(sD+11)}, 8"); xslot(sD+11,1)
    first3([0,1])
    wslots(e,j,3); xslot(j,2)
    vXa,vF,vS=2,32,12
    e(f"s_min_u32 {S(sT2)}, {S(j)}, 2"); e(f"s_lshl_b32 {S(sT2)}, {S(sT2)}, 5"); e(f"s_sub_u32 {S(sT2)}, {S(sT2)}, 16"); e(f"s_max_i32 {S(sT2)}, {S(sT2)}, 0")
    xaddr(vXa,4,32,S(sT2),False)
    e(f"v_lshlrev_b32 {R(6)}, 3, {R(tmp)}"); e(f"v_add_u32 {R(6)}, {ST1}, {R(6)}")
    for i in range(4): e(f"v_mov_b32 {R(vS+i)}, 0")
    for s in range(8):
        if s<7: e.wvm(("S",s if s<6 else 7)); e.bar()
        if 'sk3' not in DBG:
            for ks in range(4): e.lds(f"ds_read_b128 {R(vF+4*ks,4)}, {R(vXa+ks)}",("x",ks))
        if s<=4: issue(s+3,range(6),[0,1,2])
        if s==int(os.environ.get('QS',0)): pfl(e,srdS,pQKV,512*3072,[(sJ,30720),(j,7680)],192*3072,60,7)
        if s<6 or 'late6' not in DBG: p1_trickle(e,L,s,j)
        if s==int(os.environ.get('S1',6)): e('s_setprio '+os.environ.get('LP','2'))
        sk=e.newlab("nost")
        if 'sk3' in DBG:
            e(f"s_cmp_eq_u32 {S(j)}, 3"); e(f"s_cbranch_scc1 {sk}")
            for ks in range(4): e.lds(f"ds_read_b128 {R(vF+4*ks,4)}, {R(vXa+ks)}",("x",ks))
        if s<7: bump(range(vXa,vXa+4),s)
        for ks in range(4):
            e.wlg(("x",ks))
            for i in range(4):
                e(f"v_dot2_f32_bf16 {R(vS+(i&1))}, {R(vF+4*ks+i)}, {S(sONE)}, {R(vS+(i&1))}")
                e(f"v_dot2_f32_bf16 {R(vS+2+(i&1))}, {R(vF+4*ks+i)}, {R(vF+4*ks+i)}, {R(vS+2+(i&1))}")
        e.lab(sk)
    e.nop(3); e(f"v_add_f32 {R(vS)}, {R(vS)}, {R(vS+1)}"); e(f"v_add_f32 {R(vS+1)}, {R(vS+2)}, {R(vS+3)}")
    allsum_halves(e,vS,vS+2); allsum_halves(e,vS+1,vS+2)
    meanrstd(e,vS,vS+1,tmp); e(f"v_sub_f32 {R(vS)}, 0, {R(vS)}")
    sk=e.newlab("nosw"); e(f"s_cmp_eq_u32 {S(j)}, 3"); e(f"s_cbranch_scc1 {sk}"); e(f"ds_write_b64 {R(6)}, {R(vS,2)}"); e.lab(sk)
    if 'late6' in DBG: p1_trickle(e,L,6,j)
    e.wlg0(); e.bar()
    e.lab(lab_att); e.reset(); e('s_setprio 0')
    vQ,vK,vV,vLg,vO=16,32,96,160,176
    mt,h=sD,sD+1
    e(f"s_lshr_b32 {S(mt)}, {S(sW)}, 2"); e(f"s_and_b32 {S(h)}, {S(sW)}, 3")
    e(f"v_and_b32 {R(tmp)}, 31, {R(vL)}"); e(f"s_lshl_b32 {S(sT0)}, {S(mt)}, 5"); e(f"v_add_u32 {R(tmp)}, {S(sT0)}, {R(tmp)}")
    e(f"v_lshrrev_b32 {R(tmp+1)}, 5, {R(vL)}")
    e(f"s_lshl_b32 {S(sT0)}, {S(h)}, 5"); e(f"v_mul_u32_u24 {R(2)}, 144, {R(tmp)}"); e(f"v_add_u32 {R(2)}, {S(sT0)}, {R(2)}"); e(f"v_lshl_add_u32 {R(2)}, {R(tmp+1)}, 4, {R(2)}")
    e(f"s_lshl_b32 {S(sT0)}, {S(h)}, 6"); e(f"v_mul_u32_u24 {R(3)}, 272, {R(tmp)}"); e(f"v_lshl_add_u32 {R(3)}, {R(tmp+1)}, 5, {R(3)}"); e(f"v_add_u32 {R(3)}, {S(sT0)}, {R(3)}")
    e(f"s_lshl_b32 {S(sT0)}, {S(sMB)}, 6"); e(f"v_add_u32 {R(4)}, {S(sT0)}, {R(tmp)}")
    e(f"s_lshl_b32 {S(sT0)}, {S(sMB)}, 1"); e(f"s_add_u32 {S(sT0)}, {S(sT0)}, {S(mt)}"); e(f"s_lshl_b32 {S(sT0)}, {S(sT0)}, 5")
    e(f"s_lshl_b32 {S(sT1)}, {S(sNB)}, 2"); e(f"s_add_u32 {S(sT0)}, {S(sT0)}, {S(sT1)}"); e(f"s_add_u32 {S(sT0)}, {S(sT0)}, {S(h)}"); e(f"s_lshl_b32 {S(sT0)}, {S(sT0)}, 10")
    e(f"v_lshl_add_u32 {R(5)}, {R(vL)}, 4, {S(sT0)}")
    srd(e,srdW,pWO,0,512*1024); bsrc(e,14,tmp,8,sKQ,sMH,WO_LDS,16384,sLB)
    e(f"v_mov_b32 {R(6)}, 0xce6e6b28"); e(f"v_mov_b32 {R(7)}, 0x3eb8aa3b")
    e.wlg0(); e.bar(); stamp(e,10)
    e.lds(f"ds_read_b128 {R(vQ,4)}, {R(2)} offset:{QB}","q")
    for jj in range(8): e.lds(f"ds_read_b128 {R(vK+4*jj,4)}, {R(2)} offset:{KB+288+(7-jj)*288}",("k",jj))
    for jj in range(8):
        for i in range(2): e.lds(f"ds_read_b128 {R(vV+8*jj+4*i,4)}, {R(3)} offset:{VB+544+(7-jj)*544+16*i}",("v",jj))
        if jj in (1,3,5,7):
            e.wlg(("k",jj))
            for i in range(4):
                for j2 in (jj-1,jj): e(f"v_dot2_f32_bf16 {R(vLg+j2)}, {R(vQ+i)}, {R(vK+4*j2+i)}, {R(vLg+j2) if i else '0'}")
        dma(e,14,srdW,jj*16384,(sLB,jj*2048),"pre")
    vT=vK
    for jj in range(8): e(f"v_mov_b32 {R(vT+jj)}, {R(vLg+jj)}")
    for jj in range(8): e(f"v_permlane32_swap_b32 {R(vT+jj)}, {R(vLg+jj)}")
    for jj in range(4): e(f"v_pk_add_f32 {R(vLg+2*jj,2)}, {R(vLg+2*jj,2)}, {R(vT+2*jj,2)}")
    for jj in range(1,8): e(f"v_cmp_le_u32 {S(sD+2*jj,2)}, {2*jj}, {R(4)}")
    for jj in range(1,8): e(f"v_cndmask_b32 {R(vLg+jj)}, {R(6)}, {R(vLg+jj)}, {S(sD+2*jj,2)}")
    m=8
    e(f"v_max3_f32 {R(m)}, {R(vLg)}, {R(vLg+1)}, {R(vLg+2)}"); e(f"v_max3_f32 {R(m)}, {R(m)}, {R(vLg+3)}, {R(vLg+4)}")
    e(f"v_max3_f32 {R(m)}, {R(m)}, {R(vLg+5)}, {R(vLg+6)}"); e(f"v_max_f32 {R(m)}, {R(m)}, {R(vLg+7)}")
    for jj in range(8): e(f"v_sub_f32 {R(vLg+jj)}, {R(vLg+jj)}, {R(m)}")
    for jj in range(8): e(f"v_mul_f32 {R(vLg+jj)}, {R(7)}, {R(vLg+jj)}")
    for jj in range(8): e(f"v_exp_f32 {R(vLg+jj)}, {R(vLg+jj)}")
    e.nop(1)
    e(f"v_pk_add_f32 {R(10,2)}, {R(vLg,2)}, {R(vLg+2,2)}"); e(f"v_pk_add_f32 {R(12,2)}, {R(vLg+4,2)}, {R(vLg+6,2)}")
    e(f"v_pk_add_f32 {R(10,2)}, {R(10,2)}, {R(12,2)}"); e(f"v_add_f32 {R(10)}, {R(10)}, {R(11)}"); e(f"v_rcp_f32 {R(10)}, {R(10)}")
    for jj in range(8):
        e.wlg(("v",jj)); pb=vLg+(jj&~1); o=jj&1
        for i in range(4):
            if jj==0: e(f"v_pk_mul_f32 {R(vO+2*i,2)}, {R(vV+2*i,2)}, {R(pb,2)} op_sel_hi:[1,0]")
            else: e(f"v_pk_fma_f32 {R(vO+2*i,2)}, {R(vV+8*jj+2*i,2)}, {R(pb,2)}, {R(vO+2*i,2)} op_sel:[0,{o},0] op_sel_hi:[1,{o},1]")
    for i in range(4): e(f"v_pk_mul_f32 {R(vO+2*i,2)}, {R(vO+2*i,2)}, {R(10,2)} op_sel_hi:[1,0]")
    for i in range(4): e(f"v_cvt_pk_bf16_f32 {R(vQ+i)}, {R(vO+2*i)}, {R(vO+2*i+1)}")
    with ifL(e,0): getmode(e)
    gstore(e,f"buffer_store_dwordx4 {R(vQ,4)}, {R(5)}, {S(srdO,4)}, 0 offen","st")
    publish(e,L*4)
    return ST1+1024

def desc(k):
    return f""".p2align 6
.amdhsa_kernel {k}
  .amdhsa_next_free_vgpr 256
  .amdhsa_next_free_sgpr 102
  .amdhsa_accum_offset 256
  .amdhsa_group_segment_fixed_size 0
  .amdhsa_kernarg_size 72
  .amdhsa_user_sgpr_count 2
  .amdhsa_user_sgpr_kernarg_segment_ptr 1
  .amdhsa_system_sgpr_workgroup_id_x 1
.end_amdhsa_kernel
"""
def build_multi():
    e=Em(); hdr=""; ks=[]
    for L in range(2):
        for p in (1,2,3,4):
            k=f"p{p}l{L}_kernel"; ks.append(k); nwg=224 if p==3 else 256
            e.L.append(f".globl {k}\n.p2align 8\n.type {k},@function\n{k}:"); e.endlab=f"end_{k}"; e.reset()
            prologue(e,nwg)
            lds=phase1(e,L) if p==1 else phase3(e,L) if p==3 else phase_rs(e,L,p)
            stamp_flush(e,L*4+p-1)
            e.lab(e.endlab); e("s_endpgm")
            hdr+=f"; @launch kernel={k} grid=({nwg},1,1) block=(512,1,1) lds={lds}\n"
    return hdr+'.amdgcn_target "amdgcn-amd-amdhsa--gfx950"\n.text\n'+e.text()+'.section .rodata,"a"\n'+"".join(desc(k) for k in ks)
HDR='; Persistent 256-workgroup kernel (one per CU, 8 waves), two layer iterations of four phases:\n;   P4  x2 = x1 + h @ w2 (64x64 tile)\n; Workgroups with equal id%8 own 256 rows and hand tiles to each other through d_ws with tagged flags.\n'
def build_pers():
    e=Em(); k=NAME+"_kernel"
    e.L.append(f".globl {k}\n.p2align 8\n.type {k},@function\n{k}:"); e.endlab="end_all"
    prologue(e,256)
    e(f"s_mov_b32 {S(sL)}, 0"); e(f"s_mov_b32 {S(sFO)}, 0"); e("v_mov_b32 v15, 0")
    ids64(e); p1_setup(e,0)
    p1_issue(e,0,0,range(3),[])
    srd(e,srdD,50,0,256); srd(e,srdF,pWS,FL_OFF,16384)
    e.lab("layer")
    for p in (1,2,3,4):
        e.reset()
        if p>1: stamp(e,0)
        phase1(e,0) if p==1 else phase3(e,0) if p==3 else phase_rs(e,0,p)
        stamp_flush(e,p-1)
    e(f"s_mov_b32 {S(sL)}, 1"); e(f"s_mov_b32 {S(sFO)}, 4096"); stamp(e,0); e("s_branch layer")
    e.lab(e.endlab); e("s_endpgm")
    return f"; @launch grid=(256,1,1) block=(512,1,1) lds=163840\n"+HDR+'.amdgcn_target "amdgcn-amd-amdhsa--gfx950"\n.text\n'+e.text()+'.section .rodata,"a"\n'+desc(k)
if __name__=="__main__":
    if "slow" in sys.argv: FORCE_SLOW=True
    if "prof" in sys.argv: PROF=True
    out=sys.argv[1] if len(sys.argv)>1 else f"cdna_kernels/{NAME}.s"
    open(out,"w").write(build_pers())
```

```python
import sys,os
DBG=os.environ.get('DBG','')+',sk3,late6'
from em import *
NAME="interleave_layers__sliding_local_dilated__dense_activation_silu__prompt"
MB=1<<20
O_OFF,X1_OFF,H_OFF,X2_OFF,ST_OFF=0,2*MB,4*MB,12*MB,14*MB
LSTRIDE=0 if 'fresh' not in DBG else 16*MB
sW,sXCD,sJ,sT0,sT1,sT2,sT3,sMB,sNB,sKQ,sMH,sLB=3,4,5,6,7,8,9,10,11,12,13,14
sONE=15
srdA,srdW,srdR,srdO,srdS=16,20,24,28,32
pX,pQKV,pWO,pW1,pW2,pOUT,pWS=36,38,40,44,46,48,52
sD=56
vL=1
sMODE,sTAG=54,55
sL,sFO=100,101
import contextlib
@contextlib.contextmanager
def ifL(e,v):
    sk=e.newlab('ifl'); e(f's_cmp_lg_u32 {S(sL)}, {v}'); e(f's_cbranch_scc1 {sk}'); q=list(e.vm)
    yield
    e.lab(sk); e.vm=q
def srdsel(e,d,p0,o0,z0,p1,o1,z1):
    srd(e,d,p1,o1,z1)
    with ifL(e,0): srd(e,d,p0,o0,z0)
srdF,srdD=96,24
FL_OFF,X2H_OFF=40*MB,15*MB
vRES=248
vINFO=244
FORCE_SLOW=False
ONES=0x3F803F80

PROF=False
def stamp(e,i):
    if PROF: e(f"s_memrealtime {S(72+2*i,2)}")
def stamp_flush(e,slot,n=12):
    if not PROF: return
    sk=e.newlab("nopf"); e(f"s_cmp_lg_u32 {S(sW)}, {4 if 'w4' in DBG else 0}"); e(f"s_cbranch_scc1 {sk}")
    e("s_waitcnt vmcnt(0)"); stamp(e,n-1); e("s_waitcnt lgkmcnt(0)")
    srd(e,srdS,pWS,200*MB,MB)
    e(f"s_lshl_b32 {S(sT0)}, s2, 7"); e(f"s_add_u32 {S(sT0)}, {S(sT0)}, {slot*32768}"); e(f"s_lshl_b32 {S(sT1)}, {S(sL)}, 17"); e(f"s_add_u32 {S(sT0)}, {S(sT0)}, {S(sT1)}"); e(f"v_mov_b32 v2, {S(sT0)}")
    for i in range(n):
        e(f"v_mov_b32 v4, {S(72+2*i)}"); e(f"v_mov_b32 v5, {S(73+2*i)}"); e(f"buffer_store_dwordx2 v[4:5], v2, {S(srdS,4)}, 0 offen offset:{i*8}"); e.nop(2)
    e.lab(sk)
def gstore(e,instr,tag):
    a,b=e.newlab("gs"),e.newlab("gd")
    e(f"s_cmp_eq_u32 {S(sMODE)}, 0"); e(f"s_cbranch_scc1 {a}"); e.vmem(instr+(' nt' if 'stnt' in DBG else ' sc0' if 'stsc0' in DBG else ''),tag); e(f"s_branch {b}")
    e.lab(a); e(instr+" sc1"); e.lab(b)
def spin(e,body,cond):
    lp,out=e.newlab("spin"),e.newlab("spun")
    e(f"s_mov_b32 {S(sT3)}, 0"); e.lab(lp); body()
    e(f"s_add_u32 {S(sT3)}, {S(sT3)}, 1"); e(f"s_cmp_gt_u32 {S(sT3)}, 0x40000"); e(f"s_cbranch_scc1 {out}")
    cond(lp); e.lab(out)
def publish(e,ph,pre=None):
    e.wvm0(); e.bar()
    sk=e.newlab("nopub"); e(f"s_cmp_lg_u32 {S(sW)}, 0"); e(f"s_cbranch_scc1 {sk}")
    e(f"s_lshl_b32 {S(sT0)}, {S(sXCD)}, 7"); e(f"s_lshl_b32 {S(sT1)}, {S(sJ)}, 2"); e(f"s_add_u32 {S(sT0)}, {S(sT0)}, {S(sT1)}")
    e(f"v_mov_b32 v2, {S(sT0)}"); e(f"v_mov_b32 v3, {S(sTAG)}"); e("s_mov_b64 exec, 1")
    e(f"s_add_u32 {S(sT2)}, {S(sFO)}, {ph*1024}")
    gstore(e,f"buffer_store_dword v3, v2, {S(srdF,4)}, {S(sT2)} offen","fl")
    if pre: pre()
    e("s_mov_b64 exec, -1"); e.lab(sk); e.reset()
def waitflags(e,ph,jbase,n,second=None):
    sk=e.newlab("nopoll"); e(f"s_cmp_lg_u32 {S(sW)}, 0"); e(f"s_cbranch_scc1 {sk}")
    e(f"s_lshl_b32 {S(sT0)}, {S(sXCD)}, 7"); e(f"s_lshl_b32 {S(sT1)}, {S(jbase)}, 2"); e(f"s_add_u32 {S(sT0)}, {S(sT0)}, {S(sT1)}")
    e(f"s_add_u32 {S(sT0)}, {S(sT0)}, {ph*1024}")
    if ph<3: e(f"s_add_u32 {S(sT0)}, {S(sT0)}, {S(sFO)}")
    e(f"v_min_u32 v2, {n-1}, {R(vL)}"); e(f"v_lshl_add_u32 v2, v2, 2, {S(sT0)}")
    if second is not None:
        e(f"s_cmp_lg_u32 {S(sD+9)}, 0"); e(f"s_cselect_b32 {S(sT1)}, 31, 7"); e(f"v_and_b32 v3, {S(sT1)}, {R(vL)}"); e(f"v_lshl_add_u32 v3, v3, 2, {S(second)}"); e(f"v_cmp_gt_u32 vcc, 32, {R(vL)}"); e.nop(2); e("v_cndmask_b32 v2, v3, v2, vcc")
    def body(): e(f"buffer_load_dword v3, v2, {S(srdF,4)}, 0 offen sc1"); e("s_waitcnt vmcnt(0)"); e(f"v_cmp_ne_u32 vcc, {S(sTAG)}, v3")
    spin(e,body,lambda lp:e(f"s_cbranch_vccnz {lp}"))
    e(f"s_cmp_lg_u32 {S(sMODE)}, 0"); e(f"s_cbranch_scc1 {sk}"); e("buffer_inv sc1"); e("s_waitcnt vmcnt(0)")
    e.lab(sk); e.bar()
def hello(e):
    e(f"s_getreg_b32 {S(sT0)}, hwreg(HW_REG_XCC_ID, 0, 3)"); e(f"s_mul_i32 {S(sT0)}, {S(sT0)}, 6")
    e(f"s_lshl_b64 {S(sD+14,2)}, 1, {S(sT0)}"); e(f"s_add_u32 {S(sD+15)}, {S(sD+15)}, 0x1000000")
    e(f"s_lshl_b32 {S(sT1)}, {S(sXCD)}, 4"); e(f"v_mov_b32 v212, {S(sT1)}"); e(f"v_mov_b32 v214, {S(sD+14)}"); e(f"v_mov_b32 v215, {S(sD+15)}")
    e("s_mov_b64 exec, 1"); e.vmem(f"buffer_atomic_add_x2 v[214:215], v212, {S(srdD,4)}, 0 offen","hello")
    s2=e.newlab("notag"); e("s_cmp_lg_u32 s2, 0"); e(f"s_cbranch_scc1 {s2}")
    e("v_mov_b32 v212, 0x3000"); e(f"buffer_load_dword v213, v212, {S(srdF,4)}, 0 offen sc1"); e("s_waitcnt vmcnt(0)")
    e("v_add_u32 v213, 0x9e3779b9, v213"); e("v_max_u32 v213, 1, v213"); e(f"buffer_store_dword v213, v212, {S(srdF,4)}, 0 offen sc1")
    e("v_mov_b32 v212, 0x80"); e(f"buffer_store_dword v213, v212, {S(srdD,4)}, 0 offen sc1")
    e.lab(s2); e("s_mov_b64 exec, -1"); e.nop(4)
def getmode(e):
    e(f"s_lshl_b32 {S(sT0)}, {S(sXCD)}, 4"); e(f"v_mov_b32 {R(vINFO)}, {S(sT0)}"); e(f"v_mov_b32 {R(vINFO+1)}, 0x80")
    def body():
        e(f"buffer_load_dwordx2 {R(vINFO+2,2)}, {R(vINFO)}, {S(srdD,4)}, 0 offen sc1"); e(f"buffer_load_dword {R(vINFO-1)}, {R(vINFO+1)}, {S(srdD,4)}, 0 offen sc1")
        e("s_waitcnt vmcnt(0)"); e(f"v_readfirstlane_b32 {S(sD)}, {R(vINFO+2)}"); e(f"v_readfirstlane_b32 {S(sD+1)}, {R(vINFO+3)}"); e(f"v_readfirstlane_b32 {S(sTAG)}, {R(vINFO-1)}")
    def cond(lp):
        e(f"s_lshr_b32 {S(sT0)}, {S(sD+1)}, 24"); e(f"s_cmp_lt_u32 {S(sT0)}, 32"); e(f"s_cbranch_scc1 {lp}")
        e(f"s_cmp_eq_u32 {S(sTAG)}, 0"); e(f"s_cbranch_scc1 {lp}")
    spin(e,body,cond)
    e(f"s_getreg_b32 {S(sT0)}, hwreg(HW_REG_XCC_ID, 0, 3)"); e(f"s_mul_i32 {S(sT0)}, {S(sT0)}, 6")
    e(f"s_lshr_b64 {S(sD,2)}, {S(sD,2)}, {S(sT0)}"); e(f"s_and_b32 {S(sD)}, {S(sD)}, 63"); e(f"s_cmp_eq_u32 {S(sD)}, 32")
    e(f"s_cselect_b32 {S(sMODE)}, {0 if FORCE_SLOW else 1}, 0")
def prefetch(e,sr,ptr,total,nw,sw,va,dst,extra=None,off=0,only=None,nwg=32,sj=None):
    per=total//nwg//nw; lines=per//128; sj=sJ if sj is None else sj
    srd(e,sr,ptr,off,total if extra is None else 2*MB)
    e(f"s_mul_i32 {S(sT0)}, {S(sj)}, {total//nwg}"); e(f"s_mul_i32 {S(sT1)}, {S(sw)}, {per}"); e(f"s_add_u32 {S(sT0)}, {S(sT0)}, {S(sT1)}")
    if extra is not None: e(f"s_lshl_b32 {S(sT1)}, {S(sXCD)}, {extra}"); e(f"s_add_u32 {S(sT0)}, {S(sT0)}, {S(sT1)}")
    for i in range((lines+63)//64):
        if only is not None and i!=only: continue
        n=min(64,lines-64*i)
        e(f"v_min_u32 {R(va)}, {n-1}, {R(vL)}"); e(f"v_lshl_add_u32 {R(va)}, {R(va)}, 7, {S(sT0)}")
        if i: e(f"v_add_u32 {R(va)}, {8192*i}, {R(va)}")
        e.vmem(f"buffer_load_dword {R(dst)}, {R(va)}, {S(sr,4)}, 0 offen"+(' nt' if 'ntp' in DBG and NTS[sr] else ''),"pf")
def pfl(e,sr,ptr,total,terms,const,lines,va):
    srd(e,sr,ptr,0,total); e(f"s_mov_b32 {S(sT0)}, {const}")
    for sg,m in terms: e(f"s_mul_i32 {S(sT1)}, {S(sg)}, {m}"); e(f"s_add_u32 {S(sT0)}, {S(sT0)}, {S(sT1)}")
    for i in range((lines+63)//64):
        e(f"v_min_u32 {R(va)}, {min(64,lines-64*i)-1}, {R(vL)}"); e(f"v_lshl_add_u32 {R(va)}, {R(va)}, 7, {S(sT0)}")
        if i: e(f"v_add_u32 {R(va)}, {8192*i}, {R(va)}")
        e.vmem(f"buffer_load_dword v240, {R(va)}, {S(sr,4)}, 0 offen"+(' nt' if 'ntp' in DBG and NTS[sr] else ''),"pf")
def pf_w2(e,j,part):
    if part==0: pfl(e,srdR,pW2,1792*1024,[(j,448*1024),(sJ,5120)],0,40,7)
    else: pfl(e,srdR,pW2,1792*1024,[(j,448*1024),(sJ,9216)],160*1024,72,7)
def prologue(e,nwg):
    e(f"s_cmp_ge_u32 s2, {nwg}"); e("s_cbranch_scc1 "+e.endlab)
    stamp(e,0)
    e(f"s_load_dwordx16 s[36:51], s[0:1], 0"); e(f"s_load_dwordx2 s[52:53], s[0:1], 64")
    e("v_lshrrev_b32 v2, 6, v0"); e(f"v_and_b32 {R(vL)}, 63, v0")
    e(f"v_readfirstlane_b32 {S(sW)}, v2")
    e(f"s_and_b32 {S(sXCD)}, s2, 7"); e(f"s_lshr_b32 {S(sJ)}, s2, 3")
    e(f"s_mov_b32 {S(sONE)}, {ONES:#x}")
    e("s_waitcnt lgkmcnt(0)")
NTS={}
def srd(e,d,p,off,size):
    NTS[d]=(p in (pW1,pW2))
    if off: e(f"s_add_u32 {S(d)}, {S(p)}, {off:#x}"); e(f"s_addc_u32 {S(d+1)}, {S(p+1)}, 0")
    else: e(f"s_mov_b32 {S(d)}, {S(p)}"); e(f"s_mov_b32 {S(d+1)}, {S(p+1)}")
    e(f"s_mov_b32 {S(d+2)}, {size:#x}"); e(f"s_mov_b32 {S(d+3)}, 0x20000")
def dma(e,vaddr,srd_,soff,m0expr,tag,sc1=False):
    sg,c=m0expr
    if sg is None: e(f"s_mov_b32 m0, {c:#x}")
    else: e(f"s_add_u32 m0, {S(sg)}, {c:#x}")
    if soff: e(f"s_mov_b32 {S(sT3)}, {soff:#x}"); so=S(sT3)
    else: e("s_nop 0"); so="0"
    e.vmem(f"buffer_load_dwordx4 {R(vaddr)}, {S(srd_,4)}, {so} offen {'sc1 ' if sc1 else ''}{'nt ' if 'ntd' in DBG and NTS[srd_] else ''}lds",tag)
def ldfrag(e,dst,vaddr,srd_,t,tag,st):
    hi=t>>2
    if hi and (t&3==0 or st): e(f"s_mov_b32 {S(sT2)}, {hi*4096:#x}")
    so=S(sT2) if hi else "0"
    e.vmem(f"buffer_load_dwordx4 {R(dst,4)}, {R(vaddr)}, {S(srd_,4)}, {so} offen offset:{(t&3)*1024}"+' sc1'+(' nt' if 'nta' in DBG else ''),tag)
def tr_lane_base(e,dst,tmp,perm):
    a,b,c=tmp,tmp+1,tmp+2
    e(f"v_bfe_u32 {R(a)}, {R(vL)}, 2, 2")
    e(f"v_lshrrev_b32 {R(b)}, 5, {R(vL)}")
    e(f"v_lshl_add_u32 {R(dst)}, {R(b)}, 3, {R(a)}")
    e(f"v_lshlrev_b32 {R(dst)}, 7, {R(dst)}")
    e(f"v_lshrrev_b32 {R(a)}, 1, {R(a)}"); e(f"v_lshlrev_b32 {R(a)}, 2, {R(a)}")
    e(f"v_lshl_or_b32 {R(a)}, {R(b)}, 1, {R(a)}")
    if perm=="frag":
        e(f"v_bfe_u32 {R(b)}, {R(vL)}, 4, 1"); e(f"v_and_b32 {R(c)}, 1, {R(vL)}")
        e(f"v_lshl_or_b32 {R(b)}, {R(b)}, 1, {R(c)}"); e(f"v_bfe_u32 {R(c)}, {R(vL)}, 1, 1")
    else:
        e(f"v_and_b32 {R(b)}, 1, {R(vL)}"); e(f"v_bfe_u32 {R(c)}, {R(vL)}, 4, 1")
        e(f"v_lshl_or_b32 {R(b)}, {R(b)}, 1, {R(c)}"); e(f"v_bfe_u32 {R(c)}, {R(vL)}, 1, 1")
    e(f"v_xor_b32 {R(a)}, {R(a)}, {R(b)}")
    e(f"v_lshl_add_u32 {R(dst)}, {R(a)}, 4, {R(dst)}")
    e(f"v_lshl_add_u32 {R(dst)}, {R(c)}, 3, {R(dst)}")
def wdma_lane(e,dst,tmp,rowstride,odd):
    a,b=tmp,tmp+1
    e(f"v_lshrrev_b32 {R(a)}, 3, {R(vL)}")
    e(f"s_mov_b32 {S(sT0)}, {rowstride}"); e(f"v_mul_lo_u32 {R(dst)}, {R(a)}, {S(sT0)}")
    e(f"v_bfe_u32 {R(a)}, {R(vL)}, 4, 1"); e(f"v_lshlrev_b32 {R(a)}, 2, {R(a)}")
    if isinstance(odd,int):
        if odd: e(f"v_or_b32 {R(a)}, 2, {R(a)}")
    else: e(f"v_lshl_or_b32 {R(a)}, {odd}, 1, {R(a)}")
    e(f"v_and_b32 {R(b)}, 7, {R(vL)}"); e(f"v_xor_b32 {R(a)}, {R(a)}, {R(b)}")
    e(f"v_lshl_add_u32 {R(dst)}, {R(a)}, 4, {R(dst)}")
def mfma32(e,d,a,b,first): e(f"v_mfma_f32_32x32x16_bf16 {R(d,16)}, {R(a,4)}, {R(b,4)}, {'0' if first else R(d,16)}")
def mfma16(e,d,a,b,first): e(f"v_mfma_f32_16x16x32_bf16 {R(d,4)}, {R(a,4)}, {R(b,4)}, {'0' if first else R(d,4)}")
def trread(e,dst,va,off,tag):
    e.lds(f"ds_read_b64_tr_b16 {R(dst,2)}, {R(va)} offset:{off}",tag)
    e.lds(f"ds_read_b64_tr_b16 {R(dst+2,2)}, {R(va)} offset:{off+512}",tag)
def allsum_halves(e,a,t):
    e(f"v_mov_b32 {R(t)}, {R(a)}"); e.nop(2); e(f"v_permlane32_swap_b32 {R(t)}, {R(a)}"); e.nop(1); e(f"v_add_f32 {R(a)}, {R(a)}, {R(t)}")
def meanrstd(e,s_,q,t):
    e(f"v_mul_f32 {R(s_)}, 0x3b000000, {R(s_)}"); e(f"v_mul_f32 {R(q)}, 0x3b000000, {R(q)}")
    e(f"v_fma_f32 {R(q)}, -{R(s_)}, {R(s_)}, {R(q)}"); e(f"v_max_f32 {R(q)}, 0, {R(q)}")
    e(f"v_add_f32 {R(q)}, 0x3727c5ac, {R(q)}"); e(f"v_rsq_f32 {R(q)}, {R(q)}"); e.nop(1)

WO_LDS=96*1024
NPRE=int(os.environ.get('NPRE',16))
def ids64(e):
    e(f"s_lshr_b32 {S(sMB)}, {S(sJ)}, 3"); e(f"s_lshl_b32 {S(sT0)}, {S(sXCD)}, 2"); e(f"s_add_u32 {S(sMB)}, {S(sMB)}, {S(sT0)}")
    e(f"s_and_b32 {S(sNB)}, {S(sJ)}, 7"); e(f"s_and_b32 {S(sKQ)}, {S(sW)}, 3"); e(f"s_lshr_b32 {S(sMH)}, {S(sW)}, 2")
def bsrc(e,vB,tmp,KS,kq,mh,ldsbase,slab,sdst):
    wdma_lane(e,vB,tmp,1024,S(mh) if mh is not None else 0)
    e(f"s_mul_i32 {S(sT0)}, {S(kq)}, {KS*16*1024}"); e(f"s_and_b32 {S(sT1)}, {S(sJ)}, 7"); e(f"s_lshl_b32 {S(sT1)}, {S(sT1)}, 7"); e(f"s_add_u32 {S(sT0)}, {S(sT0)}, {S(sT1)}")
    e(f"s_mul_i32 {S(sdst)}, {S(kq)}, {slab}"); e(f"s_add_u32 {S(sdst)}, {S(sdst)}, {ldsbase}")
    if mh is not None:
        e(f"s_lshl_b32 {S(sT1)}, {S(mh)}, 13"); e(f"s_add_u32 {S(sT0)}, {S(sT0)}, {S(sT1)}")
        e(f"s_lshl_b32 {S(sT1)}, {S(mh)}, 10"); e(f"s_add_u32 {S(sdst)}, {S(sdst)}, {S(sT1)}")
    e(f"v_add_u32 {R(vB)}, {S(sT0)}, {R(vB)}")
def p4_preload(e,j,part):
    if part==0:
        srd(e,srdW,pW2,0,1792*1024); bsrc(e,14,9,28,j,None,0,40960,sLB)
        e("v_xor_b32 v15, 32, v14"); e("v_add_u32 v15, 0x2000, v15")
    for t in range(NPRE):
        for h in range(2): dma(e,14+h,srdW,t*16384,(sLB,t*2048+h*1024),"pre")
def phase_rs(e,L,which):
    P2=which==2
    K=512 if P2 else 1792; KS=K//64; RING=8 if P2 else 20; SLAB=RING*2048; LB=WO_LDS if P2 else 0; RB=0 if P2 else 112*1024; LA=8 if P2 else int(os.environ.get('LA',7))
    wo=L*LSTRIDE
    ids64(e)
    if P2:
        srd(e,srdA,pWS,wo+O_OFF,2*MB)
        srd(e,srdR,pX,0,2*MB)
        srd(e,srdO,pWS,wo+X1_OFF,2*MB); srd(e,srdS,pWS,wo+ST_OFF,128*1024)
    else:
        srd(e,srdA,pWS,wo+H_OFF,7*MB); srd(e,srdW,pW2,0,1792*1024); srd(e,srdR,pWS,X2H_OFF,128*1024)
        srdsel(e,srdO,pWS,X2_OFF,2*MB,pOUT,0,2*MB)
    vA,vB,vF,vRM,vT0,vT1,vRD,vRes,vAcc,vBf,vAf=12,13,4,5,6,7,8,vRES,16,48,80
    tmp=9; mt=sD+10; sb=sD+11
    e(f"s_lshl_b32 {S(mt)}, {S(sMB)}, 1"); e(f"s_add_u32 {S(mt)}, {S(mt)}, {S(sMH)}")
    e(f"s_mul_i32 {S(sT0)}, {S(mt)}, {K//16*1024}"); e(f"s_mul_i32 {S(sT1)}, {S(sKQ)}, {KS*1024}"); e(f"s_add_u32 {S(sT0)}, {S(sT0)}, {S(sT1)}")
    e(f"v_lshl_add_u32 {R(vA)}, {R(vL)}, 4, {S(sT0)}")
    if not P2: bsrc(e,vB,tmp,KS,sKQ,sMH,0,SLAB,sb)
    e(f"s_lshl_b32 {S(sT0)}, {S(mt)}, 5"); e(f"s_lshl_b32 {S(sT1)}, {S(sNB)}, 2"); e(f"s_add_u32 {S(sT1)}, {S(sT1)}, {S(sKQ)}")
    e(f"s_add_u32 {S(sT0)}, {S(sT0)}, {S(sT1)}"); e(f"s_lshl_b32 {S(sT0)}, {S(sT0)}, 10")
    e(f"v_lshl_add_u32 {R(vF)}, {R(vL)}, 4, {S(sT0)}")
    e(f"s_lshl_b32 {S(sT0)}, {S(mt)}, 15"); e(f"s_lshl_b32 {S(sT1)}, {S(sT1)}, 5"); e(f"s_add_u32 {S(sT0)}, {S(sT0)}, {S(sT1)}")
    e(f"v_and_b32 {R(tmp)}, 31, {R(vL)}"); e(f"v_lshlrev_b32 {R(tmp)}, 10, {R(tmp)}"); e(f"v_lshrrev_b32 {R(tmp+1)}, 5, {R(vL)}")
    e(f"v_lshl_add_u32 {R(tmp)}, {R(tmp+1)}, 4, {R(tmp)}"); e(f"v_add_u32 {R(vRM)}, {S(sT0)}, {R(tmp)}")
    tr_lane_base(e,vT0,tmp,"frag")
    e(f"s_mul_i32 {S(sT0)}, {S(sKQ)}, {SLAB}"); e(f"s_add_u32 {S(sT0)}, {S(sT0)}, {LB}")
    e(f"v_add_u32 {R(vT0)}, {S(sT0)}, {R(vT0)}"); e(f"v_xor_b32 {R(vT1)}, 64, {R(vT0)}")
    e(f"s_mul_i32 {S(sT0)}, {S(sMH)}, {12*2048}"); e(f"s_add_u32 {S(sT0)}, {S(sT0)}, {RB}"); e(f"v_lshl_add_u32 {R(vRD)}, {R(vL)}, 4, {S(sT0)}")
    def rd(t,nt): trread(e,vBf+(t&1)*8+nt*4,vT0+nt,(t%RING)*2048,("f",t,nt))
    if P2:
        with ifL(e,0): e(f"buffer_load_dwordx4 {R(vRes,4)}, {R(vRM)}, {S(srdR,4)}, 0 offen")
    if not P2:
        for u in range(NPRE,RING): dma(e,vB,srdW,u*16384,(sb,u*2048),"B1")
    if P2: e(f"s_and_b32 {S(sD+2)}, {S(sJ)}, 24"); waitflags(e,L*4,sD+2,8)
    else: e(f"s_lshr_b32 {S(sD+2)}, {S(sJ)}, 4"); e(f"s_mul_i32 {S(sD+2)}, {S(sD+2)}, 14"); waitflags(e,L*4+2,sD+2,14)
    stamp(e,9)
    for t in range(LA): ldfrag(e,vAf+4*t,vA,srdA,t,("A",t),False)
    if P2 and 'now1b' not in DBG and 'w1all' not in DBG: pfl(e,srdW,pW1,512*3584,[(sJ,24576),(sW,3072)],MB,24,tmp)
    rd(0,0); rd(0,1)
    for t in range(KS):
        if t+LA<KS: ldfrag(e,vAf+4*(t+LA),vA,srdA,t+LA,("A",t+LA),False)
        if not P2 and t==9:
            e.bar()
        if not P2 and 9<=t<17: u=RING+t-9; dma(e,vB,srdW,u*16384,(sb,(u%RING)*2048),"B")
        if t+1==RING and t+1<KS: e.wvm("B"); e.bar()
        e.wvm(("A",t))
        if t%4==0: stamp(e,1+t//4)
        for nt in range(2):
            if t+1<KS: rd(t+1,nt)
            e.wlg(("f",t,nt)); mfma32(e,vAcc+16*nt,vBf+(t&1)*8+nt*4,vAf+4*t,t==0)
        if not P2 and t==KS-LA:
            with ifL(e,0): (prefetch(e,srdS,pQKV,512*3072,8,sW,9,240) if 'qall' in DBG else pfl(e,srdS,pQKV,512*3072,[(sJ,18432),(sW,2304)],0,18,9)); p1_setup(e,1)
    if not P2: e.bar()
    stamp(e,10); e.nop(10)
    own=vBf
    done=e.newlab("rdone"); labs=[e.newlab("rv") for _ in range(4)]
    for q in range(1,4): e(f"s_cmp_eq_u32 {S(sKQ)}, {q}"); e(f"s_cbranch_scc1 {labs[q]}")
    for kq in range(4):
        e.lab(labs[kq])
        for q in range(4):
            if q==kq: continue
            for j in range(2): e(f"ds_write_b128 {R(vRD)}, {R(vAcc+8*q+4*j,4)} offset:{(q*3+((kq-q)&3)-1)*2048+j*1024}")
        for j in range(8): e(f"v_mov_b32 {R(own+j)}, {R(vAcc+8*kq+j)}")
        if kq<3: e(f"s_branch {done}")
    e.lab(done)
    e(f"s_mul_i32 {S(sT0)}, {S(sKQ)}, {3*2048}"); e(f"v_add_u32 {R(vRD)}, {S(sT0)}, {R(vRD)}")
    if not P2:
        with ifL(e,0):
            for s_ in range(3): p1_issue(e,1,s_,range(3),[])
    e.wlg0(); e.bar()
    for i in range(1,4):
        for j in range(2): e.lds(f"ds_read_b128 {R(own+8*i+4*j,4)}, {R(vRD)} offset:{(i-1)*2048+j*1024}",("p",i))
    e.wvm("res")
    rf=vAcc
    for j in range(4):
        e(f"v_lshlrev_b32 {R(rf+2*j)}, 16, {R(vRes+j)}"); e(f"v_and_b32 {R(rf+2*j+1)}, 0xffff0000, {R(vRes+j)}")
    for j in range(4): e(f"v_pk_add_f32 {R(own+2*j,2)}, {R(own+2*j,2)}, {R(rf+2*j,2)}")
    for i in range(1,4):
        e.wlg(("p",i))
        for j in range(4): e(f"v_pk_add_f32 {R(own+2*j,2)}, {R(own+2*j,2)}, {R(own+8*i+2*j,2)}")
    for j in range(4): e(f"v_cvt_pk_bf16_f32 {R(vRes+j)}, {R(own+2*j)}, {R(own+2*j+1)}")
    ins=f"buffer_store_dwordx4 {R(vRes,4)}, {R(vF if P2 else vRM)}, {S(srdO,4)}, 0 offen"
    gstore(e,ins,"st")
    if not P2:
        if PROF:
            with ifL(e,1): stamp_flush(e,3)
        e(f"s_cmp_lg_u32 {S(sL)}, 0"); e(f"s_cbranch_scc1 {e.endlab}")
        publish(e,3)
        sk=e.newlab("nohalo"); e(f"s_and_b32 {S(sT0)}, {S(mt)}, 7"); e(f"s_cmp_lg_u32 {S(sT0)}, 7"); e(f"s_cbranch_scc1 {sk}")
        e(f"s_lshl_b32 {S(sT0)}, {S(mt)}, 15"); e(f"s_lshl_b32 {S(sT1)}, {S(sXCD)}, 14"); e(f"s_sub_u32 {S(sT0)}, {S(sT0)}, {S(sT1)}"); e(f"s_add_u32 {S(sT0)}, {S(sT0)}, 0x4000")
        e(f"v_subrev_u32 {R(tmp)}, {S(sT0)}, {R(vRM)}"); e("s_mov_b32 exec_lo, 0xffff0000"); e("s_mov_b32 exec_hi, 0xffff0000")
        e(f"buffer_store_dwordx4 {R(vRes,4)}, {R(tmp)}, {S(srdR,4)}, 0 offen sc1"); e("s_mov_b64 exec, -1")
        e(f"s_lshl_b32 {S(sT0)}, {S(sXCD)}, 5"); e(f"s_lshl_b32 {S(sT1)}, {S(sNB)}, 2"); e(f"s_add_u32 {S(sT0)}, {S(sT0)}, {S(sT1)}"); e(f"s_add_u32 {S(sT0)}, {S(sT0)}, {S(sKQ)}")
        e(f"s_lshl_b32 {S(sT0)}, {S(sT0)}, 2"); e(f"s_add_u32 {S(sT0)}, {S(sT0)}, {7*1024}"); e(f"v_mov_b32 v2, {S(sT0)}"); e(f"v_mov_b32 v3, {S(sTAG)}")
        e("s_waitcnt vmcnt(0)"); e("s_mov_b64 exec, 1"); e(f"buffer_store_dword v3, v2, {S(srdF,4)}, 0 offen sc1"); e("s_mov_b64 exec, -1"); e.lab(sk)
    if P2:
        a,b=rf,rf+1
        e(f"v_dot2_f32_bf16 {R(a)}, {R(vRes)}, {S(sONE)}, 0"); e(f"v_dot2_f32_bf16 {R(b)}, {R(vRes)}, {R(vRes)}, 0")
        for j in range(1,4):
            e(f"v_dot2_f32_bf16 {R(a)}, {R(vRes+j)}, {S(sONE)}, {R(a)}"); e(f"v_dot2_f32_bf16 {R(b)}, {R(vRes+j)}, {R(vRes+j)}, {R(b)}")
        e(f"s_lshl_b32 {S(sT0)}, {S(sW)}, 8"); e(f"s_add_u32 {S(sT0)}, {S(sT0)}, 0xc000")
        e(f"v_lshl_add_u32 {R(tmp)}, {R(vL)}, 2, {S(sT0)}"); e.nop(2)
        e(f"v_permlane32_swap_b32 {R(a)}, {R(b)}"); e.nop(1); e(f"v_add_f32 {R(a)}, {R(a)}, {R(b)}")
        e(f"ds_write_b32 {R(tmp)}, {R(a)}"); e.wlg0(); e.bar()
        sk=e.newlab("nost"); e(f"s_cmp_lg_u32 {S(sKQ)}, 0"); e(f"s_cbranch_scc1 {sk}")
        for i in range(1,4): e(f"ds_read_b32 {R(rf+1+i)}, {R(tmp)} offset:{i*256}")
        e(f"s_lshl_b32 {S(sT0)}, {S(mt)}, 3"); e(f"s_add_u32 {S(sT0)}, {S(sT0)}, {S(sNB)}"); e(f"s_lshl_b32 {S(sT0)}, {S(sT0)}, 8")
        e(f"v_lshl_add_u32 {R(tmp)}, {R(vL)}, 2, {S(sT0)}"); e.wlg0()
        e(f"v_add_f32 {R(a)}, {R(a)}, {R(rf+2)}"); e(f"v_add_f32 {R(rf+3)}, {R(rf+3)}, {R(rf+4)}"); e(f"v_add_f32 {R(a)}, {R(a)}, {R(rf+3)}")
        gstore(e,f"buffer_store_dword {R(a)}, {R(tmp)}, {S(srdS,4)}, 0 offen","st")
        e.lab(sk)
        publish(e,L*4+1)

def phase3(e,L):
    wo=L*LSTRIDE; LA=8
    e(f"s_cmp_ge_u32 {S(sJ)}, 14"); e(f"s_cselect_b32 {S(sT0)}, 1, 0"); e(f"s_cselect_b32 {S(sT1)}, 14, 0")
    e(f"s_sub_u32 {S(sNB)}, {S(sJ)}, {S(sT1)}"); e(f"s_lshl_b32 {S(sMB)}, {S(sXCD)}, 1"); e(f"s_add_u32 {S(sMB)}, {S(sMB)}, {S(sT0)}")
    srd(e,srdA,pWS,wo+X1_OFF,2*MB); srd(e,srdW,pW1,0,512*3584); srd(e,srdO,pWS,wo+H_OFF,7*MB); srd(e,srdS,pWS,wo+ST_OFF,128*1024)
    CS=131072
    ld=e.newlab("p3ld"); fin=e.newlab("p3fin"); skip=e.newlab("p3skip"); sk2=e.newlab("p3end")
    j=sD; e(f"s_sub_u32 {S(j)}, {S(sW)}, 4")
    e(f"s_cmp_ge_u32 {S(sJ)}, 28"); e(f"s_cbranch_scc1 {skip}")
    tmp=9
    e(f"s_cmp_ge_u32 {S(sW)}, 4"); e(f"s_cbranch_scc1 {ld}")
    e('s_setprio 1')
    vA,vT,vH,vM,vS,vSt,vAcc,vBf,vAf=12,4,13,14,2,16,24,88,120
    mt=sD
    e(f"s_lshl_b32 {S(mt)}, {S(sMB)}, 2"); e(f"s_add_u32 {S(mt)}, {S(mt)}, {S(sW)}")
    e(f"s_lshl_b32 {S(sT0)}, {S(mt)}, 15"); e(f"v_lshl_add_u32 {R(vA)}, {R(vL)}, 4, {S(sT0)}")
    e(f"s_lshl_b32 {S(sT0)}, {S(mt)}, 11"); e(f"v_lshl_add_u32 {R(vH)}, {R(vL)}, 2, {S(sT0)}")
    tr_lane_base(e,vT,tmp,"frag")
    e(f"v_xor_b32 {R(vT+1)}, 64, {R(vT)}"); e(f"v_add_u32 {R(vT+2)}, 0x10000, {R(vT)}"); e(f"v_add_u32 {R(vT+3)}, 0x10000, {R(vT+1)}")
    e(f"s_and_b32 {S(sD+2)}, {S(sMB)}, 1"); e(f"s_lshl_b32 {S(sD+2)}, {S(sD+2)}, 4"); waitflags(e,L*4+1,sD+2,16); stamp(e,9)
    for t in range(LA): ldfrag(e,vAf+4*t,vA,srdA,t,("A",t),False)
    def rd(t,nt): trread(e,vBf+(t&1)*16+nt*4,vT+nt,t*2048,("f",t,nt))
    e.bar()
    for nt in range(4): rd(0,nt)
    for t in range(32):
        for u in (LA+2*t,LA+2*t+1):
            if u<32: ldfrag(e,vAf+4*u,vA,srdA,u,("A",u),False)
        if t==12:
            for i in range(8): e.vmem(f"buffer_load_dword {R(vSt+i)}, {R(vH)}, {S(srdS,4)}, 0 offen offset:{i*256} sc1","st")
            e(f"s_mul_i32 {S(sT0)}, {S(mt)}, {112*1024}"); e(f"s_lshl_b32 {S(sT1)}, {S(sNB)}, 13"); e(f"s_add_u32 {S(sT0)}, {S(sT0)}, {S(sT1)}")
            e(f"v_lshl_add_u32 {R(vH)}, {R(vL)}, 4, {S(sT0)}")
        if (t+1)%4==0 and t+1<=16: e.bar()
        e.wvm(("A",t))
        if t%4==0: stamp(e,1+t//4)
        for nt in range(4):
            if t+1<32: rd(t+1,nt)
            e.wlg(("f",t,nt)); mfma32(e,vAcc+16*nt,vBf+(t&1)*16+nt*4,vAf+4*t,t==0)
        if t==30:
            e.wvm("st")
            for i in (4,2,1):
                for jj in range(i): e(f"v_add_f32 {R(vSt+jj)}, {R(vSt+jj)}, {R(vSt+jj+i)}")
            e(f"v_mov_b32 {R(vSt+1)}, {R(vSt)}"); e.nop(2); e(f"v_permlane32_swap_b32 {R(vSt)}, {R(vSt+1)}"); e.nop(1)
            meanrstd(e,vSt,vSt+1,tmp)
            e(f"v_mul_f32 {R(vM)}, 0xbfb8aa3b, {R(vSt+1)}"); e(f"v_mul_f32 {R(vM+1)}, {R(vM)}, {R(vSt)}"); e(f"v_sub_f32 {R(vM+1)}, 0, {R(vM+1)}")
            e(f"v_mov_b32 {R(vS)}, 0xbfb8aa3b")
    e(f"v_lshrrev_b32 {R(tmp)}, 5, {R(vL)}"); e(f"v_lshlrev_b32 {R(tmp)}, 4, {R(tmp)}"); e(f"v_add_u32 {R(tmp)}, {CS:#x}, {R(tmp)}")
    e.bar(); stamp(e,10)
    vC=vAf
    for nt in range(4):
        for g in range(4): e.lds(f"ds_read_b128 {R(vC+16*nt+4*g,4)}, {R(tmp)} offset:{nt*128+g*32}",("c",nt))
    for jj in range(32): e(f"v_pk_mul_f32 {R(vAcc+2*jj,2)}, {R(vAcc+2*jj,2)}, {R(vM,2)} op_sel_hi:[1,0]") if jj>=24 or True else None
    e.wlg0(); e.bar()
    U=vBf; PK=vAf+64
    for nt in range(4):
        for hh in range(2):
            b=vAcc+16*nt+8*hh; c=vC+16*nt+8*hh; o=PK+(nt*2+hh)*4
            for jj in range(4): e(f"v_pk_fma_f32 {R(b+2*jj,2)}, {R(c+2*jj,2)}, {R(vM,2)}, {R(b+2*jj,2)} op_sel:[0,1,0] op_sel_hi:[1,1,1]")
            for jj in range(8): e(f"v_exp_f32 {R(U+jj)}, {R(b+jj)}")
            e.nop(1)
            for jj in range(4): e(f"v_pk_fma_f32 {R(U+2*jj,2)}, {R(U+2*jj,2)}, {R(vS,2)}, {R(vS,2)} op_sel_hi:[1,0,0]")
            for jj in range(8): e(f"v_rcp_f32 {R(U+jj)}, {R(U+jj)}")
            e.nop(1)
            for jj in range(4): e(f"v_pk_mul_f32 {R(b+2*jj,2)}, {R(b+2*jj,2)}, {R(U+2*jj,2)}")
            for jj in range(4): e(f"v_cvt_pk_bf16_f32 {R(o+jj)}, {R(b+2*jj)}, {R(b+2*jj+1)}")
            t=nt*2+hh
            if t==4: e(f"s_movk_i32 {S(sT2)}, 0x1000")
            gstore(e,f"buffer_store_dwordx4 {R(o,4)}, {R(vH)}, {S(srdO,4)}, {S(sT2) if t>=4 else '0'} offen offset:{(t&3)*1024}","st")
    e(f"s_branch {fin}")
    e.lab(ld); e.reset(); e('s_setprio '+os.environ.get('PRIO','0'))
    vB,vT,vCs,vBf=2,4,5,16
    wdma_lane(e,vB,tmp,3584,0)
    e(f"s_and_b32 {S(sD+1)}, {S(j)}, 1"); e(f"s_lshr_b32 {S(sD+2)}, {S(j)}, 1")
    e(f"s_mul_i32 {S(sT0)}, {S(sD+2)}, {32*3584}"); e(f"s_lshl_b32 {S(sT1)}, {S(sD+1)}, 7"); e(f"s_add_u32 {S(sT0)}, {S(sT0)}, {S(sT1)}")
    e(f"s_lshl_b32 {S(sT1)}, {S(sNB)}, 8"); e(f"s_add_u32 {S(sT0)}, {S(sT0)}, {S(sT1)}")
    e(f"v_add_u32 {R(vB)}, {S(sT0)}, {R(vB)}"); e(f"v_xor_b32 {R(vB+1)}, 32, {R(vB)}")
    e(f"s_lshl_b32 {S(sLB)}, {S(sD+1)}, 16"); e(f"s_lshl_b32 {S(sT1)}, {S(sD+2)}, 12"); e(f"s_add_u32 {S(sLB)}, {S(sLB)}, {S(sT1)}")
    def wch(ch):
        for i in range(4): dma(e,vB+(i&1),srdW,(ch*64+8*i)*3584,(sLB,ch*8192+i*1024),("B",ch))
    for ch in range(3): wch(ch)
    tr_lane_base(e,vT,tmp,"frag")
    e(f"s_lshl_b32 {S(sT0)}, {S(sD+1)}, 6"); e(f"v_xor_b32 {R(vT)}, {S(sT0)}, {R(vT)}")
    e(f"s_lshl_b32 {S(sT0)}, {S(sD+2)}, 16"); e(f"v_add_u32 {R(vT)}, {S(sT0)}, {R(vT)}")
    e(f"v_mov_b32 {R(vCs)}, 0"); e(f"v_mov_b32 {R(vCs+1)}, 0")
    e.bar()
    for ch in range(8):
        if ch<=4: e.wvm(("B",ch if ch<4 else 7)); e.bar()
        if ch==0: stamp(e,9)
        if ch==4: stamp(e,1)
        for c2 in {0:(3,4),1:(5,6),2:(7,)}.get(ch,()): wch(c2)
        if ch==3:
            e(f"s_lshl_b32 {S(sT0)}, {S(sMB)}, 2"); e(f"s_add_u32 {S(sT0)}, {S(sT0)}, {S(j)}"); e(f"s_mul_i32 {S(sT0)}, {S(sT0)}, {112*1024}")
            e(f"s_lshl_b32 {S(sT1)}, {S(sNB)}, 13"); e(f"s_add_u32 {S(sT0)}, {S(sT0)}, {S(sT1)}"); e(f"v_lshl_add_u32 v7, {R(vL)}, 7, {S(sT0)}")
            e.vmem(f"buffer_load_dword v242, v7, {S(srdO,4)}, 0 offen sc1","pf")
        if ch==4:
            pf_w2(e,j,0); pf_w2(e,j,1)
            with ifL(e,0): x2touch(e,j,4,7)
        if ch==int(os.environ.get('S3',9)): e('s_setprio '+os.environ.get('LP','2'))
        with ifL(e,0):
            for t in range(4): trread(e,vBf+4*t,vT,(ch*4+t)*2048,("f",t))
            for t in range(4):
                e.wlg(("f",t))
                for i in range(4): e(f"v_dot2_f32_bf16 {R(vCs+(i&1))}, {R(vBf+4*t+i)}, {S(sONE)}, {R(vCs+(i&1))}")
    e(f"s_lshl_b32 {S(sT0)}, {S(j)}, 7"); e(f"s_add_u32 {S(sT0)}, {S(sT0)}, {CS:#x}")
    e(f"v_and_b32 {R(tmp)}, 31, {R(vL)}"); e(f"v_lshl_add_u32 {R(tmp)}, {R(tmp)}, 2, {S(sT0)}"); e.nop(2)
    with ifL(e,0):
        e(f"v_add_f32 {R(vCs)}, {R(vCs)}, {R(vCs+1)}")
        allsum_halves(e,vCs,vCs+1); e(f"v_mov_b32 v252, {R(vCs)}")
    e(f"ds_write_b32 {R(tmp)}, v252")
    stamp(e,3)
    if 'w4' in DBG: e.wvm0()
    stamp(e,4); e.wlg0(); e('s_setprio 0'); e.bar(); e.bar(); stamp(e,5)
    p4_preload(e,j,0); e.bar(); e.wvm0()
    e(f"s_branch {sk2}")
    e.lab(fin); e('s_setprio 0'); publish(e,L*4+2); e(f"s_branch {sk2}")
    e.lab(skip)
    sk3=e.newlab("p3np"); e(f"s_cmp_lt_u32 {S(sW)}, 4"); e(f"s_cbranch_scc1 {sk3}"); pf_w2(e,j,0); pf_w2(e,j,1)
    with ifL(e,0): x2touch(e,j,4,7)
    p4_preload(e,j,0); e.lab(sk3)
    e.wvm0(); e.bar(); e.lab(sk2)

STG=34816; WOF=10240; CS1=4*STG; ST1=CS1+1024; QB,KB,VB=0,9216,20736
vW,vX,vb=200,206,209
dW,dX=sD,sD+6
def wslots(e,sw,k0):
    for a in range(3):
        e(f"s_mul_i32 {S(sT0)}, {S(sw)}, 3"); e(f"s_add_u32 {S(sT0)}, {S(sT0)}, {a}")
        e(f"s_lshl_b32 {S(dW+k0+a)}, {S(sT0)}, 10"); e(f"s_add_u32 {S(dW+k0+a)}, {S(dW+k0+a)}, {WOF}")
        e(f"s_and_b32 {S(sT1)}, {S(sT0)}, 1"); e(f"s_lshl_b32 {S(sT1)}, {S(sT1)}, 5"); e(f"v_xor_b32 {R(vW+k0+a)}, {S(sT1)}, {R(vb)}")
        e(f"s_and_b32 {S(sT1)}, {S(sT0)}, 7"); e(f"s_mul_i32 {S(sT1)}, {S(sT1)}, {8*3072}")
        e(f"s_lshr_b32 {S(sT0)}, {S(sT0)}, 3"); e(f"s_lshl_b32 {S(sT0)}, {S(sT0)}, 10"); e(f"s_add_u32 {S(sT0)}, {S(sT0)}, {S(sT1)}")
        e(f"v_add_u32 {R(vW+k0+a)}, {S(sT0)}, {R(vW+k0+a)}")
def p1_setup(e,L):
    tmp=9
    srd(e,srdW,pQKV,0,512*3072)
    wdma_lane(e,vb,tmp,3072,0)
    e(f"s_lshl_b32 {S(sT0)}, {S(sNB)}, 7"); e(f"v_add_u32 {R(vb)}, {S(sT0)}, {R(vb)}")
    e(f"v_lshrrev_b32 {R(tmp)}, 3, {R(vL)}"); e(f"v_lshrrev_b32 {R(tmp+1)}, 4, {R(vL)}"); e(f"v_and_b32 {R(tmp+2)}, 7, {R(vL)}")
    e(f"v_xor_b32 {R(tmp+1)}, {R(tmp+1)}, {R(tmp+2)}"); e(f"v_lshlrev_b32 {R(tmp+1)}, 4, {R(tmp+1)}")
    e(f"v_lshl_add_u32 {R(vb+1)}, {R(tmp)}, 10, {R(tmp+1)}")
    wslots(e,sW,0)
def p1_issue(e,L,s,ws,xs):
    b=(s%4)*STG
    for k in xs: dma(e,vX+k,srdA,s*128,(dX+k,b),("S",s),True)
    for k in ws: dma(e,vW+k,srdW,s*64*3072,(dW+k,b),("S",s))
def p1_trickle(e,L,s,j):
    wo=L*LSTRIDE; va=211
    if s==5 and "nopt" not in DBG:
        srd(e,srdS,pWS,wo,16*MB)
        e(f"s_lshl_b32 {S(sT0)}, {S(sMB)}, 16"); e(f"s_lshl_b32 {S(sT1)}, {S(sNB)}, 12"); e(f"s_add_u32 {S(sT0)}, {S(sT0)}, {S(sT1)}")
        e(f"s_and_b32 {S(sT1)}, {S(j)}, 1"); e(f"s_lshl_b32 {S(sT1)}, {S(sT1)}, 15"); e(f"s_add_u32 {S(sT0)}, {S(sT0)}, {S(sT1)}")
        e(f"s_lshr_b32 {S(sT1)}, {S(j)}, 1"); e(f"s_lshl_b32 {S(sT1)}, {S(sT1)}, 21"); e(f"s_add_u32 {S(sT0)}, {S(sT0)}, {S(sT1)}")
        e(f"v_and_b32 {R(va)}, 31, {R(vL)}"); e(f"v_lshl_add_u32 {R(va)}, {R(va)}, 7, {S(sT0)}")
        e.vmem(f"buffer_load_dword v242, {R(va)}, {S(srdS,4)}, 0 offen sc1","pf")
        e(f"s_lshl_b32 {S(sT0)}, {S(sMB)}, 12"); e(f"s_lshl_b32 {S(sT1)}, {S(sNB)}, 8"); e(f"s_add_u32 {S(sT0)}, {S(sT0)}, {S(sT1)}"); e(f"s_add_u32 {S(sT0)}, {S(sT0)}, {ST_OFF}")
        e(f"v_and_b32 {R(va)}, 1, {R(vL)}"); e(f"v_lshl_add_u32 {R(va)}, {R(va)}, 7, {S(sT0)}"); e(f"v_bfe_u32 {R(va+1)}, {R(vL)}, 1, 1"); e(f"v_lshl_add_u32 {R(va)}, {R(va+1)}, 11, {R(va)}")
        e.vmem(f"buffer_load_dword v242, {R(va)}, {S(srdS,4)}, 0 offen sc1","pf")
        if True:
            e(f"s_lshl_b32 {S(sT0)}, {S(sXCD)}, 7"); e(f"v_and_b32 {R(va)}, 7, {R(vL)}"); e(f"v_lshl_add_u32 {R(va)}, {R(va)}, 10, {S(sT0)}")
            e.vmem(f"buffer_load_dword v242, {R(va)}, {S(srdF,4)}, 0 offen sc1","pf")
    if s==5: prefetch(e,srdS,pWO,512*1024,4,j,va,240)
    if s==6:
        if 'w1all' in DBG: prefetch(e,srdS,pW1,512*3584,4,j,va,240)
        else: pfl(e,srdS,pW1,512*3584,[(sJ,32768),(j,8192)],0,64,va)
def x2touch(e,sw,nw,va):
    e(f"s_lshr_b32 {S(sT0)}, {S(sJ)}, 3"); e(f"s_lshl_b32 {S(sT1)}, {S(sXCD)}, 2"); e(f"s_add_u32 {S(sT0)}, {S(sT0)}, {S(sT1)}"); e(f"s_lshl_b32 {S(sT0)}, {S(sT0)}, 16")
    e(f"s_mul_i32 {S(sT1)}, {S(sw)}, {65536//nw}"); e(f"s_add_u32 {S(sT0)}, {S(sT0)}, {S(sT1)}")
    e(f"s_and_b32 {S(sT1)}, {S(sJ)}, 7"); e(f"s_lshl_b32 {S(sT1)}, {S(sT1)}, 7"); e(f"s_add_u32 {S(sT0)}, {S(sT0)}, {S(sT1)}")
    srd(e,srdR,pWS,X2_OFF,2*MB)
    e(f"v_and_b32 {R(va)}, {64//nw-1}, {R(vL)}"); e(f"v_lshl_add_u32 {R(va)}, {R(va)}, 10, {S(sT0)}")
    e.vmem(f"buffer_load_dword v242, {R(va)}, {S(srdR,4)}, 0 offen sc1","pf")
def phase1(e,L):
    wo=L*LSTRIDE
    ids64(e)
    srdsel(e,srdA,pX,0,2*MB,pWS,X2_OFF,4*MB)
    srd(e,srdO,pWS,wo+O_OFF,2*MB)
    tmp=9
    lab_h,lab_l,lab_att=e.newlab("p1h"),e.newlab("p1l"),e.newlab("p1att")
    issue=lambda s,ws,xs: p1_issue(e,L,s,ws,xs)
    def first3(xs):
        e.alt=[]
        for s in range(3):
            if s: w0(s)
            issue(s,[],xs)
    def w0(s):
        with ifL(e,0): e.only0=True; issue(s,range(3),[]); e.only0=False
    def xslot(si,k):
        e(f"s_lshl_b32 {S(dX+k)}, {S(si)}, 10")
        e(f"s_and_b32 {S(sT1)}, {S(si)}, 1"); e(f"s_lshl_b32 {S(sT1)}, {S(sT1)}, 6"); e(f"v_xor_b32 {R(vX+k)}, {S(sT1)}, {R(vb+1)}")
        e(f"s_lshl_b32 {S(sT0)}, {S(sMB)}, 16"); e(f"s_lshl_b32 {S(sT1)}, {S(si)}, 13"); e(f"s_add_u32 {S(sT0)}, {S(sT0)}, {S(sT1)}")
        e(f"s_sub_u32 {S(sT0)}, {S(sT0)}, 0x4000")
        if True:
            e(f"s_lshl_b32 {S(sT2)}, {S(sXCD)}, 14"); e(f"s_add_u32 {S(sT2)}, {S(sT2)}, {S(sT1)}"); e(f"s_add_u32 {S(sT2)}, {S(sT2)}, {X2H_OFF-X2_OFF-0x4000}")
            e(f"s_cmp_lt_u32 {S(si)}, 2"); e(f"s_cselect_b32 {S(sT1)}, {S(sD+9)}, 0"); e(f"s_cmp_lg_u32 {S(sT1)}, 0"); e(f"s_cselect_b32 {S(sT0)}, {S(sT2)}, {S(sT0)}")
        e(f"v_add_u32 {R(vX+k)}, {S(sT0)}, {R(vX+k)}")
    def bump(regs,s):
        d=STG if s%4!=3 else -3*STG
        for r in regs: e(f"v_add_u32 {R(r)}, {d&0xffffffff:#x}, {R(r)}")
    def xaddr(dst,n,step,rowbase,w16):
        if w16: e(f"v_and_b32 {R(tmp)}, 15, {R(vL)}"); e(f"v_lshrrev_b32 {R(tmp+1)}, 4, {R(vL)}")
        else: e(f"v_and_b32 {R(tmp)}, 31, {R(vL)}"); e(f"v_lshrrev_b32 {R(tmp+1)}, 5, {R(vL)}")
        if rowbase is not None: e(f"v_add_u32 {R(tmp)}, {rowbase}, {R(tmp)}")
        e(f"v_bfe_u32 {R(tmp+2)}, {R(tmp)}, 1, 3"); e(f"v_xor_b32 {R(tmp+1)}, {R(tmp+1)}, {R(tmp+2)}")
        e(f"v_lshlrev_b32 {R(tmp+1)}, 4, {R(tmp+1)}"); e(f"v_lshl_add_u32 {R(dst)}, {R(tmp)}, 7, {R(tmp+1)}")
        for i in range(1,n): e(f"v_xor_b32 {R(dst+i)}, {i*step}, {R(dst)}")
    if True:
        e(f"s_cmp_lt_u32 {S(sJ)}, 8"); e(f"s_cselect_b32 {S(sD+9)}, {S(sXCD)}, 0"); e(f"s_mul_i32 {S(sD+9)}, {S(sD+9)}, {S(sL)}")
        e(f"s_and_b32 {S(sD+12)}, {S(sJ)}, 24"); e(f"s_max_u32 {S(sT0)}, {S(sD+12)}, 8"); e(f"s_sub_u32 {S(sT0)}, {S(sT0)}, 8"); e(f"s_lshl_b32 {S(sT0)}, {S(sT0)}, 2")
        e(f"s_lshl_b32 {S(sT1)}, {S(sXCD)}, 7"); e(f"s_add_u32 {S(sT0)}, {S(sT0)}, {S(sT1)}"); e(f"s_add_u32 {S(sT0)}, {S(sT0)}, {3*1024}")
        e(f"s_add_u32 {S(sT1)}, {S(sT1)}, {7*1024-128}"); e(f"s_cmp_lg_u32 {S(sD+9)}, 0"); e(f"s_cselect_b32 {S(sD+13)}, {S(sT1)}, {S(sT0)}")
    xslot(sW,0)
    with ifL(e,1): waitflags(e,3,sD+12,8,sD+13)
    e(f"s_cmp_ge_u32 {S(sW)}, 4"); e(f"s_cbranch_scc1 {lab_l}")
    first3([0])
    q0=list(e.vm); q1=list(e.alt)
    e(f"s_cmp_eq_u32 {S(sW)}, 3"); e(f"s_cbranch_scc1 {lab_h}")
    e('s_setprio 1')
    vXa,vTa,vAcc,vF=2,6,32,96
    xaddr(vXa,4,32,16,False)
    tr_lane_base(e,vTa,tmp,"head")
    pA,nA,pB,nB=sD+10,sD+11,sD+12,sD+13
    e(f"s_min_u32 {S(pA)}, {S(sW)}, 1"); e(f"s_lshr_b32 {S(nA)}, {S(sW)}, 1"); e(f"s_lshl_b32 {S(pB)}, {S(pA)}, 1")
    e(f"s_and_b32 {S(nB)}, {S(sW)}, 1"); e(f"s_xor_b32 {S(nB)}, {S(nB)}, 1")
    for r,p,n in ((vTa+1,pB,nB),(vTa,pA,nA)):
        e(f"s_lshl_b32 {S(sT0)}, {S(n)}, 6"); e(f"v_xor_b32 {R(r)}, {S(sT0)}, {R(vTa)}")
        e(f"s_lshl_b32 {S(sT0)}, {S(p)}, 13"); e(f"s_add_u32 {S(sT0)}, {S(sT0)}, {WOF}"); e(f"v_add_u32 {R(r)}, {S(sT0)}, {R(r)}")
    def rd(t,p):
        b=vF+(t&1)*16; ks=t&3
        if p==0: trread(e,b+8,vTa,ks*2048,("a",t))
        if p==1: e.lds(f"ds_read_b128 {R(b,4)}, {R(vXa+ks)}",("a",t)); e.lds(f"ds_read_b128 {R(b+4,4)}, {R(vXa+ks)} offset:4096",("b",t))
        if p==2: trread(e,b+12,vTa+1,ks*2048,("c",t))
    e.wvm(("S",0)); e.bar(); stamp(e,1)
    for p in range(3): rd(0,p)
    for t in range(32):
        nx=t+1<32
        if nx and (t+1)%4==0:
            s=(t+1)//4
            e.wvm(("S",s)); (e.wlg0() if s<=4 else None); bump(range(vXa,vXa+6),s-1); (e.bar() if s<7 else None); stamp(e,1+s)
        b=vF+(t&1)*16
        if nx: rd(t+1,0)
        e.wlg(("a",t)); mfma32(e,vAcc,b+8,b,t==0)
        if nx: rd(t+1,1)
        e.wlg(("b",t)); mfma32(e,vAcc+16,b+8,b+4,t==0)
        if nx: rd(t+1,2)
        e.wlg(("c",t)); mfma32(e,vAcc+32,b+12,b,t==0); mfma32(e,vAcc+48,b+12,b+4,t==0)
    vC,vSt,vWA,vWB,vP=128,160,2,3,168
    e(f"v_lshrrev_b32 {R(tmp)}, 5, {R(vL)}"); e(f"v_and_b32 {R(tmp+1)}, 31, {R(vL)}")
    for r,p,n in ((4,pA,nA),(5,pB,nB)):
        e(f"s_lshl_b32 {S(sT0)}, {S(p)}, 8"); e(f"s_lshl_b32 {S(sT1)}, {S(n)}, 7"); e(f"s_add_u32 {S(sT0)}, {S(sT0)}, {S(sT1)}")
        e(f"s_add_u32 {S(sT0)}, {S(sT0)}, {CS1}"); e(f"v_lshl_add_u32 {R(r)}, {R(tmp)}, 6, {S(sT0)}")
    e(f"v_lshlrev_b32 {R(6)}, 3, {R(tmp+1)}"); e(f"v_add_u32 {R(6)}, {ST1+128:#x}, {R(6)}")
    e(f"v_mul_u32_u24 {R(vWA)}, 144, {R(tmp+1)}"); e(f"v_lshl_add_u32 {R(vWA)}, {R(tmp)}, 5, {R(vWA)}")
    e(f"v_mul_u32_u24 {R(vWB)}, 272, {R(tmp+1)}"); e(f"v_lshl_add_u32 {R(vWB)}, {R(tmp)}, 6, {R(vWB)}")
    e(f"s_mul_i32 {S(sT0)}, {S(pA)}, {KB+16*144}"); e(f"s_lshl_b32 {S(sT1)}, {S(nA)}, 6"); e(f"s_add_u32 {S(sT0)}, {S(sT0)}, {S(sT1)}")
    e(f"v_add_u32 {R(vWA)}, {S(sT0)}, {R(vWA)}")
    e(f"s_lshl_b32 {S(sT1)}, {S(nB)}, 7"); e(f"s_add_u32 {S(sT1)}, {S(sT1)}, {VB+16*272}"); e(f"v_add_u32 {R(vWB)}, {S(sT1)}, {R(vWB)}")
    e.bar(); stamp(e,9)
    for m in range(2): e.lds(f"ds_read_b64 {R(vSt+2*m,2)}, {R(6)} offset:{m*256}","st")
    for T in range(2):
        for g in range(4): e.lds(f"ds_read_b128 {R(vC+16*T+4*g,4)}, {R(4+T)} offset:{g*16}",("c",T))
    def corr(T,m):
        b=vAcc+32*T+16*m
        for j in range(8): e(f"v_pk_fma_f32 {R(b+2*j,2)}, {R(vC+16*T+2*j,2)}, {R(vSt+2*m,2)}, {R(b+2*j,2)} op_sel_hi:[1,0,1]")
        for j in range(8): e(f"v_pk_mul_f32 {R(b+2*j,2)}, {R(b+2*j,2)}, {R(vSt+2*m,2)} op_sel:[0,1] op_sel_hi:[1,1]")
    def wr16(T,m,off):
        b=vAcc+32*T+16*m; p=vP+8*(2*T+m)
        for j in range(8): e(f"v_cvt_pk_bf16_f32 {R(p+j)}, {R(b+2*j)}, {R(b+2*j+1)}")
        for j in range(2): e(f"ds_write_b128 {R(vWA)}, {R(p+4*j,4)} offset:{off+m*32*144+16*j}")
    e.wlg(("c",0))
    for m in range(2): corr(0,m); wr16(0,m,0)
    e.wlg0()
    for m in range(2): corr(1,m)
    lv=e.newlab("p1v"); e(f"s_cmp_lg_u32 {S(sW)}, 0"); e(f"s_cbranch_scc1 {lv}")
    for m in range(2): wr16(1,m,64)
    e(f"s_branch {lab_att}")
    e.lab(lv)
    for m in range(2):
        for j in range(4): e(f"ds_write_b128 {R(vWB)}, {R(vAcc+32+16*m+4*j,4)} offset:{m*32*272+16*j}")
    e(f"s_branch {lab_att}")
    e.lab(lab_h); e.reset(); e.vm=list(q0); e.alt=list(q1); e('s_setprio 1')
    vXa,vTh,vAcc,vXf,vWf=2,4,32,80,96
    xaddr(vXa,2,64,None,True)
    e(f"v_lshrrev_b32 {R(tmp)}, 4, {R(vL)}"); e(f"v_bfe_u32 {R(tmp+1)}, {R(vL)}, 2, 2")
    e(f"v_lshl_add_u32 {R(vTh)}, {R(tmp)}, 3, {R(tmp+1)}"); e(f"v_lshlrev_b32 {R(vTh)}, 7, {R(vTh)}")
    e(f"v_and_b32 {R(tmp)}, 1, {R(tmp)}"); e(f"v_lshlrev_b32 {R(tmp)}, 1, {R(tmp)}"); e(f"v_lshrrev_b32 {R(tmp+1)}, 1, {R(tmp+1)}")
    e(f"v_lshl_or_b32 {R(tmp)}, {R(tmp+1)}, 2, {R(tmp)}"); e(f"v_bfe_u32 {R(tmp+1)}, {R(vL)}, 1, 1"); e(f"v_or_b32 {R(tmp)}, {R(tmp)}, {R(tmp+1)}")
    e(f"v_lshl_add_u32 {R(vTh)}, {R(tmp)}, 4, {R(vTh)}"); e(f"v_and_b32 {R(tmp)}, 1, {R(vL)}"); e(f"v_lshl_add_u32 {R(vTh)}, {R(tmp)}, 3, {R(vTh)}")
    e(f"v_add_u32 {R(vTh)}, {WOF}, {R(vTh)}")
    for h in range(1,4): e(f"v_xor_b32 {R(vTh+h)}, {h*32}, {R(vTh)}")
    e(f"v_and_b32 {R(tmp)}, 15, {R(vL)}"); e(f"v_cmp_eq_u32 vcc, 0, {R(tmp)}"); e(f"v_mov_b32 {R(12)}, {S(sONE)}")
    def rdu(u,h):
        T,p=divmod(u,3); kk=T&1
        if p==0 and h==0: e.lds(f"ds_read_b128 {R(vXf+4*(T&1),4)}, {R(vXa+kk)}",("x",T))
        trread(e,vWf+(u&1)*16+4*h,vTh+h,p*8192+kk*4096,("w",u,h))
    e.wvm(("S",0)); e.bar()
    for h in range(4): rdu(0,h)
    for u in range(48):
        T,p=divmod(u,3)
        if u+1<48 and (u+1)%6==0:
            s=(u+1)//6
            e.wvm(("S",s)); (e.wlg0() if s<=4 else None); bump(range(vXa,vXa+6),s-1); (e.bar() if s<7 else None)
            if s==2:
                with ifL(e,0): hello(e)
        if p==0:
            e.wlg(("x",T))
            for i in range(4): e(f"v_cndmask_b32 {R(vXf+4*(T&1)+i)}, {R(vXf+4*(T&1)+i)}, {R(12)}, vcc")
            e.nop(2)
        for h in range(4):
            if u+1<48: rdu(u+1,h)
            e.wlg(("w",u,h)); mfma16(e,vAcc+16*p+4*h,vWf+(u&1)*16+4*h,vXf+4*(T&1),T==0)
    e(f"v_lshrrev_b32 {R(tmp)}, 4, {R(vL)}"); e(f"v_and_b32 {R(tmp+1)}, 15, {R(vL)}")
    e(f"v_lshlrev_b32 {R(2)}, 4, {R(tmp)}"); e(f"v_add_u32 {R(2)}, {CS1}, {R(2)}")
    e(f"v_lshlrev_b32 {R(3)}, 3, {R(tmp+1)}"); e(f"v_add_u32 {R(3)}, {ST1}, {R(3)}")
    e(f"v_mul_u32_u24 {R(4)}, 144, {R(tmp+1)}"); e(f"v_lshl_add_u32 {R(4)}, {R(tmp)}, 3, {R(4)}")
    e(f"v_mul_u32_u24 {R(5)}, 272, {R(tmp+1)}"); e(f"v_lshl_add_u32 {R(5)}, {R(tmp)}, 4, {R(5)}")
    e(f"s_and_saveexec_b64 {S(sD+14,2)}, vcc")
    for i in range(12): e(f"ds_write_b128 {R(2)}, {R(vAcc+4*i,4)} offset:{i*64}")
    e(f"s_mov_b64 exec, {S(sD+14,2)}")
    e.wlg0(); e.bar()
    vC,vSt=96,80
    e.lds(f"ds_read_b64 {R(vSt,2)}, {R(3)}","st")
    for i in range(8): e.lds(f"ds_read_b128 {R(vC+4*i,4)}, {R(2)} offset:{(4+i)*64}",("c",i))
    for i in range(8):
        e.wlg(("c",i)); b=vAcc+16+4*i
        for j in range(2): e(f"v_pk_fma_f32 {R(b+2*j,2)}, {R(vC+4*i+2*j,2)}, {R(vSt,2)}, {R(b+2*j,2)} op_sel_hi:[1,0,1]")
        for j in range(2): e(f"v_pk_mul_f32 {R(b+2*j,2)}, {R(b+2*j,2)}, {R(vSt,2)} op_sel:[0,1] op_sel_hi:[1,1]")
        if i<4:
            for j in range(2): e(f"v_cvt_pk_bf16_f32 {R(b+j)}, {R(b+2*j)}, {R(b+2*j+1)}")
            e.lds(f"ds_write_b64 {R(4)}, {R(b,2)} offset:{KB+i*32}")
        else: e.lds(f"ds_write_b128 {R(5)}, {R(b,4)} offset:{VB+(i-4)*64}")
    e(f"s_branch {lab_att}")
    e.lab(lab_l); e.reset(); e('s_setprio '+os.environ.get('PRIO','0'))
    j=sD+10; e(f"s_sub_u32 {S(j)}, {S(sW)}, 4")
    e(f"s_and_b32 {S(sD+11)}, {S(j)}, 1"); e(f"s_add_u32 {S(sD+11)}, {S(sD+11)}, 8"); xslot(sD+11,1)
    first3([0,1])
    wslots(e,j,3); xslot(j,2)
    vXa,vF,vS=2,32,12
    e(f"s_min_u32 {S(sT2)}, {S(j)}, 2"); e(f"s_lshl_b32 {S(sT2)}, {S(sT2)}, 5"); e(f"s_sub_u32 {S(sT2)}, {S(sT2)}, 16"); e(f"s_max_i32 {S(sT2)}, {S(sT2)}, 0")
    xaddr(vXa,4,32,S(sT2),False)
    e(f"v_lshlrev_b32 {R(6)}, 3, {R(tmp)}"); e(f"v_add_u32 {R(6)}, {ST1}, {R(6)}")
    for i in range(4): e(f"v_mov_b32 {R(vS+i)}, 0")
    for s in range(8):
        if s<7: e.wvm(("S",s if s<6 else 7)); e.bar()
        if 'sk3' not in DBG:
            for ks in range(4): e.lds(f"ds_read_b128 {R(vF+4*ks,4)}, {R(vXa+ks)}",("x",ks))
        if s<=4: issue(s+3,range(6),[0,1,2])
        if s==int(os.environ.get('QS',1)): pfl(e,srdS,pQKV,512*3072,[(sJ,30720),(j,7680)],192*3072,60,7)
        if s<6 or 'late6' not in DBG: p1_trickle(e,L,s,j)
        if s==int(os.environ.get('S1',6)): e('s_setprio '+os.environ.get('LP','2'))
        sk=e.newlab("nost")
        if 'sk3' in DBG:
            e(f"s_cmp_eq_u32 {S(j)}, 3"); e(f"s_cbranch_scc1 {sk}")
            for ks in range(4): e.lds(f"ds_read_b128 {R(vF+4*ks,4)}, {R(vXa+ks)}",("x",ks))
        if s<7: bump(range(vXa,vXa+4),s)
        for ks in range(4):
            e.wlg(("x",ks))
            for i in range(4):
                e(f"v_dot2_f32_bf16 {R(vS+(i&1))}, {R(vF+4*ks+i)}, {S(sONE)}, {R(vS+(i&1))}")
                e(f"v_dot2_f32_bf16 {R(vS+2+(i&1))}, {R(vF+4*ks+i)}, {R(vF+4*ks+i)}, {R(vS+2+(i&1))}")
        e.lab(sk)
    e.nop(3); e(f"v_add_f32 {R(vS)}, {R(vS)}, {R(vS+1)}"); e(f"v_add_f32 {R(vS+1)}, {R(vS+2)}, {R(vS+3)}")
    allsum_halves(e,vS,vS+2); allsum_halves(e,vS+1,vS+2)
    meanrstd(e,vS,vS+1,tmp); e(f"v_sub_f32 {R(vS)}, 0, {R(vS)}")
    sk=e.newlab("nosw"); e(f"s_cmp_eq_u32 {S(j)}, 3"); e(f"s_cbranch_scc1 {sk}"); e(f"ds_write_b64 {R(6)}, {R(vS,2)}"); e.lab(sk)
    if 'late6' in DBG: p1_trickle(e,L,6,j)
    e.wlg0(); e.bar()
    e.lab(lab_att); e.reset(); e('s_setprio 0')
    vQ,vK,vV,vLg,vO=16,32,96,160,176
    mt,h=sD,sD+1
    e(f"s_lshr_b32 {S(mt)}, {S(sW)}, 2"); e(f"s_and_b32 {S(h)}, {S(sW)}, 3")
    e(f"v_and_b32 {R(tmp)}, 31, {R(vL)}"); e(f"s_lshl_b32 {S(sT0)}, {S(mt)}, 5"); e(f"v_add_u32 {R(tmp)}, {S(sT0)}, {R(tmp)}")
    e(f"v_lshrrev_b32 {R(tmp+1)}, 5, {R(vL)}")
    e(f"s_lshl_b32 {S(sT0)}, {S(h)}, 5"); e(f"v_mul_u32_u24 {R(2)}, 144, {R(tmp)}"); e(f"v_add_u32 {R(2)}, {S(sT0)}, {R(2)}"); e(f"v_lshl_add_u32 {R(2)}, {R(tmp+1)}, 4, {R(2)}")
    e(f"s_lshl_b32 {S(sT0)}, {S(h)}, 6"); e(f"v_mul_u32_u24 {R(3)}, 272, {R(tmp)}"); e(f"v_lshl_add_u32 {R(3)}, {R(tmp+1)}, 5, {R(3)}"); e(f"v_add_u32 {R(3)}, {S(sT0)}, {R(3)}")
    e(f"s_lshl_b32 {S(sT0)}, {S(sMB)}, 6"); e(f"v_add_u32 {R(4)}, {S(sT0)}, {R(tmp)}")
    e(f"s_lshl_b32 {S(sT0)}, {S(sMB)}, 1"); e(f"s_add_u32 {S(sT0)}, {S(sT0)}, {S(mt)}"); e(f"s_lshl_b32 {S(sT0)}, {S(sT0)}, 5")
    e(f"s_lshl_b32 {S(sT1)}, {S(sNB)}, 2"); e(f"s_add_u32 {S(sT0)}, {S(sT0)}, {S(sT1)}"); e(f"s_add_u32 {S(sT0)}, {S(sT0)}, {S(h)}"); e(f"s_lshl_b32 {S(sT0)}, {S(sT0)}, 10")
    e(f"v_lshl_add_u32 {R(5)}, {R(vL)}, 4, {S(sT0)}")
    srd(e,srdW,pWO,0,512*1024); bsrc(e,14,tmp,8,sKQ,sMH,WO_LDS,16384,sLB)
    e(f"v_mov_b32 {R(6)}, 0xce6e6b28"); e(f"v_mov_b32 {R(7)}, 0x3eb8aa3b")
    e.wlg0(); e.bar(); stamp(e,10)
    e.lds(f"ds_read_b128 {R(vQ,4)}, {R(2)} offset:{QB}","q")
    for jj in range(8): e.lds(f"ds_read_b128 {R(vK+4*jj,4)}, {R(2)} offset:{KB+288+(7-jj)*288}",("k",jj))
    for jj in range(8):
        for i in range(2): e.lds(f"ds_read_b128 {R(vV+8*jj+4*i,4)}, {R(3)} offset:{VB+544+(7-jj)*544+16*i}",("v",jj))
        if jj in (1,3,5,7):
            e.wlg(("k",jj))
            for i in range(4):
                for j2 in (jj-1,jj): e(f"v_dot2_f32_bf16 {R(vLg+j2)}, {R(vQ+i)}, {R(vK+4*j2+i)}, {R(vLg+j2) if i else '0'}")
        dma(e,14,srdW,jj*16384,(sLB,jj*2048),"pre")
    vT=vK
    for jj in range(8): e(f"v_mov_b32 {R(vT+jj)}, {R(vLg+jj)}")
    for jj in range(8): e(f"v_permlane32_swap_b32 {R(vT+jj)}, {R(vLg+jj)}")
    for jj in range(4): e(f"v_pk_add_f32 {R(vLg+2*jj,2)}, {R(vLg+2*jj,2)}, {R(vT+2*jj,2)}")
    for jj in range(1,8): e(f"v_cmp_le_u32 {S(sD+2*jj,2)}, {2*jj}, {R(4)}")
    for jj in range(1,8): e(f"v_cndmask_b32 {R(vLg+jj)}, {R(6)}, {R(vLg+jj)}, {S(sD+2*jj,2)}")
    m=8
    e(f"v_max3_f32 {R(m)}, {R(vLg)}, {R(vLg+1)}, {R(vLg+2)}"); e(f"v_max3_f32 {R(m)}, {R(m)}, {R(vLg+3)}, {R(vLg+4)}")
    e(f"v_max3_f32 {R(m)}, {R(m)}, {R(vLg+5)}, {R(vLg+6)}"); e(f"v_max_f32 {R(m)}, {R(m)}, {R(vLg+7)}")
    for jj in range(8): e(f"v_sub_f32 {R(vLg+jj)}, {R(vLg+jj)}, {R(m)}")
    for jj in range(8): e(f"v_mul_f32 {R(vLg+jj)}, {R(7)}, {R(vLg+jj)}")
    for jj in range(8): e(f"v_exp_f32 {R(vLg+jj)}, {R(vLg+jj)}")
    e.nop(1)
    e(f"v_pk_add_f32 {R(10,2)}, {R(vLg,2)}, {R(vLg+2,2)}"); e(f"v_pk_add_f32 {R(12,2)}, {R(vLg+4,2)}, {R(vLg+6,2)}")
    e(f"v_pk_add_f32 {R(10,2)}, {R(10,2)}, {R(12,2)}"); e(f"v_add_f32 {R(10)}, {R(10)}, {R(11)}"); e(f"v_rcp_f32 {R(10)}, {R(10)}")
    for jj in range(8):
        e.wlg(("v",jj)); pb=vLg+(jj&~1); o=jj&1
        for i in range(4):
            if jj==0: e(f"v_pk_mul_f32 {R(vO+2*i,2)}, {R(vV+2*i,2)}, {R(pb,2)} op_sel_hi:[1,0]")
            else: e(f"v_pk_fma_f32 {R(vO+2*i,2)}, {R(vV+8*jj+2*i,2)}, {R(pb,2)}, {R(vO+2*i,2)} op_sel:[0,{o},0] op_sel_hi:[1,{o},1]")
    for i in range(4): e(f"v_pk_mul_f32 {R(vO+2*i,2)}, {R(vO+2*i,2)}, {R(10,2)} op_sel_hi:[1,0]")
    for i in range(4): e(f"v_cvt_pk_bf16_f32 {R(vQ+i)}, {R(vO+2*i)}, {R(vO+2*i+1)}")
    with ifL(e,0): getmode(e)
    gstore(e,f"buffer_store_dwordx4 {R(vQ,4)}, {R(5)}, {S(srdO,4)}, 0 offen","st")
    publish(e,L*4)
    return ST1+1024

def desc(k):
    return f""".p2align 6
.amdhsa_kernel {k}
  .amdhsa_next_free_vgpr 256
  .amdhsa_next_free_sgpr 102
  .amdhsa_accum_offset 256
  .amdhsa_group_segment_fixed_size 0
  .amdhsa_kernarg_size 72
  .amdhsa_user_sgpr_count 2
  .amdhsa_user_sgpr_kernarg_segment_ptr 1
  .amdhsa_system_sgpr_workgroup_id_x 1
.end_amdhsa_kernel
"""
def build_multi():
    e=Em(); hdr=""; ks=[]
    for L in range(2):
        for p in (1,2,3,4):
            k=f"p{p}l{L}_kernel"; ks.append(k); nwg=224 if p==3 else 256
            e.L.append(f".globl {k}\n.p2align 8\n.type {k},@function\n{k}:"); e.endlab=f"end_{k}"; e.reset()
            prologue(e,nwg)
            lds=phase1(e,L) if p==1 else phase3(e,L) if p==3 else phase_rs(e,L,p)
            stamp_flush(e,L*4+p-1)
            e.lab(e.endlab); e("s_endpgm")
            hdr+=f"; @launch kernel={k} grid=({nwg},1,1) block=(512,1,1) lds={lds}\n"
    return hdr+'.amdgcn_target "amdgcn-amd-amdhsa--gfx950"\n.text\n'+e.text()+'.section .rodata,"a"\n'+"".join(desc(k) for k in ks)
HDR='; Persistent 256-workgroup kernel (one per CU, 8 waves), two layer iterations of four phases:\n;   P4  x2 = x1 + h @ w2 (64x64 tile)\n; Workgroups with equal id%8 own 256 rows and hand tiles to each other through d_ws with tagged flags.\n'
def build_pers():
    e=Em(); k=NAME+"_kernel"
    e.L.append(f".globl {k}\n.p2align 8\n.type {k},@function\n{k}:"); e.endlab="end_all"
    prologue(e,256)
    e(f"s_mov_b32 {S(sL)}, 0"); e(f"s_mov_b32 {S(sFO)}, 0"); e("v_mov_b32 v15, 0")
    ids64(e); p1_setup(e,0)
    p1_issue(e,0,0,range(3),[])
    srd(e,srdD,50,0,256); srd(e,srdF,pWS,FL_OFF,16384)
    e.lab("layer")
    for p in (1,2,3,4):
        e.reset()
        if p>1: stamp(e,0)
        phase1(e,0) if p==1 else phase3(e,0) if p==3 else phase_rs(e,0,p)
        stamp_flush(e,p-1)
    e(f"s_mov_b32 {S(sL)}, 1"); e(f"s_mov_b32 {S(sFO)}, 4096"); stamp(e,0); e("s_branch layer")
    e.lab(e.endlab); e("s_endpgm")
    return f"; @launch grid=(256,1,1) block=(512,1,1) lds=163840\n"+HDR+'.amdgcn_target "amdgcn-amd-amdhsa--gfx950"\n.text\n'+e.text()+'.section .rodata,"a"\n'+desc(k)
if __name__=="__main__":
    if "slow" in sys.argv: FORCE_SLOW=True
    if "prof" in sys.argv: PROF=True
    out=sys.argv[1] if len(sys.argv)>1 else f"cdna_kernels/{NAME}.s"
    open(out,"w").write(build_pers())
```
